```python
import torch

def _softmax(x, axis=-1):
    return torch.softmax(x, dim=axis)
def _gelu(x):
    return torch.nn.functional.gelu(x, approximate="tanh")
def _silu(x):
    return torch.nn.functional.silu(x)
def _sigmoid(x):
    return torch.sigmoid(x)
def _layernorm(x, axis=-1, eps=1e-5):
    m = x.mean(dim=axis, keepdim=True)
    v = x.var(dim=axis, keepdim=True, unbiased=False)
    return (x - m) / torch.sqrt(v + eps)
def _scatter_add(tgt, idx, src, axis=0):
    return tgt.clone().index_add_(axis, idx, src)
def _segment_sum(src, seg, n):
    out = torch.zeros((n,) + src.shape[1:], dtype=src.dtype)
    return out.index_add_(0, seg, src)
def _pad(x, pw):
    flat = tuple(v for pair in reversed(pw) for v in pair)
    return torch.nn.functional.pad(x, flat)

kernel_name = 'interleave_layers__mha_block__ssm_conv_h3__prompt'

def setup_inputs():

    _w = (lambda a: (lambda t: t.to(torch.bfloat16) if t.is_floating_point() else t)(torch.as_tensor(a)))
    def _A_setup():
        B, S, D, H = 1, 2048, 512, 32
        return {
            "x": _w((lambda *s: torch.randn(*s, dtype=torch.bfloat16) * 0.05)(B, S, D)),
            "wqkv": _w((lambda *s: torch.randn(*s, dtype=torch.bfloat16) * 0.05)(D, 3 * D)),
            "wo": _w((lambda *s: torch.randn(*s, dtype=torch.bfloat16) * 0.05)(D, D)),
        }
    _A_in = _A_setup()

    def _B_setup():
        B, S, D = 1, 2048, 512
        ks = 4
        return {
            "q": _w((lambda *s: torch.randn(*s, dtype=torch.bfloat16) * 0.05)(B, S, D)),
            "k": _w((lambda *s: torch.randn(*s, dtype=torch.bfloat16) * 0.4)(B, S, D)),
            "v": _w((lambda *s: torch.randn(*s, dtype=torch.bfloat16) * 0.4)(B, S, D)),
            "shift_k": _w((lambda *s: torch.randn(*s, dtype=torch.bfloat16) * 0.4)(D, ks) * 0.5),
            "ssm_k": _w((lambda *s: torch.randn(*s, dtype=torch.bfloat16) * 0.4)(D, S) * (1.0 / S ** 0.5)),
            "ssm_D": _w((lambda *s: torch.randn(*s, dtype=torch.bfloat16) * 0.4)(D)),
        }
    _B_in = _B_setup()

    return {
        "A_x": _A_in["x"],
        "A_wqkv": _A_in["wqkv"],
        "A_wo": _A_in["wo"],
        "B_q": _B_in["q"],
        "B_k": _B_in["k"],
        "B_v": _B_in["v"],
        "B_shift_k": _B_in["shift_k"],
        "B_ssm_k": _B_in["ssm_k"],
        "B_ssm_D": _B_in["ssm_D"],
    }

def reference(A_x, A_wqkv, A_wo, B_q, B_k, B_v, B_shift_k, B_ssm_k, B_ssm_D):
    def _A_ref(x, wqkv, wo):
        B, S, D = x.shape
        H = 32
        Dh = D // H
        qkv = (lambda x, *d: x.permute(*d))((x @ wqkv).reshape(B, S, 3, H, Dh), 2, 0, 3, 1, 4)
        q, k, v = qkv[0], qkv[1], qkv[2]
        scores = torch.einsum("bhqd,bhkd->bhqk", q, k) * (Dh ** -0.5)
        p = _softmax(scores, axis=-1)
        o = torch.einsum("bhqk,bhkd->bhqd", p, v)
        return (lambda x, *d: x.permute(*d))(o, 0, 2, 1, 3).reshape(B, S, D) @ wo

    def _B_ref(q, k, v, shift_k, ssm_k, ssm_D):
        B, S, D = q.shape
        ks = shift_k.shape[-1]
        k_pad = _pad(k, ((0, 0), (ks - 1, 0), (0, 0)))
        k_shift = torch.zeros_like(k)
        for t in range(ks):
            k_shift = k_shift + k_pad[:, t:t + S, :] * shift_k[:, ks - 1 - t][None, None, :]
        kv = k_shift * v
        L = 2 * S
        kv_pad = _pad(kv, ((0, 0), (0, S), (0, 0)))
        kf_pad = _pad(ssm_k, ((0, 0), (0, S)))
        kv_f = (lambda x, axes=(-2,-1): torch.fft.rfft2(x.float(), dim=axes))(kv_pad[:, None, :, :], axes=(1, 2))
        kf_f = (lambda x, axes=(-2,-1): torch.fft.rfft2(x.float(), dim=axes))(kf_pad[:, None, :], axes=(1, 2))
        kf_f = (lambda x, *d: x.permute(*d))(kf_f, 1, 2, 0)
        y_f = kv_f * kf_f[None, :, :, :]
        y = (lambda x, s, axes=(-2,-1): torch.fft.irfft2(x, s=s, dim=axes).to(torch.bfloat16))(y_f, (1, L), axes=(1, 2))[:, 0, :S, :]
        y = y + kv * ssm_D[None, None, :]
        return q * y

    x = A_x
    x = x + _A_ref(_layernorm(x, axis=-1), A_wqkv, A_wo)
    x = x + _B_ref(_layernorm(x, axis=-1), B_k, B_v, B_shift_k, B_ssm_k, B_ssm_D)
    x = x + _A_ref(_layernorm(x, axis=-1), A_wqkv, A_wo)
    x = x + _B_ref(_layernorm(x, axis=-1), B_k, B_v, B_shift_k, B_ssm_k, B_ssm_D)
    return x
```

```python
class Asm:
    def __init__(self):
        self.out = []
        self._uid = 0
    def __call__(self, s):
        for line in s.strip("\n").split("\n"):
            self.out.append("    " + line.strip())
    def label(self, name):
        self.out.append(name + ":")
    def comment(self, s):
        self.out.append("    ; " + s)
    def raw(self, s):
        self.out.append(s)
    def uid(self, base):
        self._uid += 1
        return f"{base}_{self._uid}"
    def text(self):
        return "\n".join(self.out) + "\n"

def vr(base, n=1):
    return f"v{base}" if n == 1 else f"v[{base}:{base+n-1}]"
def sr(base, n=1):
    return f"s{base}" if n == 1 else f"s[{base}:{base+n-1}]"

def kernel_begin(a, name):
    a.raw(f".globl {name}")
    a.raw(".p2align 8")
    a.raw(f".type {name},@function")
    a.raw(f"{name}:")

def kernel_desc(name, vgpr, sgpr=96):
    acc = (vgpr + 3) // 4 * 4
    return f""".amdhsa_kernel {name}
  .amdhsa_next_free_vgpr {vgpr}
  .amdhsa_next_free_sgpr {sgpr}
  .amdhsa_accum_offset {acc}
  .amdhsa_group_segment_fixed_size 0
  .amdhsa_kernarg_size 96
  .amdhsa_user_sgpr_count 2
  .amdhsa_user_sgpr_kernarg_segment_ptr 1
  .amdhsa_system_sgpr_workgroup_id_x 1
.end_amdhsa_kernel
"""

def srd(a, d, base, size, off=0):
    if off:
        a(f"s_add_u32 s{d}, s{base}, {hex(off)}")
        a(f"s_addc_u32 s{d+1}, s{base+1}, 0")
    else:
        a(f"s_mov_b32 s{d}, s{base}")
        a(f"s_mov_b32 s{d+1}, s{base+1}")
    a(f"s_mov_b32 s{d+2}, {hex(size)}")
    a(f"s_mov_b32 s{d+3}, 0x00020000")
```

```python
import struct
from asmlib import *
import layout as LY

def f32hex(x):
    return hex(struct.unpack("<I", struct.pack("<f", x))[0])

def lds_bytes(NW):
    return 131072 + 8 * 2304 + 2048

def emit(a, name, NW=8, U=8):
    KS = NW // 8
    TS = 64 // KS
    kernel_begin(a, name)
    done = f"{name}_done"
    Q, C, S, O, P, KB, VB = 4, 16, (32, 48), 64, 80, (88, 92), (96, 104)
    a(f"""
    s_cmp_ge_u32 s2, 256
    s_cbranch_scc1 {done}
    s_load_dwordx2 s[14:15], s[0:1], 88
    v_lshrrev_b32 v2, 6, v0
    v_and_b32 v1, 63, v0
    v_readfirstlane_b32 s40, v2
    s_and_b32 s44, s2, 7
    s_lshr_b32 s45, s2, 3
    s_lshl_b32 s41, s44, 2
    s_and_b32 s46, s45, 3
    s_add_u32 s41, s41, s46
    s_lshr_b32 s42, s45, 2
    s_and_b32 s43, s40, 7
    s_lshr_b32 s47, s40, 3
    s_lshl_b32 s42, s42, 3
    s_add_u32 s42, s42, s43
    v_lshlrev_b32 v3, 4, v1
    s_lshl_b32 s48, s41, 16
    s_lshl_b32 s49, s42, 10
    s_add_u32 s49, s49, s48
    s_mul_i32 s50, s47, {TS}
    s_add_u32 s51, s50, s43
    s_lshl_b32 s51, s51, 10
    s_add_u32 s52, s48, s51
    s_waitcnt lgkmcnt(0)
    """)
    srd(a, 24, 14, LY.WS_USED)
    a(f"""
    s_add_u32 s49, s49, {hex(LY.QF)}
    buffer_load_dwordx4 v[{Q}:{Q+3}], v3, s[24:27], s49 offen
    """)
    for n in range(TS // 8):
        a(f"s_add_u32 m0, s51, {n*8192}")
        a(f"s_add_u32 s53, s52, {hex(LY.KF + n*8192)}")
        a(f"buffer_load_dwordx4 v3, s[24:27], s53 offen lds")
        a(f"s_add_u32 m0, s51, {65536 + n*8192}")
        a(f"s_add_u32 s53, s52, {hex(LY.VF + n*8192)}")
        a(f"buffer_load_dwordx4 v3, s[24:27], s53 offen lds")
    nd = 2 * (TS // 8)
    for r in range(16):
        a(f"v_mov_b32 v{C+r}, 0")
        a(f"v_mov_b32 v{O+r}, 0")
        a(f"v_mov_b32 v{VB[0]+r}, 0x3f803f80")
    a(f"""
    s_lshl_b32 s54, s50, 10
    v_add_u32 v8, s54, v3
    v_and_b32 v9, 15, v1
    v_lshlrev_b32 v9, 4, v9
    v_lshrrev_b32 v10, 5, v1
    v_lshl_add_u32 v9, v10, 8, v9
    s_add_u32 s54, s54, 0x10000
    v_add_u32 v9, s54, v9
    s_mov_b32 s56, 0xffff
    s_mov_b32 s57, 0xffff
    s_mov_b32 s58, 0
    s_mov_b32 s59, {TS // U}
    s_waitcnt vmcnt({nd - 2})
    s_barrier
    """)
    main = f"{name}_main"
    loop = f"{name}_loop"
    def kread(buf, off): a(f"ds_read_b128 v[{KB[buf]}:{KB[buf]+3}], v8 offset:{off}")
    def vread(buf, off):
        a("s_mov_b64 exec, s[56:57]")
        a(f"ds_read_b128 v[{VB[buf]}:{VB[buf]+3}], v9 offset:{off}")
        a(f"ds_read_b128 v[{VB[buf]+4}:{VB[buf]+7}], v9 offset:{off+512}")
        a("s_mov_b64 exec, -1")
    def qk(sbuf, kbuf):
        a(f"v_mfma_f32_32x32x16_bf16 {vr(S[sbuf],16)}, {vr(KB[kbuf],4)}, {vr(Q,4)}, {vr(C,16)}")
    a.label(main)
    a("s_mov_b32 s60, s58")
    kread(0, 0)
    kread(1, 1024)
    vread(0, 0)
    a("s_waitcnt lgkmcnt(3)")
    qk(0, 0)
    a.label(loop)
    for t in range(U):
        cur, nxt = t & 1, (t + 1) & 1
        if t == 5:
            sk = a.uid(f"{name}_nb")
            a(f"""
            s_cmp_lg_u32 s60, 0
            s_cbranch_scc1 {sk}
            s_waitcnt vmcnt(0)
            s_barrier
            s_mov_b32 s60, 1
            """)
            a.label(sk)
        a("s_waitcnt lgkmcnt(2)")
        qk(nxt, nxt)
        kread(cur, (t + 2) * 1024)
        vread(nxt, (t + 1) * 1024)
        s = S[cur]
        def e(i): a(f"v_exp_f32 v{s+i}, v{s+i}")
        def c(j): a(f"v_cvt_pk_bf16_f32 v{P+j}, v{s+2*j}, v{s+2*j+1}")
        e(0); e(1); e(2); c(0); e(3); e(4); c(1); e(5); e(6); c(2); e(7); e(8); c(3); e(9)
        a("s_waitcnt lgkmcnt(3)")
        a(f"v_mfma_f32_32x32x16_bf16 {vr(O,16)}, {vr(VB[cur],4)}, {vr(P,4)}, {vr(O,16)}")
        e(10); c(4); e(11); e(12); c(5); e(13); e(14); c(6); e(15)
        if t == U - 1:
            a(f"v_add_u32 v8, {U*1024}, v8")
        else:
            a("s_nop 0")
        c(7)
        if t == U - 1:
            a(f"v_add_u32 v9, {U*1024}, v9")
            a("s_sub_u32 s59, s59, 1")
        else:
            a("s_nop 1")
        a(f"v_mfma_f32_32x32x16_bf16 {vr(O,16)}, {vr(VB[cur]+4,4)}, {vr(P+4,4)}, {vr(O,16)}")
    a(f"""
    s_cmp_lg_u32 s59, 0
    s_cbranch_scc1 {loop}
    s_waitcnt lgkmcnt(0)
    s_nop 15
    """)
    fin = f"{name}_fin"
    fb = f"{name}_fb"
    a(f"""
    s_cmp_lg_u32 s58, 0
    s_cbranch_scc1 {fin}
    """)
    if KS == 2:
        up = f"{name}_upper"
        a(f"""
        s_mul_i32 s54, s43, 2304
        s_add_u32 s54, s54, 131072
        v_lshl_add_u32 v10, v1, 2, s54
        s_cmp_eq_u32 s47, 0
        s_cbranch_scc1 {up}
        """)
        for r in range(9):
            a(f"ds_write_b32 v10, v{O+r} offset:{r*256}")
        a(f"""
        s_waitcnt lgkmcnt(0)
        s_barrier
        s_endpgm
        """)
        a.label(up)
        a("s_barrier")
        for r in range(9):
            a(f"ds_read_b32 v{S[0]+r}, v10 offset:{r*256}")
        a("s_waitcnt lgkmcnt(0)")
        for r in range(9):
            a(f"v_add_f32 v{O+r}, v{O+r}, v{S[0]+r}")
    a(f"v_add_f32 v10, abs(v{O}), abs(v{O+1})")
    for r in range(2, 8):
        a(f"v_add_f32 v10, v10, abs(v{O+r})")
    a(f"""
    v_cmp_le_f32 vcc, {f32hex(2.0**-60)}, v{O+8}
    v_cmp_ge_f32 s[62:63], {'s61'}, v{O+8}
    """.replace("v_cmp_ge_f32 s[62:63], s61", f"s_mov_b32 s61, {f32hex(2.0**60)}\n    v_cmp_ge_f32 s[62:63], s61"))
    a(f"""
    s_and_b64 vcc, vcc, s[62:63]
    s_mov_b32 s61, 0x7f800000
    v_cmp_gt_f32 s[62:63], s61, v10
    s_and_b64 vcc, vcc, s[62:63]
    s_cmp_eq_u64 vcc, -1
    s_cbranch_scc0 {fb}
    """)
    a.label(fin)
    a(f"""
    v_rcp_f32 v10, v{O+8}
    s_lshl_b32 s54, s42, 15
    s_lshl_b32 s55, s41, 10
    s_add_u32 s54, s54, s55
    s_add_u32 s54, s54, {hex(LY.OF)}
    """)
    for r in range(8):
        a(f"v_mul_f32 v{O+r}, v{O+r}, v10")
    for j in range(4):
        a(f"v_cvt_pk_bf16_f32 v{P+j}, v{O+2*j}, v{O+2*j+1}")
    a(f"buffer_store_dwordx4 v[{P}:{P+3}], v3, s[24:27], s54 offen")
    a.label(done)
    a("s_endpgm")
    a.label(fb)
    fl = f"{name}_fbl"
    a(f"""
    v_mov_b32 v8, v3
    v_mov_b32 v11, 0xff800000
    s_mov_b32 s59, 64
    """)
    a.label(fl)
    a(f"""
    ds_read_b128 v[{KB[0]}:{KB[0]+3}], v8
    v_add_u32 v8, 1024, v8
    s_waitcnt lgkmcnt(0)
    v_mfma_f32_32x32x16_bf16 {vr(S[0],16)}, {vr(KB[0],4)}, {vr(Q,4)}, 0
    s_nop 15
    """)
    for j in range(8):
        a(f"v_max3_f32 v11, v11, v{S[0]+2*j}, v{S[0]+2*j+1}")
    a(f"""
    s_sub_u32 s59, s59, 1
    s_cmp_lg_u32 s59, 0
    s_cbranch_scc1 {fl}
    v_mov_b32 v12, v11
    s_nop 1
    v_permlane32_swap_b32 v11, v12
    s_nop 1
    v_max_f32 v11, v11, v12
    v_sub_f32 v11, 0, v11
    """)
    for r in range(16):
        a(f"v_mov_b32 v{C+r}, v11")
        a(f"v_mov_b32 v{O+r}, 0")
    a(f"""
    v_mov_b32 v8, v3
    v_and_b32 v9, 15, v1
    v_lshlrev_b32 v9, 4, v9
    v_lshrrev_b32 v10, 5, v1
    v_lshl_add_u32 v9, v10, 8, v9
    v_add_u32 v9, 0x10000, v9
    s_mov_b32 s58, 1
    s_mov_b32 s59, {64 // U}
    s_branch {main}
    """)
    return 112
```

```python
import struct
from asmlib import *
import layout as LY
def f32hex(x):
    return hex(struct.unpack("<I", struct.pack("<f", x))[0])
def lds_bytes():
    return 512

def emit(a, name, final):
    kernel_begin(a, name)
    done = f"{name}_done"
    a(f"""
    s_cmp_ge_u32 s2, 256
    s_cbranch_scc1 {done}
    s_load_dwordx2 s[4:5], s[0:1], 72
    s_load_dwordx2 s[14:15], s[0:1], 88
    v_lshrrev_b32 v2, 6, v0
    v_and_b32 v1, 63, v0
    v_readfirstlane_b32 s40, v2
    s_lshr_b32 s41, s2, 2
    s_and_b32 s42, s2, 3
    v_and_b32 v3, 7, v1
    v_bfe_u32 v4, v1, 3, 1
    v_lshrrev_b32 v5, 4, v1
    v_lshlrev_b32 v6, 4, v3
    v_lshl_add_u32 v6, v4, 9, v6
    v_lshl_add_u32 v6, v5, 10, v6
    s_lshl_b32 s43, s41, 15
    s_lshl_b32 s44, s42, 7
    s_add_u32 s43, s43, s44
    s_lshl_b32 s44, s40, 13
    s_add_u32 s43, s43, s44
    s_waitcnt lgkmcnt(0)
    """)
    srd(a, 16, 4, 0x200000)
    srd(a, 24, 14, LY.WS_USED)
    X, Y = 8, 16
    a(f"""
    s_add_u32 s45, s43, {hex(LY.X3F if final else LY.X1F)}
    s_add_u32 s46, s45, 4096
    buffer_load_dwordx4 v[{X}:{X+3}], v6, s[24:27], s45 offen
    buffer_load_dwordx4 v[{X+4}:{X+7}], v6, s[24:27], s46 offen
    s_add_u32 s45, s43, {hex(LY.YF)}
    s_add_u32 s46, s45, 4096
    buffer_load_dwordx4 v[{Y}:{Y+3}], v6, s[24:27], s45 offen
    buffer_load_dwordx4 v[{Y+4}:{Y+7}], v6, s[24:27], s46 offen
    v_mov_b32 v24, 0
    v_mov_b32 v25, 0
    s_mov_b32 s55, 0x3f803f80
    s_waitcnt vmcnt(2)
    """)
    for d in range(8):
        a(f"v_dot2c_f32_bf16 v24, s55, v{X+d}")
        a(f"v_dot2c_f32_bf16 v25, v{X+d}, v{X+d}")
    a(f"""
    s_nop 3
    v_add_f32_dpp v24, v24, v24 row_ror:8 row_mask:0xf bank_mask:0xf
    v_add_f32_dpp v25, v25, v25 row_ror:8 row_mask:0xf bank_mask:0xf
    v_mov_b32 v26, v24
    v_mov_b32 v27, v25
    s_nop 1
    v_permlane16_swap_b32 v24, v26
    v_permlane16_swap_b32 v25, v27
    s_nop 1
    v_add_f32 v24, v24, v26
    v_add_f32 v25, v25, v27
    v_mov_b32 v26, v24
    v_mov_b32 v27, v25
    s_nop 1
    v_permlane32_swap_b32 v24, v26
    v_permlane32_swap_b32 v25, v27
    s_nop 1
    v_add_f32 v24, v24, v26
    v_add_f32 v25, v25, v27
    s_lshl_b32 s45, s40, 6
    v_lshlrev_b32 v28, 3, v3
    v_add_u32 v29, s45, v28
    ds_write_b64 v29, v[24:25]
    s_waitcnt lgkmcnt(0)
    s_barrier
    ds_read_b64 v[30:31], v28
    ds_read_b64 v[32:33], v28 offset:64
    ds_read_b64 v[34:35], v28 offset:128
    ds_read_b64 v[36:37], v28 offset:192
    s_waitcnt lgkmcnt(0)
    v_pk_add_f32 v[30:31], v[30:31], v[32:33]
    v_pk_add_f32 v[34:35], v[34:35], v[36:37]
    v_pk_add_f32 v[24:25], v[30:31], v[34:35]
    s_mov_b32 s56, {f32hex(1.0/512)}
    v_mul_f32 v24, s56, v24
    v_mul_f32 v25, s56, v25
    v_fma_f32 v25, -v24, v24, v25
    v_max_f32 v25, 0, v25
    v_add_f32 v25, {f32hex(1e-5)}, v25
    v_rsq_f32 v26, v25
    s_nop 0
    v_mul_f32 v28, v24, v26
    v_sub_f32 v28, 0, v28
    v_mov_b32 v27, v26
    v_mov_b32 v29, v28
    s_waitcnt vmcnt(0)
    """)
    XF, YF_, T = 32, 48, 64
    for d in range(8):
        a(f"v_lshlrev_b32 v{XF+2*d}, 16, v{X+d}")
        a(f"v_and_b32 v{XF+2*d+1}, 0xffff0000, v{X+d}")
        a(f"v_lshlrev_b32 v{YF_+2*d}, 16, v{Y+d}")
        a(f"v_and_b32 v{YF_+2*d+1}, 0xffff0000, v{Y+d}")
    def p(b): return f"v[{b}:{b+1}]"
    for d in range(8):
        a(f"v_pk_fma_f32 {p(T+2*d)}, {p(XF+2*d)}, v[26:27], v[28:29]")
    for d in range(8):
        a(f"v_pk_fma_f32 {p(T+2*d)}, {p(T+2*d)}, {p(YF_+2*d)}, {p(XF+2*d)}")
    for d in range(8):
        a(f"v_cvt_pk_bf16_f32 v{X+d}, v{T+2*d}, v{T+2*d+1}")
    if final:
        a(f"""
        v_lshlrev_b32 v6, 10, v3
        v_lshl_add_u32 v6, v4, 4, v6
        v_lshl_add_u32 v6, v5, 5, v6
        s_lshl_b32 s45, s2, 13
        s_lshl_b32 s46, s40, 8
        s_add_u32 s45, s45, s46
        buffer_store_dwordx4 v[{X}:{X+3}], v6, s[16:19], s45 offen
        buffer_store_dwordx4 v[{X+4}:{X+7}], v6, s[16:19], s45 offen offset:128
        """)
    else:
        a(f"""
        s_add_u32 s45, s43, {hex(LY.X2F)}
        s_add_u32 s46, s45, 4096
        buffer_store_dwordx4 v[{X}:{X+3}], v6, s[24:27], s45 offen
        buffer_store_dwordx4 v[{X+4}:{X+7}], v6, s[24:27], s46 offen
        """)
    a.label(done)
    a("s_endpgm")
    return 80
```

```python
from asmlib import *
import layout as LY

CS = 4160
HB = 4 * CS
UB = 4 * 1536
CH = HB + UB
def lds_bytes():
    return 2 * CH + 4 * 4096

def emit(a, name):
    kernel_begin(a, name)
    done = f"{name}_done"
    a(f"""
    s_cmp_ge_u32 s2, 256
    s_cbranch_scc1 {done}
    s_load_dwordx4 s[4:7], s[0:1], 56
    s_load_dwordx2 s[14:15], s[0:1], 88
    v_lshrrev_b32 v2, 6, v0
    v_and_b32 v1, 63, v0
    v_readfirstlane_b32 s40, v2
    s_lshl_b32 s44, s2, 2
    s_lshr_b32 s41, s40, 1
    s_and_b32 s42, s40, 1
    s_lshl_b32 s43, s2, 1
    s_add_u32 s43, s43, s41
    s_mul_i32 s45, s41, {CH}
    s_lshl_b32 s46, s43, 12
    v_lshlrev_b32 v3, 4, v1
    s_waitcnt lgkmcnt(0)
    s_load_dword s47, s[6:7], s44
    s_add_u32 s16, s4, s46
    s_addc_u32 s17, s5, 0
    s_movk_i32 s18, 0x1000
    s_mov_b32 s19, 0x00020000
    """)
    srd(a, 24, 14, LY.WS_USED)
    a(f"""
    s_lshl_b32 s48, s42, 11
    v_add_u32 v4, s48, v3
    """)
    HL = 16
    for it in range(2):
        for k in range(3):
            a(f"buffer_load_dwordx4 v[{HL+12*it+4*k}:{HL+12*it+4*k+3}], v4, s[16:19], 0 offen offset:{it*1024 + 4*k}")
    a(f"""
    v_mov_b32 v5, 0
    buffer_load_dwordx2 v[40:41], v5, s[16:19], 0 offen
    """)
    a(f"""
    s_mul_i32 s49, s42, 3072
    s_add_u32 s49, s49, s45
    s_add_u32 s50, s46, s48
    s_add_u32 m0, s49, {HB + 512}
    s_add_u32 s51, s50, {hex(LY.UT)}
    buffer_load_dwordx4 v3, s[24:27], s51 offen lds
    s_add_u32 m0, s49, {HB + 512 + 1536}
    s_add_u32 s51, s50, {hex(LY.UT + 1024)}
    buffer_load_dwordx4 v3, s[24:27], s51 offen lds
    """)
    a(f"""
    v_mov_b32 v8, 0
    v_mov_b32 v9, 0
    v_mov_b32 v10, 0
    v_mov_b32 v11, 0
    v_lshrrev_b32 v6, 5, v1
    v_and_b32 v7, 31, v1
    s_movk_i32 s52, 1536
    v_mul_lo_u32 v12, v6, s52
    v_lshl_add_u32 v12, v7, 4, v12
    s_add_u32 s52, s49, {HB}
    v_add_u32 v12, s52, v12
    ds_write_b128 v12, v[8:11]
    s_add_u32 s52, s45, s48
    v_add_u32 v13, s52, v3
    s_waitcnt vmcnt(3)
    """)
    for it in range(2):
        A, B, Cc = HL + 12*it, HL + 12*it + 4, HL + 12*it + 8
        for j in range(4):
            a(f"v_alignbyte_b32 v{44+j}, v{B+j}, v{A+j}, 2")
            a(f"v_alignbyte_b32 v{48+j}, v{Cc+j}, v{B+j}, 2")
        o = 64 + it * 1024
        a(f"ds_write_b128 v13, v[44:47] offset:{o}")
        a(f"ds_write_b128 v13, v[{B}:{B+3}] offset:{o + CS}")
        a(f"ds_write_b128 v13, v[48:51] offset:{o + 2*CS}")
        a(f"ds_write_b128 v13, v[{Cc}:{Cc+3}] offset:{o + 3*CS}")
    hs = a.uid(f"{name}_hs")
    a(f"""
    s_cmp_lg_u32 s42, 0
    s_cbranch_scc1 {hs}
    s_waitcnt vmcnt(2)
    v_lshlrev_b32 v44, 16, v40
    v_alignbyte_b32 v45, v41, v40, 2
    v_cmp_eq_u32 vcc, 3, v1
    s_nop 1
    v_cndmask_b32 v11, v11, v44, vcc
    v_cmp_eq_u32 vcc, 7, v1
    s_nop 1
    v_cndmask_b32 v11, v11, v40, vcc
    v_cmp_eq_u32 vcc, 11, v1
    s_nop 1
    v_cndmask_b32 v11, v11, v45, vcc
    v_cndmask_b32 v10, v10, v44, vcc
    v_cmp_eq_u32 vcc, 15, v1
    s_nop 1
    v_cndmask_b32 v11, v11, v41, vcc
    v_cndmask_b32 v10, v10, v40, vcc
    v_lshrrev_b32 v12, 2, v1
    s_movk_i32 s52, {CS}
    v_mul_lo_u32 v12, v12, s52
    v_and_b32 v14, 3, v1
    v_lshl_add_u32 v12, v14, 4, v12
    v_add_u32 v12, s45, v12
    s_mov_b64 exec, 0xffff
    ds_write_b128 v12, v[8:11]
    s_mov_b64 exec, -1
    """)
    a.label(hs)
    a(f"""
    v_and_b32 v12, 3, v1
    s_movk_i32 s52, {CS}
    v_mul_lo_u32 v12, v12, s52
    v_bfe_u32 v14, v1, 2, 1
    v_lshl_add_u32 v12, v14, 4, v12
    v_bfe_u32 v14, v1, 3, 1
    v_lshl_add_u32 v12, v14, 3, v12
    v_bfe_u32 v14, v1, 4, 1
    v_lshl_add_u32 v12, v14, 5, v12
    v_lshlrev_b32 v14, 4, v6
    v_sub_u32 v12, v12, v14
    s_mul_i32 s53, s42, {24*64}
    s_add_u32 s53, s53, s45
    s_add_u32 s53, s53, 16
    v_add_u32 v12, s53, v12
    s_movk_i32 s52, 1536
    v_mul_lo_u32 v13, v6, s52
    v_lshl_add_u32 v13, v7, 4, v13
    s_add_u32 s53, s45, {HB}
    v_add_u32 v15, s53, v13
    s_mul_i32 s54, s42, {24*16}
    s_sub_u32 s53, s53, s54
    s_sub_u32 s53, s53, 32
    v_add_u32 v13, s53, v13
    s_cmp_eq_u32 s42, 0
    s_cselect_b32 s55, 12, 4
    s_cselect_b32 s56, 0, 16
    s_waitcnt vmcnt(0) lgkmcnt(0)
    s_barrier
    """)
    ACC = (64, 80)
    BUF = (16, 40)
    for r in range(16):
        a(f"v_mov_b32 v{ACC[0]+r}, 0")
        a(f"v_mov_b32 v{ACC[1]+r}, 0")
    def reads(buf, dd, both):
        n = 0
        for kp in range(2):
            b = BUF[buf] + 12 * kp
            ao = 32 * (2 * dd - kp + 1)
            a(f"ds_read_b64 v[{b}:{b+1}], v12 offset:{ao}")
            a(f"ds_read_b64 v[{b+2}:{b+3}], v12 offset:{ao+8}")
            bo = kp * 3072 + (32 - dd) * 16 + 32
            if both:
                a(f"ds_read_b128 v[{b+4}:{b+7}], v13 offset:{bo}")
                n += 1
            a(f"ds_read_b128 v[{b+8}:{b+11}], v13 offset:{bo + 512}")
            n += 3
        return n
    def mfmas(buf, both):
        for kp in range(2):
            b = BUF[buf] + 12 * kp
            if both:
                a(f"v_mfma_f32_32x32x16_bf16 {vr(ACC[0],16)}, {vr(b,4)}, {vr(b+4,4)}, {vr(ACC[0],16)}")
            a(f"v_mfma_f32_32x32x16_bf16 {vr(ACC[1],16)}, {vr(b,4)}, {vr(b+8,4)}, {vr(ACC[1],16)}")
    reads(0, 0, True)
    for both, cnt in ((True, 55), (False, 56)):
        lp = a.uid(f"{name}_lp")
        ex = a.uid(f"{name}_ex")
        if not both:
            a(f"s_cmp_eq_u32 s{cnt}, 0")
            a(f"s_cbranch_scc1 {ex}")
        a.label(lp)
        n = reads(1, 1, both)
        a(f"s_waitcnt lgkmcnt({n})")
        mfmas(0, both)
        n = reads(0, 2, both)
        a(f"s_waitcnt lgkmcnt({n})")
        mfmas(1, both)
        a(f"""
        v_add_u32 v12, 128, v12
        v_subrev_u32 v13, 32, v13
        s_sub_u32 s{cnt}, s{cnt}, 1
        s_cmp_lg_u32 s{cnt}, 0
        s_cbranch_scc1 {lp}
        """)
        a.label(ex)
    k1 = a.uid(f"{name}_k1"); jn = a.uid(f"{name}_jn")
    a(f"""
    s_waitcnt lgkmcnt(0)
    s_lshl_b32 s57, s40, 12
    s_add_u32 s57, s57, {2*CH}
    v_add_u32 v12, s57, v3
    s_xor_b32 s58, s40, 1
    s_lshl_b32 s58, s58, 12
    s_add_u32 s58, s58, {2*CH}
    v_add_u32 v13, s58, v3
    s_lshl_b32 s59, s42, 9
    v_add_u32 v15, s59, v15
    ds_read_b128 v[16:19], v15 offset:512
    ds_read_b128 v[20:23], v15 offset:{3072 + 512}
    s_nop 7
    s_cmp_eq_u32 s42, 0
    s_cbranch_scc1 {k1}
    """)
    for g in range(4):
        a(f"ds_write_b128 v12, v[{ACC[0]+4*g}:{ACC[0]+4*g+3}] offset:{g*1024}")
    for r in range(16):
        a(f"v_mov_b32 v{ACC[0]+r}, v{ACC[1]+r}")
    a(f"s_branch {jn}")
    a.label(k1)
    for g in range(4):
        a(f"ds_write_b128 v12, v[{ACC[1]+4*g}:{ACC[1]+4*g+3}] offset:{g*1024}")
    a.label(jn)
    a(f"""
    s_lshl_b32 s60, s47, 16
    s_and_b32 s61, s47, 0xffff0000
    s_cmp_eq_u32 s41, 0
    s_cselect_b32 s60, s60, s61
    s_waitcnt lgkmcnt(0)
    s_barrier
    """)
    for g in range(4):
        a(f"ds_read_b128 v[{ACC[1]+4*g}:{ACC[1]+4*g+3}], v13 offset:{g*1024}")
    for kp in range(2):
        for j in range(4):
            a(f"v_lshlrev_b32 v{24+8*kp+7-2*j}, 16, v{16+4*kp+j}")
            a(f"v_and_b32 v{24+8*kp+6-2*j}, 0xffff0000, v{16+4*kp+j}")
    a("s_waitcnt lgkmcnt(0)")
    for r in range(16):
        a(f"v_add_f32 v{ACC[0]+r}, v{ACC[0]+r}, v{ACC[1]+r}")
        a(f"v_fmac_f32 v{ACC[0]+r}, s60, v{24+r}")
    for j in range(8):
        a(f"v_cvt_pk_bf16_f32 v{16+j}, v{ACC[0]+2*j}, v{ACC[0]+2*j+1}")
    a(f"""
    v_lshlrev_b32 v12, 10, v6
    v_lshl_add_u32 v12, v7, 4, v12
    s_add_u32 s59, s59, s46
    s_add_u32 s59, s59, {hex(LY.YT)}
    buffer_store_dwordx4 v[16:19], v12, s[24:27], s59 offen
    buffer_store_dwordx4 v[20:23], v12, s[24:27], s59 offen offset:2048
    """)
    a.label(done)
    a("s_endpgm")
    return 96

def emit_t2(a, name):
    kernel_begin(a, name)
    done = f"{name}_done"
    a(f"""
    s_cmp_ge_u32 s2, 64
    s_cbranch_scc1 {done}
    s_load_dwordx2 s[14:15], s[0:1], 88
    v_lshrrev_b32 v2, 6, v0
    v_and_b32 v1, 63, v0
    v_readfirstlane_b32 s40, v2
    v_lshlrev_b32 v3, 4, v1
    v_lshlrev_b32 v4, 15, v1
    s_lshl_b32 s41, s2, 15
    s_lshl_b32 s42, s40, 10
    s_add_u32 s41, s41, s42
    s_add_u32 s41, s41, {hex(LY.YT)}
    s_lshl_b32 s43, s2, 9
    s_lshl_b32 s42, s40, 7
    s_add_u32 s43, s43, s42
    s_add_u32 s43, s43, {hex(LY.YF)}
    s_mov_b32 s44, 0x05040100
    s_mov_b32 s45, 0x07060302
    s_waitcnt lgkmcnt(0)
    """)
    srd(a, 24, 14, LY.WS_USED)
    for c in range(8):
        a(f"buffer_load_dwordx4 v[{8+4*c}:{11+4*c}], v3, s[24:27], s41 offen")
        if c < 7: a("s_add_u32 s41, s41, 4096")
    a("s_waitcnt vmcnt(0)")
    for j in range(4):
        for half in range(2):
            t = 2 * j + half
            for k in range(4):
                a(f"v_perm_b32 v{40+4*t+k}, v{8+4*(2*k+1)+j}, v{8+4*(2*k)+j}, s{44+half}")
    for t in range(8):
        a(f"buffer_store_dwordx4 v[{40+4*t}:{43+4*t}], v4, s[24:27], s43 offen offset:{t*16}")
    a.label(done)
    a("s_endpgm")
    return 72
```

```python
from asmlib import *
import layout as LY

def lds_bytes():
    return 65536 + 4 * 4096

def emit(a, name, layer1):
    kernel_begin(a, name)
    done = f"{name}_done"
    a(f"""
    s_cmp_ge_u32 s2, 256
    s_cbranch_scc1 {done}
    s_load_dwordx2 s[4:5], s[0:1], 0
    s_load_dwordx2 s[6:7], s[0:1], 16
    s_load_dwordx2 s[14:15], s[0:1], 88
    v_lshrrev_b32 v2, 6, v0
    v_and_b32 v1, 63, v0
    v_readfirstlane_b32 s40, v2
    s_and_b32 s44, s2, 7
    s_lshr_b32 s45, s2, 3
    s_and_b32 s41, s44, 3
    s_lshl_b32 s41, s41, 3
    s_and_b32 s46, s45, 7
    s_add_u32 s41, s41, s46
    s_lshr_b32 s42, s44, 2
    s_lshl_b32 s42, s42, 2
    s_lshr_b32 s46, s45, 3
    s_add_u32 s42, s42, s46
    s_and_b32 s46, s40, 1
    s_lshr_b32 s47, s40, 1
    s_lshl_b32 s43, s41, 1
    s_add_u32 s43, s43, s46
    v_lshlrev_b32 v3, 4, v1
    s_waitcnt lgkmcnt(0)
    """)
    srd(a, 16, 4, 0x200000)
    srd(a, 20, 6, 0x80000)
    srd(a, 24, 14, LY.WS_USED)
    OFR, ACC, WFR, RES = 64, 32, 16, 8
    a(f"""
    s_lshl_b32 s49, s43, 15
    s_lshl_b32 s50, s47, 14
    s_add_u32 s49, s49, s50
    s_add_u32 s50, s49, {hex(LY.OF)}
    """)
    for ks in range(16):
        if ks % 4 == 0 and ks:
            a("s_add_u32 s50, s50, 4096")
        a(f"buffer_load_dwordx4 v[{OFR+4*ks}:{OFR+4*ks+3}], v3, s[24:27], s50 offen offset:{(ks%4)*1024}")
    a(f"""
    v_lshrrev_b32 v4, 2, v1
    v_lshlrev_b32 v4, 10, v4
    v_and_b32 v5, 3, v1
    v_lshl_add_u32 v4, v5, 4, v4
    s_lshl_b32 s52, s42, 7
    v_add_u32 v4, s52, v4
    s_lshl_b32 s53, s40, 14
    s_lshl_b32 s54, s40, 10
    """)
    for n in range(8):
        for f in range(2):
            a(f"s_add_u32 m0, s54, {f*32768 + n*4096}")
            a(f"s_add_u32 s51, s53, {f*64 + n*65536}")
            a(f"buffer_load_dwordx4 v4, s[20:23], s51 offen lds")
    if layer1:
        a(f"""
        v_and_b32 v5, 31, v1
        v_lshlrev_b32 v5, 10, v5
        v_lshrrev_b32 v6, 5, v1
        v_lshl_add_u32 v5, v6, 4, v5
        s_lshl_b32 s55, s43, 15
        s_lshl_b32 s56, s42, 7
        s_add_u32 s55, s55, s56
        s_lshl_b32 s56, s47, 6
        s_add_u32 s55, s55, s56
        buffer_load_dwordx4 v[{RES}:{RES+3}], v5, s[16:19], s55 offen
        buffer_load_dwordx4 v[{RES+4}:{RES+7}], v5, s[16:19], s55 offen offset:32
        """)
    a(f"""
    s_lshl_b32 s55, s43, 15
    s_lshl_b32 s56, s42, 12
    s_add_u32 s55, s55, s56
    s_lshl_b32 s56, s47, 11
    s_add_u32 s55, s55, s56
    """)
    if not layer1:
        a(f"""
        s_add_u32 s56, s55, {hex(LY.X2F)}
        buffer_load_dwordx4 v[{RES}:{RES+3}], v3, s[24:27], s56 offen
        buffer_load_dwordx4 v[{RES+4}:{RES+7}], v3, s[24:27], s56 offen offset:1024
        """)
    a(f"""
    v_lshrrev_b32 v6, 5, v1
    v_lshlrev_b32 v6, 9, v6
    v_bfe_u32 v7, v1, 2, 2
    v_lshl_add_u32 v6, v7, 6, v6
    v_bfe_u32 v7, v1, 4, 1
    v_lshl_add_u32 v6, v7, 5, v6
    v_and_b32 v7, 1, v1
    v_lshl_add_u32 v6, v7, 4, v6
    v_bfe_u32 v7, v1, 1, 1
    v_lshl_add_u32 v6, v7, 3, v6
    s_lshl_b32 s57, s47, 14
    v_add_u32 v6, s57, v6
    s_waitcnt vmcnt(0)
    s_barrier
    """)
    def wread(ks):
        b = WFR + 8 * (ks & 1)
        for f in range(2):
            for q in range(2):
                a(f"ds_read_b64_tr_b16 v[{b+4*f+2*q}:{b+4*f+2*q+1}], v6 offset:{f*32768 + ks*1024 + q*256}")
    wread(0)
    for ks in range(16):
        if ks + 1 < 16:
            wread(ks + 1)
            a("s_waitcnt lgkmcnt(4)")
        else:
            a("s_waitcnt lgkmcnt(0)")
        b = WFR + 8 * (ks & 1)
        for f in range(2):
            acc = vr(ACC + 16*f, 16)
            a(f"v_mfma_f32_32x32x16_bf16 {acc}, {vr(b+4*f,4)}, {vr(OFR+4*ks,4)}, {'0' if ks == 0 else acc}")
    keep = a.uid(f"{name}_k1")
    join = a.uid(f"{name}_j")
    a(f"""
    s_lshl_b32 s57, s40, 12
    s_add_u32 s57, s57, 65536
    v_add_u32 v7, s57, v3
    s_xor_b32 s57, s57, 0x2000
    v_add_u32 v5, s57, v3
    s_nop 10
    s_cmp_eq_u32 s47, 0
    s_cbranch_scc1 {keep}
    """)
    for g in range(4):
        a(f"ds_write_b128 v7, v[{ACC+4*g}:{ACC+4*g+3}] offset:{g*1024}")
    for r in range(16):
        a(f"v_mov_b32 v{ACC+r}, v{ACC+16+r}")
    a(f"s_branch {join}")
    a.label(keep)
    for g in range(4):
        a(f"ds_write_b128 v7, v[{ACC+16+4*g}:{ACC+16+4*g+3}] offset:{g*1024}")
    a.label(join)
    a("s_waitcnt lgkmcnt(0)")
    a("s_barrier")
    for g in range(4):
        a(f"ds_read_b128 v[{OFR+4*g}:{OFR+4*g+3}], v5 offset:{g*1024}")
    a("s_waitcnt lgkmcnt(0)")
    for r in range(16):
        a(f"v_add_f32 v{ACC+r}, v{ACC+r}, v{OFR+r}")
    T = OFR + 16
    for j in range(8):
        a(f"v_cvt_pk_bf16_f32 v{T+j}, v{ACC+2*j}, v{ACC+2*j+1}")
    for j in range(8):
        a(f"v_lshlrev_b32 v{ACC+2*j}, 16, v{T+j}")
        a(f"v_and_b32 v{ACC+2*j+1}, 0xffff0000, v{T+j}")
        a(f"v_lshlrev_b32 v{OFR+2*j}, 16, v{RES+j}")
        a(f"v_and_b32 v{OFR+2*j+1}, 0xffff0000, v{RES+j}")
    for j in range(8):
        a(f"v_pk_add_f32 v[{ACC+2*j}:{ACC+2*j+1}], v[{ACC+2*j}:{ACC+2*j+1}], v[{OFR+2*j}:{OFR+2*j+1}]")
    for j in range(8):
        a(f"v_cvt_pk_bf16_f32 v{T+j}, v{ACC+2*j}, v{ACC+2*j+1}")
    a(f"""
    s_add_u32 s56, s55, {hex(LY.X1F if layer1 else LY.X3F)}
    buffer_store_dwordx4 v[{T}:{T+3}], v3, s[24:27], s56 offen
    buffer_store_dwordx4 v[{T+4}:{T+7}], v3, s[24:27], s56 offen offset:1024
    """)
    a.label(done)
    a("s_endpgm")
    return 128
```

```python
import struct
from asmlib import *
import layout as LY

def f32hex(x):
    return hex(struct.unpack("<I", struct.pack("<f", x))[0])

LDS_W = 0
LDS_X = 98304
def lds_bytes(layer1):
    return 163840 if layer1 else 98304 + 4 * 2048

def emit(a, name, layer1):
    XS = 16384 if layer1 else 2048
    kernel_begin(a, name)
    done = f"{name}_done"
    a(f"""
    s_cmp_ge_u32 s2, 256
    s_cbranch_scc1 {done}
    s_load_dwordx4 s[4:7], s[0:1], 0
    s_load_dwordx4 s[8:11], s[0:1], 32
    s_load_dwordx2 s[12:13], s[0:1], 48
    s_load_dwordx2 s[14:15], s[0:1], 88
    v_lshrrev_b32 v2, 6, v0
    v_and_b32 v1, 63, v0
    v_readfirstlane_b32 s40, v2
    s_and_b32 s44, s2, 7
    s_lshr_b32 s45, s2, 3
    s_and_b32 s41, s44, 3
    s_lshl_b32 s41, s41, 2
    s_and_b32 s46, s45, 3
    s_add_u32 s41, s41, s46
    s_lshr_b32 s42, s44, 2
    s_lshl_b32 s42, s42, 3
    s_lshr_b32 s46, s45, 2
    s_add_u32 s42, s42, s46
    s_lshl_b32 s43, s41, 2
    s_add_u32 s43, s43, s40
    s_waitcnt lgkmcnt(0)
    """)
    srd(a, 16, 4, 0x200000)
    srd(a, 20, 6, 0x180000)
    srd(a, 24, 14, LY.WS_USED)
    if layer1:
        srd(a, 28, 8, 0x200000)
        srd(a, 32, 10, 0x200000)
        srd(a, 36, 12, 0x1000)
    XF = 64
    ACC = 192
    WFR = 40
    if layer1:
        a.comment("T1 loads: k (11 rows), v (8 rows), shift taps")
        a(f"""
        s_lshr_b32 s46, s2, 3
        s_lshl_b32 s46, s46, 16
        s_lshl_b32 s47, s40, 14
        s_add_u32 s46, s46, s47
        s_and_b32 s47, s2, 7
        s_lshl_b32 s48, s47, 7
        s_add_u32 s46, s46, s48
        v_lshrrev_b32 v3, 5, v1
        v_and_b32 v4, 31, v1
        v_lshlrev_b32 v5, 13, v3
        v_lshl_add_u32 v5, v4, 2, v5
        v_add_u32 v5, s46, v5
        v_add_u32 v6, 0x1000, v5
        v_subrev_u32 v7, 0xc00, v5
        s_lshl_b32 s48, s47, 9
        v_lshl_add_u32 v8, v4, 4, s48
        """)
        T = 192
        for r in range(3):
            a(f"buffer_load_dword v{T+r}, v7, s[28:31], 0 offen offset:{r*1024}")
        for r in range(8):
            a(f"buffer_load_dword v{T+3+r}, v{5 if r < 4 else 6}, s[28:31], 0 offen offset:{(r%4)*1024}")
        for r in range(8):
            a(f"buffer_load_dword v{T+11+r}, v{5 if r < 4 else 6}, s[32:35], 0 offen offset:{(r%4)*1024}")
        a(f"buffer_load_dwordx4 v[{T+20}:{T+23}], v8, s[36:39], 0 offen")
        n_t1 = 20
        a(f"""
        v_xor_b32 v9, v4, v3
        v_lshlrev_b32 v9, 4, v9
        v_lshl_add_u32 v9, v3, 10, v9
        s_lshl_b32 s49, s43, 15
        s_mul_i32 s50, s40, {XS}
        s_add_u32 s50, s50, {LDS_X}
        """)
        def xdma(rnd):
            for i in range(16):
                a(f"v_xor_b32 v10, {((2*i) & 15) << 4}, v9")
                a(f"s_add_u32 m0, s50, {i*1024}")
                a(f"s_add_u32 s51, s49, {2*i*1024 + rnd*512}")
                a(f"buffer_load_dwordx4 v10, s[16:19], s51 offen lds")
        xdma(0)
    else:
        a.comment("X frags straight from F-layout")
        a(f"""
        v_lshlrev_b32 v9, 4, v1
        s_lshl_b32 s49, s43, 15
        s_add_u32 s49, s49, {hex(LY.X2F)}
        s_mul_i32 s50, s40, {XS}
        s_add_u32 s50, s50, {LDS_X}
        """)
        for ks in range(32):
            if ks % 4 == 0 and ks:
                a(f"s_add_u32 s49, s49, 4096")
            a(f"buffer_load_dwordx4 v[{XF+4*ks}:{XF+4*ks+3}], v9, s[24:27], s49 offen offset:{(ks%4)*1024}")
    a(f"""
    v_lshrrev_b32 v11, 2, v1
    s_movk_i32 s52, 3072
    v_mul_lo_u32 v11, v11, s52
    v_and_b32 v12, 3, v1
    v_lshl_add_u32 v11, v12, 4, v11
    s_lshl_b32 s52, s42, 6
    v_add_u32 v11, s52, v11
    s_mul_i32 s53, s40, {16*3072}
    s_lshl_b32 s54, s40, 10
    """)
    for n in range(8):
        for f in range(3):
            a(f"s_add_u32 m0, s54, {f*32768 + n*4096}")
            a(f"s_add_u32 s51, s53, {f*1024 + n*64*3072}")
            a(f"buffer_load_dwordx4 v11, s[20:23], s51 offen lds")
    n_w = 24
    if layer1:
        a.comment("T1 compute")
        a(f"s_waitcnt vmcnt({16+n_w})")
        KFp = 128
        VFp = 152
        WP = 168
        RS = 176
        for r in range(11):
            a(f"v_lshlrev_b32 v{KFp+2*r}, 16, v{T+r}")
            a(f"v_and_b32 v{KFp+2*r+1}, 0xffff0000, v{T+r}")
        for r in range(8):
            a(f"v_lshlrev_b32 v{VFp+2*r}, 16, v{T+11+r}")
            a(f"v_and_b32 v{VFp+2*r+1}, 0xffff0000, v{T+11+r}")
        D0 = T + 20
        a(f"""
        v_lshlrev_b32 v{WP+0}, 16, v{D0}
        v_lshlrev_b32 v{WP+1}, 16, v{D0+2}
        v_and_b32 v{WP+2}, 0xffff0000, v{D0}
        v_and_b32 v{WP+3}, 0xffff0000, v{D0+2}
        v_lshlrev_b32 v{WP+4}, 16, v{D0+1}
        v_lshlrev_b32 v{WP+5}, 16, v{D0+3}
        v_and_b32 v{WP+6}, 0xffff0000, v{D0+1}
        v_and_b32 v{WP+7}, 0xffff0000, v{D0+3}
        """)
        def p(b): return f"v[{b}:{b+1}]"
        for t in range(8):
            a(f"v_pk_mul_f32 {p(RS+2*t)}, {p(KFp+2*t)}, {p(WP+6)}")
        for j in (2, 1, 0):
            for t in range(8):
                a(f"v_pk_fma_f32 {p(RS+2*t)}, {p(KFp+2*(t+3-j))}, {p(WP+2*j)}, {p(RS+2*t)}")
        for t in range(8):
            a(f"v_pk_mul_f32 {p(RS+2*t)}, {p(RS+2*t)}, {p(VFp+2*t)}")
        for j in range(4):
            a(f"v_cvt_pk_bf16_f32 v{T+j}, v{RS+2*(7-2*j)}, v{RS+2*(6-2*j)}")
            a(f"v_cvt_pk_bf16_f32 v{T+4+j}, v{RS+2*(7-2*j)+1}, v{RS+2*(6-2*j)+1}")
        a(f"""
        s_lshl_b32 s46, s47, 18
        s_add_u32 s46, s46, {hex(LY.UT)}
        s_lshr_b32 s48, s2, 3
        s_lshl_b32 s48, s48, 5
        s_add_u32 s46, s46, s48
        s_lshr_b32 s48, s40, 1
        s_lshl_b32 s48, s48, 4
        s_add_u32 s46, s46, s48
        s_and_b32 s48, s40, 1
        s_lshl_b32 s48, s48, 11
        s_add_u32 s46, s46, s48
        v_lshlrev_b32 v5, 13, v4
        v_lshl_add_u32 v5, v3, 10, v5
        v_add_u32 v6, 0x1000, v5
        buffer_store_dwordx4 v[{T}:{T+3}], v5, s[24:27], s46 offen
        buffer_store_dwordx4 v[{T+4}:{T+7}], v6, s[24:27], s46 offen
        """)
        n_st = 2
        a(f"""
        v_and_b32 v13, 15, v1
        v_xor_b32 v13, v13, v3
        v_lshlrev_b32 v13, 4, v13
        v_lshl_add_u32 v13, v4, 9, v13
        v_add_u32 v13, s50, v13
        s_waitcnt vmcnt({n_w+n_st})
        """)
        def xread(rnd):
            for ks in range(16):
                a(f"v_xor_b32 v10, {ks << 5}, v13")
                a(f"ds_read_b128 v[{XF+4*(16*rnd+ks)}:{XF+4*(16*rnd+ks)+3}], v10")
        xread(0)
        a("s_waitcnt lgkmcnt(0)")
        xdma(1)
    SUM, SQ = 14, 16
    CS = 18
    a(f"""
    v_mov_b32 v14, 0
    v_mov_b32 v15, 0
    v_mov_b32 v16, 0
    v_mov_b32 v17, 0
    v_mov_b32 v18, 0
    v_mov_b32 v19, 0
    v_mov_b32 v20, 0
    s_mov_b32 s55, 0x3f803f80
    """)
    def stats(ks):
        for d in range(4):
            r = XF + 4*ks + d
            a(f"v_dot2c_f32_bf16 v{SUM + (d & 1)}, s55, v{r}")
            a(f"v_dot2c_f32_bf16 v{SQ + (d & 1)}, v{r}, v{r}")
    a(f"""
    v_lshrrev_b32 v21, 5, v1
    v_lshlrev_b32 v21, 9, v21
    v_bfe_u32 v22, v1, 2, 2
    v_lshl_add_u32 v21, v22, 6, v21
    v_bfe_u32 v22, v1, 4, 1
    v_lshl_add_u32 v21, v22, 5, v21
    v_and_b32 v22, 3, v1
    v_lshl_add_u32 v21, v22, 3, v21
    v_add_u32 v22, 0x10000, v21
    """)
    if layer1:
        for ks in range(16): stats(ks)
        a("s_waitcnt vmcnt(16)")
    else:
        a("s_waitcnt vmcnt(24)")
        for ks in range(32): stats(ks)
        a("s_waitcnt vmcnt(0)")
    a("s_barrier")
    def wread(ks):
        b = WFR + 12 * (ks & 1)
        for f in range(3):
            for q in range(2):
                base, off = (21, f*32768 + ks*1024 + q*256) if f < 2 else (22, ks*1024 + q*256)
                a(f"ds_read_b64_tr_b16 v[{b+4*f+2*q}:{b+4*f+2*q+1}], v{base} offset:{off}")
    wread(0)
    for ks in range(32):
        if layer1 and ks == 16:
            a("s_waitcnt vmcnt(0)")
            xread(1)
            a("s_waitcnt lgkmcnt(0)")
            for k2 in range(16, 32): stats(k2)
        if ks + 1 < 32:
            wread(ks + 1)
            a("s_waitcnt lgkmcnt(6)")
        else:
            a("s_waitcnt lgkmcnt(0)")
        b = WFR + 12 * (ks & 1)
        x = vr(XF + 4*ks, 4)
        for f in range(3):
            acc = vr(ACC + 16*f, 16)
            c = "0" if ks == 0 else acc
            w = vr(b + 4*f, 4)
            if f < 2: a(f"v_mfma_f32_32x32x16_bf16 {acc}, {w}, {x}, {c}")
            else:     a(f"v_mfma_f32_32x32x16_bf16 {acc}, {x}, {w}, {c}")
        skip = a.uid(f"{name}_cs")
        a(f"s_cmp_eq_u32 s40, {ks & 3}")
        a(f"s_cbranch_scc0 {skip}")
        for d in range(4):
            for f in range(3):
                a(f"v_dot2c_f32_bf16 v{CS+f}, s55, v{b+4*f+d}")
        a.label(skip)
    a(f"""
    s_nop 3
    v_add_f32 v14, v14, v15
    v_add_f32 v16, v16, v17
    v_mov_b32 v15, v14
    v_mov_b32 v17, v16
    v_mov_b32 v23, v18
    v_mov_b32 v24, v19
    v_mov_b32 v25, v20
    s_nop 1
    v_permlane32_swap_b32 v14, v15
    v_permlane32_swap_b32 v16, v17
    v_permlane32_swap_b32 v18, v23
    v_permlane32_swap_b32 v19, v24
    v_permlane32_swap_b32 v20, v25
    s_nop 1
    v_add_f32 v14, v14, v15
    v_add_f32 v16, v16, v17
    v_add_f32 v18, v18, v23
    v_add_f32 v19, v19, v24
    v_add_f32 v20, v20, v25
    v_and_b32 v4, 31, v1
    v_lshl_add_u32 v26, v4, 2, s50
    ds_write_b32 v26, v18
    ds_write_b32 v26, v19 offset:128
    ds_write_b32 v26, v20 offset:256
    s_mov_b32 s56, {f32hex(1.0/512)}
    v_mul_f32 v14, s56, v14
    v_mul_f32 v16, s56, v16
    v_fma_f32 v16, -v14, v14, v16
    v_max_f32 v16, 0, v16
    v_add_f32 v16, {f32hex(1e-5)}, v16
    v_rsq_f32 v16, v16
    s_nop 0
    v_mul_f32 v17, v14, v16
    v_sub_f32 v17, 0, v17
    ds_write_b32 v26, v16 offset:512
    ds_write_b32 v26, v17 offset:640
    s_waitcnt lgkmcnt(0)
    s_barrier
    v_lshlrev_b32 v27, 2, v4
    v_add_u32 v27, {LDS_X}, v27
    """)
    for f in range(3):
        for w in range(4):
            a(f"ds_read_b32 v{28+4*f+w}, v27 offset:{w*XS + f*128}")
    a("s_waitcnt lgkmcnt(0)")
    for f in range(3):
        a(f"v_add_f32 v{28+4*f}, v{28+4*f}, v{29+4*f}")
        a(f"v_add_f32 v{30+4*f}, v{30+4*f}, v{31+4*f}")
        a(f"v_add_f32 v{18+f}, v{28+4*f}, v{30+4*f}")
    a(f"""
    ds_write_b32 v26, v18 offset:1024
    ds_write_b32 v26, v19 offset:1152
    v_lshrrev_b32 v3, 5, v1
    v_lshl_add_u32 v27, v3, 4, s50
    s_waitcnt lgkmcnt(0)
    """)
    TQ = 64
    for g in range(4):
        a(f"ds_read_b128 v[{TQ+4*g}:{TQ+4*g+3}], v27 offset:{1024 + 32*g}")
        a(f"ds_read_b128 v[{TQ+16+4*g}:{TQ+16+4*g+3}], v27 offset:{1152 + 32*g}")
        a(f"ds_read_b128 v[{TQ+32+4*g}:{TQ+32+4*g+3}], v27 offset:{512 + 32*g}")
        a(f"ds_read_b128 v[{TQ+48+4*g}:{TQ+48+4*g+3}], v27 offset:{640 + 32*g}")
    a(f"""
    s_mov_b32 s56, {f32hex(LY.QSCALE)}
    v_mul_f32 v23, s56, v16
    v_mul_f32 v24, s56, v17
    s_lshl_b32 s57, s42, 17
    s_lshl_b32 s58, s43, 10
    s_add_u32 s57, s57, s58
    v_lshlrev_b32 v9, 4, v1
    s_waitcnt lgkmcnt(0)
    """)
    PK = 128
    for f, (rs, mr) in enumerate(((23, 24), (16, 17))):
        for r in range(16):
            a(f"v_mul_f32 v{ACC+16*f+r}, v{ACC+16*f+r}, v{rs}")
            a(f"v_fmac_f32 v{ACC+16*f+r}, v{TQ+16*f+r}, v{mr}")
        for j in range(8):
            a(f"v_cvt_pk_bf16_f32 v{PK+8*f+j}, v{ACC+16*f+2*j}, v{ACC+16*f+2*j+1}")
        base = LY.QF if f == 0 else LY.KF
        a(f"s_add_u32 s58, s57, {hex(base)}")
        a(f"buffer_store_dwordx4 v[{PK+8*f}:{PK+8*f+3}], v9, s[24:27], s58 offen")
        a(f"s_add_u32 s58, s57, {hex(base + 65536)}")
        a(f"buffer_store_dwordx4 v[{PK+8*f+4}:{PK+8*f+7}], v9, s[24:27], s58 offen")
    for r in range(16):
        a(f"v_mul_f32 v{ACC+32+r}, v{ACC+32+r}, v{TQ+32+r}")
        a(f"v_fmac_f32 v{ACC+32+r}, v{TQ+48+r}, v20")
    for j in range(8):
        a(f"v_cvt_pk_bf16_f32 v{PK+16+j}, v{ACC+32+2*j}, v{ACC+32+2*j+1}")
    a(f"""
    v_and_b32 v10, 3, v1
    v_bfe_u32 v11, v1, 2, 1
    v_lshl_or_b32 v10, v11, 3, v10
    v_bfe_u32 v11, v1, 3, 1
    v_lshl_or_b32 v10, v11, 2, v10
    v_lshlrev_b32 v10, 4, v10
    v_lshl_or_b32 v10, v3, 8, v10
    v_bfe_u32 v11, v1, 4, 1
    v_lshl_or_b32 v10, v11, 16, v10
    s_add_u32 s58, s57, {hex(LY.VF)}
    buffer_store_dwordx4 v[{PK+16}:{PK+19}], v10, s[24:27], s58 offen
    buffer_store_dwordx4 v[{PK+20}:{PK+23}], v10, s[24:27], s58 offen offset:512
    """)
    a.label(done)
    a("s_endpgm")
    return 240
```

```python
QF  = 0x0000000
KF  = 0x0200000
VF  = 0x0400000
OF  = 0x0600000
X1F = 0x0800000
X2F = 0x0A00000
X3F = 0x0C00000
UT  = 0x0E00000
YT  = 0x1000000
YF  = 0x1200000
GR  = 0x1400000
CSB = 0x1480000
ST2 = 0x1490000
WP  = 0x1500000
WS_USED = 0x1700000
QSCALE = 0.25 * 1.4426950408889634
```

```python
import sys
sys.path.insert(0, "gen")
from asmlib import *
import k_qkv, k_attn, k_oproj, k_bl, k_conv

HEADER = open("interleave_layers__mha_block__ssm_conv_h3__prompt.s.ref").read().split("; Override launch")[0]

def build(path, NW=8):
    a = Asm()
    descs = []
    launches = []
    def add(name, vg): descs.append(kernel_desc(name, vg))
    add("qkv1_kernel", k_qkv.emit(a, "qkv1_kernel", True))
    add("qkv2_kernel", k_qkv.emit(a, "qkv2_kernel", False))
    add("conv_kernel", k_conv.emit(a, "conv_kernel"))
    add("t2_kernel", k_conv.emit_t2(a, "t2_kernel"))
    add("attn_kernel", k_attn.emit(a, "attn_kernel", NW))
    add("oproj1_kernel", k_oproj.emit(a, "oproj1_kernel", True))
    add("oproj2_kernel", k_oproj.emit(a, "oproj2_kernel", False))
    add("bl1_kernel", k_bl.emit(a, "bl1_kernel", False))
    add("bl2_kernel", k_bl.emit(a, "bl2_kernel", True))
    L = lambda k, g, b, l: launches.append(f"; @launch kernel={k} grid=({g},1,1) block=({b},1,1) lds={l}")
    L("qkv1_kernel", 256, 256, k_qkv.lds_bytes(True))
    L("conv_kernel", 256, 256, k_conv.lds_bytes())
    L("t2_kernel", 64, 256, 0)
    L("attn_kernel", 256, NW * 64, k_attn.lds_bytes(NW))
    L("oproj1_kernel", 256, 256, k_oproj.lds_bytes())
    L("bl1_kernel", 256, 256, k_bl.lds_bytes())
    L("qkv2_kernel", 256, 256, k_qkv.lds_bytes(False))
    L("attn_kernel", 256, NW * 64, k_attn.lds_bytes(NW))
    L("oproj2_kernel", 256, 256, k_oproj.lds_bytes())
    L("bl2_kernel", 256, 256, k_bl.lds_bytes())
    txt = HEADER + "\n".join(launches) + "\n" + '.amdgcn_target "amdgcn-amd-amdhsa--gfx950"\n.text\n' + a.text()
    txt += '.section .rodata,"a"\n' + "".join(".p2align 6\n" + d for d in descs)
    open(path, "w").write(txt)

if __name__ == "__main__":
    out = sys.argv[1] if len(sys.argv) > 1 else "interleave_layers__mha_block__ssm_conv_h3__prompt.s"
    nw = int(sys.argv[2]) if len(sys.argv) > 2 else 8
    build(out, nw)
```

```python
class Asm:
    def __init__(self):
        self.out = []
        self._uid = 0
    def __call__(self, s):
        for line in s.strip("\n").split("\n"):
            self.out.append("    " + line.strip())
    def label(self, name):
        self.out.append(name + ":")
    def comment(self, s):
        self.out.append("    ; " + s)
    def raw(self, s):
        self.out.append(s)
    def uid(self, base):
        self._uid += 1
        return f"{base}_{self._uid}"
    def text(self):
        return "\n".join(self.out) + "\n"

def vr(base, n=1):
    return f"v{base}" if n == 1 else f"v[{base}:{base+n-1}]"
def sr(base, n=1):
    return f"s{base}" if n == 1 else f"s[{base}:{base+n-1}]"

def kernel_begin(a, name):
    a.raw(f".globl {name}")
    a.raw(".p2align 8")
    a.raw(f".type {name},@function")
    a.raw(f"{name}:")

def kernel_desc(name, vgpr, sgpr=96):
    acc = (vgpr + 3) // 4 * 4
    return f""".amdhsa_kernel {name}
  .amdhsa_next_free_vgpr {vgpr}
  .amdhsa_next_free_sgpr {sgpr}
  .amdhsa_accum_offset {acc}
  .amdhsa_group_segment_fixed_size 0
  .amdhsa_kernarg_size 96
  .amdhsa_user_sgpr_count 2
  .amdhsa_user_sgpr_kernarg_segment_ptr 1
  .amdhsa_system_sgpr_workgroup_id_x 1
.end_amdhsa_kernel
"""

def srd(a, d, base, size, off=0):
    if off:
        a(f"s_add_u32 s{d}, s{base}, {hex(off)}")
        a(f"s_addc_u32 s{d+1}, s{base+1}, 0")
    else:
        a(f"s_mov_b32 s{d}, s{base}")
        a(f"s_mov_b32 s{d+1}, s{base+1}")
    a(f"s_mov_b32 s{d+2}, {hex(size)}")
    a(f"s_mov_b32 s{d+3}, 0x00020000")


DIAG = False
DIAG_OFF = 0x3000000
def stamp(a, i):
    if not DIAG: return
    a(f"s_memtime s[86:87]")
    if i == 0:
        a(f"s_memrealtime s[88:89]")
    a("s_waitcnt lgkmcnt(0)")
    a(f"s_mov_b32 s{70+i}, s86")
    if i == 0:
        a("s_mov_b32 s84, s88")
def stamp_flush(a, slot, n, wave_sgpr, ws_lo):
    if not DIAG: return
    a(f"""
    s_memrealtime s[88:89]
    s_waitcnt lgkmcnt(0)
    s_mov_b32 s85, s88
    s_add_u32 s92, s{ws_lo}, {hex(DIAG_OFF + slot * 0x40000)}
    s_addc_u32 s93, s{ws_lo+1}, 0
    s_mov_b32 s94, 0x40000
    s_mov_b32 s95, 0x00020000
    s_lshl_b32 s90, s2, 10
    s_lshl_b32 s91, s{wave_sgpr}, 6
    s_add_u32 s90, s90, s91
    v_mov_b32 v1, s90
    s_mov_b64 exec, 1
    """)
    for i in list(range(n)) + [14, 15]:
        a(f"v_mov_b32 v2, s{70+i}")
        a(f"buffer_store_dword v2, v1, s[92:95], 0 offen offset:{4*i}")
```

```python
import struct
from asmlib import *
import layout as LY

def f32hex(x):
    return hex(struct.unpack("<I", struct.pack("<f", x))[0])

CS = 4160
CHB = 2 * CS + 6144
def lds_bytes(conv):
    return 163840 if conv else 131072 + 8 * 2304 + 2048

def emit(a, name, conv):
    TS = 32
    kernel_begin(a, name)
    done = f"{name}_done"
    QA, QB, S, O, P, KB, VB = 4, 8, (16, 32), (48, 64), 80, (88, 92), (96, 104)
    a(f"""
    s_cmp_ge_u32 s2, 256
    s_cbranch_scc1 {done}
    s_load_dwordx2 s[14:15], s[0:1], 88
    """)
    if conv:
        a("s_load_dwordx4 s[4:7], s[0:1], 56")
    a(f"""
    v_lshrrev_b32 v2, 6, v0
    v_and_b32 v1, 63, v0
    v_readfirstlane_b32 s40, v2
    v_lshlrev_b32 v3, 4, v1
    """)
    if conv:
        a(f"""
        s_cmp_ge_u32 s40, 8
        s_cbranch_scc1 {name}_conv
        """)
    a(f"""
    s_and_b32 s44, s2, 7
    s_lshr_b32 s45, s2, 3
    s_lshl_b32 s41, s44, 2
    s_and_b32 s46, s45, 3
    s_add_u32 s41, s41, s46
    s_lshr_b32 s42, s45, 2
    s_and_b32 s43, s40, 3
    s_lshr_b32 s47, s40, 2
    s_lshl_b32 s42, s42, 3
    s_lshl_b32 s46, s43, 1
    s_add_u32 s42, s42, s46
    s_lshl_b32 s48, s41, 16
    s_lshl_b32 s49, s42, 10
    s_add_u32 s49, s49, s48
    s_lshl_b32 s50, s47, 5
    s_add_u32 s51, s50, s43
    s_lshl_b32 s51, s51, 10
    s_add_u32 s52, s48, s51
    s_waitcnt lgkmcnt(0)
    """)
    srd(a, 24, 14, LY.WS_USED)
    stamp(a, 0)
    def dma(n):
        a(f"s_add_u32 m0, s51, {n*4096}")
        a(f"s_add_u32 s53, s52, {hex(LY.KF + n*4096)}")
        a(f"buffer_load_dwordx4 v3, s[24:27], s53 offen lds")
        a(f"s_add_u32 m0, s51, {65536 + n*4096}")
        a(f"s_add_u32 s53, s52, {hex(LY.VF + n*4096)}")
        a(f"buffer_load_dwordx4 v3, s[24:27], s53 offen lds")
    a(f"""
    s_add_u32 s49, s49, {hex(LY.QF)}
    buffer_load_dwordx4 v[{QA}:{QA+3}], v3, s[24:27], s49 offen
    buffer_load_dwordx4 v[{QB}:{QB+3}], v3, s[24:27], s49 offen offset:1024
    """)
    dma(0); dma(1)
    for r in range(16):
        a(f"v_mov_b32 v{O[0]+r}, 0")
        a(f"v_mov_b32 v{O[1]+r}, 0")
    zs = a.uid(f"{name}_zs")
    a(f"""
    s_cmp_ge_u32 s40, 2
    s_cbranch_scc1 {zs}
    s_lshl_b32 s53, s2, 11
    s_lshl_b32 s54, s40, 10
    s_add_u32 s53, s53, s54
    s_add_u32 s53, s53, {hex(LY.GR)}
    buffer_store_dwordx4 v[{O[0]}:{O[0]+3}], v3, s[24:27], s53 offen
    """)
    a.label(zs)
    a(f"""
    v_and_b32 v14, 27, v1
    v_cmp_eq_u32 vcc, 16, v14
    v_mov_b32 v15, 0x3f803f80
    s_lshl_b32 s54, s50, 10
    v_cndmask_b32 v14, 0, v15, vcc
    """)
    for r in range(16):
        a(f"v_mov_b32 v{VB[0]+r}, v14")
    for r in range(4):
        a(f"v_mov_b32 v{P+4+r}, 0")
    a(f"""
    v_add_u32 v12, s54, v3
    v_and_b32 v13, 15, v1
    v_lshlrev_b32 v13, 4, v13
    v_lshrrev_b32 v14, 5, v1
    v_lshl_add_u32 v13, v14, 8, v13
    s_add_u32 s54, s54, 0x10000
    v_add_u32 v13, s54, v13
    s_mov_b32 s56, 0xffff
    s_mov_b32 s57, 0xffff
    """)
    for n in range(2, 8): dma(n)
    a("s_waitcnt vmcnt(12)")
    a("s_barrier")
    stamp(a, 1)
    def kread(buf, t): a(f"ds_read_b128 v[{KB[buf]}:{KB[buf]+3}], v12 offset:{t*1024}")
    def vread(buf, t):
        a("s_mov_b64 exec, s[56:57]")
        a(f"ds_read_b128 v[{VB[buf]}:{VB[buf]+3}], v13 offset:{t*1024}")
        a(f"ds_read_b128 v[{VB[buf]+4}:{VB[buf]+7}], v13 offset:{t*1024+512}")
        a("s_mov_b64 exec, -1")
    def mf(d, x, y, c): a(f"v_mfma_f32_32x32x16_bf16 {vr(d,16)}, {vr(x,4)}, {vr(y,4)}, {c}")
    kread(0, 0); vread(0, 0)
    a("s_waitcnt lgkmcnt(2)")
    mf(S[0], KB[0], QA, "0")
    a("s_waitcnt lgkmcnt(0)")
    a("s_nop 7"); a("s_nop 3")
    for t in range(TS):
        cur, nxt = t & 1, (t + 1) & 1
        for ph in range(2):
            s, o, op, sp = S[ph], O[ph], O[1 - ph], S[1 - ph]
            e = lambda i: a(f"v_exp_f32 v{s+i}, v{s+i}")
            c = lambda j: a(f"v_cvt_pk_bf16_f32 v{P+j}, v{s+2*j}, v{s+2*j+1}")
            vprev = VB[cur] if ph == 1 else VB[nxt]
            e(0); e(1)
            if not (t == 0 and ph == 0):
                mf(op, vprev + 4, P + 4, vr(op, 16))
            e(2); c(0); e(3); e(4); c(1); e(5)
            if ph == 0:
                mf(sp, KB[cur], QB, "0")
                if t + 1 < TS:
                    if t == 7:
                        a("s_waitcnt vmcnt(0)")
                        a("s_barrier")
                    kread(nxt, t + 1); vread(nxt, t + 1)
            elif t + 1 < TS:
                a("s_waitcnt lgkmcnt(2)")
                mf(sp, KB[nxt], QA, "0")
            e(6); c(2); e(7); e(8); c(3); e(9); e(10)
            mf(o, VB[cur], P, vr(o, 16))
            c(4); e(11); e(12); c(5); e(13); e(14); c(6); e(15)
            if ph == 1: a("s_waitcnt lgkmcnt(0)")
            else: a("s_nop 0")
            c(7)
    a("s_nop 1")
    mf(O[1], VB[(TS - 1) & 1] + 4, P + 4, vr(O[1], 16))
    stamp(a, 2)
    a(f"""
    s_mul_i32 s54, s40, 2304
    s_add_u32 s54, s54, 131072
    v_lshl_add_u32 v14, v1, 2, s54
    s_xor_b32 s55, s40, 4
    s_mul_i32 s55, s55, 2304
    s_add_u32 s55, s55, 131072
    v_lshl_add_u32 v15, v1, 2, s55
    s_add_u32 s42, s42, s47
    s_nop 7
    """)
    if conv:
        a("s_barrier")
    k1 = a.uid(f"{name}_k1"); jn = a.uid(f"{name}_jn")
    a(f"""
    s_cmp_eq_u32 s47, 0
    s_cbranch_scc1 {k1}
    """)
    for r in range(9): a(f"ds_write_b32 v14, v{O[0]+r} offset:{r*256}")
    for r in range(9): a(f"v_mov_b32 v{O[0]+r}, v{O[1]+r}")
    for r in range(4): a(f"v_mov_b32 v{QA+r}, v{QB+r}")
    a(f"s_branch {jn}")
    a.label(k1)
    for r in range(9): a(f"ds_write_b32 v14, v{O[1]+r} offset:{r*256}")
    a.label(jn)
    a("s_waitcnt lgkmcnt(0)")
    a("s_barrier")
    for r in range(9): a(f"ds_read_b32 v{S[0]+r}, v15 offset:{r*256}")
    a("s_waitcnt lgkmcnt(0)")
    Oa = O[0]
    for r in range(9): a(f"v_add_f32 v{Oa+r}, v{Oa+r}, v{S[0]+r}")
    fin = f"{name}_fin"; fb = f"{name}_fb"
    a(f"v_add_f32 v14, abs(v{Oa}), abs(v{Oa+1})")
    for r in range(2, 8): a(f"v_add_f32 v14, v14, abs(v{Oa+r})")
    a(f"""
    v_cmp_le_f32 vcc, {f32hex(2.0**-60)}, v{Oa+8}
    s_mov_b32 s61, {f32hex(2.0**60)}
    v_cmp_ge_f32 s[62:63], s61, v{Oa+8}
    s_and_b64 vcc, vcc, s[62:63]
    s_mov_b32 s61, 0x7f800000
    v_cmp_gt_f32 s[62:63], s61, v14
    s_and_b64 vcc, vcc, s[62:63]
    s_cmp_eq_u64 vcc, -1
    s_cbranch_scc0 {fb}
    """)
    a.label(fin)
    a(f"""
    v_rcp_f32 v14, v{Oa+8}
    s_lshl_b32 s54, s42, 15
    s_lshl_b32 s55, s41, 10
    s_add_u32 s54, s54, s55
    s_add_u32 s54, s54, {hex(LY.OF)}
    """)
    for r in range(8): a(f"v_mul_f32 v{Oa+r}, v{Oa+r}, v14")
    for j in range(4): a(f"v_cvt_pk_bf16_f32 v{P+j}, v{Oa+2*j}, v{Oa+2*j+1}")
    a(f"buffer_store_dwordx4 v[{P}:{P+3}], v3, s[24:27], s54 offen")
    stamp(a, 3)
    stamp_flush(a, 1 if conv else 6, 4, 40, 14)
    a.label(done)
    a("s_endpgm")
    C = O[1]
    a.label(fb)
    fl = f"{name}_fbl"; fl2 = f"{name}_fbm"
    a(f"""
    v_mov_b32 v12, v3
    v_mov_b32 v14, 0xff800000
    s_mov_b32 s59, 64
    """)
    a.label(fl)
    a(f"""
    ds_read_b128 v[{KB[0]}:{KB[0]+3}], v12
    v_add_u32 v12, 1024, v12
    s_waitcnt lgkmcnt(0)
    v_mfma_f32_32x32x16_bf16 {vr(S[0],16)}, {vr(KB[0],4)}, {vr(QA,4)}, 0
    s_nop 15
    """)
    for j in range(8): a(f"v_max3_f32 v14, v14, v{S[0]+2*j}, v{S[0]+2*j+1}")
    a(f"""
    s_sub_u32 s59, s59, 1
    s_cmp_lg_u32 s59, 0
    s_cbranch_scc1 {fl}
    v_mov_b32 v15, v14
    s_nop 1
    v_permlane32_swap_b32 v14, v15
    s_nop 1
    v_max_f32 v14, v14, v15
    v_sub_f32 v14, 0, v14
    """)
    for r in range(16):
        a(f"v_mov_b32 v{C+r}, v14")
        a(f"v_mov_b32 v{Oa+r}, 0")
    a(f"""
    v_mov_b32 v12, v3
    v_and_b32 v13, 15, v1
    v_lshlrev_b32 v13, 4, v13
    v_lshrrev_b32 v14, 5, v1
    v_lshl_add_u32 v13, v14, 8, v13
    v_add_u32 v13, 0x10000, v13
    s_mov_b32 s59, 64
    """)
    a.label(fl2)
    kread(0, 0); vread(0, 0)
    a(f"""
    v_add_u32 v12, 1024, v12
    v_add_u32 v13, 1024, v13
    s_waitcnt lgkmcnt(0)
    v_mfma_f32_32x32x16_bf16 {vr(S[0],16)}, {vr(KB[0],4)}, {vr(QA,4)}, {vr(C,16)}
    s_nop 15
    """)
    for i in range(16): a(f"v_exp_f32 v{S[0]+i}, v{S[0]+i}")
    a("s_nop 0")
    for j in range(8): a(f"v_cvt_pk_bf16_f32 v{P+j}, v{S[0]+2*j}, v{S[0]+2*j+1}")
    a("s_nop 1")
    mf(Oa, VB[0], P, vr(Oa, 16))
    mf(Oa, VB[0] + 4, P + 4, vr(Oa, 16))
    a(f"""
    s_sub_u32 s59, s59, 1
    s_cmp_lg_u32 s59, 0
    s_cbranch_scc1 {fl2}
    s_nop 15
    s_branch {fin}
    """)
    if conv:
        emit_conv(a, name)
    return 112

def emit_conv(a, name):
    a.label(f"{name}_conv")
    a(f"""
    s_sub_u32 s40, s40, 8
    s_lshr_b32 s41, s40, 1
    s_and_b32 s42, s40, 1
    s_lshl_b32 s43, s2, 1
    s_add_u32 s43, s43, s41
    s_mul_i32 s45, s41, {CHB}
    s_add_u32 s45, s45, 131072
    s_lshl_b32 s46, s43, 12
    s_lshl_b32 s44, s2, 2
    s_lshl_b32 s48, s42, 11
    v_add_u32 v4, s48, v3
    v_mov_b32 v5, 0
    s_waitcnt lgkmcnt(0)
    s_load_dword s47, s[6:7], s44
    s_add_u32 s16, s4, s46
    s_addc_u32 s17, s5, 0
    s_movk_i32 s18, 0x1000
    s_mov_b32 s19, 0x00020000
    """)
    srd(a, 24, 14, LY.WS_USED)
    HL = 16
    for it in range(2):
        for k in range(2):
            a(f"buffer_load_dwordx4 v[{HL+8*it+4*k}:{HL+8*it+4*k+3}], v4, s[16:19], 0 offen offset:{it*1024 + 4*k}")
    a(f"""
    buffer_load_dword v40, v5, s[16:19], 0 offen
    s_mul_i32 s49, s42, 3072
    s_add_u32 s49, s49, s45
    s_add_u32 s50, s46, s48
    s_add_u32 m0, s49, {2*CS + 512}
    s_add_u32 s51, s50, {hex(LY.UT)}
    buffer_load_dwordx4 v3, s[24:27], s51 offen lds
    s_add_u32 m0, s49, {2*CS + 512 + 1536}
    s_add_u32 s51, s50, {hex(LY.UT + 1024)}
    buffer_load_dwordx4 v3, s[24:27], s51 offen lds
    s_barrier
    v_mov_b32 v8, 0
    v_mov_b32 v9, 0
    v_mov_b32 v10, 0
    v_mov_b32 v11, 0
    v_lshrrev_b32 v6, 5, v1
    v_and_b32 v7, 31, v1
    s_movk_i32 s52, 1536
    v_mul_lo_u32 v12, v6, s52
    v_lshl_add_u32 v12, v7, 4, v12
    s_add_u32 s52, s49, {2*CS}
    v_add_u32 v12, s52, v12
    ds_write_b128 v12, v[8:11]
    s_add_u32 s52, s45, s48
    v_add_u32 v13, s52, v3
    s_waitcnt vmcnt(3)
    """)
    for it in range(2):
        A, B = HL + 8*it, HL + 8*it + 4
        for j in range(4):
            a(f"v_alignbyte_b32 v{44+j}, v{B+j}, v{A+j}, 2")
        o = 64 + it * 1024
        a(f"ds_write_b128 v13, v[44:47] offset:{o}")
        a(f"ds_write_b128 v13, v[{B}:{B+3}] offset:{o + CS}")
    hs = a.uid(f"{name}_hs")
    a(f"""
    s_cmp_lg_u32 s42, 0
    s_cbranch_scc1 {hs}
    s_waitcnt vmcnt(2)
    v_lshlrev_b32 v44, 16, v40
    v_cmp_eq_u32 vcc, 3, v1
    s_nop 1
    v_cndmask_b32 v11, v11, v44, vcc
    v_cmp_eq_u32 vcc, 7, v1
    s_nop 1
    v_cndmask_b32 v11, v11, v40, vcc
    v_lshrrev_b32 v12, 2, v1
    s_movk_i32 s52, {CS}
    v_mul_lo_u32 v12, v12, s52
    v_and_b32 v14, 3, v1
    v_lshl_add_u32 v12, v14, 4, v12
    v_add_u32 v12, s45, v12
    s_mov_b64 exec, 0xff
    ds_write_b128 v12, v[8:11]
    s_mov_b64 exec, -1
    """)
    a.label(hs)
    a(f"""
    v_and_b32 v12, 1, v1
    s_movk_i32 s52, {CS - 2}
    v_mul_lo_u32 v12, v12, s52
    v_and_b32 v14, 19, v1
    v_lshl_add_u32 v12, v14, 1, v12
    v_bfe_u32 v14, v1, 2, 1
    v_lshl_add_u32 v12, v14, 4, v12
    v_bfe_u32 v14, v1, 3, 1
    v_lshl_add_u32 v12, v14, 3, v12
    v_lshlrev_b32 v14, 4, v6
    v_sub_u32 v12, v12, v14
    s_add_u32 s53, s45, 16
    v_add_u32 v12, s53, v12
    s_movk_i32 s52, 1536
    v_mul_lo_u32 v13, v6, s52
    v_lshl_add_u32 v13, v7, 4, v13
    s_lshl_b32 s59, s42, 9
    s_add_u32 s53, s45, s59
    s_add_u32 s53, s53, {2*CS}
    v_add_u32 v15, s53, v13
    v_subrev_u32 v13, 32, v15
    s_lshl_b32 s55, s42, 4
    s_add_u32 s55, s55, 16
    """)
    ACC = 64
    BUF = (16, 32)
    for r in range(16): a(f"v_mov_b32 v{ACC+r}, 0")
    a("s_waitcnt vmcnt(0) lgkmcnt(0)")
    a("s_barrier")
    def reads(buf, dd):
        for kp in range(2):
            b = BUF[buf] + 8 * kp
            ao = 8 * (2 * dd - kp + 1)
            a(f"ds_read2_b32 v[{b}:{b+1}], v12 offset0:{ao} offset1:{ao+1}")
            a(f"ds_read2_b32 v[{b+2}:{b+3}], v12 offset0:{ao+2} offset1:{ao+3}")
            a(f"ds_read_b128 v[{b+4}:{b+7}], v13 offset:{kp * 3072 + (32 - dd) * 16 + 32}")
    def mfmas(buf):
        for kp in range(2):
            b = BUF[buf] + 8 * kp
            a(f"v_mfma_f32_32x32x16_bf16 {vr(ACC,16)}, {vr(b,4)}, {vr(b+4,4)}, {vr(ACC,16)}")
    reads(0, 0)
    lp = f"{name}_clp"
    a.label(lp)
    reads(1, 1)
    a("s_waitcnt lgkmcnt(6)")
    mfmas(0)
    reads(0, 2)
    a("s_waitcnt lgkmcnt(6)")
    mfmas(1)
    a(f"""
    v_add_u32 v12, 128, v12
    v_subrev_u32 v13, 32, v13
    s_sub_u32 s55, s55, 1
    s_cmp_lg_u32 s55, 0
    s_cbranch_scc1 {lp}
    s_waitcnt lgkmcnt(0)
    ds_read_b128 v[16:19], v15 offset:512
    ds_read_b128 v[20:23], v15 offset:{3072 + 512}
    s_lshl_b32 s60, s47, 16
    s_and_b32 s61, s47, 0xffff0000
    s_cmp_eq_u32 s41, 0
    s_cselect_b32 s60, s60, s61
    v_lshlrev_b32 v12, 6, v7
    v_lshl_add_u32 v12, v6, 4, v12
    s_lshl_b32 s59, s42, 11
    s_add_u32 s59, s59, s46
    s_add_u32 s59, s59, {hex(LY.YT)}
    s_waitcnt lgkmcnt(0)
    """)
    for kp in range(2):
        for j in range(4):
            a(f"v_lshlrev_b32 v{24+8*kp+7-2*j}, 16, v{16+4*kp+j}")
            a(f"v_and_b32 v{24+8*kp+6-2*j}, 0xffff0000, v{16+4*kp+j}")
    for r in range(16): a(f"v_fmac_f32 v{ACC+r}, s60, v{24+r}")
    for j in range(8): a(f"v_cvt_pk_bf16_f32 v{16+j}, v{ACC+2*j}, v{ACC+2*j+1}")
    a(f"""
    buffer_store_dwordx4 v[16:19], v12, s[24:27], s59 offen
    buffer_store_dwordx4 v[20:23], v12, s[24:27], s59 offen offset:32
    s_endpgm
    """)
```

```python
import struct
from asmlib import *
import layout as LY
def f32hex(x):
    return hex(struct.unpack("<I", struct.pack("<f", x))[0])

YL = 65536 + 4 * 4096
def lds_bytes():
    return YL + 8192

def emit(a, name, layer1):
    kernel_begin(a, name)
    done = f"{name}_done"
    a(f"""
    s_cmp_ge_u32 s2, 256
    s_cbranch_scc1 {done}
    s_load_dwordx2 s[4:5], s[0:1], {0 if layer1 else 72}
    s_load_dwordx2 s[6:7], s[0:1], 16
    s_load_dwordx2 s[14:15], s[0:1], 88
    v_lshrrev_b32 v2, 6, v0
    v_and_b32 v1, 63, v0
    v_readfirstlane_b32 s40, v2
    s_and_b32 s44, s2, 7
    s_lshr_b32 s45, s2, 3
    s_lshl_b32 s41, s44, 2
    s_and_b32 s46, s45, 3
    s_add_u32 s41, s41, s46
    s_lshr_b32 s42, s45, 2
    s_and_b32 s46, s40, 1
    s_lshr_b32 s47, s40, 1
    s_lshl_b32 s43, s41, 1
    s_add_u32 s43, s43, s46
    v_lshlrev_b32 v3, 4, v1
    s_waitcnt lgkmcnt(0)
    """)
    srd(a, 16, 4, 0x200000)
    srd(a, 20, 6, 0x80000)
    srd(a, 24, 14, LY.WS_USED)
    stamp(a, 0)
    OFR, ACC, WFR, RES, YR = 64, 32, 16, 8, 128
    a(f"""
    s_lshl_b32 s49, s43, 15
    s_lshl_b32 s50, s47, 14
    s_add_u32 s49, s49, s50
    s_add_u32 s50, s49, {hex(LY.OF)}
    v_lshrrev_b32 v4, 2, v1
    v_lshlrev_b32 v4, 10, v4
    v_and_b32 v5, 3, v1
    v_lshl_add_u32 v4, v5, 4, v4
    s_lshl_b32 s52, s42, 7
    v_add_u32 v4, s52, v4
    s_lshl_b32 s53, s40, 14
    s_lshl_b32 s54, s40, 10
    """)
    for n in range(8):
        for f in range(2):
            a(f"s_add_u32 m0, s54, {f*32768 + n*4096}")
            a(f"s_add_u32 s51, s53, {f*64 + n*65536}")
            a(f"buffer_load_dwordx4 v4, s[20:23], s51 offen lds")
        for ks in (2*n, 2*n+1):
            if ks % 4 == 0 and ks:
                a("s_add_u32 s50, s50, 4096")
            a(f"buffer_load_dwordx4 v[{OFR+4*ks}:{OFR+4*ks+3}], v3, s[24:27], s50 offen offset:{(ks%4)*1024}")
    a(f"""
    v_lshrrev_b32 v5, 3, v1
    v_lshlrev_b32 v5, 12, v5
    v_and_b32 v6, 7, v1
    v_lshl_add_u32 v5, v6, 4, v5
    s_lshl_b32 s55, s42, 18
    s_lshl_b32 s56, s40, 16
    s_add_u32 s55, s55, s56
    s_lshl_b32 s56, s41, 7
    s_add_u32 s55, s55, s56
    s_lshl_b32 s57, s40, 11
    s_add_u32 m0, s57, {YL}
    s_add_u32 s56, s55, {hex(LY.YT)}
    buffer_load_dwordx4 v5, s[24:27], s56 offen lds
    s_add_u32 m0, s57, {YL + 1024}
    s_add_u32 s56, s55, {hex(LY.YT + 32768)}
    buffer_load_dwordx4 v5, s[24:27], s56 offen lds
    """)
    a(f"""
    v_and_b32 v7, 31, v1
    v_lshlrev_b32 v7, 10, v7
    v_lshrrev_b32 v6, 5, v1
    v_lshl_add_u32 v7, v6, 4, v7
    s_lshl_b32 s58, s43, 15
    s_lshl_b32 s56, s42, 7
    s_add_u32 s58, s58, s56
    s_lshl_b32 s56, s47, 6
    s_add_u32 s58, s58, s56
    s_lshl_b32 s55, s43, 15
    s_lshl_b32 s56, s42, 12
    s_add_u32 s55, s55, s56
    s_lshl_b32 s56, s47, 11
    s_add_u32 s55, s55, s56
    s_add_u32 s55, s55, {hex(LY.X2F)}
    """)
    if layer1:
        a(f"""
        buffer_load_dwordx4 v[{RES}:{RES+3}], v7, s[16:19], s58 offen
        buffer_load_dwordx4 v[{RES+4}:{RES+7}], v7, s[16:19], s58 offen offset:32
        """)
    else:
        a(f"""
        buffer_load_dwordx4 v[{RES}:{RES+3}], v3, s[24:27], s55 offen
        buffer_load_dwordx4 v[{RES+4}:{RES+7}], v3, s[24:27], s55 offen offset:1024
        """)
    a(f"""
    v_lshlrev_b32 v6, 9, v6
    v_bfe_u32 v5, v1, 2, 2
    v_lshl_add_u32 v6, v5, 6, v6
    v_lshlrev_b32 v4, 1, v6
    v_bfe_u32 v5, v1, 4, 1
    v_lshl_add_u32 v6, v5, 5, v6
    v_lshl_add_u32 v4, v5, 5, v4
    v_and_b32 v5, 3, v1
    v_lshl_add_u32 v4, v5, 3, v4
    v_and_b32 v5, 1, v1
    v_lshl_add_u32 v6, v5, 4, v6
    v_bfe_u32 v5, v1, 1, 1
    v_lshl_add_u32 v6, v5, 3, v6
    s_lshl_b32 s57, s47, 14
    v_add_u32 v6, s57, v6
    s_lshl_b32 s57, s47, 12
    s_lshl_b32 s56, s46, 6
    s_add_u32 s57, s57, s56
    s_add_u32 s57, s57, {YL}
    v_add_u32 v4, s57, v4
    s_waitcnt vmcnt(0)
    s_barrier
    """)
    stamp(a, 1)
    def wread(ks):
        b = WFR + 8 * (ks & 1)
        for f in range(2):
            for q in range(2):
                a(f"ds_read_b64_tr_b16 v[{b+4*f+2*q}:{b+4*f+2*q+1}], v6 offset:{f*32768 + ks*1024 + q*256}")
    wread(0)
    for ks in range(16):
        if ks + 1 < 16:
            wread(ks + 1)
            a("s_waitcnt lgkmcnt(4)")
        else:
            for q in range(4):
                a(f"ds_read_b64_tr_b16 v[{YR+2*q}:{YR+2*q+1}], v4 offset:{(q >> 1)*2048 + (q & 1)*512}")
            a("s_waitcnt lgkmcnt(4)")
        b = WFR + 8 * (ks & 1)
        for f in range(2):
            acc = vr(ACC + 16*f, 16)
            a(f"v_mfma_f32_32x32x16_bf16 {acc}, {vr(b+4*f,4)}, {vr(OFR+4*ks,4)}, {'0' if ks == 0 else acc}")
    stamp(a, 2)
    keep = a.uid(f"{name}_k1"); join = a.uid(f"{name}_j")
    a(f"""
    s_lshl_b32 s57, s40, 12
    s_add_u32 s57, s57, 65536
    v_add_u32 v4, s57, v3
    s_xor_b32 s57, s57, 0x2000
    v_add_u32 v5, s57, v3
    s_lshl_b32 s59, s43, 13
    s_add_u32 s59, s59, {hex(LY.GR)}
    s_lshl_b32 s60, s42, 10
    s_lshl_b32 s61, s47, 9
    s_add_u32 s60, s60, s61
    s_add_u32 s60, s60, s59
    s_nop 4
    s_cmp_eq_u32 s47, 0
    s_cbranch_scc1 {keep}
    """)
    for g in range(4): a(f"ds_write_b128 v4, v[{ACC+4*g}:{ACC+4*g+3}] offset:{g*1024}")
    for r in range(16): a(f"v_mov_b32 v{ACC+r}, v{ACC+16+r}")
    a(f"s_branch {join}")
    a.label(keep)
    for g in range(4): a(f"ds_write_b128 v4, v[{ACC+16+4*g}:{ACC+16+4*g+3}] offset:{g*1024}")
    a.label(join)
    RF = OFR + 32
    for j in range(8):
        a(f"v_lshlrev_b32 v{RF+2*j}, 16, v{RES+j}")
        a(f"v_and_b32 v{RF+2*j+1}, 0xffff0000, v{RES+j}")
    a("s_waitcnt lgkmcnt(0)")
    a("s_barrier")
    for g in range(4): a(f"ds_read_b128 v[{OFR+4*g}:{OFR+4*g+3}], v5 offset:{g*1024}")
    a(f"""
    v_mov_b32 v24, 0
    v_mov_b32 v26, 0
    s_mov_b32 s62, 0x3f803f80
    s_waitcnt lgkmcnt(0)
    """)
    def p(b): return f"v[{b}:{b+1}]"
    T = OFR + 16
    for j in range(8): a(f"v_pk_add_f32 {p(ACC+2*j)}, {p(ACC+2*j)}, {p(OFR+2*j)}")
    for j in range(8): a(f"v_cvt_pk_bf16_f32 v{T+j}, v{ACC+2*j}, v{ACC+2*j+1}")
    for j in range(8):
        a(f"v_lshlrev_b32 v{ACC+2*j}, 16, v{T+j}")
        a(f"v_and_b32 v{ACC+2*j+1}, 0xffff0000, v{T+j}")
    for j in range(8): a(f"v_pk_add_f32 {p(ACC+2*j)}, {p(ACC+2*j)}, {p(RF+2*j)}")
    for j in range(8): a(f"v_cvt_pk_bf16_f32 v{T+j}, v{ACC+2*j}, v{ACC+2*j+1}")
    for j in range(8):
        a(f"v_dot2c_f32_bf16 v24, s62, v{T+j}")
        a(f"v_dot2c_f32_bf16 v26, v{T+j}, v{T+j}")
    a(f"""
    v_and_b32 v4, 31, v1
    v_lshlrev_b32 v4, 4, v4
    s_nop 1
    v_mov_b32 v25, v24
    v_mov_b32 v27, v26
    s_nop 1
    v_permlane32_swap_b32 v24, v25
    v_permlane32_swap_b32 v26, v27
    s_nop 1
    v_add_f32 v24, v24, v25
    v_add_f32 v26, v26, v27
    v_mov_b32 v25, 1
    v_mov_b32 v27, 1
    s_mov_b64 exec, 0xffffffff
    buffer_store_dwordx4 v[24:27], v4, s[24:27], s60 offen sc0 sc1
    s_mov_b64 exec, -1
    """)
    YF_ = RF
    for j in range(8):
        a(f"v_lshlrev_b32 v{ACC+2*j}, 16, v{T+j}")
        a(f"v_and_b32 v{ACC+2*j+1}, 0xffff0000, v{T+j}")
        a(f"v_lshlrev_b32 v{YF_+2*j}, 16, v{YR+j}")
        a(f"v_and_b32 v{YF_+2*j+1}, 0xffff0000, v{YR+j}")
    stamp(a, 3)
    G = 136
    poll = f"{name}_poll"
    a("s_add_u32 s61, s59, 4096")
    a("s_mov_b32 s63, 0x10000")
    a.label(poll)
    for i in range(8):
        a(f"buffer_load_dwordx4 v[{G+4*i}:{G+4*i+3}], v3, s[24:27], s{59 if i < 4 else 61} offen offset:{(i%4)*1024} sc0 sc1")
    a("s_waitcnt vmcnt(0)")
    a(f"v_and_b32 v28, v{G+1}, v{G+3}")
    for i in range(1, 8):
        a(f"v_and_b32 v29, v{G+4*i+1}, v{G+4*i+3}")
        a(f"v_and_b32 v28, v28, v29")
    a(f"""
    v_cmp_eq_u32 vcc, 1, v28
    s_sub_u32 s63, s63, 1
    s_cbranch_scc1 {poll}_out
    s_cmp_eq_u64 vcc, -1
    s_cbranch_scc0 {poll}
    """)
    a.label(poll + "_out")
    stamp(a, 4)
    for i in range(1, 8):
        a(f"v_add_f32 v{G}, v{G}, v{G+4*i}")
        a(f"v_add_f32 v{G+2}, v{G+2}, v{G+4*i+2}")
    a(f"""
    v_mov_b32 v{G+1}, v{G}
    v_mov_b32 v{G+3}, v{G+2}
    s_mov_b32 s56, {f32hex(1.0/512)}
    s_nop 0
    v_permlane32_swap_b32 v{G}, v{G+1}
    v_permlane32_swap_b32 v{G+2}, v{G+3}
    s_nop 1
    v_add_f32 v24, v{G}, v{G+1}
    v_add_f32 v25, v{G+2}, v{G+3}
    v_mul_f32 v24, s56, v24
    v_mul_f32 v25, s56, v25
    v_fma_f32 v25, -v24, v24, v25
    v_max_f32 v25, 0, v25
    v_add_f32 v25, {f32hex(1e-5)}, v25
    v_rsq_f32 v26, v25
    s_nop 0
    v_mul_f32 v28, v24, v26
    v_sub_f32 v28, 0, v28
    v_mov_b32 v27, v26
    v_mov_b32 v29, v28
    """)
    for j in range(8): a(f"v_pk_fma_f32 {p(OFR+2*j)}, {p(ACC+2*j)}, v[26:27], v[28:29]")
    for j in range(8): a(f"v_pk_fma_f32 {p(OFR+2*j)}, {p(OFR+2*j)}, {p(YF_+2*j)}, {p(ACC+2*j)}")
    for j in range(8): a(f"v_cvt_pk_bf16_f32 v{T+j}, v{OFR+2*j}, v{OFR+2*j+1}")
    if layer1:
        a(f"""
        buffer_store_dwordx4 v[{T}:{T+3}], v3, s[24:27], s55 offen
        buffer_store_dwordx4 v[{T+4}:{T+7}], v3, s[24:27], s55 offen offset:1024
        """)
    else:
        a(f"""
        buffer_store_dwordx4 v[{T}:{T+3}], v7, s[16:19], s58 offen
        buffer_store_dwordx4 v[{T+4}:{T+7}], v7, s[16:19], s58 offen offset:32
        """)
    stamp(a, 5)
    stamp_flush(a, 3 if layer1 else 4, 6, 40, 14)
    a.label(done)
    a("s_endpgm")
    return 168
```

```python
import struct
from asmlib import *
import layout as LY

def f32hex(x):
    return hex(struct.unpack("<I", struct.pack("<f", x))[0])

LDS_W = 0
LDS_X = 98304
def lds_bytes(layer1):
    return 163840 if layer1 else 98304 + 4 * 2048

def emit(a, name, layer1):
    XS = 16384 if layer1 else 2048
    kernel_begin(a, name)
    done = f"{name}_done"
    a(f"""
    s_cmp_ge_u32 s2, 256
    s_cbranch_scc1 {done}
    s_load_dwordx4 s[4:7], s[0:1], 0
    s_load_dwordx4 s[8:11], s[0:1], 32
    s_load_dwordx2 s[12:13], s[0:1], 48
    s_load_dwordx2 s[14:15], s[0:1], 88
    v_lshrrev_b32 v2, 6, v0
    v_and_b32 v1, 63, v0
    v_readfirstlane_b32 s40, v2
    s_and_b32 s44, s2, 7
    s_lshr_b32 s45, s2, 3
    s_and_b32 s41, s44, 3
    s_lshl_b32 s41, s41, 2
    s_and_b32 s46, s45, 3
    s_add_u32 s41, s41, s46
    s_lshr_b32 s42, s44, 2
    s_lshl_b32 s42, s42, 3
    s_lshr_b32 s46, s45, 2
    s_add_u32 s42, s42, s46
    s_lshl_b32 s43, s41, 2
    s_add_u32 s43, s43, s40
    s_waitcnt lgkmcnt(0)
    """)
    srd(a, 16, 4, 0x200000)
    srd(a, 20, 6, 0x180000)
    srd(a, 24, 14, LY.WS_USED)
    stamp(a, 0)
    if layer1:
        srd(a, 28, 8, 0x200000)
        srd(a, 32, 10, 0x200000)
        srd(a, 36, 12, 0x1000)
    XF = 64
    ACC = 192
    WFR = 40
    if layer1:
        a.comment("T1 loads: k (11 rows), v (8 rows), shift taps")
        a(f"""
        s_lshr_b32 s46, s2, 3
        s_lshl_b32 s46, s46, 16
        s_lshl_b32 s47, s40, 14
        s_add_u32 s46, s46, s47
        s_and_b32 s47, s2, 7
        s_lshl_b32 s48, s47, 7
        s_add_u32 s46, s46, s48
        v_lshrrev_b32 v3, 5, v1
        v_and_b32 v4, 31, v1
        v_lshlrev_b32 v5, 13, v3
        v_lshl_add_u32 v5, v4, 2, v5
        v_add_u32 v5, s46, v5
        v_add_u32 v6, 0x1000, v5
        v_subrev_u32 v7, 0xc00, v5
        s_lshl_b32 s48, s47, 9
        v_lshl_add_u32 v8, v4, 4, s48
        """)
        T = 192
        for r in range(3):
            a(f"buffer_load_dword v{T+r}, v7, s[28:31], 0 offen offset:{r*1024}")
        for r in range(8):
            a(f"buffer_load_dword v{T+3+r}, v{5 if r < 4 else 6}, s[28:31], 0 offen offset:{(r%4)*1024}")
        for r in range(8):
            a(f"buffer_load_dword v{T+11+r}, v{5 if r < 4 else 6}, s[32:35], 0 offen offset:{(r%4)*1024}")
        a(f"buffer_load_dwordx4 v[{T+20}:{T+23}], v8, s[36:39], 0 offen")
        n_t1 = 20
        a(f"""
        v_xor_b32 v9, v4, v3
        v_lshlrev_b32 v9, 4, v9
        v_lshl_add_u32 v9, v3, 10, v9
        s_lshl_b32 s49, s43, 15
        s_mul_i32 s50, s40, {XS}
        s_add_u32 s50, s50, {LDS_X}
        """)
        def xdma(rnd):
            for i in range(16):
                a(f"v_xor_b32 v10, {((2*i) & 15) << 4}, v9")
                a(f"s_add_u32 m0, s50, {i*1024}")
                a(f"s_add_u32 s51, s49, {2*i*1024 + rnd*512}")
                a(f"buffer_load_dwordx4 v10, s[16:19], s51 offen lds")
        xdma(0)
    else:
        a.comment("X frags straight from F-layout")
        a(f"""
        v_lshlrev_b32 v9, 4, v1
        s_lshl_b32 s49, s43, 15
        s_add_u32 s49, s49, {hex(LY.X2F)}
        s_mul_i32 s50, s40, {XS}
        s_add_u32 s50, s50, {LDS_X}
        """)
        for ks in range(32):
            if ks % 4 == 0 and ks:
                a(f"s_add_u32 s49, s49, 4096")
            a(f"buffer_load_dwordx4 v[{XF+4*ks}:{XF+4*ks+3}], v9, s[24:27], s49 offen offset:{(ks%4)*1024}")
    a(f"""
    v_lshrrev_b32 v11, 2, v1
    s_movk_i32 s52, 3072
    v_mul_lo_u32 v11, v11, s52
    v_and_b32 v12, 3, v1
    v_lshl_add_u32 v11, v12, 4, v11
    s_lshl_b32 s52, s42, 6
    v_add_u32 v11, s52, v11
    s_mul_i32 s53, s40, {16*3072}
    s_lshl_b32 s54, s40, 10
    """)
    for n in range(8):
        for f in range(3):
            a(f"s_add_u32 m0, s54, {f*32768 + n*4096}")
            a(f"s_add_u32 s51, s53, {f*1024 + n*64*3072}")
            a(f"buffer_load_dwordx4 v11, s[20:23], s51 offen lds")
    n_w = 24
    stamp(a, 1)
    if layer1:
        a.comment("T1 compute")
        a(f"s_waitcnt vmcnt({16+n_w})")
        KFp = 128
        VFp = 152
        WP = 168
        RS = 176
        for r in range(11):
            a(f"v_lshlrev_b32 v{KFp+2*r}, 16, v{T+r}")
            a(f"v_and_b32 v{KFp+2*r+1}, 0xffff0000, v{T+r}")
        for r in range(8):
            a(f"v_lshlrev_b32 v{VFp+2*r}, 16, v{T+11+r}")
            a(f"v_and_b32 v{VFp+2*r+1}, 0xffff0000, v{T+11+r}")
        D0 = T + 20
        a(f"""
        v_lshlrev_b32 v{WP+0}, 16, v{D0}
        v_lshlrev_b32 v{WP+1}, 16, v{D0+2}
        v_and_b32 v{WP+2}, 0xffff0000, v{D0}
        v_and_b32 v{WP+3}, 0xffff0000, v{D0+2}
        v_lshlrev_b32 v{WP+4}, 16, v{D0+1}
        v_lshlrev_b32 v{WP+5}, 16, v{D0+3}
        v_and_b32 v{WP+6}, 0xffff0000, v{D0+1}
        v_and_b32 v{WP+7}, 0xffff0000, v{D0+3}
        """)
        def p(b): return f"v[{b}:{b+1}]"
        for t in range(8):
            a(f"v_pk_mul_f32 {p(RS+2*t)}, {p(KFp+2*t)}, {p(WP+6)}")
        for j in (2, 1, 0):
            for t in range(8):
                a(f"v_pk_fma_f32 {p(RS+2*t)}, {p(KFp+2*(t+3-j))}, {p(WP+2*j)}, {p(RS+2*t)}")
        for t in range(8):
            a(f"v_pk_mul_f32 {p(RS+2*t)}, {p(RS+2*t)}, {p(VFp+2*t)}")
        for j in range(4):
            a(f"v_cvt_pk_bf16_f32 v{T+j}, v{RS+2*(7-2*j)}, v{RS+2*(6-2*j)}")
            a(f"v_cvt_pk_bf16_f32 v{T+4+j}, v{RS+2*(7-2*j)+1}, v{RS+2*(6-2*j)+1}")
        a(f"""
        s_lshl_b32 s46, s47, 18
        s_add_u32 s46, s46, {hex(LY.UT)}
        s_lshr_b32 s48, s2, 3
        s_lshl_b32 s48, s48, 5
        s_add_u32 s46, s46, s48
        s_lshr_b32 s48, s40, 1
        s_lshl_b32 s48, s48, 4
        s_add_u32 s46, s46, s48
        s_and_b32 s48, s40, 1
        s_lshl_b32 s48, s48, 11
        s_add_u32 s46, s46, s48
        v_lshlrev_b32 v5, 13, v4
        v_lshl_add_u32 v5, v3, 10, v5
        v_add_u32 v6, 0x1000, v5
        buffer_store_dwordx4 v[{T}:{T+3}], v5, s[24:27], s46 offen
        buffer_store_dwordx4 v[{T+4}:{T+7}], v6, s[24:27], s46 offen
        """)
        n_st = 2
        a(f"""
        v_and_b32 v13, 15, v1
        v_xor_b32 v13, v13, v3
        v_lshlrev_b32 v13, 4, v13
        v_lshl_add_u32 v13, v4, 9, v13
        v_add_u32 v13, s50, v13
        s_waitcnt vmcnt({n_w+n_st})
        """)
        def xread(rnd):
            for ks in range(16):
                a(f"v_xor_b32 v10, {ks << 5}, v13")
                a(f"ds_read_b128 v[{XF+4*(16*rnd+ks)}:{XF+4*(16*rnd+ks)+3}], v10")
        xread(0)
        a("s_waitcnt lgkmcnt(0)")
        xdma(1)
    stamp(a, 2)
    SUM, SQ = 14, 16
    CS = 18
    a(f"""
    v_mov_b32 v14, 0
    v_mov_b32 v15, 0
    v_mov_b32 v16, 0
    v_mov_b32 v17, 0
    v_mov_b32 v18, 0
    v_mov_b32 v19, 0
    v_mov_b32 v20, 0
    s_mov_b32 s55, 0x3f803f80
    """)
    def stats(ks):
        for d in range(4):
            r = XF + 4*ks + d
            a(f"v_dot2c_f32_bf16 v{SUM + (d & 1)}, s55, v{r}")
            a(f"v_dot2c_f32_bf16 v{SQ + (d & 1)}, v{r}, v{r}")
    a(f"""
    v_lshrrev_b32 v21, 5, v1
    v_lshlrev_b32 v21, 9, v21
    v_bfe_u32 v22, v1, 2, 2
    v_lshl_add_u32 v21, v22, 6, v21
    v_bfe_u32 v22, v1, 4, 1
    v_lshl_add_u32 v21, v22, 5, v21
    v_and_b32 v22, 3, v1
    v_lshl_add_u32 v21, v22, 3, v21
    v_add_u32 v22, 0x10000, v21
    """)
    if layer1:
        for ks in range(16): stats(ks)
        a("s_waitcnt vmcnt(16)")
    else:
        a("s_waitcnt vmcnt(24)")
        for ks in range(32): stats(ks)
        a("s_waitcnt vmcnt(0)")
    stamp(a, 3)
    a("s_barrier")
    stamp(a, 4)
    def wread(ks):
        b = WFR + 12 * (ks & 1)
        for f in range(3):
            for q in range(2):
                base, off = (21, f*32768 + ks*1024 + q*256) if f < 2 else (22, ks*1024 + q*256)
                a(f"ds_read_b64_tr_b16 v[{b+4*f+2*q}:{b+4*f+2*q+1}], v{base} offset:{off}")
    wread(0)
    for ks in range(32):
        if layer1 and ks == 16:
            a("s_waitcnt vmcnt(0)")
            xread(1)
            a("s_waitcnt lgkmcnt(0)")
            for k2 in range(16, 32): stats(k2)
        if ks + 1 < 32:
            wread(ks + 1)
            a("s_waitcnt lgkmcnt(6)")
        else:
            a("s_waitcnt lgkmcnt(0)")
        b = WFR + 12 * (ks & 1)
        x = vr(XF + 4*ks, 4)
        for f in range(3):
            acc = vr(ACC + 16*f, 16)
            c = "0" if ks == 0 else acc
            w = vr(b + 4*f, 4)
            if f < 2: a(f"v_mfma_f32_32x32x16_bf16 {acc}, {w}, {x}, {c}")
            else:     a(f"v_mfma_f32_32x32x16_bf16 {acc}, {x}, {w}, {c}")
        skip = a.uid(f"{name}_cs")
        a(f"s_cmp_eq_u32 s40, {ks & 3}")
        a(f"s_cbranch_scc0 {skip}")
        for d in range(4):
            for f in range(3):
                a(f"v_dot2c_f32_bf16 v{CS+f}, s55, v{b+4*f+d}")
        a.label(skip)
    stamp(a, 5)
    a(f"""
    s_nop 3
    v_add_f32 v14, v14, v15
    v_add_f32 v16, v16, v17
    v_mov_b32 v15, v14
    v_mov_b32 v17, v16
    v_mov_b32 v23, v18
    v_mov_b32 v24, v19
    v_mov_b32 v25, v20
    s_nop 1
    v_permlane32_swap_b32 v14, v15
    v_permlane32_swap_b32 v16, v17
    v_permlane32_swap_b32 v18, v23
    v_permlane32_swap_b32 v19, v24
    v_permlane32_swap_b32 v20, v25
    s_nop 1
    v_add_f32 v14, v14, v15
    v_add_f32 v16, v16, v17
    v_add_f32 v18, v18, v23
    v_add_f32 v19, v19, v24
    v_add_f32 v20, v20, v25
    v_and_b32 v4, 31, v1
    v_lshl_add_u32 v26, v4, 2, s50
    ds_write_b32 v26, v18
    ds_write_b32 v26, v19 offset:128
    ds_write_b32 v26, v20 offset:256
    s_mov_b32 s56, {f32hex(1.0/512)}
    v_mul_f32 v14, s56, v14
    v_mul_f32 v16, s56, v16
    v_fma_f32 v16, -v14, v14, v16
    v_max_f32 v16, 0, v16
    v_add_f32 v16, {f32hex(1e-5)}, v16
    v_rsq_f32 v16, v16
    s_nop 0
    v_mul_f32 v17, v14, v16
    v_sub_f32 v17, 0, v17
    ds_write_b32 v26, v16 offset:512
    ds_write_b32 v26, v17 offset:640
    s_waitcnt lgkmcnt(0)
    s_barrier
    v_lshlrev_b32 v27, 2, v4
    v_add_u32 v27, {LDS_X}, v27
    """)
    for f in range(3):
        for w in range(4):
            a(f"ds_read_b32 v{28+4*f+w}, v27 offset:{w*XS + f*128}")
    a("s_waitcnt lgkmcnt(0)")
    for f in range(3):
        a(f"v_add_f32 v{28+4*f}, v{28+4*f}, v{29+4*f}")
        a(f"v_add_f32 v{30+4*f}, v{30+4*f}, v{31+4*f}")
        a(f"v_add_f32 v{18+f}, v{28+4*f}, v{30+4*f}")
    a(f"""
    ds_write_b32 v26, v18 offset:1024
    ds_write_b32 v26, v19 offset:1152
    v_lshrrev_b32 v3, 5, v1
    v_lshl_add_u32 v27, v3, 4, s50
    s_waitcnt lgkmcnt(0)
    """)
    TQ = 64
    for g in range(4):
        a(f"ds_read_b128 v[{TQ+4*g}:{TQ+4*g+3}], v27 offset:{1024 + 32*g}")
        a(f"ds_read_b128 v[{TQ+16+4*g}:{TQ+16+4*g+3}], v27 offset:{1152 + 32*g}")
        a(f"ds_read_b128 v[{TQ+32+4*g}:{TQ+32+4*g+3}], v27 offset:{512 + 32*g}")
        a(f"ds_read_b128 v[{TQ+48+4*g}:{TQ+48+4*g+3}], v27 offset:{640 + 32*g}")
    a(f"""
    s_mov_b32 s56, {f32hex(LY.QSCALE)}
    v_mul_f32 v23, s56, v16
    v_mul_f32 v24, s56, v17
    s_lshl_b32 s57, s42, 17
    s_lshl_b32 s58, s43, 10
    s_add_u32 s57, s57, s58
    v_lshlrev_b32 v9, 4, v1
    s_waitcnt lgkmcnt(0)
    """)
    PK = 128
    for f, (rs, mr) in enumerate(((23, 24), (16, 17))):
        for r in range(16):
            a(f"v_mul_f32 v{ACC+16*f+r}, v{ACC+16*f+r}, v{rs}")
            a(f"v_fmac_f32 v{ACC+16*f+r}, v{TQ+16*f+r}, v{mr}")
        for j in range(8):
            a(f"v_cvt_pk_bf16_f32 v{PK+8*f+j}, v{ACC+16*f+2*j}, v{ACC+16*f+2*j+1}")
        base = LY.QF if f == 0 else LY.KF
        a(f"s_add_u32 s58, s57, {hex(base)}")
        a(f"buffer_store_dwordx4 v[{PK+8*f}:{PK+8*f+3}], v9, s[24:27], s58 offen")
        a(f"s_add_u32 s58, s57, {hex(base + 65536)}")
        a(f"buffer_store_dwordx4 v[{PK+8*f+4}:{PK+8*f+7}], v9, s[24:27], s58 offen")
    for r in range(16):
        a(f"v_mul_f32 v{ACC+32+r}, v{ACC+32+r}, v{TQ+32+r}")
        a(f"v_fmac_f32 v{ACC+32+r}, v{TQ+48+r}, v20")
    for j in range(8):
        a(f"v_cvt_pk_bf16_f32 v{PK+16+j}, v{ACC+32+2*j}, v{ACC+32+2*j+1}")
    a(f"""
    v_and_b32 v10, 3, v1
    v_bfe_u32 v11, v1, 2, 1
    v_lshl_or_b32 v10, v11, 3, v10
    v_bfe_u32 v11, v1, 3, 1
    v_lshl_or_b32 v10, v11, 2, v10
    v_lshlrev_b32 v10, 4, v10
    v_lshl_or_b32 v10, v3, 8, v10
    v_bfe_u32 v11, v1, 4, 1
    v_lshl_or_b32 v10, v11, 16, v10
    s_add_u32 s58, s57, {hex(LY.VF)}
    buffer_store_dwordx4 v[{PK+16}:{PK+19}], v10, s[24:27], s58 offen
    buffer_store_dwordx4 v[{PK+20}:{PK+23}], v10, s[24:27], s58 offen offset:512
    """)
    stamp(a, 6)
    stamp_flush(a, 0 if layer1 else 2, 7, 40, 14)
    a.label(done)
    a("s_endpgm")
    return 240
```

```python
import sys
sys.path.insert(0, "gen")
from asmlib import *
import asmlib
import k_qkv, k_attn2, k_oproj2

HEADER = open("interleave_layers__mha_block__ssm_conv_h3__prompt.s.ref").read().split("; Override launch")[0]

def build(path):
    a = Asm()
    descs = []
    launches = []
    def add(name, vg): descs.append(kernel_desc(name, vg))
    add("qkv1_kernel", k_qkv.emit(a, "qkv1_kernel", True))
    add("qkv2_kernel", k_qkv.emit(a, "qkv2_kernel", False))
    add("attn1_kernel", k_attn2.emit(a, "attn1_kernel", True))
    add("attn2_kernel", k_attn2.emit(a, "attn2_kernel", False))
    add("oproj1_kernel", k_oproj2.emit(a, "oproj1_kernel", True))
    add("oproj2_kernel", k_oproj2.emit(a, "oproj2_kernel", False))
    L = lambda k, g, b, l: launches.append(f"; @launch kernel={k} grid=({g},1,1) block=({b},1,1) lds={l}")
    L("qkv1_kernel", 256, 256, k_qkv.lds_bytes(True))
    L("attn1_kernel", 256, 768, k_attn2.lds_bytes(True))
    L("oproj1_kernel", 256, 256, k_oproj2.lds_bytes())
    L("qkv2_kernel", 256, 256, k_qkv.lds_bytes(False))
    L("attn2_kernel", 256, 512, k_attn2.lds_bytes(False))
    L("oproj2_kernel", 256, 256, k_oproj2.lds_bytes())
    txt = HEADER + "\n".join(launches) + "\n" + '.amdgcn_target "amdgcn-amd-amdhsa--gfx950"\n.text\n' + a.text()
    txt += '.section .rodata,"a"\n' + "".join(".p2align 6\n" + d for d in descs)
    open(path, "w").write(txt)

if __name__ == "__main__":
    out = sys.argv[1] if len(sys.argv) > 1 else "interleave_layers__mha_block__ssm_conv_h3__prompt.s"
    if len(sys.argv) > 2 and sys.argv[2] == "diag":
        asmlib.DIAG = True
    build(out)
```

```python
import struct
from asmlib import *
import layout as LY

def f32hex(x):
    return hex(struct.unpack("<I", struct.pack("<f", x))[0])

CS = 4160
CHB = 2 * CS + 6144
FLAG = 131072 + 2 * CHB
def lds_bytes(conv):
    return 163840

def emit(a, name, conv):
    TS = 32
    kernel_begin(a, name)
    done = f"{name}_done"
    QA, QB, S, O, P, KB, VB = 4, 8, (16, 32), (48, 64), 80, (88, 92), (96, 104)
    a(f"""
    s_cmp_ge_u32 s2, 256
    s_cbranch_scc1 {done}
    s_load_dwordx2 s[14:15], s[0:1], 88
    """)
    if conv:
        a("s_load_dwordx4 s[4:7], s[0:1], 56")
        a("s_load_dwordx2 s[8:9], s[0:1], 16")
        a("s_load_dwordx2 s[10:11], s[0:1], 48")
        a("s_load_dwordx4 s[28:31], s[0:1], 32")
    a(f"""
    v_lshrrev_b32 v2, 6, v0
    v_and_b32 v1, 63, v0
    v_readfirstlane_b32 s40, v2
    v_lshlrev_b32 v3, 4, v1
    """)
    a(f"""
    s_and_b32 s44, s2, 7
    s_lshr_b32 s45, s2, 3
    s_lshl_b32 s41, s44, 2
    s_and_b32 s46, s45, 3
    s_add_u32 s41, s41, s46
    s_cmp_ge_u32 s40, 8
    s_cbranch_scc1 {name}_help
    s_lshr_b32 s42, s45, 2
    s_and_b32 s43, s40, 3
    s_lshr_b32 s47, s40, 2
    s_lshl_b32 s42, s42, 3
    s_lshl_b32 s46, s43, 1
    s_add_u32 s42, s42, s46
    s_lshl_b32 s48, s41, 16
    s_lshl_b32 s49, s42, 10
    s_add_u32 s49, s49, s48
    s_lshl_b32 s50, s47, 5
    s_add_u32 s51, s50, s43
    s_lshl_b32 s51, s51, 10
    s_add_u32 s52, s48, s51
    s_waitcnt lgkmcnt(0)
    """)
    srd(a, 24, 14, LY.WS_USED)
    stamp(a, 0)
    def dma(n):
        a(f"s_add_u32 m0, s51, {n*4096}")
        a(f"s_add_u32 s53, s52, {hex(LY.KF + n*4096)}")
        a(f"buffer_load_dwordx4 v3, s[24:27], s53 offen lds")
        a(f"s_add_u32 m0, s51, {65536 + n*4096}")
        a(f"s_add_u32 s53, s52, {hex(LY.VF + n*4096)}")
        a(f"buffer_load_dwordx4 v3, s[24:27], s53 offen lds")
    a(f"""
    s_add_u32 s49, s49, {hex(LY.QF)}
    buffer_load_dwordx4 v[{QA}:{QA+3}], v3, s[24:27], s49 offen
    buffer_load_dwordx4 v[{QB}:{QB+3}], v3, s[24:27], s49 offen offset:1024
    """)
    dma(0); dma(1)
    for r in range(16):
        a(f"v_mov_b32 v{O[0]+r}, 0")
        a(f"v_mov_b32 v{O[1]+r}, 0")
    zs = a.uid(f"{name}_zs")
    a(f"""
    s_cmp_ge_u32 s40, 2
    s_cbranch_scc1 {zs}
    s_lshl_b32 s53, s2, 11
    s_lshl_b32 s54, s40, 10
    s_add_u32 s53, s53, s54
    s_add_u32 s53, s53, {hex(LY.GR)}
    buffer_store_dwordx4 v[{O[0]}:{O[0]+3}], v3, s[24:27], s53 offen
    """)
    a.label(zs)
    a(f"""
    v_and_b32 v14, 27, v1
    v_cmp_eq_u32 vcc, 16, v14
    v_mov_b32 v15, 0x3f803f80
    s_lshl_b32 s54, s50, 10
    v_cndmask_b32 v14, 0, v15, vcc
    """)
    for r in range(16):
        a(f"v_mov_b32 v{VB[0]+r}, v14")
    for r in range(4):
        a(f"v_mov_b32 v{P+4+r}, 0")
    a(f"""
    v_add_u32 v12, s54, v3
    v_and_b32 v13, 15, v1
    v_lshlrev_b32 v13, 4, v13
    v_lshrrev_b32 v14, 5, v1
    v_lshl_add_u32 v13, v14, 8, v13
    s_add_u32 s54, s54, 0x10000
    v_add_u32 v13, s54, v13
    s_mov_b32 s56, 0xffff
    s_mov_b32 s57, 0xffff
    v_mov_b32 v14, {FLAG + 4}
    """)
    a("s_waitcnt vmcnt(0)")
    a("s_barrier")
    stamp(a, 1)
    def kread(buf, t): a(f"ds_read_b128 v[{KB[buf]}:{KB[buf]+3}], v12 offset:{t*1024}")
    def vread(buf, t):
        a("s_mov_b64 exec, s[56:57]")
        a(f"ds_read_b128 v[{VB[buf]}:{VB[buf]+3}], v13 offset:{t*1024}")
        a(f"ds_read_b128 v[{VB[buf]+4}:{VB[buf]+7}], v13 offset:{t*1024+512}")
        a("s_mov_b64 exec, -1")
    def mf(d, x, y, c): a(f"v_mfma_f32_32x32x16_bf16 {vr(d,16)}, {vr(x,4)}, {vr(y,4)}, {c}")
    kread(0, 0); vread(0, 0)
    a("s_waitcnt lgkmcnt(2)")
    mf(S[0], KB[0], QA, "0")
    a("s_waitcnt lgkmcnt(0)")
    a("s_nop 7"); a("s_nop 3")
    for t in range(TS):
        cur, nxt = t & 1, (t + 1) & 1
        for ph in range(2):
            s, o, op, sp = S[ph], O[ph], O[1 - ph], S[1 - ph]
            e = lambda i: a(f"v_exp_f32 v{s+i}, v{s+i}")
            c = lambda j: a(f"v_cvt_pk_bf16_f32 v{P+j}, v{s+2*j}, v{s+2*j+1}")
            vprev = VB[cur] if ph == 1 else VB[nxt]
            e(0); e(1)
            if not (t == 0 and ph == 0):
                mf(op, vprev + 4, P + 4, vr(op, 16))
            e(2); c(0); e(3); e(4); c(1); e(5)
            if ph == 0:
                mf(sp, KB[cur], QB, "0")
                if t + 1 < TS:
                    if t == 7:
                        a.comment("the helper waves have streamed the remaining K/V tiles once their counter reads 4")
                        a.label(f"{name}_kvw")
                        a(f"""
                        ds_read_b32 v15, v14
                        s_waitcnt lgkmcnt(0)
                        v_readfirstlane_b32 s53, v15
                        s_cmp_ge_u32 s53, 4
                        s_cbranch_scc0 {name}_kvw
                        """)
                    kread(nxt, t + 1); vread(nxt, t + 1)
            elif t + 1 < TS:
                a("s_waitcnt lgkmcnt(2)")
                mf(sp, KB[nxt], QA, "0")
            e(6); c(2); e(7); e(8); c(3); e(9); e(10)
            mf(o, VB[cur], P, vr(o, 16))
            c(4); e(11); e(12); c(5); e(13); e(14); c(6); e(15)
            if ph == 1: a("s_waitcnt lgkmcnt(0)")
            else: a("s_nop 0")
            c(7)
    a("s_nop 1")
    mf(O[1], VB[(TS - 1) & 1] + 4, P + 4, vr(O[1], 16))
    stamp(a, 2)
    a(f"""
    s_mul_i32 s54, s40, 2304
    s_add_u32 s54, s54, 131072
    v_lshl_add_u32 v14, v1, 2, s54
    s_xor_b32 s55, s40, 4
    s_mul_i32 s55, s55, 2304
    s_add_u32 s55, s55, 131072
    v_lshl_add_u32 v15, v1, 2, s55
    s_add_u32 s42, s42, s47
    s_nop 7
    """)
    if conv:
        a("s_barrier")
    k1 = a.uid(f"{name}_k1"); jn = a.uid(f"{name}_jn")
    a(f"""
    s_cmp_eq_u32 s47, 0
    s_cbranch_scc1 {k1}
    """)
    for r in range(9): a(f"ds_write_b32 v14, v{O[0]+r} offset:{r*256}")
    for r in range(9): a(f"v_mov_b32 v{O[0]+r}, v{O[1]+r}")
    for r in range(4): a(f"v_mov_b32 v{QA+r}, v{QB+r}")
    a(f"s_branch {jn}")
    a.label(k1)
    for r in range(9): a(f"ds_write_b32 v14, v{O[1]+r} offset:{r*256}")
    a.label(jn)
    a("s_waitcnt lgkmcnt(0)")
    a("s_barrier")
    for r in range(9): a(f"ds_read_b32 v{S[0]+r}, v15 offset:{r*256}")
    a("s_waitcnt lgkmcnt(0)")
    Oa = O[0]
    for r in range(9): a(f"v_add_f32 v{Oa+r}, v{Oa+r}, v{S[0]+r}")
    fin = f"{name}_fin"; fb = f"{name}_fb"
    a(f"v_add_f32 v14, abs(v{Oa}), abs(v{Oa+1})")
    for r in range(2, 8): a(f"v_add_f32 v14, v14, abs(v{Oa+r})")
    a(f"""
    v_cmp_le_f32 vcc, {f32hex(2.0**-60)}, v{Oa+8}
    s_mov_b32 s61, {f32hex(2.0**60)}
    v_cmp_ge_f32 s[62:63], s61, v{Oa+8}
    s_and_b64 vcc, vcc, s[62:63]
    s_mov_b32 s61, 0x7f800000
    v_cmp_gt_f32 s[62:63], s61, v14
    s_and_b64 vcc, vcc, s[62:63]
    s_cmp_eq_u64 vcc, -1
    s_cbranch_scc0 {fb}
    """)
    a.label(fin)
    a(f"""
    v_rcp_f32 v14, v{Oa+8}
    s_lshl_b32 s54, s42, 15
    s_lshl_b32 s55, s41, 10
    s_add_u32 s54, s54, s55
    s_add_u32 s54, s54, {hex(LY.OF)}
    """)
    for r in range(8): a(f"v_mul_f32 v{Oa+r}, v{Oa+r}, v14")
    for j in range(4): a(f"v_cvt_pk_bf16_f32 v{P+j}, v{Oa+2*j}, v{Oa+2*j+1}")
    a(f"buffer_store_dwordx4 v[{P}:{P+3}], v3, s[24:27], s54 offen")
    stamp(a, 3)
    stamp_flush(a, 1 if conv else 6, 4, 40, 14)
    a.label(done)
    a("s_endpgm")
    C = O[1]
    a.label(fb)
    fl = f"{name}_fbl"; fl2 = f"{name}_fbm"
    a(f"""
    v_mov_b32 v12, v3
    v_mov_b32 v14, 0xff800000
    s_mov_b32 s59, 64
    """)
    a.label(fl)
    a(f"""
    ds_read_b128 v[{KB[0]}:{KB[0]+3}], v12
    v_add_u32 v12, 1024, v12
    s_waitcnt lgkmcnt(0)
    v_mfma_f32_32x32x16_bf16 {vr(S[0],16)}, {vr(KB[0],4)}, {vr(QA,4)}, 0
    s_nop 15
    """)
    for j in range(8): a(f"v_max3_f32 v14, v14, v{S[0]+2*j}, v{S[0]+2*j+1}")
    a(f"""
    s_sub_u32 s59, s59, 1
    s_cmp_lg_u32 s59, 0
    s_cbranch_scc1 {fl}
    v_mov_b32 v15, v14
    s_nop 1
    v_permlane32_swap_b32 v14, v15
    s_nop 1
    v_max_f32 v14, v14, v15
    v_sub_f32 v14, 0, v14
    """)
    for r in range(16):
        a(f"v_mov_b32 v{C+r}, v14")
        a(f"v_mov_b32 v{Oa+r}, 0")
    a(f"""
    v_mov_b32 v12, v3
    v_and_b32 v13, 15, v1
    v_lshlrev_b32 v13, 4, v13
    v_lshrrev_b32 v14, 5, v1
    v_lshl_add_u32 v13, v14, 8, v13
    v_add_u32 v13, 0x10000, v13
    s_mov_b32 s59, 64
    """)
    a.label(fl2)
    kread(0, 0); vread(0, 0)
    a(f"""
    v_add_u32 v12, 1024, v12
    v_add_u32 v13, 1024, v13
    s_waitcnt lgkmcnt(0)
    v_mfma_f32_32x32x16_bf16 {vr(S[0],16)}, {vr(KB[0],4)}, {vr(QA,4)}, {vr(C,16)}
    s_nop 15
    """)
    for i in range(16): a(f"v_exp_f32 v{S[0]+i}, v{S[0]+i}")
    a("s_nop 0")
    for j in range(8): a(f"v_cvt_pk_bf16_f32 v{P+j}, v{S[0]+2*j}, v{S[0]+2*j+1}")
    a("s_nop 1")
    mf(Oa, VB[0], P, vr(Oa, 16))
    mf(Oa, VB[0] + 4, P + 4, vr(Oa, 16))
    a(f"""
    s_sub_u32 s59, s59, 1
    s_cmp_lg_u32 s59, 0
    s_cbranch_scc1 {fl2}
    s_nop 15
    s_branch {fin}
    """)
    emit_help(a, name, conv)
    return 112

def emit_help(a, name, conv):
    a.label(f"{name}_help")
    a(f"""
    s_sub_u32 s40, s40, 8
    s_lshl_b32 s51, s40, 10
    s_lshl_b32 s52, s41, 16
    s_add_u32 s52, s52, s51
    v_mov_b32 v5, 0
    v_mov_b32 v8, 0
    v_mov_b32 v9, 0
    v_mov_b32 v10, 0
    v_mov_b32 v11, 0
    v_mov_b32 v2, {FLAG}
    ds_write_b64 v2, v[8:9]
    """)
    if conv:
        a(f"""
        s_lshr_b32 s41, s40, 1
        s_and_b32 s42, s40, 1
        s_and_b32 s39, s2, 7
        s_lshl_b32 s39, s39, 5
        s_lshr_b32 s43, s2, 3
        s_add_u32 s39, s39, s43
        s_lshl_b32 s43, s39, 1
        s_add_u32 s43, s43, s41
        s_mul_i32 s45, s41, {CHB}
        s_add_u32 s45, s45, 131072
        s_lshl_b32 s46, s43, 12
        s_lshl_b32 s44, s39, 2
        s_lshl_b32 s48, s42, 11
        v_add_u32 v4, s48, v3
        v_lshrrev_b32 v6, 5, v1
        v_and_b32 v7, 31, v1
        s_movk_i32 s53, 1536
        v_mul_lo_u32 v12, v6, s53
        v_lshl_add_u32 v12, v7, 4, v12
        s_mul_i32 s49, s42, 3072
        s_add_u32 s49, s49, s45
        s_add_u32 s53, s49, {2*CS}
        v_add_u32 v12, s53, v12
        ds_write_b128 v12, v[8:11]
        """)
    a("s_waitcnt lgkmcnt(0)")
    srd(a, 24, 14, LY.WS_USED)
    a("s_barrier")
    a("s_setprio 3")
    for n in range(2, 8):
        for kp in range(2):
            o = kp * 32768 + n * 4096
            a(f"s_add_u32 m0, s51, {o}")
            a(f"s_add_u32 s53, s52, {hex(LY.KF + o)}")
            a(f"buffer_load_dwordx4 v3, s[24:27], s53 offen lds")
            a(f"s_add_u32 m0, s51, {65536 + o}")
            a(f"s_add_u32 s53, s52, {hex(LY.VF + o)}")
            a(f"buffer_load_dwordx4 v3, s[24:27], s53 offen lds")
    def kvdone(n):
        a(f"""
        v_mov_b32 v15, 1
        s_waitcnt vmcnt({n})
        s_mov_b64 exec, 1
        ds_add_u32 v2, v15 offset:4
        s_mov_b64 exec, -1
        """)
    if not conv:
        kvdone(0)
        a("s_endpgm")
        return
    a(f"""
    s_load_dword s47, s[6:7], s44
    s_add_u32 s16, s4, s46
    s_addc_u32 s17, s5, 0
    s_movk_i32 s18, 0x1000
    s_mov_b32 s19, 0x00020000
    """)
    srd(a, 32, 28, 0x200000)
    srd(a, 56, 30, 0x200000)
    srd(a, 60, 10, 0x1000)
    stamp(a, 0)
    HL = 48
    for it in range(2):
        for k in range(2):
            a(f"buffer_load_dwordx4 v[{HL+8*it+4*k}:{HL+8*it+4*k+3}], v4, s[16:19], 0 offen offset:{it*1024 + 4*k}")
    T = 16
    a(f"""
    buffer_load_dword v40, v5, s[16:19], 0 offen
    s_lshl_b32 s50, s39, 4
    buffer_load_dwordx4 v[36:39], v5, s[60:63], s50 offen
    s_lshl_b32 s50, s40, 19
    s_add_u32 s50, s50, s44
    v_lshlrev_b32 v12, 13, v1
    v_add_u32 v12, s50, v12
    v_add_u32 v13, 0x1000, v12
    v_subrev_u32 v14, 0xc00, v12
    """)
    kvdone(6)
    stamp(a, 1)
    for r in range(3):
        a(f"buffer_load_dword v{T+r}, v14, s[32:35], 0 offen offset:{r*1024}")
    for r in range(8):
        a(f"buffer_load_dword v{T+3+r}, v{12 if r < 4 else 13}, s[32:35], 0 offen offset:{(r%4)*1024}")
    for r in range(8):
        a(f"buffer_load_dword v{T+11+r}, v{12 if r < 4 else 13}, s[56:59], 0 offen offset:{(r%4)*1024}")
    a(f"""
    s_add_u32 s52, s45, s48
    v_add_u32 v13, s52, v3
    s_waitcnt vmcnt(19)
    """)
    for it in range(2):
        A, B = HL + 8*it, HL + 8*it + 4
        for j in range(4):
            a(f"v_alignbyte_b32 v{44+j}, v{B+j}, v{A+j}, 2")
        o = 64 + it * 1024
        a(f"ds_write_b128 v13, v[44:47] offset:{o}")
        a(f"ds_write_b128 v13, v[{B}:{B+3}] offset:{o + CS}")
    hs = a.uid(f"{name}_hs")
    a(f"""
    s_cmp_lg_u32 s42, 0
    s_cbranch_scc1 {hs}
    v_lshlrev_b32 v44, 16, v40
    v_cmp_eq_u32 vcc, 3, v1
    s_nop 1
    v_cndmask_b32 v11, v11, v44, vcc
    v_cmp_eq_u32 vcc, 7, v1
    s_nop 1
    v_cndmask_b32 v11, v11, v40, vcc
    v_lshrrev_b32 v12, 2, v1
    s_movk_i32 s52, {CS}
    v_mul_lo_u32 v12, v12, s52
    v_and_b32 v14, 3, v1
    v_lshl_add_u32 v12, v14, 4, v12
    v_add_u32 v12, s45, v12
    s_mov_b64 exec, 0xff
    ds_write_b128 v12, v[8:11]
    s_mov_b64 exec, -1
    """)
    a.label(hs)
    KFp, VFp, WP, RS = 64, 86, 102, 16
    D0 = 36
    a(f"""
    v_lshlrev_b32 v{WP+0}, 16, v{D0}
    v_lshlrev_b32 v{WP+1}, 16, v{D0+2}
    v_and_b32 v{WP+2}, 0xffff0000, v{D0}
    v_and_b32 v{WP+3}, 0xffff0000, v{D0+2}
    v_lshlrev_b32 v{WP+4}, 16, v{D0+1}
    v_lshlrev_b32 v{WP+5}, 16, v{D0+3}
    v_and_b32 v{WP+6}, 0xffff0000, v{D0+1}
    v_and_b32 v{WP+7}, 0xffff0000, v{D0+3}
    v_and_b32 v12, 3, v1
    s_movk_i32 s52, 1536
    v_mul_lo_u32 v12, v12, s52
    v_lshrrev_b32 v14, 2, v1
    v_lshl_add_u32 v14, v14, 4, v12
    s_lshl_b32 s52, s40, 8
    s_add_u32 s52, s52, {131072 + 2*CS + 512}
    v_add_u32 v14, s52, v14
    s_waitcnt vmcnt(0)
    """)
    stamp(a, 2)
    for r in range(11):
        a(f"v_lshlrev_b32 v{KFp+2*r}, 16, v{T+r}")
        a(f"v_and_b32 v{KFp+2*r+1}, 0xffff0000, v{T+r}")
    for r in range(8):
        a(f"v_lshlrev_b32 v{VFp+2*r}, 16, v{T+11+r}")
        a(f"v_and_b32 v{VFp+2*r+1}, 0xffff0000, v{T+11+r}")
    def p(b): return f"v[{b}:{b+1}]"
    for t in range(8):
        a(f"v_pk_mul_f32 {p(RS+2*t)}, {p(KFp+2*t)}, {p(WP+6)}")
    for jj in (2, 1, 0):
        for t in range(8):
            a(f"v_pk_fma_f32 {p(RS+2*t)}, {p(KFp+2*(t+3-jj))}, {p(WP+2*jj)}, {p(RS+2*t)}")
    for t in range(8):
        a(f"v_pk_mul_f32 {p(RS+2*t)}, {p(RS+2*t)}, {p(VFp+2*t)}")
    for q in range(4):
        a(f"v_cvt_pk_bf16_f32 v{32+q}, v{RS+2*(7-2*q)}, v{RS+2*(6-2*q)}")
        a(f"v_cvt_pk_bf16_f32 v{36+q}, v{RS+2*(7-2*q)+1}, v{RS+2*(6-2*q)+1}")
    a(f"""
    ds_write_b128 v14, v[32:35]
    ds_write_b128 v14, v[36:39] offset:{CHB}
    v_mov_b32 v5, 1
    s_waitcnt lgkmcnt(0)
    s_mov_b64 exec, 1
    ds_add_u32 v2, v5
    s_mov_b64 exec, -1
    """)
    a(f"""
    v_and_b32 v12, 1, v1
    s_movk_i32 s52, {CS - 2}
    v_mul_lo_u32 v12, v12, s52
    v_and_b32 v14, 19, v1
    v_lshl_add_u32 v12, v14, 1, v12
    v_bfe_u32 v14, v1, 2, 1
    v_lshl_add_u32 v12, v14, 4, v12
    v_bfe_u32 v14, v1, 3, 1
    v_lshl_add_u32 v12, v14, 3, v12
    v_lshlrev_b32 v14, 4, v6
    v_sub_u32 v12, v12, v14
    s_add_u32 s53, s45, 16
    v_add_u32 v12, s53, v12
    s_movk_i32 s52, 1536
    v_mul_lo_u32 v13, v6, s52
    v_lshl_add_u32 v13, v7, 4, v13
    s_lshl_b32 s59, s42, 9
    s_add_u32 s53, s45, s59
    s_add_u32 s53, s53, {2*CS}
    v_add_u32 v15, s53, v13
    v_subrev_u32 v13, 32, v15
    s_lshl_b32 s55, s42, 4
    s_add_u32 s55, s55, 16
    """)
    ACC = 64
    BUF = (16, 32)
    for r in range(16): a(f"v_mov_b32 v{ACC+r}, 0")
    a.label(f"{name}_cw")
    a(f"""
    ds_read_b32 v5, v2
    s_waitcnt lgkmcnt(0)
    v_readfirstlane_b32 s52, v5
    s_cmp_ge_u32 s52, 4
    s_cbranch_scc1 {name}_cwd
    s_sleep 2
    s_branch {name}_cw
    """)
    a.label(f"{name}_cwd")
    stamp(a, 3)
    a(f"""
    v_lshlrev_b32 v80, 7, v1
    s_lshr_b32 s53, s2, 3
    s_cmp_lt_u32 s40, 2
    s_cbranch_scc1 {name}_cwo
    s_mul_i32 s53, s53, 49152
    s_and_b32 s54, s40, 1
    s_mul_i32 s54, s54, 24576
    s_add_u32 s53, s53, s54
    s_add_u32 s53, s53, {hex(LY.WP)}
    buffer_load_dword v81, v80, s[24:27], s53 offen
    s_add_u32 s53, s53, 8192
    buffer_load_dword v81, v80, s[24:27], s53 offen
    s_add_u32 s53, s53, 8192
    buffer_load_dword v81, v80, s[24:27], s53 offen
    s_branch {name}_cgo
    """)
    a.label(f"{name}_cwo")
    a(f"""
    s_lshl_b32 s53, s53, 14
    s_lshl_b32 s54, s40, 13
    s_add_u32 s53, s53, s54
    s_mov_b32 s16, s8
    s_mov_b32 s17, s9
    s_mov_b32 s18, 0x80000
    buffer_load_dword v81, v80, s[16:19], s53 offen
    """)
    a.label(f"{name}_cgo")
    def reads(buf, dd):
        for kp in range(2):
            b = BUF[buf] + 8 * kp
            ao = 8 * (2 * dd - kp + 1)
            a(f"ds_read2_b32 v[{b}:{b+1}], v12 offset0:{ao} offset1:{ao+1}")
            a(f"ds_read2_b32 v[{b+2}:{b+3}], v12 offset0:{ao+2} offset1:{ao+3}")
            a(f"ds_read_b128 v[{b+4}:{b+7}], v13 offset:{kp * 3072 + (32 - dd) * 16 + 32}")
    def mfmas(buf):
        for kp in range(2):
            b = BUF[buf] + 8 * kp
            a(f"v_mfma_f32_32x32x16_bf16 {vr(ACC,16)}, {vr(b,4)}, {vr(b+4,4)}, {vr(ACC,16)}")
    reads(0, 0)
    lp = f"{name}_clp"
    a.label(lp)
    reads(1, 1)
    a("s_waitcnt lgkmcnt(6)")
    mfmas(0)
    reads(0, 2)
    a("s_waitcnt lgkmcnt(6)")
    mfmas(1)
    a(f"""
    v_add_u32 v12, 128, v12
    v_subrev_u32 v13, 32, v13
    s_sub_u32 s55, s55, 1
    s_cmp_lg_u32 s55, 0
    s_cbranch_scc1 {lp}
    s_waitcnt lgkmcnt(0)
    ds_read_b128 v[16:19], v15 offset:512
    ds_read_b128 v[20:23], v15 offset:{3072 + 512}
    s_lshl_b32 s60, s47, 16
    s_and_b32 s61, s47, 0xffff0000
    s_cmp_eq_u32 s41, 0
    s_cselect_b32 s60, s60, s61
    v_lshlrev_b32 v12, 6, v7
    v_lshl_add_u32 v12, v6, 4, v12
    s_lshl_b32 s59, s42, 11
    s_add_u32 s59, s59, s46
    s_add_u32 s59, s59, {hex(LY.YT)}
    s_waitcnt lgkmcnt(0)
    """)
    for kp in range(2):
        for j in range(4):
            a(f"v_lshlrev_b32 v{24+8*kp+7-2*j}, 16, v{16+4*kp+j}")
            a(f"v_and_b32 v{24+8*kp+6-2*j}, 0xffff0000, v{16+4*kp+j}")
    for r in range(16): a(f"v_fmac_f32 v{ACC+r}, s60, v{24+r}")
    for j in range(8): a(f"v_cvt_pk_bf16_f32 v{16+j}, v{ACC+2*j}, v{ACC+2*j+1}")
    a(f"""
    buffer_store_dwordx4 v[16:19], v12, s[24:27], s59 offen
    buffer_store_dwordx4 v[20:23], v12, s[24:27], s59 offen offset:32
    """)
    stamp(a, 4)
    stamp_flush(a, 5, 5, 40, 14)
    a("s_endpgm")
```

```python
import struct
from asmlib import *
import layout as LY
def f32hex(x):
    return hex(struct.unpack("<I", struct.pack("<f", x))[0])

YL = 65536 + 4 * 4096
def lds_bytes():
    return YL + 8192

def emit(a, name, layer1):
    kernel_begin(a, name)
    done = f"{name}_done"
    a(f"""
    s_cmp_ge_u32 s2, 256
    s_cbranch_scc1 {done}
    s_load_dwordx2 s[4:5], s[0:1], {0 if layer1 else 72}
    s_load_dwordx2 s[6:7], s[0:1], 16
    s_load_dwordx2 s[14:15], s[0:1], 88
    v_lshrrev_b32 v2, 6, v0
    v_and_b32 v1, 63, v0
    v_readfirstlane_b32 s40, v2
    s_and_b32 s44, s2, 7
    s_lshr_b32 s45, s2, 3
    s_lshl_b32 s41, s44, 2
    s_and_b32 s46, s45, 3
    s_add_u32 s41, s41, s46
    s_lshr_b32 s42, s45, 2
    s_and_b32 s46, s40, 1
    s_lshr_b32 s47, s40, 1
    s_lshl_b32 s43, s41, 1
    s_add_u32 s43, s43, s46
    v_lshlrev_b32 v3, 4, v1
    s_waitcnt lgkmcnt(0)
    """)
    srd(a, 16, 4, 0x200000)
    srd(a, 20, 6, 0x80000)
    srd(a, 24, 14, LY.WS_USED)
    stamp(a, 0)
    OFR, ACC, WFR, RES, YR = 64, 32, 16, 8, 128
    a(f"""
    s_lshl_b32 s49, s43, 15
    s_lshl_b32 s50, s47, 14
    s_add_u32 s49, s49, s50
    s_add_u32 s50, s49, {hex(LY.OF)}
    v_lshrrev_b32 v4, 2, v1
    v_lshlrev_b32 v4, 10, v4
    v_and_b32 v5, 3, v1
    v_lshl_add_u32 v4, v5, 4, v4
    s_lshl_b32 s52, s42, 7
    v_add_u32 v4, s52, v4
    s_lshl_b32 s53, s40, 14
    s_lshl_b32 s54, s40, 10
    """)
    for n in range(8):
        for f in range(2):
            a(f"s_add_u32 m0, s54, {f*32768 + n*4096}")
            a(f"s_add_u32 s51, s53, {f*64 + n*65536}")
            a(f"buffer_load_dwordx4 v4, s[20:23], s51 offen lds")
        for ks in (2*n, 2*n+1):
            if ks % 4 == 0 and ks:
                a("s_add_u32 s50, s50, 4096")
            a(f"buffer_load_dwordx4 v[{OFR+4*ks}:{OFR+4*ks+3}], v3, s[24:27], s50 offen offset:{(ks%4)*1024}")
    a(f"""
    v_lshrrev_b32 v5, 3, v1
    v_lshlrev_b32 v5, 12, v5
    v_and_b32 v6, 7, v1
    v_lshl_add_u32 v5, v6, 4, v5
    s_lshl_b32 s55, s42, 18
    s_lshl_b32 s56, s40, 16
    s_add_u32 s55, s55, s56
    s_lshl_b32 s56, s41, 7
    s_add_u32 s55, s55, s56
    s_lshl_b32 s57, s40, 11
    s_add_u32 m0, s57, {YL}
    s_add_u32 s56, s55, {hex(LY.YT)}
    buffer_load_dwordx4 v5, s[24:27], s56 offen lds
    s_add_u32 m0, s57, {YL + 1024}
    s_add_u32 s56, s55, {hex(LY.YT + 32768)}
    buffer_load_dwordx4 v5, s[24:27], s56 offen lds
    """)
    a(f"""
    v_and_b32 v7, 31, v1
    v_lshlrev_b32 v7, 10, v7
    v_lshrrev_b32 v6, 5, v1
    v_lshl_add_u32 v7, v6, 4, v7
    s_lshl_b32 s58, s43, 15
    s_lshl_b32 s56, s42, 7
    s_add_u32 s58, s58, s56
    s_lshl_b32 s56, s47, 6
    s_add_u32 s58, s58, s56
    s_lshl_b32 s55, s43, 15
    s_lshl_b32 s56, s42, 12
    s_add_u32 s55, s55, s56
    s_lshl_b32 s56, s47, 11
    s_add_u32 s55, s55, s56
    s_add_u32 s55, s55, {hex(LY.X2F)}
    """)
    if layer1:
        a(f"""
        buffer_load_dwordx4 v[{RES}:{RES+3}], v7, s[16:19], s58 offen
        buffer_load_dwordx4 v[{RES+4}:{RES+7}], v7, s[16:19], s58 offen offset:32
        """)
    else:
        a(f"""
        buffer_load_dwordx4 v[{RES}:{RES+3}], v3, s[24:27], s55 offen
        buffer_load_dwordx4 v[{RES+4}:{RES+7}], v3, s[24:27], s55 offen offset:1024
        """)
    a(f"""
    v_lshlrev_b32 v6, 9, v6
    v_bfe_u32 v5, v1, 2, 2
    v_lshl_add_u32 v6, v5, 6, v6
    v_lshlrev_b32 v4, 1, v6
    v_bfe_u32 v5, v1, 4, 1
    v_lshl_add_u32 v6, v5, 5, v6
    v_lshl_add_u32 v4, v5, 5, v4
    v_and_b32 v5, 3, v1
    v_lshl_add_u32 v4, v5, 3, v4
    v_and_b32 v5, 1, v1
    v_lshl_add_u32 v6, v5, 4, v6
    v_bfe_u32 v5, v1, 1, 1
    v_lshl_add_u32 v6, v5, 3, v6
    s_lshl_b32 s57, s47, 14
    v_add_u32 v6, s57, v6
    s_lshl_b32 s57, s47, 12
    s_lshl_b32 s56, s46, 6
    s_add_u32 s57, s57, s56
    s_add_u32 s57, s57, {YL}
    v_add_u32 v4, s57, v4
    s_waitcnt vmcnt(0)
    s_barrier
    """)
    stamp(a, 1)
    def wread(ks):
        b = WFR + 8 * (ks & 1)
        for f in range(2):
            for q in range(2):
                a(f"ds_read_b64_tr_b16 v[{b+4*f+2*q}:{b+4*f+2*q+1}], v6 offset:{f*32768 + ks*1024 + q*256}")
    wread(0)
    for ks in range(16):
        if ks + 1 < 16:
            wread(ks + 1)
            a("s_waitcnt lgkmcnt(4)")
        else:
            for q in range(4):
                a(f"ds_read_b64_tr_b16 v[{YR+2*q}:{YR+2*q+1}], v4 offset:{(q >> 1)*2048 + (q & 1)*512}")
            a("s_waitcnt lgkmcnt(4)")
        b = WFR + 8 * (ks & 1)
        for f in range(2):
            acc = vr(ACC + 16*f, 16)
            a(f"v_mfma_f32_32x32x16_bf16 {acc}, {vr(b+4*f,4)}, {vr(OFR+4*ks,4)}, {'0' if ks == 0 else acc}")
    stamp(a, 2)
    keep = a.uid(f"{name}_k1"); join = a.uid(f"{name}_j")
    a(f"""
    s_lshl_b32 s57, s40, 12
    s_add_u32 s57, s57, 65536
    v_add_u32 v4, s57, v3
    s_xor_b32 s57, s57, 0x2000
    v_add_u32 v5, s57, v3
    s_lshl_b32 s59, s43, 13
    s_add_u32 s59, s59, {hex(LY.GR)}
    s_lshl_b32 s60, s42, 10
    s_lshl_b32 s61, s47, 9
    s_add_u32 s60, s60, s61
    s_add_u32 s60, s60, s59
    s_nop 4
    s_cmp_eq_u32 s47, 0
    s_cbranch_scc1 {keep}
    """)
    for g in range(4): a(f"ds_write_b128 v4, v[{ACC+4*g}:{ACC+4*g+3}] offset:{g*1024}")
    for r in range(16): a(f"v_mov_b32 v{ACC+r}, v{ACC+16+r}")
    a(f"s_branch {join}")
    a.label(keep)
    for g in range(4): a(f"ds_write_b128 v4, v[{ACC+16+4*g}:{ACC+16+4*g+3}] offset:{g*1024}")
    a.label(join)
    RF = OFR + 32
    for j in range(8):
        a(f"v_lshlrev_b32 v{RF+2*j}, 16, v{RES+j}")
        a(f"v_and_b32 v{RF+2*j+1}, 0xffff0000, v{RES+j}")
    a("s_waitcnt lgkmcnt(0)")
    a("s_barrier")
    for g in range(4): a(f"ds_read_b128 v[{OFR+4*g}:{OFR+4*g+3}], v5 offset:{g*1024}")
    a(f"""
    v_mov_b32 v24, 0
    v_mov_b32 v26, 0
    s_mov_b32 s62, 0x3f803f80
    s_waitcnt lgkmcnt(0)
    """)
    def p(b): return f"v[{b}:{b+1}]"
    T = OFR + 16
    for j in range(8): a(f"v_pk_add_f32 {p(ACC+2*j)}, {p(ACC+2*j)}, {p(OFR+2*j)}")
    for j in range(8): a(f"v_cvt_pk_bf16_f32 v{T+j}, v{ACC+2*j}, v{ACC+2*j+1}")
    for j in range(8):
        a(f"v_lshlrev_b32 v{ACC+2*j}, 16, v{T+j}")
        a(f"v_and_b32 v{ACC+2*j+1}, 0xffff0000, v{T+j}")
    for j in range(8): a(f"v_pk_add_f32 {p(ACC+2*j)}, {p(ACC+2*j)}, {p(RF+2*j)}")
    for j in range(8): a(f"v_cvt_pk_bf16_f32 v{T+j}, v{ACC+2*j}, v{ACC+2*j+1}")
    for j in range(8):
        a(f"v_dot2c_f32_bf16 v24, s62, v{T+j}")
        a(f"v_dot2c_f32_bf16 v26, v{T+j}, v{T+j}")
    a(f"""
    v_and_b32 v4, 31, v1
    v_lshlrev_b32 v4, 4, v4
    s_nop 1
    v_mov_b32 v25, v24
    v_mov_b32 v27, v26
    s_nop 1
    v_permlane32_swap_b32 v24, v25
    v_permlane32_swap_b32 v26, v27
    s_nop 1
    v_add_f32 v24, v24, v25
    v_add_f32 v26, v26, v27
    v_mov_b32 v25, 1
    v_mov_b32 v27, 1
    s_mov_b64 exec, 0xffffffff
    buffer_store_dwordx4 v[24:27], v4, s[24:27], s60 offen sc0 sc1
    s_mov_b64 exec, -1
    """)
    YF_ = RF
    for j in range(8):
        a(f"v_lshlrev_b32 v{ACC+2*j}, 16, v{T+j}")
        a(f"v_and_b32 v{ACC+2*j+1}, 0xffff0000, v{T+j}")
        a(f"v_lshlrev_b32 v{YF_+2*j}, 16, v{YR+j}")
        a(f"v_and_b32 v{YF_+2*j+1}, 0xffff0000, v{YR+j}")
    stamp(a, 3)
    G = 136
    poll = f"{name}_poll"
    a("s_add_u32 s61, s59, 4096")
    a("s_mov_b32 s63, 0x10000")
    a.label(poll)
    for i in range(8):
        a(f"buffer_load_dwordx4 v[{G+4*i}:{G+4*i+3}], v3, s[24:27], s{59 if i < 4 else 61} offen offset:{(i%4)*1024} sc0 sc1")
    a("s_waitcnt vmcnt(0)")
    a(f"v_and_b32 v28, v{G+1}, v{G+3}")
    for i in range(1, 8):
        a(f"v_and_b32 v29, v{G+4*i+1}, v{G+4*i+3}")
        a(f"v_and_b32 v28, v28, v29")
    a(f"""
    v_cmp_eq_u32 vcc, 1, v28
    s_sub_u32 s63, s63, 1
    s_cbranch_scc1 {poll}_out
    s_cmp_eq_u64 vcc, -1
    s_cbranch_scc0 {poll}
    """)
    a.label(poll + "_out")
    stamp(a, 4)
    for i in range(1, 8):
        a(f"v_add_f32 v{G}, v{G}, v{G+4*i}")
        a(f"v_add_f32 v{G+2}, v{G+2}, v{G+4*i+2}")
    a(f"""
    v_mov_b32 v{G+1}, v{G}
    v_mov_b32 v{G+3}, v{G+2}
    s_mov_b32 s56, {f32hex(1.0/512)}
    s_nop 0
    v_permlane32_swap_b32 v{G}, v{G+1}
    v_permlane32_swap_b32 v{G+2}, v{G+3}
    s_nop 1
    v_add_f32 v24, v{G}, v{G+1}
    v_add_f32 v25, v{G+2}, v{G+3}
    v_mul_f32 v24, s56, v24
    v_mul_f32 v25, s56, v25
    v_fma_f32 v25, -v24, v24, v25
    v_max_f32 v25, 0, v25
    v_add_f32 v25, {f32hex(1e-5)}, v25
    v_rsq_f32 v26, v25
    s_nop 0
    v_mul_f32 v28, v24, v26
    v_sub_f32 v28, 0, v28
    v_mov_b32 v27, v26
    v_mov_b32 v29, v28
    """)
    for j in range(8): a(f"v_pk_fma_f32 {p(OFR+2*j)}, {p(ACC+2*j)}, v[26:27], v[28:29]")
    for j in range(8): a(f"v_pk_fma_f32 {p(OFR+2*j)}, {p(OFR+2*j)}, {p(YF_+2*j)}, {p(ACC+2*j)}")
    for j in range(8): a(f"v_cvt_pk_bf16_f32 v{T+j}, v{OFR+2*j}, v{OFR+2*j+1}")
    if layer1:
        a(f"""
        buffer_store_dwordx4 v[{T}:{T+3}], v3, s[24:27], s55 offen
        buffer_store_dwordx4 v[{T+4}:{T+7}], v3, s[24:27], s55 offen offset:1024
        v_mov_b32 v24, 0
        v_mov_b32 v25, 0
        """)
        for j in range(8):
            a(f"v_dot2c_f32_bf16 v24, s62, v{T+j}")
            a(f"v_dot2c_f32_bf16 v25, v{T+j}, v{T+j}")
        a(f"""
        v_lshrrev_b32 v4, 1, v4
        s_sub_u32 s60, s60, {hex(LY.GR)}
        s_lshr_b32 s60, s60, 1
        s_add_u32 s60, s60, {hex(LY.ST2)}
        v_mov_b32 v26, v24
        v_mov_b32 v27, v25
        s_nop 1
        v_permlane32_swap_b32 v24, v26
        v_permlane32_swap_b32 v25, v27
        s_nop 0
        v_add_f32 v24, v24, v26
        v_add_f32 v25, v25, v27
        s_mov_b64 exec, 0xffffffff
        buffer_store_dwordx2 v[24:25], v4, s[24:27], s60 offen
        """)
    else:
        a(f"""
        buffer_store_dwordx4 v[{T}:{T+3}], v7, s[16:19], s58 offen
        buffer_store_dwordx4 v[{T+4}:{T+7}], v7, s[16:19], s58 offen offset:32
        """)
    stamp(a, 5)
    stamp_flush(a, 3 if layer1 else 4, 6, 40, 14)
    a.label(done)
    a("s_endpgm")
    return 168
```

```python
import struct
from asmlib import *
import layout as LY

def f32hex(x):
    return hex(struct.unpack("<I", struct.pack("<f", x))[0])

NSLOT = 5
SLOT = 28672
STAT = NSLOT * SLOT
def lds_bytes(layer1):
    return STAT + 4 * 2048

def emit(a, name, layer1, prefetch=False):
    kernel_begin(a, name)
    done = f"{name}_done"
    a(f"""
    s_cmp_ge_u32 s2, 256
    s_cbranch_scc1 {done}
    s_load_dwordx4 s[4:7], s[0:1], 0
    s_load_dwordx2 s[14:15], s[0:1], 88
    """)
    a(f"""
    v_lshrrev_b32 v2, 6, v0
    v_and_b32 v1, 63, v0
    v_readfirstlane_b32 s40, v2
    s_and_b32 s44, s2, 7
    s_lshr_b32 s45, s2, 3
    """)
    if layer1:
        a("""
        s_and_b32 s41, s44, 3
        s_lshl_b32 s41, s41, 2
        s_and_b32 s46, s45, 3
        s_add_u32 s41, s41, s46
        s_lshr_b32 s42, s44, 2
        s_lshl_b32 s42, s42, 3
        s_lshr_b32 s46, s45, 2
        s_add_u32 s42, s42, s46
        """)
    else:
        a("""
        s_lshl_b32 s41, s44, 1
        s_and_b32 s46, s45, 1
        s_add_u32 s41, s41, s46
        s_lshr_b32 s42, s45, 1
        """)
    a(f"""
    s_and_b32 s39, s40, 3
    s_lshl_b32 s43, s41, 2
    s_add_u32 s43, s43, s39
    v_lshrrev_b32 v3, 5, v1
    v_and_b32 v4, 31, v1
    v_lshlrev_b32 v9, 4, v1
    s_lshl_b32 s49, s43, 15
    s_cmp_ge_u32 s40, 4
    s_cbranch_scc1 {name}_loader
    s_lshl_b32 s50, s40, 11
    s_add_u32 s50, s50, {STAT}
    s_waitcnt lgkmcnt(0)
    """)
    srd(a, 24, 14, LY.WS_USED)
    stamp(a, 0)
    XR = (64, 80)
    ACC = 96
    WFR = 144
    TQ = 24
    TV = 180
    SUM, SQ, CS = 14, 16, 18
    if not layer1:
        a.comment("column sums of W (written by layer 1): Q,K per register, V per lane; row-stat partials of x2")
        a(f"""
        v_lshlrev_b32 v5, 4, v3
        v_lshlrev_b32 v6, 2, v4
        s_lshl_b32 s51, s42, 7
        s_add_u32 s51, s51, {hex(LY.CSB)}
        v_lshlrev_b32 v7, 3, v1
        s_lshl_b32 s52, s43, 12
        s_add_u32 s52, s52, {hex(LY.ST2)}
        """)
        for i2 in range(8):
            a(f"buffer_load_dwordx2 v[{WFR+2*i2}:{WFR+2*i2+1}], v7, s[24:27], s52 offen offset:{512*i2}")
        for f in range(2):
            for g in range(4):
                a(f"buffer_load_dwordx4 v[{TQ+16*f+4*g}:{TQ+16*f+4*g+3}], v5, s[24:27], s51 offen offset:{f*2048 + 32*g}")
        a(f"s_add_u32 s51, s51, 4096")
        a(f"buffer_load_dword v20, v6, s[24:27], s51 offen")
    if layer1:
        a.comment("cold start: touch a distinct share of the lines this XCD will need, so all misses are in flight at once (speed only)")
        srd(a, 16, 4, 0x200000)
        srd(a, 20, 6, 0x180000)
        a(f"""
        s_and_b32 s51, s42, 7
        s_lshl_b32 s51, s51, 7
        s_add_u32 s51, s51, s49
        v_lshlrev_b32 v10, 10, v4
        buffer_load_dword v24, v10, s[16:19], s51 offen
        s_and_b32 s53, s41, 3
        s_lshl_b32 s53, s53, 1
        s_and_b32 s54, s42, 1
        s_add_u32 s53, s53, s54
        s_mul_i32 s53, s53, 3072
        s_lshl_b32 s54, s42, 6
        s_add_u32 s53, s53, s54
        s_min_u32 s54, s40, 2
        s_lshl_b32 s54, s54, 10
        s_add_u32 s53, s53, s54
        s_movk_i32 s54, {8*3072}
        v_mul_lo_u32 v10, v1, s54
        buffer_load_dword v25, v10, s[20:23], s53 offen
        """)
    a(f"""
    s_mov_b32 s55, 0x3f803f80
    v_lshlrev_b32 v21, 9, v3
    v_bfe_u32 v22, v1, 2, 2
    v_lshl_add_u32 v21, v22, 6, v21
    v_bfe_u32 v22, v1, 4, 1
    v_lshl_add_u32 v21, v22, 5, v21
    v_and_b32 v22, 3, v1
    v_lshl_add_u32 v21, v22, 3, v21
    v_add_u32 v22, {2*SLOT}, v21
    v_add_u32 v23, {4*SLOT}, v21
    s_lshl_b32 s56, s40, 12
    s_add_u32 s56, s56, 12288
    """)
    if layer1:
        a(f"""
        v_bfe_u32 v13, v1, 1, 3
        v_xor_b32 v13, v13, v3
        v_lshlrev_b32 v13, 4, v13
        v_lshl_add_u32 v13, v4, 7, v13
        v_add_u32 v13, s56, v13
        """)
        for kk in range(4):
            a(f"v_xor_b32 v{56+kk}, {kk << 5}, v13")
            a(f"v_add_u32 v{60+kk}, {2*SLOT}, v{56+kk}")
            a(f"v_add_u32 v{5+kk}, {4*SLOT}, v{56+kk}")
        for r in (14, 15, 16, 17, 18, 19, 20):
            a(f"v_mov_b32 v{r}, 0")
    else:
        a(f"""
        v_add_u32 v56, s56, v9
        v_add_u32 v60, {2*SLOT}, v56
        v_add_u32 v5, {4*SLOT}, v56
        """)
    def finish_stats():
        a(f"""
        v_mov_b32 v15, v14
        v_mov_b32 v17, v16
        v_lshl_add_u32 v12, v4, 2, s50
        v_lshl_add_u32 v11, v3, 4, s50
        v_permlane32_swap_b32 v14, v15
        v_permlane32_swap_b32 v16, v17
        s_mov_b32 s56, {f32hex(1.0/512)}
        s_nop 0
        v_add_f32 v14, v14, v15
        v_add_f32 v16, v16, v17
        v_mul_f32 v14, s56, v14
        v_mul_f32 v16, s56, v16
        v_fma_f32 v16, -v14, v14, v16
        v_max_f32 v16, 0, v16
        v_add_f32 v16, {f32hex(1e-5)}, v16
        v_rsq_f32 v16, v16
        s_nop 0
        v_mul_f32 v17, v14, v16
        v_sub_f32 v17, 0, v17
        ds_write_b32 v12, v16 offset:512
        ds_write_b32 v12, v17 offset:640
        s_waitcnt lgkmcnt(0)
        """)
        for g in range(4):
            a(f"ds_read_b128 v[{TV+4*g}:{TV+4*g+3}], v11 offset:{512 + 32*g}")
            a(f"ds_read_b128 v[{TV+16+4*g}:{TV+16+4*g+3}], v11 offset:{640 + 32*g}")
    if not layer1:
        a("s_waitcnt vmcnt(9)")
        for i2 in range(1, 8):
            a(f"v_add_f32 v{WFR}, v{WFR}, v{WFR+2*i2}")
            a(f"v_add_f32 v{WFR+1}, v{WFR+1}, v{WFR+2*i2+1}")
        a(f"v_mov_b32 v14, v{WFR}")
        a(f"v_mov_b32 v16, v{WFR+1}")
        finish_stats()
        a("s_waitcnt lgkmcnt(0)")
    def wread(ks):
        j, kk = ks // 4, ks % 4
        sl = j % NSLOT
        base = 21 + sl // 2
        b = WFR + 12 * (ks % 3)
        for f in range(3):
            for q in range(2):
                off = (sl & 1) * SLOT + f*4096 + kk*1024 + q*256
                a(f"ds_read_b64_tr_b16 v[{b+4*f+2*q}:{b+4*f+2*q+1}], v{base} offset:{off}")
    def xread(j):
        sl = j % NSLOT
        for kk in range(4):
            if layer1:
                base, off = (56, 60, 5)[sl // 2] + kk, (sl & 1) * SLOT
            else:
                base, off = (56, 60, 5)[sl // 2], (sl & 1) * SLOT + kk * 1024
            a(f"ds_read_b128 v[{XR[j&1]+4*kk}:{XR[j&1]+4*kk+3}], v{base} offset:{off}")
    a("s_barrier")
    stamp(a, 1)
    xread(0); wread(0)
    for ks in range(32):
        j, kk = ks // 4, ks % 4
        if kk == 0:
            a("s_waitcnt lgkmcnt(0)")
            wread(ks + 1); wread(ks + 2)
        elif kk == 1:
            a("s_waitcnt lgkmcnt(6)")
            wread(ks + 2)
        elif kk == 2:
            a("s_waitcnt lgkmcnt(6)")
        else:
            a("s_waitcnt lgkmcnt(0)")
            if j < 7:
                a("s_barrier")
                if j == 6: stamp(a, 2)
                xread(j + 1); wread(ks + 1)
        b = WFR + 12 * (ks % 3)
        xr = XR[j & 1] + 4*kk
        x = vr(xr, 4)
        for f in range(3):
            acc = vr(ACC + 16*f, 16)
            c = "0" if ks == 0 else acc
            w = vr(b + 4*f, 4)
            if f < 2: a(f"v_mfma_f32_32x32x16_bf16 {acc}, {w}, {x}, {c}")
            else:     a(f"v_mfma_f32_32x32x16_bf16 {acc}, {x}, {w}, {c}")
        if layer1:
            skip = a.uid(f"{name}_cs")
            a(f"s_cmp_eq_u32 s40, {kk}")
            a(f"s_cbranch_scc0 {skip}")
            for d in range(4):
                for f in range(3):
                    a(f"v_dot2c_f32_bf16 v{CS+f}, s55, v{b+4*f+d}")
            a.label(skip)
            if kk == 2:
                for r in range(16):
                    a(f"v_dot2c_f32_bf16 v{SUM + (r & 1)}, s55, v{XR[j&1]+r}")
                    a(f"v_dot2c_f32_bf16 v{SQ + (r & 1)}, v{XR[j&1]+r}, v{XR[j&1]+r}")
    stamp(a, 3)
    if layer1:
        a(f"""
        s_nop 2
        v_add_f32 v14, v14, v15
        v_add_f32 v16, v16, v17
        v_mov_b32 v57, v18
        v_mov_b32 v58, v19
        v_mov_b32 v59, v20
        v_lshl_add_u32 v12, v4, 2, s50
        s_nop 0
        v_permlane32_swap_b32 v18, v57
        v_permlane32_swap_b32 v19, v58
        v_permlane32_swap_b32 v20, v59
        s_nop 0
        v_add_f32 v18, v18, v57
        v_add_f32 v19, v19, v58
        v_add_f32 v20, v20, v59
        ds_write_b32 v12, v18
        ds_write_b32 v12, v19 offset:128
        ds_write_b32 v12, v20 offset:256
        """)
        finish_stats()
        a(f"""
        s_barrier
        v_lshlrev_b32 v10, 2, v4
        v_add_u32 v13, {STAT}, v10
        """)
        for f in range(3):
            for w in range(4):
                a(f"ds_read_b32 v{64+4*f+w}, v13 offset:{w*2048 + f*128}")
        a("s_waitcnt lgkmcnt(0)")
        for f in range(3):
            a(f"v_add_f32 v{64+4*f}, v{64+4*f}, v{65+4*f}")
            a(f"v_add_f32 v{66+4*f}, v{66+4*f}, v{67+4*f}")
            a(f"v_add_f32 v{CS+f}, v{64+4*f}, v{66+4*f}")
        a(f"""
        ds_write_b32 v12, v18 offset:1024
        ds_write_b32 v12, v19 offset:1152
        """)
        sk = a.uid(f"{name}_cst")
        a(f"""
        s_cmp_lg_u32 s43, 0
        s_cbranch_scc1 {sk}
        s_lshl_b32 s51, s42, 7
        s_add_u32 s51, s51, {hex(LY.CSB)}
        buffer_store_dword v18, v10, s[24:27], s51 offen
        buffer_store_dword v19, v10, s[24:27], s51 offen offset:2048
        s_add_u32 s51, s51, 4096
        buffer_store_dword v20, v10, s[24:27], s51 offen
        """)
        a.label(sk)
        a("s_waitcnt lgkmcnt(0)")
        for g in range(4):
            a(f"ds_read_b128 v[{TQ+4*g}:{TQ+4*g+3}], v11 offset:{1024 + 32*g}")
            a(f"ds_read_b128 v[{TQ+16+4*g}:{TQ+16+4*g+3}], v11 offset:{1152 + 32*g}")
    a(f"""
    s_mov_b32 s56, {f32hex(LY.QSCALE)}
    v_mul_f32 v56, s56, v16
    v_mul_f32 v58, s56, v17
    v_mov_b32 v57, v56
    v_mov_b32 v59, v58
    v_mov_b32 v60, v16
    v_mov_b32 v61, v16
    v_mov_b32 v62, v17
    v_mov_b32 v63, v17
    s_waitcnt vmcnt(0)
    v_mov_b32 v21, v20
    s_lshl_b32 s57, s42, 17
    s_lshl_b32 s58, s43, 10
    s_add_u32 s57, s57, s58
    v_and_b32 v10, 3, v1
    v_bfe_u32 v11, v1, 2, 1
    v_lshl_or_b32 v10, v11, 3, v10
    v_bfe_u32 v11, v1, 3, 1
    v_lshl_or_b32 v10, v11, 2, v10
    v_lshlrev_b32 v10, 4, v10
    v_lshl_or_b32 v10, v3, 8, v10
    v_bfe_u32 v11, v1, 4, 1
    v_lshl_or_b32 v10, v11, 16, v10
    s_waitcnt lgkmcnt(0)
    """)
    def p(b): return f"v[{b}:{b+1}]"
    PK = 64
    for f, (rs, mr) in ((1, (60, 62)), (0, (56, 58))):
        for j in range(8):
            a(f"v_pk_mul_f32 {p(ACC+16*f+2*j)}, {p(ACC+16*f+2*j)}, {p(rs)}")
        for j in range(8):
            a(f"v_pk_fma_f32 {p(ACC+16*f+2*j)}, {p(TQ+16*f+2*j)}, {p(mr)}, {p(ACC+16*f+2*j)}")
        for j in range(8):
            a(f"v_cvt_pk_bf16_f32 v{PK+8*f+j}, v{ACC+16*f+2*j}, v{ACC+16*f+2*j+1}")
        base = LY.QF if f == 0 else LY.KF
        a(f"s_add_u32 s58, s57, {hex(base)}")
        a(f"buffer_store_dwordx4 v[{PK+8*f}:{PK+8*f+3}], v9, s[24:27], s58 offen")
        a(f"s_add_u32 s58, s57, {hex(base + 65536)}")
        a(f"buffer_store_dwordx4 v[{PK+8*f+4}:{PK+8*f+7}], v9, s[24:27], s58 offen")
    for j in range(8):
        a(f"v_pk_mul_f32 {p(ACC+32+2*j)}, {p(ACC+32+2*j)}, {p(TV+2*j)}")
    for j in range(8):
        a(f"v_pk_fma_f32 {p(ACC+32+2*j)}, {p(TV+16+2*j)}, v[20:21], {p(ACC+32+2*j)}")
    for j in range(8):
        a(f"v_cvt_pk_bf16_f32 v{PK+16+j}, v{ACC+32+2*j}, v{ACC+32+2*j+1}")
    a(f"""
    s_add_u32 s58, s57, {hex(LY.VF)}
    buffer_store_dwordx4 v[{PK+16}:{PK+19}], v10, s[24:27], s58 offen
    buffer_store_dwordx4 v[{PK+20}:{PK+23}], v10, s[24:27], s58 offen offset:512
    """)
    stamp(a, 4)
    stamp_flush(a, 0 if layer1 else 2, 5, 40, 14)
    a.label(done)
    a("s_endpgm")
    a.label(f"{name}_loader")
    a(f"""
    v_lshrrev_b32 v11, 2, v1
    s_movk_i32 s52, 3072
    v_mul_lo_u32 v11, v11, s52
    v_and_b32 v12, 3, v1
    v_lshl_add_u32 v11, v12, 4, v11
    s_lshl_b32 s52, s42, 6
    s_mul_i32 s53, s39, {16*3072}
    s_add_u32 s52, s52, s53
    s_lshl_b32 s53, s39, 10
    s_lshl_b32 s54, s39, 12
    s_add_u32 s54, s54, 12288
    """)
    if layer1:
        a(f"""
        v_lshrrev_b32 v13, 3, v1
        v_lshrrev_b32 v14, 4, v1
        v_and_b32 v15, 7, v1
        v_xor_b32 v15, v15, v14
        v_lshlrev_b32 v15, 4, v15
        v_lshl_add_u32 v15, v13, 10, v15
        v_xor_b32 v16, 64, v15
        """)
    else:
        a(f"""
        s_add_u32 s49, s49, {hex(LY.X2F)}
        s_mul_i32 s52, s42, {8*12288}
        s_add_u32 s52, s52, s53
        s_add_u32 s52, s52, {hex(LY.WP)}
        """)
    a("s_waitcnt lgkmcnt(0)")
    if layer1: srd(a, 20, 6, 0x180000)
    if layer1: srd(a, 16, 4, 0x200000)
    srd(a, 24, 14, LY.WS_USED)
    def issue(j):
        sl = (j % NSLOT) * SLOT
        for n in range(4):
            a(f"s_add_u32 m0, s54, {sl + n*1024}")
            if layer1:
                a(f"s_add_u32 s51, s49, {n*8192 + j*128}")
                a(f"buffer_load_dwordx4 v{15 + (n & 1)}, s[16:19], s51 offen lds")
            else:
                a(f"s_add_u32 s51, s49, {j*4096 + n*1024}")
                a(f"buffer_load_dwordx4 v9, s[24:27], s51 offen lds")
            if n < 3:
                a(f"s_add_u32 m0, s53, {sl + n*4096}")
                if layer1:
                    a(f"s_add_u32 s51, s52, {n*1024 + j*64*3072}")
                    a(f"buffer_load_dwordx4 v11, s[20:23], s51 offen lds")
                else:
                    a(f"s_add_u32 s51, s52, {n*4096 + j*12288}")
                    a(f"buffer_load_dwordx4 v9, s[24:27], s51 offen lds")
    LA = 3
    for j in range(LA): issue(j)
    nT1 = 2 if layer1 else 0
    def t1_loads():
        a.comment("packed copy of W for layer 2: rows [32rb,32rb+32), tile f = lw (lw 3 repeats f=2)")
        a(f"""
        s_min_u32 s56, s39, 2
        s_lshl_b32 s57, s56, 10
        s_lshl_b32 s58, s42, 6
        s_add_u32 s57, s57, s58
        s_mul_i32 s58, s41, {32*3072}
        s_add_u32 s57, s57, s58
        buffer_load_dwordx4 v[112:115], v11, s[20:23], s57 offen
        s_add_u32 s57, s57, {16*3072}
        buffer_load_dwordx4 v[116:119], v11, s[20:23], s57 offen
        s_mul_i32 s59, s42, {8*12288}
        s_lshr_b32 s58, s41, 1
        s_mul_i32 s58, s58, 12288
        s_add_u32 s59, s59, s58
        s_and_b32 s58, s41, 1
        s_lshl_b32 s58, s58, 11
        s_add_u32 s59, s59, s58
        s_lshl_b32 s56, s56, 12
        s_add_u32 s59, s59, s56
        s_add_u32 s59, s59, {hex(LY.WP)}
        """)
    for j in range(8):
        issued = min(8, LA + j)
        extra = nT1 if j >= 6 else 0
        a(f"s_waitcnt vmcnt({7 * (issued - j - 1) + extra})")
        a("s_barrier")
        if j + LA < 8: issue(j + LA)
        if j == 5 and layer1: t1_loads()
    if layer1:
        a("s_waitcnt vmcnt(0)")
        a("buffer_store_dwordx4 v[112:115], v9, s[24:27], s59 offen")
        a("buffer_store_dwordx4 v[116:119], v9, s[24:27], s59 offen offset:1024")
    a("s_endpgm")
    return 212
```

```python
import sys
sys.path.insert(0, "gen")
from asmlib import *
import asmlib
import k_qkv3 as k_qkv, k_attn2, k_oproj2

HEADER = open("interleave_layers__mha_block__ssm_conv_h3__prompt.s.ref").read().split("; Override launch")[0]

def build(path):
    a = Asm()
    descs = []
    launches = []
    def add(name, vg): descs.append(kernel_desc(name, vg))
    add("qkv1_kernel", k_qkv.emit(a, "qkv1_kernel", True))
    add("qkv2_kernel", k_qkv.emit(a, "qkv2_kernel", False))
    add("attn1_kernel", k_attn2.emit(a, "attn1_kernel", True))
    add("attn2_kernel", k_attn2.emit(a, "attn2_kernel", False))
    add("oproj1_kernel", k_oproj2.emit(a, "oproj1_kernel", True))
    add("oproj2_kernel", k_oproj2.emit(a, "oproj2_kernel", False))
    L = lambda k, g, b, l: launches.append(f"; @launch kernel={k} grid=({g},1,1) block=({b},1,1) lds={l}")
    L("qkv1_kernel", 256, 512, k_qkv.lds_bytes(True))
    L("attn1_kernel", 256, 768, k_attn2.lds_bytes(True))
    L("oproj1_kernel", 256, 256, k_oproj2.lds_bytes())
    L("qkv2_kernel", 256, 512, k_qkv.lds_bytes(False))
    L("attn2_kernel", 256, 768, k_attn2.lds_bytes(False))
    L("oproj2_kernel", 256, 256, k_oproj2.lds_bytes())
    txt = HEADER + "\n".join(launches) + "\n" + '.amdgcn_target "amdgcn-amd-amdhsa--gfx950"\n.text\n' + a.text()
    txt += '.section .rodata,"a"\n' + "".join(".p2align 6\n" + d for d in descs)
    open(path, "w").write(txt)

if __name__ == "__main__":
    out = sys.argv[1] if len(sys.argv) > 1 else "interleave_layers__mha_block__ssm_conv_h3__prompt.s"
    if len(sys.argv) > 2 and sys.argv[2] == "diag":
        asmlib.DIAG = True
    build(out)
```

```python
import struct
from asmlib import *
import layout as LY

def f32hex(x):
    return hex(struct.unpack("<I", struct.pack("<f", x))[0])

CS = 4160
CHB = 2 * CS + 6144
FLAG = 131072 + 2 * CHB
def lds_bytes(conv):
    return 163840

U = 32
def emit(a, name, conv):
    TS = 32
    kernel_begin(a, name)
    done = f"{name}_done"
    QA, QB, S, O, P, KB, VB = 4, 8, (16, 32), (48, 64), 80, (88, 92), (96, 104)
    a(f"""
    s_cmp_ge_u32 s2, 256
    s_cbranch_scc1 {done}
    s_load_dwordx2 s[14:15], s[0:1], 88
    """)
    if conv:
        a("s_load_dwordx4 s[4:7], s[0:1], 56")
        a("s_load_dwordx2 s[8:9], s[0:1], 16")
        a("s_load_dwordx2 s[10:11], s[0:1], 48")
        a("s_load_dwordx4 s[28:31], s[0:1], 32")
    a(f"""
    v_lshrrev_b32 v2, 6, v0
    v_and_b32 v1, 63, v0
    v_readfirstlane_b32 s40, v2
    v_lshlrev_b32 v3, 4, v1
    """)
    a(f"""
    s_and_b32 s44, s2, 7
    s_lshr_b32 s45, s2, 3
    s_lshl_b32 s41, s44, 2
    s_and_b32 s46, s45, 3
    s_add_u32 s41, s41, s46
    s_cmp_ge_u32 s40, 8
    s_cbranch_scc1 {name}_help
    s_lshr_b32 s42, s45, 2
    s_and_b32 s43, s40, 3
    s_lshr_b32 s47, s40, 2
    s_lshl_b32 s42, s42, 3
    s_lshl_b32 s46, s43, 1
    s_add_u32 s42, s42, s46
    s_lshl_b32 s48, s41, 16
    s_lshl_b32 s49, s42, 10
    s_add_u32 s49, s49, s48
    s_lshl_b32 s50, s47, 5
    s_add_u32 s51, s50, s43
    s_lshl_b32 s51, s51, 10
    s_add_u32 s52, s48, s51
    s_waitcnt lgkmcnt(0)
    """)
    srd(a, 24, 14, LY.WS_USED)
    stamp(a, 0)
    def dma(n):
        a(f"s_add_u32 m0, s51, {n*4096}")
        a(f"s_add_u32 s53, s52, {hex(LY.KF + n*4096)}")
        a(f"buffer_load_dwordx4 v3, s[24:27], s53 offen lds")
        a(f"s_add_u32 m0, s51, {65536 + n*4096}")
        a(f"s_add_u32 s53, s52, {hex(LY.VF + n*4096)}")
        a(f"buffer_load_dwordx4 v3, s[24:27], s53 offen lds")
    a(f"""
    s_add_u32 s49, s49, {hex(LY.QF)}
    buffer_load_dwordx4 v[{QA}:{QA+3}], v3, s[24:27], s49 offen
    buffer_load_dwordx4 v[{QB}:{QB+3}], v3, s[24:27], s49 offen offset:1024
    """)
    dma(0); dma(1)
    for r in range(16):
        a(f"v_mov_b32 v{O[0]+r}, 0")
        a(f"v_mov_b32 v{O[1]+r}, 0")
    zs = a.uid(f"{name}_zs")
    a(f"""
    s_cmp_ge_u32 s40, 2
    s_cbranch_scc1 {zs}
    s_lshl_b32 s53, s2, 11
    s_lshl_b32 s54, s40, 10
    s_add_u32 s53, s53, s54
    s_add_u32 s53, s53, {hex(LY.GR)}
    buffer_store_dwordx4 v[{O[0]}:{O[0]+3}], v3, s[24:27], s53 offen
    """)
    a.label(zs)
    a(f"""
    v_and_b32 v14, 27, v1
    v_cmp_eq_u32 vcc, 16, v14
    v_mov_b32 v15, 0x3f803f80
    s_lshl_b32 s54, s50, 10
    v_cndmask_b32 v14, 0, v15, vcc
    """)
    for r in range(16):
        a(f"v_mov_b32 v{VB[0]+r}, v14")
    for r in range(4):
        a(f"v_mov_b32 v{P+4+r}, 0")
    a(f"""
    v_add_u32 v12, s54, v3
    v_and_b32 v13, 15, v1
    v_lshlrev_b32 v13, 4, v13
    v_lshrrev_b32 v14, 5, v1
    v_lshl_add_u32 v13, v14, 8, v13
    s_add_u32 s54, s54, 0x10000
    v_add_u32 v13, s54, v13
    s_mov_b32 s56, 0xffff
    s_mov_b32 s57, 0xffff
    v_mov_b32 v14, {FLAG + 4}
    """)
    a("s_waitcnt vmcnt(0)")
    a("s_barrier")
    stamp(a, 1)
    def kread(buf, t): a(f"ds_read_b128 v[{KB[buf]}:{KB[buf]+3}], v12 offset:{t*1024}")
    def vread(buf, t):
        a("s_mov_b64 exec, s[56:57]")
        a(f"ds_read_b128 v[{VB[buf]}:{VB[buf]+3}], v13 offset:{t*1024}")
        a(f"ds_read_b128 v[{VB[buf]+4}:{VB[buf]+7}], v13 offset:{t*1024+512}")
        a("s_mov_b64 exec, -1")
    def mf(d, x, y, c): a(f"v_mfma_f32_32x32x16_bf16 {vr(d,16)}, {vr(x,4)}, {vr(y,4)}, {c}")
    kread(0, 0); vread(0, 0)
    a("s_waitcnt lgkmcnt(2)")
    mf(S[0], KB[0], QA, "0")
    a("s_waitcnt lgkmcnt(0)")
    a("s_nop 7"); a("s_nop 3")
    looped = U < TS
    if looped:
        a(f"s_mov_b32 s58, {TS // U}")
        a(f"s_mov_b32 s59, 0")
        a.label(f"{name}_loop")
    for t in range(U):
        cur, nxt = t & 1, (t + 1) & 1
        last = (t + 1 == TS) and not looped
        for ph in range(2):
            s, o, op, sp = S[ph], O[ph], O[1 - ph], S[1 - ph]
            e = lambda i: a(f"v_exp_f32 v{s+i}, v{s+i}")
            c = lambda j: a(f"v_cvt_pk_bf16_f32 v{P+j}, v{s+2*j}, v{s+2*j+1}")
            vprev = VB[cur] if ph == 1 else VB[nxt]
            e(0); e(1)
            if looped or not (t == 0 and ph == 0):
                mf(op, vprev + 4, P + 4, vr(op, 16))
            e(2); c(0); e(3); e(4); c(1); e(5)
            if ph == 0:
                mf(sp, KB[cur], QB, "0")
                if not last:
                    if t == 7:
                        a.comment("the helper waves have streamed the remaining K/V tiles once their counter reads 4")
                        if looped:
                            a(f"s_cmp_lg_u32 s59, 0")
                            a(f"s_cbranch_scc1 {name}_kvd")
                        a.label(f"{name}_kvw")
                        a(f"""
                        ds_read_b32 v15, v14
                        s_waitcnt lgkmcnt(0)
                        v_readfirstlane_b32 s59, v15
                        s_cmp_ge_u32 s59, 4
                        s_cbranch_scc0 {name}_kvw
                        """)
                        a.label(f"{name}_kvd")
                    kread(nxt, t + 1); vread(nxt, t + 1)
            elif not last:
                a("s_waitcnt lgkmcnt(2)")
                mf(sp, KB[nxt], QA, "0")
            e(6); c(2); e(7); e(8); c(3); e(9); e(10)
            mf(o, VB[cur], P, vr(o, 16))
            c(4); e(11); e(12); c(5); e(13); e(14); c(6); e(15)
            if ph == 1: a("s_waitcnt lgkmcnt(0)")
            elif looped and t == U - 1:
                a(f"v_add_u32 v12, {U*1024}, v12")
            else: a("s_nop 0")
            c(7)
            if looped and t == U - 1 and ph == 0:
                a(f"v_add_u32 v13, {U*1024}, v13")
    if looped:
        a(f"""
        s_sub_u32 s58, s58, 1
        s_cmp_lg_u32 s58, 0
        s_cbranch_scc1 {name}_loop
        """)
    a("s_nop 1")
    mf(O[1], VB[(TS - 1) & 1] + 4, P + 4, vr(O[1], 16))
    stamp(a, 2)
    a(f"""
    s_mul_i32 s54, s40, 2304
    s_add_u32 s54, s54, 131072
    v_lshl_add_u32 v14, v1, 2, s54
    s_xor_b32 s55, s40, 4
    s_mul_i32 s55, s55, 2304
    s_add_u32 s55, s55, 131072
    v_lshl_add_u32 v15, v1, 2, s55
    s_add_u32 s42, s42, s47
    s_nop 7
    """)
    if conv:
        a("s_barrier")
    k1 = a.uid(f"{name}_k1"); jn = a.uid(f"{name}_jn")
    a(f"""
    s_cmp_eq_u32 s47, 0
    s_cbranch_scc1 {k1}
    """)
    for r in range(9): a(f"ds_write_b32 v14, v{O[0]+r} offset:{r*256}")
    for r in range(9): a(f"v_mov_b32 v{O[0]+r}, v{O[1]+r}")
    for r in range(4): a(f"v_mov_b32 v{QA+r}, v{QB+r}")
    a(f"s_branch {jn}")
    a.label(k1)
    for r in range(9): a(f"ds_write_b32 v14, v{O[1]+r} offset:{r*256}")
    a.label(jn)
    a("s_waitcnt lgkmcnt(0)")
    a("s_barrier")
    for r in range(9): a(f"ds_read_b32 v{S[0]+r}, v15 offset:{r*256}")
    a("s_waitcnt lgkmcnt(0)")
    Oa = O[0]
    for r in range(9): a(f"v_add_f32 v{Oa+r}, v{Oa+r}, v{S[0]+r}")
    fin = f"{name}_fin"; fb = f"{name}_fb"
    a(f"v_add_f32 v14, abs(v{Oa}), abs(v{Oa+1})")
    for r in range(2, 8): a(f"v_add_f32 v14, v14, abs(v{Oa+r})")
    a(f"""
    v_cmp_le_f32 vcc, {f32hex(2.0**-60)}, v{Oa+8}
    s_mov_b32 s61, {f32hex(2.0**60)}
    v_cmp_ge_f32 s[62:63], s61, v{Oa+8}
    s_and_b64 vcc, vcc, s[62:63]
    s_mov_b32 s61, 0x7f800000
    v_cmp_gt_f32 s[62:63], s61, v14
    s_and_b64 vcc, vcc, s[62:63]
    s_cmp_eq_u64 vcc, -1
    s_cbranch_scc0 {fb}
    """)
    a.label(fin)
    a(f"""
    v_rcp_f32 v14, v{Oa+8}
    s_lshl_b32 s54, s42, 15
    s_lshl_b32 s55, s41, 10
    s_add_u32 s54, s54, s55
    s_add_u32 s54, s54, {hex(LY.OF)}
    """)
    for r in range(8): a(f"v_mul_f32 v{Oa+r}, v{Oa+r}, v14")
    for j in range(4): a(f"v_cvt_pk_bf16_f32 v{P+j}, v{Oa+2*j}, v{Oa+2*j+1}")
    a(f"buffer_store_dwordx4 v[{P}:{P+3}], v3, s[24:27], s54 offen")
    stamp(a, 3)
    stamp_flush(a, 1 if conv else 6, 4, 40, 14)
    a.label(done)
    a("s_endpgm")
    C = O[1]
    a.label(fb)
    fl = f"{name}_fbl"; fl2 = f"{name}_fbm"
    a(f"""
    v_mov_b32 v12, v3
    v_mov_b32 v14, 0xff800000
    s_mov_b32 s59, 64
    """)
    a.label(fl)
    a(f"""
    ds_read_b128 v[{KB[0]}:{KB[0]+3}], v12
    v_add_u32 v12, 1024, v12
    s_waitcnt lgkmcnt(0)
    v_mfma_f32_32x32x16_bf16 {vr(S[0],16)}, {vr(KB[0],4)}, {vr(QA,4)}, 0
    s_nop 15
    """)
    for j in range(8): a(f"v_max3_f32 v14, v14, v{S[0]+2*j}, v{S[0]+2*j+1}")
    a(f"""
    s_sub_u32 s59, s59, 1
    s_cmp_lg_u32 s59, 0
    s_cbranch_scc1 {fl}
    v_mov_b32 v15, v14
    s_nop 1
    v_permlane32_swap_b32 v14, v15
    s_nop 1
    v_max_f32 v14, v14, v15
    v_sub_f32 v14, 0, v14
    """)
    for r in range(16):
        a(f"v_mov_b32 v{C+r}, v14")
        a(f"v_mov_b32 v{Oa+r}, 0")
    a(f"""
    v_mov_b32 v12, v3
    v_and_b32 v13, 15, v1
    v_lshlrev_b32 v13, 4, v13
    v_lshrrev_b32 v14, 5, v1
    v_lshl_add_u32 v13, v14, 8, v13
    v_add_u32 v13, 0x10000, v13
    s_mov_b32 s59, 64
    """)
    a.label(fl2)
    kread(0, 0); vread(0, 0)
    a(f"""
    v_add_u32 v12, 1024, v12
    v_add_u32 v13, 1024, v13
    s_waitcnt lgkmcnt(0)
    v_mfma_f32_32x32x16_bf16 {vr(S[0],16)}, {vr(KB[0],4)}, {vr(QA,4)}, {vr(C,16)}
    s_nop 15
    """)
    for i in range(16): a(f"v_exp_f32 v{S[0]+i}, v{S[0]+i}")
    a("s_nop 0")
    for j in range(8): a(f"v_cvt_pk_bf16_f32 v{P+j}, v{S[0]+2*j}, v{S[0]+2*j+1}")
    a("s_nop 1")
    mf(Oa, VB[0], P, vr(Oa, 16))
    mf(Oa, VB[0] + 4, P + 4, vr(Oa, 16))
    a(f"""
    s_sub_u32 s59, s59, 1
    s_cmp_lg_u32 s59, 0
    s_cbranch_scc1 {fl2}
    s_nop 15
    s_branch {fin}
    """)
    emit_help(a, name, conv)
    return 112

def emit_help(a, name, conv):
    a.label(f"{name}_help")
    a(f"""
    s_sub_u32 s40, s40, 8
    s_lshl_b32 s51, s40, 10
    s_lshl_b32 s52, s41, 16
    s_add_u32 s52, s52, s51
    v_mov_b32 v5, 0
    v_mov_b32 v8, 0
    v_mov_b32 v9, 0
    v_mov_b32 v10, 0
    v_mov_b32 v11, 0
    v_mov_b32 v2, {FLAG}
    ds_write_b64 v2, v[8:9]
    """)
    if conv:
        a(f"""
        s_lshr_b32 s41, s40, 1
        s_and_b32 s42, s40, 1
        s_and_b32 s39, s2, 7
        s_lshl_b32 s39, s39, 5
        s_lshr_b32 s43, s2, 3
        s_add_u32 s39, s39, s43
        s_lshl_b32 s43, s39, 1
        s_add_u32 s43, s43, s41
        s_mul_i32 s45, s41, {CHB}
        s_add_u32 s45, s45, 131072
        s_lshl_b32 s46, s43, 12
        s_lshl_b32 s44, s39, 2
        s_lshl_b32 s48, s42, 11
        v_add_u32 v4, s48, v3
        v_lshrrev_b32 v6, 5, v1
        v_and_b32 v7, 31, v1
        s_movk_i32 s53, 1536
        v_mul_lo_u32 v12, v6, s53
        v_lshl_add_u32 v12, v7, 4, v12
        s_mul_i32 s49, s42, 3072
        s_add_u32 s49, s49, s45
        s_add_u32 s53, s49, {2*CS}
        v_add_u32 v12, s53, v12
        ds_write_b128 v12, v[8:11]
        """)
    a("s_waitcnt lgkmcnt(0)")
    srd(a, 24, 14, LY.WS_USED)
    a("s_barrier")
    a("s_setprio 3")
    for n in range(2, 8):
        for kp in range(2):
            o = kp * 32768 + n * 4096
            a(f"s_add_u32 m0, s51, {o}")
            a(f"s_add_u32 s53, s52, {hex(LY.KF + o)}")
            a(f"buffer_load_dwordx4 v3, s[24:27], s53 offen lds")
            a(f"s_add_u32 m0, s51, {65536 + o}")
            a(f"s_add_u32 s53, s52, {hex(LY.VF + o)}")
            a(f"buffer_load_dwordx4 v3, s[24:27], s53 offen lds")
    def kvdone(n):
        a(f"""
        v_mov_b32 v15, 1
        s_waitcnt vmcnt({n})
        s_mov_b64 exec, 1
        ds_add_u32 v2, v15 offset:4
        s_mov_b64 exec, -1
        """)
    if not conv:
        kvdone(0)
        a("s_endpgm")
        return
    a(f"""
    s_load_dword s47, s[6:7], s44
    s_add_u32 s16, s4, s46
    s_addc_u32 s17, s5, 0
    s_movk_i32 s18, 0x1000
    s_mov_b32 s19, 0x00020000
    """)
    srd(a, 32, 28, 0x200000)
    srd(a, 56, 30, 0x200000)
    srd(a, 60, 10, 0x1000)
    stamp(a, 0)
    HL = 48
    for it in range(2):
        for k in range(2):
            a(f"buffer_load_dwordx4 v[{HL+8*it+4*k}:{HL+8*it+4*k+3}], v4, s[16:19], 0 offen offset:{it*1024 + 4*k}")
    T = 16
    a(f"""
    buffer_load_dword v40, v5, s[16:19], 0 offen
    s_lshl_b32 s50, s39, 4
    buffer_load_dwordx4 v[36:39], v5, s[60:63], s50 offen
    s_lshl_b32 s50, s40, 19
    s_add_u32 s50, s50, s44
    v_lshlrev_b32 v12, 13, v1
    v_add_u32 v12, s50, v12
    v_add_u32 v13, 0x1000, v12
    v_subrev_u32 v14, 0xc00, v12
    """)
    kvdone(6)
    stamp(a, 1)
    for r in range(3):
        a(f"buffer_load_dword v{T+r}, v14, s[32:35], 0 offen offset:{r*1024}")
    for r in range(8):
        a(f"buffer_load_dword v{T+3+r}, v{12 if r < 4 else 13}, s[32:35], 0 offen offset:{(r%4)*1024}")
    for r in range(8):
        a(f"buffer_load_dword v{T+11+r}, v{12 if r < 4 else 13}, s[56:59], 0 offen offset:{(r%4)*1024}")
    a(f"""
    s_add_u32 s52, s45, s48
    v_add_u32 v13, s52, v3
    s_waitcnt vmcnt(19)
    """)
    for it in range(2):
        A, B = HL + 8*it, HL + 8*it + 4
        for j in range(4):
            a(f"v_alignbyte_b32 v{44+j}, v{B+j}, v{A+j}, 2")
        o = 64 + it * 1024
        a(f"ds_write_b128 v13, v[44:47] offset:{o}")
        a(f"ds_write_b128 v13, v[{B}:{B+3}] offset:{o + CS}")
    hs = a.uid(f"{name}_hs")
    a(f"""
    s_cmp_lg_u32 s42, 0
    s_cbranch_scc1 {hs}
    v_lshlrev_b32 v44, 16, v40
    v_cmp_eq_u32 vcc, 3, v1
    s_nop 1
    v_cndmask_b32 v11, v11, v44, vcc
    v_cmp_eq_u32 vcc, 7, v1
    s_nop 1
    v_cndmask_b32 v11, v11, v40, vcc
    v_lshrrev_b32 v12, 2, v1
    s_movk_i32 s52, {CS}
    v_mul_lo_u32 v12, v12, s52
    v_and_b32 v14, 3, v1
    v_lshl_add_u32 v12, v14, 4, v12
    v_add_u32 v12, s45, v12
    s_mov_b64 exec, 0xff
    ds_write_b128 v12, v[8:11]
    s_mov_b64 exec, -1
    """)
    a.label(hs)
    KFp, VFp, WP, RS = 64, 86, 102, 16
    D0 = 36
    a(f"""
    v_lshlrev_b32 v{WP+0}, 16, v{D0}
    v_lshlrev_b32 v{WP+1}, 16, v{D0+2}
    v_and_b32 v{WP+2}, 0xffff0000, v{D0}
    v_and_b32 v{WP+3}, 0xffff0000, v{D0+2}
    v_lshlrev_b32 v{WP+4}, 16, v{D0+1}
    v_lshlrev_b32 v{WP+5}, 16, v{D0+3}
    v_and_b32 v{WP+6}, 0xffff0000, v{D0+1}
    v_and_b32 v{WP+7}, 0xffff0000, v{D0+3}
    v_and_b32 v12, 3, v1
    s_movk_i32 s52, 1536
    v_mul_lo_u32 v12, v12, s52
    v_lshrrev_b32 v14, 2, v1
    v_lshl_add_u32 v14, v14, 4, v12
    s_lshl_b32 s52, s40, 8
    s_add_u32 s52, s52, {131072 + 2*CS + 512}
    v_add_u32 v14, s52, v14
    s_waitcnt vmcnt(0)
    """)
    stamp(a, 2)
    for r in range(11):
        a(f"v_lshlrev_b32 v{KFp+2*r}, 16, v{T+r}")
        a(f"v_and_b32 v{KFp+2*r+1}, 0xffff0000, v{T+r}")
    for r in range(8):
        a(f"v_lshlrev_b32 v{VFp+2*r}, 16, v{T+11+r}")
        a(f"v_and_b32 v{VFp+2*r+1}, 0xffff0000, v{T+11+r}")
    def p(b): return f"v[{b}:{b+1}]"
    for t in range(8):
        a(f"v_pk_mul_f32 {p(RS+2*t)}, {p(KFp+2*t)}, {p(WP+6)}")
    for jj in (2, 1, 0):
        for t in range(8):
            a(f"v_pk_fma_f32 {p(RS+2*t)}, {p(KFp+2*(t+3-jj))}, {p(WP+2*jj)}, {p(RS+2*t)}")
    for t in range(8):
        a(f"v_pk_mul_f32 {p(RS+2*t)}, {p(RS+2*t)}, {p(VFp+2*t)}")
    for q in range(4):
        a(f"v_cvt_pk_bf16_f32 v{32+q}, v{RS+2*(7-2*q)}, v{RS+2*(6-2*q)}")
        a(f"v_cvt_pk_bf16_f32 v{36+q}, v{RS+2*(7-2*q)+1}, v{RS+2*(6-2*q)+1}")
    a(f"""
    ds_write_b128 v14, v[32:35]
    ds_write_b128 v14, v[36:39] offset:{CHB}
    v_mov_b32 v5, 1
    s_waitcnt lgkmcnt(0)
    s_mov_b64 exec, 1
    ds_add_u32 v2, v5
    s_mov_b64 exec, -1
    """)
    a(f"""
    v_and_b32 v12, 1, v1
    s_movk_i32 s52, {CS - 2}
    v_mul_lo_u32 v12, v12, s52
    v_and_b32 v14, 19, v1
    v_lshl_add_u32 v12, v14, 1, v12
    v_bfe_u32 v14, v1, 2, 1
    v_lshl_add_u32 v12, v14, 4, v12
    v_bfe_u32 v14, v1, 3, 1
    v_lshl_add_u32 v12, v14, 3, v12
    v_lshlrev_b32 v14, 4, v6
    v_sub_u32 v12, v12, v14
    s_add_u32 s53, s45, 16
    v_add_u32 v12, s53, v12
    s_movk_i32 s52, 1536
    v_mul_lo_u32 v13, v6, s52
    v_lshl_add_u32 v13, v7, 4, v13
    s_lshl_b32 s59, s42, 9
    s_add_u32 s53, s45, s59
    s_add_u32 s53, s53, {2*CS}
    v_add_u32 v15, s53, v13
    v_subrev_u32 v13, 32, v15
    s_lshl_b32 s55, s42, 4
    s_add_u32 s55, s55, 16
    """)
    ACC = 64
    BUF = (16, 32)
    for r in range(16): a(f"v_mov_b32 v{ACC+r}, 0")
    a.label(f"{name}_cw")
    a(f"""
    ds_read_b32 v5, v2
    s_waitcnt lgkmcnt(0)
    v_readfirstlane_b32 s52, v5
    s_cmp_ge_u32 s52, 4
    s_cbranch_scc1 {name}_cwd
    s_sleep 2
    s_branch {name}_cw
    """)
    a.label(f"{name}_cwd")
    stamp(a, 3)
    a(f"""
    v_lshlrev_b32 v80, 7, v1
    s_lshr_b32 s53, s2, 3
    s_cmp_lt_u32 s40, 2
    s_cbranch_scc1 {name}_cwo
    s_mul_i32 s53, s53, 49152
    s_and_b32 s54, s40, 1
    s_mul_i32 s54, s54, 24576
    s_add_u32 s53, s53, s54
    s_add_u32 s53, s53, {hex(LY.WP)}
    buffer_load_dword v81, v80, s[24:27], s53 offen
    s_add_u32 s53, s53, 8192
    buffer_load_dword v81, v80, s[24:27], s53 offen
    s_add_u32 s53, s53, 8192
    buffer_load_dword v81, v80, s[24:27], s53 offen
    s_branch {name}_cgo
    """)
    a.label(f"{name}_cwo")
    a(f"""
    s_lshl_b32 s53, s53, 14
    s_lshl_b32 s54, s40, 13
    s_add_u32 s53, s53, s54
    s_mov_b32 s16, s8
    s_mov_b32 s17, s9
    s_mov_b32 s18, 0x80000
    buffer_load_dword v81, v80, s[16:19], s53 offen
    """)
    a.label(f"{name}_cgo")
    def reads(buf, dd):
        for kp in range(2):
            b = BUF[buf] + 8 * kp
            ao = 8 * (2 * dd - kp + 1)
            a(f"ds_read2_b32 v[{b}:{b+1}], v12 offset0:{ao} offset1:{ao+1}")
            a(f"ds_read2_b32 v[{b+2}:{b+3}], v12 offset0:{ao+2} offset1:{ao+3}")
            a(f"ds_read_b128 v[{b+4}:{b+7}], v13 offset:{kp * 3072 + (32 - dd) * 16 + 32}")
    def mfmas(buf):
        for kp in range(2):
            b = BUF[buf] + 8 * kp
            a(f"v_mfma_f32_32x32x16_bf16 {vr(ACC,16)}, {vr(b,4)}, {vr(b+4,4)}, {vr(ACC,16)}")
    reads(0, 0)
    lp = f"{name}_clp"
    a.label(lp)
    reads(1, 1)
    a("s_waitcnt lgkmcnt(6)")
    mfmas(0)
    reads(0, 2)
    a("s_waitcnt lgkmcnt(6)")
    mfmas(1)
    a(f"""
    v_add_u32 v12, 128, v12
    v_subrev_u32 v13, 32, v13
    s_sub_u32 s55, s55, 1
    s_cmp_lg_u32 s55, 0
    s_cbranch_scc1 {lp}
    s_waitcnt lgkmcnt(0)
    ds_read_b128 v[16:19], v15 offset:512
    ds_read_b128 v[20:23], v15 offset:{3072 + 512}
    s_lshl_b32 s60, s47, 16
    s_and_b32 s61, s47, 0xffff0000
    s_cmp_eq_u32 s41, 0
    s_cselect_b32 s60, s60, s61
    v_lshlrev_b32 v12, 6, v7
    v_lshl_add_u32 v12, v6, 4, v12
    s_lshl_b32 s59, s42, 11
    s_add_u32 s59, s59, s46
    s_add_u32 s59, s59, {hex(LY.YT)}
    s_waitcnt lgkmcnt(0)
    """)
    for kp in range(2):
        for j in range(4):
            a(f"v_lshlrev_b32 v{24+8*kp+7-2*j}, 16, v{16+4*kp+j}")
            a(f"v_and_b32 v{24+8*kp+6-2*j}, 0xffff0000, v{16+4*kp+j}")
    for r in range(16): a(f"v_fmac_f32 v{ACC+r}, s60, v{24+r}")
    for j in range(8): a(f"v_cvt_pk_bf16_f32 v{16+j}, v{ACC+2*j}, v{ACC+2*j+1}")
    a(f"""
    buffer_store_dwordx4 v[16:19], v12, s[24:27], s59 offen
    buffer_store_dwordx4 v[20:23], v12, s[24:27], s59 offen offset:32
    """)
    stamp(a, 4)
    stamp_flush(a, 5, 5, 40, 14)
    a("s_endpgm")
```

```python
import sys
sys.path.insert(0, "gen")
from asmlib import *
import asmlib
import k_qkv3 as k_qkv, k_attn2, k_oproj2

HEADER = open("interleave_layers__mha_block__ssm_conv_h3__prompt.s.ref").read().split("; Override launch")[0]

def build(path):
    a = Asm()
    descs = []
    launches = []
    def add(name, vg): descs.append(kernel_desc(name, vg))
    add("qkv1_kernel", k_qkv.emit(a, "qkv1_kernel", True))
    add("qkv2_kernel", k_qkv.emit(a, "qkv2_kernel", False))
    add("attn1_kernel", k_attn2.emit(a, "attn1_kernel", True))
    add("attn2_kernel", k_attn2.emit(a, "attn2_kernel", False))
    add("oproj1_kernel", k_oproj2.emit(a, "oproj1_kernel", True))
    add("oproj2_kernel", k_oproj2.emit(a, "oproj2_kernel", False))
    L = lambda k, g, b, l: launches.append(f"; @launch kernel={k} grid=({g},1,1) block=({b},1,1) lds={l}")
    L("qkv1_kernel", 256, 512, k_qkv.lds_bytes(True))
    L("attn1_kernel", 256, 768, k_attn2.lds_bytes(True))
    L("oproj1_kernel", 256, 256, k_oproj2.lds_bytes())
    L("qkv2_kernel", 256, 512, k_qkv.lds_bytes(False))
    L("attn2_kernel", 256, 768, k_attn2.lds_bytes(False))
    L("oproj2_kernel", 256, 256, k_oproj2.lds_bytes())
    txt = HEADER + "\n".join(launches) + "\n" + '.amdgcn_target "amdgcn-amd-amdhsa--gfx950"\n.text\n' + a.text()
    txt += '.section .rodata,"a"\n' + "".join(".p2align 6\n" + d for d in descs)
    open(path, "w").write(txt)

if __name__ == "__main__":
    out = sys.argv[1] if len(sys.argv) > 1 else "interleave_layers__mha_block__ssm_conv_h3__prompt.s"
    for opt in sys.argv[2:]:
        if opt == "diag": asmlib.DIAG = True
        elif "=" in opt:
            k, v = opt.split("="); mod, attr = k.split(".")
            setattr({"attn": k_attn2, "qkv": k_qkv, "oproj": k_oproj2}[mod], attr, int(v))
    build(out)
```

```python
import struct
from asmlib import *
import layout as LY

def f32hex(x):
    return hex(struct.unpack("<I", struct.pack("<f", x))[0])
def p(b): return f"v[{b}:{b+1}]"

CS = 4160
CHB = 2 * CS + 6144
FLAG = 131072 + 2 * CHB
YL = 151552
U = 8
SLEEP = 4
GSLEEP = 2
PLO, PHI = 13, 0
LDS_BYTES = 163840
N = "mega"


def poll(a, soff, tag):
    L = a.uid(f"{N}_pl{tag}")
    a(f"s_mov_b32 s69, 0x10000")
    a.label(L)
    a(f"""
    buffer_load_dword v15, v2, s[24:27], s{soff} offen sc1
    s_waitcnt vmcnt(0)
    v_cmp_ne_u32 vcc, 0, v15
    s_cmp_eq_u64 vcc, -1
    s_cbranch_scc1 {L}_d
    s_sub_u32 s69, s69, 1
    s_cbranch_scc1 {L}_d
    s_sleep {SLEEP}
    s_branch {L}
    """)
    a.label(L + "_d")

def set_flag(a, soff):
    a(f"""
    v_mov_b32 v15, 1
    v_mov_b32 v14, 0
    s_waitcnt vmcnt(0)
    s_mov_b64 exec, 1
    buffer_store_dword v15, v14, s[24:27], s{soff} offen sc1
    s_mov_b64 exec, -1
    """)

def emit(a):
    name = "mega_kernel"
    kernel_begin(a, name)
    a(f"""
    s_cmp_ge_u32 s2, 256
    s_cbranch_scc1 {N}_done
    s_load_dwordx2 s[4:5], s[0:1], 0
    s_load_dwordx2 s[6:7], s[0:1], 16
    s_load_dwordx2 s[8:9], s[0:1], 72
    s_load_dwordx2 s[10:11], s[0:1], 48
    s_load_dwordx2 s[12:13], s[0:1], 64
    s_load_dwordx2 s[14:15], s[0:1], 88
    s_load_dwordx2 s[16:17], s[0:1], 56
    s_load_dwordx4 s[28:31], s[0:1], 32
    v_lshrrev_b32 v2, 6, v0
    v_and_b32 v1, 63, v0
    v_readfirstlane_b32 s40, v2
    v_lshlrev_b32 v3, 4, v1
    v_lshlrev_b32 v2, 2, v1
    s_mov_b32 s3, 0
    s_and_b32 s36, s2, 7
    s_lshr_b32 s37, s2, 3
    s_waitcnt lgkmcnt(0)
    """)
    srd(a, 24, 14, LY.WS_USED)
    stamp(a, 0)
    a.label(f"{N}_layer")
    attention(a)
    oproj(a)
    qkv(a)
    a(f"""
    s_mov_b32 s3, 1
    s_branch {N}_layer
    """)
    a.label(f"{N}_done")
    a("s_endpgm")
    attention_fallback(a)
    return 168

QA, QB, S, O, P, KB, VB = 4, 8, (16, 32), (48, 64), 80, (88, 92), (96, 104)
def mf(a, d, x, y, c): a(f"v_mfma_f32_32x32x16_bf16 {vr(d,16)}, {vr(x,4)}, {vr(y,4)}, {c}")

def attention(a):
    TS = 32
    a(f"""
    s_lshl_b32 s41, s36, 2
    s_and_b32 s46, s37, 3
    s_add_u32 s41, s41, s46
    s_mul_i32 s38, s3, {hex(LY.QKVL)}
    s_lshl_b32 s48, s41, 16
    s_add_u32 s48, s48, s38
    s_cmp_eq_u32 s3, 0
    s_cbranch_scc1 {N}_a_go
    s_cmp_lg_u32 s40, 8
    s_cbranch_scc1 {N}_a_rv
    s_lshr_b32 s53, s41, 1
    s_lshl_b32 s53, s53, 8
    s_add_u32 s53, s53, {hex(LY.FQ)}
    """)
    poll(a, 53, "q")
    a.label(f"{N}_a_rv")
    a("s_barrier")
    a.label(f"{N}_a_go")
    stamp(a, 1)
    a(f"""
    s_cmp_ge_u32 s40, 8
    s_cbranch_scc1 {N}_help
    s_lshr_b32 s42, s37, 2
    s_and_b32 s43, s40, 3
    s_lshr_b32 s47, s40, 2
    s_lshl_b32 s42, s42, 3
    s_lshl_b32 s46, s43, 1
    s_add_u32 s42, s42, s46
    s_lshl_b32 s49, s42, 10
    s_add_u32 s49, s49, s48
    s_lshl_b32 s50, s47, 5
    s_add_u32 s51, s50, s43
    s_lshl_b32 s51, s51, 10
    s_add_u32 s52, s48, s51
    buffer_load_dwordx4 v[{QA}:{QA+3}], v3, s[24:27], s49 offen sc1
    buffer_load_dwordx4 v[{QB}:{QB+3}], v3, s[24:27], s49 offen offset:1024 sc1
    """)
    for n in range(2):
        a(f"s_add_u32 m0, s51, {n*4096}")
        a(f"s_add_u32 s53, s52, {hex(LY.KF + n*4096)}")
        a(f"buffer_load_dwordx4 v3, s[24:27], s53 offen sc1 lds")
        a(f"s_add_u32 m0, s51, {65536 + n*4096}")
        a(f"s_add_u32 s53, s52, {hex(LY.VF + n*4096)}")
        a(f"buffer_load_dwordx4 v3, s[24:27], s53 offen sc1 lds")
    for r in range(16):
        a(f"v_mov_b32 v{O[0]+r}, 0")
        a(f"v_mov_b32 v{O[1]+r}, 0")
    a(f"""
    v_and_b32 v14, 27, v1
    v_cmp_eq_u32 vcc, 16, v14
    v_mov_b32 v15, 0x3f803f80
    s_lshl_b32 s54, s50, 10
    v_cndmask_b32 v14, 0, v15, vcc
    """)
    for r in range(16): a(f"v_mov_b32 v{VB[0]+r}, v14")
    for r in range(4): a(f"v_mov_b32 v{P+4+r}, 0")
    a(f"""
    v_add_u32 v12, s54, v3
    v_and_b32 v13, 15, v1
    v_lshlrev_b32 v13, 4, v13
    v_lshrrev_b32 v14, 5, v1
    v_lshl_add_u32 v13, v14, 8, v13
    s_add_u32 s54, s54, 0x10000
    v_add_u32 v13, s54, v13
    s_mov_b32 s56, 0xffff
    s_mov_b32 s57, 0xffff
    v_mov_b32 v14, {FLAG + 4}
    s_waitcnt vmcnt(0)
    s_barrier
    """)
    stamp(a, 2)
    def kread(buf, t): a(f"ds_read_b128 v[{KB[buf]}:{KB[buf]+3}], v12 offset:{t*1024}")
    def vread(buf, t):
        a("s_mov_b64 exec, s[56:57]")
        a(f"ds_read_b128 v[{VB[buf]}:{VB[buf]+3}], v13 offset:{t*1024}")
        a(f"ds_read_b128 v[{VB[buf]+4}:{VB[buf]+7}], v13 offset:{t*1024+512}")
        a("s_mov_b64 exec, -1")
    kread(0, 0); vread(0, 0)
    a("s_waitcnt lgkmcnt(2)")
    mf(a, S[0], KB[0], QA, "0")
    a(f"""
    s_waitcnt lgkmcnt(0)
    s_mov_b32 s58, {TS // U}
    s_mov_b32 s59, 0
    s_nop 7
    s_nop 1
    """)
    a.label(f"{N}_loop")
    for t in range(U):
        cur, nxt = t & 1, (t + 1) & 1
        for ph in range(2):
            s, o, op, sp = S[ph], O[ph], O[1 - ph], S[1 - ph]
            e = lambda i: a(f"v_exp_f32 v{s+i}, v{s+i}")
            c = lambda j: a(f"v_cvt_pk_bf16_f32 v{P+j}, v{s+2*j}, v{s+2*j+1}")
            vprev = VB[cur] if ph == 1 else VB[nxt]
            if PLO >= 0 and 2 * t + ph in (PLO, PHI):
                sk = a.uid(f"{N}_pr")
                a(f"s_cmp_eq_u32 s47, 0")
                a(f"s_cbranch_scc1 {sk}")
                a(f"s_setprio {1 if 2 * t + ph == PHI else 0}")
                a.label(sk)
            e(0); e(1)
            mf(a, op, vprev + 4, P + 4, vr(op, 16))
            e(2); c(0); e(3); e(4); c(1); e(5)
            if ph == 0:
                mf(a, sp, KB[cur], QB, "0")
                if t == 7:
                    a(f"s_cmp_lg_u32 s59, 0")
                    a(f"s_cbranch_scc1 {N}_kvd")
                    a.label(f"{N}_kvw")
                    a(f"""
                    ds_read_b32 v15, v14
                    s_waitcnt lgkmcnt(0)
                    v_readfirstlane_b32 s59, v15
                    s_cmp_ge_u32 s59, 4
                    s_cbranch_scc0 {N}_kvw
                    """)
                    a.label(f"{N}_kvd")
                kread(nxt, t + 1); vread(nxt, t + 1)
            else:
                a("s_waitcnt lgkmcnt(2)")
                mf(a, sp, KB[nxt], QA, "0")
            e(6); c(2); e(7); e(8); c(3); e(9); e(10)
            mf(a, o, VB[cur], P, vr(o, 16))
            c(4); e(11); e(12); c(5); e(13); e(14); c(6); e(15)
            if ph == 1: a("s_waitcnt lgkmcnt(0)")
            elif t == U - 1: a(f"v_add_u32 v12, {U*1024}, v12")
            else: a("s_nop 0")
            c(7)
            if t == U - 1 and ph == 0: a(f"v_add_u32 v13, {U*1024}, v13")
    a(f"""
    s_sub_u32 s58, s58, 1
    s_cmp_lg_u32 s58, 0
    s_cbranch_scc1 {N}_loop
    """)
    mf(a, O[1], VB[1] + 4, P + 4, vr(O[1], 16))
    stamp(a, 3)
    a(f"""
    s_setprio 0
    s_mul_i32 s54, s40, 2304
    s_add_u32 s54, s54, 131072
    v_add_u32 v14, s54, v2
    s_xor_b32 s55, s40, 4
    s_mul_i32 s55, s55, 2304
    s_add_u32 s55, s55, 131072
    v_add_u32 v13, s55, v2
    s_add_u32 s42, s42, s47
    s_nop 7
    s_barrier
    s_cmp_eq_u32 s47, 0
    s_cbranch_scc1 {N}_k1
    """)
    for r in range(9): a(f"ds_write_b32 v14, v{O[0]+r} offset:{r*256}")
    for r in range(9): a(f"v_mov_b32 v{O[0]+r}, v{O[1]+r}")
    for r in range(4): a(f"v_mov_b32 v{QA+r}, v{QB+r}")
    a(f"s_branch {N}_jn")
    a.label(f"{N}_k1")
    for r in range(9): a(f"ds_write_b32 v14, v{O[1]+r} offset:{r*256}")
    a.label(f"{N}_jn")
    a("s_waitcnt lgkmcnt(0)")
    a("s_barrier")
    for r in range(9): a(f"ds_read_b32 v{S[0]+r}, v13 offset:{r*256}")
    a("s_waitcnt lgkmcnt(0)")
    Oa = O[0]
    for r in range(9): a(f"v_add_f32 v{Oa+r}, v{Oa+r}, v{S[0]+r}")
    a(f"v_add_f32 v14, abs(v{Oa}), abs(v{Oa+1})")
    for r in range(2, 8): a(f"v_add_f32 v14, v14, abs(v{Oa+r})")
    a(f"""
    v_cmp_le_f32 vcc, {f32hex(2.0**-60)}, v{Oa+8}
    s_mov_b32 s61, {f32hex(2.0**60)}
    v_cmp_ge_f32 s[62:63], s61, v{Oa+8}
    s_and_b64 vcc, vcc, s[62:63]
    s_mov_b32 s61, 0x7f800000
    v_cmp_gt_f32 s[62:63], s61, v14
    s_and_b64 vcc, vcc, s[62:63]
    s_cmp_eq_u64 vcc, -1
    s_cbranch_scc0 {N}_fb
    """)
    a.label(f"{N}_fin")
    a(f"""
    v_rcp_f32 v14, v{Oa+8}
    s_lshl_b32 s54, s42, 15
    s_lshl_b32 s55, s41, 10
    s_add_u32 s54, s54, s55
    s_mul_i32 s55, s3, {hex(LY.OFL)}
    s_add_u32 s54, s54, s55
    s_add_u32 s54, s54, {hex(LY.OF)}
    """)
    for r in range(8): a(f"v_mul_f32 v{Oa+r}, v{Oa+r}, v14")
    for j in range(4): a(f"v_cvt_pk_bf16_f32 v{P+j}, v{Oa+2*j}, v{Oa+2*j+1}")
    a(f"""
    buffer_store_dwordx4 v[{P}:{P+3}], v3, s[24:27], s54 offen sc1
    s_lshl_b32 s54, s42, 7
    s_lshl_b32 s55, s41, 2
    s_add_u32 s54, s54, s55
    s_lshl_b32 s55, s3, 13
    s_add_u32 s54, s54, s55
    s_add_u32 s54, s54, {hex(LY.FO)}
    """)
    set_flag(a, 54)
    stamp(a, 4)
    a(f"s_branch {N}_op")
    helper(a)

def attention_fallback(a):
    C, Oa = O[1], O[0]
    a.label(f"{N}_fb")
    a(f"""
    s_add_u32 s52, s48, {hex(LY.KF)}
    v_mov_b32 v14, 0xff800000
    s_mov_b32 s59, 64
    """)
    a.label(f"{N}_fbl")
    a(f"""
    buffer_load_dwordx4 v[{KB[0]}:{KB[0]+3}], v3, s[24:27], s52 offen sc1
    s_add_u32 s52, s52, 1024
    s_waitcnt vmcnt(0)
    v_mfma_f32_32x32x16_bf16 {vr(S[0],16)}, {vr(KB[0],4)}, {vr(QA,4)}, 0
    s_nop 15
    """)
    for j in range(8): a(f"v_max3_f32 v14, v14, v{S[0]+2*j}, v{S[0]+2*j+1}")
    a(f"""
    s_sub_u32 s59, s59, 1
    s_cmp_lg_u32 s59, 0
    s_cbranch_scc1 {N}_fbl
    v_mov_b32 v15, v14
    s_nop 1
    v_permlane32_swap_b32 v14, v15
    s_nop 1
    v_max_f32 v14, v14, v15
    v_sub_f32 v14, 0, v14
    """)
    for r in range(16):
        a(f"v_mov_b32 v{C+r}, v14")
        a(f"v_mov_b32 v{Oa+r}, 0")
    a(f"""
    v_and_b32 v13, 15, v1
    v_lshlrev_b32 v13, 4, v13
    v_lshrrev_b32 v14, 5, v1
    v_lshl_add_u32 v13, v14, 8, v13
    s_add_u32 s52, s48, {hex(LY.KF)}
    s_add_u32 s53, s48, {hex(LY.VF)}
    s_mov_b32 s59, 64
    """)
    a.label(f"{N}_fbm")
    a(f"""
    buffer_load_dwordx4 v[{KB[0]}:{KB[0]+3}], v3, s[24:27], s52 offen sc1
    s_mov_b64 exec, s[56:57]
    buffer_load_dwordx4 v[{VB[0]}:{VB[0]+3}], v13, s[24:27], s53 offen sc1
    buffer_load_dwordx4 v[{VB[0]+4}:{VB[0]+7}], v13, s[24:27], s53 offen offset:512 sc1
    s_mov_b64 exec, -1
    s_add_u32 s52, s52, 1024
    s_add_u32 s53, s53, 1024
    s_waitcnt vmcnt(0)
    v_mfma_f32_32x32x16_bf16 {vr(S[0],16)}, {vr(KB[0],4)}, {vr(QA,4)}, {vr(C,16)}
    s_nop 15
    """)
    for i in range(16): a(f"v_exp_f32 v{S[0]+i}, v{S[0]+i}")
    a("s_nop 0")
    for j in range(8): a(f"v_cvt_pk_bf16_f32 v{P+j}, v{S[0]+2*j}, v{S[0]+2*j+1}")
    a("s_nop 1")
    mf(a, Oa, VB[0], P, vr(Oa, 16))
    mf(a, Oa, VB[0] + 4, P + 4, vr(Oa, 16))
    a(f"""
    s_sub_u32 s59, s59, 1
    s_cmp_lg_u32 s59, 0
    s_cbranch_scc1 {N}_fbm
    s_nop 15
    s_branch {N}_fin
    """)

def helper(a):
    a.label(f"{N}_help")
    a(f"""
    s_sub_u32 s39, s40, 8
    s_lshl_b32 s51, s39, 10
    s_add_u32 s52, s48, s51
    v_mov_b32 v5, 0
    v_mov_b32 v8, 0
    v_mov_b32 v9, 0
    v_mov_b32 v10, 0
    v_mov_b32 v11, 0
    v_mov_b32 v4, {FLAG}
    ds_write_b64 v4, v[8:9]
    s_lshr_b32 s41, s39, 1
    s_and_b32 s42, s39, 1
    s_lshl_b32 s38, s36, 5
    s_add_u32 s38, s38, s37
    s_lshl_b32 s43, s38, 1
    s_add_u32 s43, s43, s41
    s_mul_i32 s45, s41, {CHB}
    s_add_u32 s45, s45, 131072
    s_lshl_b32 s46, s43, 12
    s_lshl_b32 s44, s38, 2
    s_lshl_b32 s48, s42, 11
    v_lshrrev_b32 v6, 5, v1
    v_and_b32 v7, 31, v1
    s_movk_i32 s53, 1536
    v_mul_lo_u32 v12, v6, s53
    v_lshl_add_u32 v12, v7, 4, v12
    s_mul_i32 s49, s42, 3072
    s_add_u32 s49, s49, s45
    s_add_u32 s53, s49, {2*CS}
    v_add_u32 v12, s53, v12
    ds_write_b128 v12, v[8:11]
    s_waitcnt lgkmcnt(0)
    s_barrier
    s_setprio 3
    """)
    for n in range(2, 8):
        for kp in range(2):
            o = kp * 32768 + n * 4096
            a(f"s_add_u32 m0, s51, {o}")
            a(f"s_add_u32 s53, s52, {hex(LY.KF + o)}")
            a(f"buffer_load_dwordx4 v3, s[24:27], s53 offen sc1 lds")
            a(f"s_add_u32 m0, s51, {65536 + o}")
            a(f"s_add_u32 s53, s52, {hex(LY.VF + o)}")
            a(f"buffer_load_dwordx4 v3, s[24:27], s53 offen sc1 lds")
    a(f"""
    v_mov_b32 v15, 1
    s_waitcnt vmcnt(0)
    s_mov_b64 exec, 1
    ds_add_u32 v4, v15 offset:4
    s_mov_b64 exec, -1
    s_cmp_lg_u32 s3, 0
    s_cbranch_scc1 {N}_hend
    s_load_dword s47, s[12:13], s44
    s_add_u32 s20, s16, s46
    s_addc_u32 s21, s17, 0
    s_movk_i32 s22, 0x1000
    s_mov_b32 s23, 0x00020000
    v_add_u32 v13, s48, v3
    """)
    srd(a, 32, 28, 0x200000)
    srd(a, 56, 30, 0x200000)
    srd(a, 60, 10, 0x1000)
    HL = 48
    for it in range(2):
        for k in range(2):
            a(f"buffer_load_dwordx4 v[{HL+8*it+4*k}:{HL+8*it+4*k+3}], v13, s[20:23], 0 offen offset:{it*1024 + 4*k}")
    T = 16
    a(f"""
    buffer_load_dword v40, v5, s[20:23], 0 offen
    s_lshl_b32 s50, s38, 4
    buffer_load_dwordx4 v[36:39], v5, s[60:63], s50 offen
    s_lshl_b32 s50, s39, 19
    s_add_u32 s50, s50, s44
    v_lshlrev_b32 v12, 13, v1
    v_add_u32 v12, s50, v12
    v_add_u32 v13, 0x1000, v12
    v_subrev_u32 v14, 0xc00, v12
    """)
    for r in range(3):
        a(f"buffer_load_dword v{T+r}, v14, s[32:35], 0 offen offset:{r*1024}")
    for r in range(8):
        a(f"buffer_load_dword v{T+3+r}, v{12 if r < 4 else 13}, s[32:35], 0 offen offset:{(r%4)*1024}")
    for r in range(8):
        a(f"buffer_load_dword v{T+11+r}, v{12 if r < 4 else 13}, s[56:59], 0 offen offset:{(r%4)*1024}")
    a(f"""
    s_add_u32 s52, s45, s48
    v_add_u32 v13, s52, v3
    s_waitcnt vmcnt(19)
    """)
    for it in range(2):
        A, B = HL + 8*it, HL + 8*it + 4
        for j in range(4):
            a(f"v_alignbyte_b32 v{44+j}, v{B+j}, v{A+j}, 2")
        o = 64 + it * 1024
        a(f"ds_write_b128 v13, v[44:47] offset:{o}")
        a(f"ds_write_b128 v13, v[{B}:{B+3}] offset:{o + CS}")
    a(f"""
    s_cmp_lg_u32 s42, 0
    s_cbranch_scc1 {N}_hs
    v_lshlrev_b32 v44, 16, v40
    v_cmp_eq_u32 vcc, 3, v1
    s_nop 1
    v_cndmask_b32 v11, v11, v44, vcc
    v_cmp_eq_u32 vcc, 7, v1
    s_nop 1
    v_cndmask_b32 v11, v11, v40, vcc
    v_lshrrev_b32 v12, 2, v1
    s_movk_i32 s52, {CS}
    v_mul_lo_u32 v12, v12, s52
    v_and_b32 v14, 3, v1
    v_lshl_add_u32 v12, v14, 4, v12
    v_add_u32 v12, s45, v12
    s_mov_b64 exec, 0xff
    ds_write_b128 v12, v[8:11]
    s_mov_b64 exec, -1
    """)
    a.label(f"{N}_hs")
    KFp, VFp, WPr, RS = 64, 86, 102, 16
    D0 = 36
    a(f"""
    v_lshlrev_b32 v{WPr+0}, 16, v{D0}
    v_lshlrev_b32 v{WPr+1}, 16, v{D0+2}
    v_and_b32 v{WPr+2}, 0xffff0000, v{D0}
    v_and_b32 v{WPr+3}, 0xffff0000, v{D0+2}
    v_lshlrev_b32 v{WPr+4}, 16, v{D0+1}
    v_lshlrev_b32 v{WPr+5}, 16, v{D0+3}
    v_and_b32 v{WPr+6}, 0xffff0000, v{D0+1}
    v_and_b32 v{WPr+7}, 0xffff0000, v{D0+3}
    v_and_b32 v12, 3, v1
    s_movk_i32 s52, 1536
    v_mul_lo_u32 v12, v12, s52
    v_lshrrev_b32 v14, 2, v1
    v_lshl_add_u32 v14, v14, 4, v12
    s_lshl_b32 s52, s39, 8
    s_add_u32 s52, s52, {131072 + 2*CS + 512}
    v_add_u32 v14, s52, v14
    s_waitcnt vmcnt(0)
    """)
    for r in range(11):
        a(f"v_lshlrev_b32 v{KFp+2*r}, 16, v{T+r}")
        a(f"v_and_b32 v{KFp+2*r+1}, 0xffff0000, v{T+r}")
    for r in range(8):
        a(f"v_lshlrev_b32 v{VFp+2*r}, 16, v{T+11+r}")
        a(f"v_and_b32 v{VFp+2*r+1}, 0xffff0000, v{T+11+r}")
    for t in range(8):
        a(f"v_pk_mul_f32 {p(RS+2*t)}, {p(KFp+2*t)}, {p(WPr+6)}")
    for jj in (2, 1, 0):
        for t in range(8):
            a(f"v_pk_fma_f32 {p(RS+2*t)}, {p(KFp+2*(t+3-jj))}, {p(WPr+2*jj)}, {p(RS+2*t)}")
    for t in range(8):
        a(f"v_pk_mul_f32 {p(RS+2*t)}, {p(RS+2*t)}, {p(VFp+2*t)}")
    for q in range(4):
        a(f"v_cvt_pk_bf16_f32 v{32+q}, v{RS+2*(7-2*q)}, v{RS+2*(6-2*q)}")
        a(f"v_cvt_pk_bf16_f32 v{36+q}, v{RS+2*(7-2*q)+1}, v{RS+2*(6-2*q)+1}")
    a(f"""
    ds_write_b128 v14, v[32:35]
    ds_write_b128 v14, v[36:39] offset:{CHB}
    v_mov_b32 v5, 1
    s_waitcnt lgkmcnt(0)
    s_mov_b64 exec, 1
    ds_add_u32 v4, v5
    s_mov_b64 exec, -1
    v_and_b32 v12, 1, v1
    s_movk_i32 s52, {CS - 2}
    v_mul_lo_u32 v12, v12, s52
    v_and_b32 v14, 19, v1
    v_lshl_add_u32 v12, v14, 1, v12
    v_bfe_u32 v14, v1, 2, 1
    v_lshl_add_u32 v12, v14, 4, v12
    v_bfe_u32 v14, v1, 3, 1
    v_lshl_add_u32 v12, v14, 3, v12
    v_lshlrev_b32 v14, 4, v6
    v_sub_u32 v12, v12, v14
    s_add_u32 s53, s45, 16
    v_add_u32 v12, s53, v12
    s_movk_i32 s52, 1536
    v_mul_lo_u32 v13, v6, s52
    v_lshl_add_u32 v13, v7, 4, v13
    s_lshl_b32 s59, s42, 9
    s_add_u32 s53, s45, s59
    s_add_u32 s53, s53, {2*CS}
    v_add_u32 v8, s53, v13
    v_subrev_u32 v13, 32, v8
    s_lshl_b32 s55, s42, 4
    s_add_u32 s55, s55, 16
    """)
    ACC = 64
    BUF = (16, 32)
    for r in range(16): a(f"v_mov_b32 v{ACC+r}, 0")
    a.label(f"{N}_cw")
    a(f"""
    ds_read_b32 v5, v4
    s_waitcnt lgkmcnt(0)
    v_readfirstlane_b32 s52, v5
    s_cmp_ge_u32 s52, 4
    s_cbranch_scc1 {N}_cwd
    s_sleep 2
    s_branch {N}_cw
    """)
    a.label(f"{N}_cwd")
    a(f"""
    v_lshlrev_b32 v80, 7, v1
    s_cmp_lt_u32 s39, 2
    s_cbranch_scc1 {N}_cwo
    s_mul_i32 s53, s37, 49152
    s_mul_i32 s54, s42, 24576
    s_add_u32 s53, s53, s54
    s_add_u32 s53, s53, {hex(LY.WP)}
    buffer_load_dword v81, v80, s[24:27], s53 offen
    s_add_u32 s53, s53, 8192
    buffer_load_dword v81, v80, s[24:27], s53 offen
    s_add_u32 s53, s53, 8192
    buffer_load_dword v81, v80, s[24:27], s53 offen
    s_branch {N}_cgo
    """)
    a.label(f"{N}_cwo")
    a(f"""
    s_lshl_b32 s53, s37, 14
    s_lshl_b32 s54, s39, 13
    s_add_u32 s53, s53, s54
    s_mov_b32 s20, s6
    s_mov_b32 s21, s7
    s_mov_b32 s22, 0x80000
    buffer_load_dword v81, v80, s[20:23], s53 offen
    """)
    a.label(f"{N}_cgo")
    def reads(buf, dd):
        for kp in range(2):
            b = BUF[buf] + 8 * kp
            ao = 8 * (2 * dd - kp + 1)
            a(f"ds_read2_b32 v[{b}:{b+1}], v12 offset0:{ao} offset1:{ao+1}")
            a(f"ds_read2_b32 v[{b+2}:{b+3}], v12 offset0:{ao+2} offset1:{ao+3}")
            a(f"ds_read_b128 v[{b+4}:{b+7}], v13 offset:{kp * 3072 + (32 - dd) * 16 + 32}")
    def mfmas(buf):
        for kp in range(2):
            b = BUF[buf] + 8 * kp
            mf(a, ACC, b, b + 4, vr(ACC, 16))
    reads(0, 0)
    a.label(f"{N}_clp")
    reads(1, 1)
    a("s_waitcnt lgkmcnt(6)")
    mfmas(0)
    reads(0, 2)
    a("s_waitcnt lgkmcnt(6)")
    mfmas(1)
    a(f"""
    v_add_u32 v12, 128, v12
    v_subrev_u32 v13, 32, v13
    s_sub_u32 s55, s55, 1
    s_cmp_lg_u32 s55, 0
    s_cbranch_scc1 {N}_clp
    s_waitcnt lgkmcnt(0)
    ds_read_b128 v[16:19], v8 offset:512
    ds_read_b128 v[20:23], v8 offset:{3072 + 512}
    s_lshl_b32 s60, s47, 16
    s_and_b32 s61, s47, 0xffff0000
    s_cmp_eq_u32 s41, 0
    s_cselect_b32 s60, s60, s61
    v_lshlrev_b32 v12, 4, v7
    v_lshl_add_u32 v12, v6, 10, v12
    s_lshl_b32 s59, s42, 9
    s_add_u32 s58, s59, s46
    s_add_u32 s58, s58, {hex(LY.YT)}
    s_lshl_b32 s59, s42, 11
    s_waitcnt lgkmcnt(0)
    """)
    for kp in range(2):
        for j in range(4):
            a(f"v_lshlrev_b32 v{24+8*kp+7-2*j}, 16, v{16+4*kp+j}")
            a(f"v_and_b32 v{24+8*kp+6-2*j}, 0xffff0000, v{16+4*kp+j}")
    for r in range(16): a(f"v_fmac_f32 v{ACC+r}, s60, v{24+r}")
    for j in range(8): a(f"v_cvt_pk_bf16_f32 v{16+j}, v{ACC+2*j}, v{ACC+2*j+1}")
    a(f"""
    buffer_store_dwordx4 v[16:19], v12, s[24:27], s58 offen sc1
    buffer_store_dwordx4 v[20:23], v12, s[24:27], s58 offen offset:2048 sc1
    s_lshl_b32 s68, s43, 2
    s_add_u32 s68, s68, s59
    s_add_u32 s68, s68, {hex(LY.FY)}
    """)
    stamp(a, 12)
    a.label(f"{N}_hend")
    a(f"""
    s_setprio 0
    s_barrier
    s_barrier
    """)

def oproj(a):
    a.comment("================= out-projection + gated layer =================")
    a.label(f"{N}_op")
    a(f"""
    s_lshl_b32 s41, s36, 2
    s_and_b32 s46, s37, 3
    s_add_u32 s41, s41, s46
    s_lshr_b32 s42, s37, 2
    s_cmp_lt_u32 s40, 4
    s_cbranch_scc1 {N}_opc
    s_cmp_lt_u32 s40, 8
    s_cbranch_scc1 {N}_opb
    """)
    srd(a, 20, 6, 0x80000)
    a(f"""
    s_sub_u32 s39, s40, 8
    v_bfe_u32 v4, v1, 2, 3
    v_lshlrev_b32 v4, 10, v4
    v_lshrrev_b32 v5, 5, v1
    v_lshl_add_u32 v4, v5, 6, v4
    v_and_b32 v5, 3, v1
    v_lshl_add_u32 v4, v5, 4, v4
    s_lshl_b32 s52, s42, 7
    s_lshl_b32 s53, s39, 13
    s_add_u32 s52, s52, s53
    s_lshl_b32 s54, s39, 10
    """)
    for n in range(16):
        a(f"s_add_u32 m0, s54, {n*4096}")
        a(f"s_add_u32 s51, s52, {n*32768}")
        a(f"buffer_load_dwordx4 v4, s[20:23], s51 offen lds")
        if n == 3:
            a(f"""
            s_cmp_lg_u32 s3, 0
            s_cbranch_scc1 {N}_nofy
            v_mov_b32 v15, 1
            v_mov_b32 v14, 0
            s_waitcnt vmcnt(4)
            s_mov_b64 exec, 1
            buffer_store_dword v15, v14, s[24:27], s68 offen sc1
            s_mov_b64 exec, -1
            """)
            a.label(f"{N}_nofy")
    a(f"""
    s_lshr_b32 s53, s41, 4
    s_lshl_b32 s53, s53, 11
    s_lshl_b32 s55, s42, 8
    s_add_u32 s53, s53, s55
    s_add_u32 s53, s53, {hex(LY.FY)}
    v_lshrrev_b32 v5, 3, v1
    v_lshlrev_b32 v5, 12, v5
    v_and_b32 v6, 3, v1
    v_lshl_add_u32 v5, v6, 10, v5
    v_bfe_u32 v6, v1, 2, 1
    v_lshl_add_u32 v5, v6, 4, v5
    s_lshl_b32 s55, s42, 18
    s_lshl_b32 s56, s39, 16
    s_add_u32 s55, s55, s56
    s_lshl_b32 s56, s41, 5
    s_add_u32 s55, s55, s56
    s_lshl_b32 s57, s39, 11
    """)
    a(f"""
    s_lshl_b32 s50, s41, 8
    s_lshl_b32 s49, s3, 13
    s_add_u32 s50, s50, s49
    s_add_u32 s50, s50, {hex(LY.FO)}
    s_cmp_lg_u32 s40, 8
    s_cbranch_scc1 {N}_op_rv
    """)
    poll(a, 53, "y")
    poll(a, 50, "o")
    a.label(f"{N}_op_rv")
    if DIAGFIX():
        stamp(a, 13)
        a(f"s_cmp_lg_u32 s3, 0")
        a(f"s_cbranch_scc1 {N}_dg1")
        stamp_flush(a, 3, 14, 40, 14)
        a("s_mov_b64 exec, -1\nv_and_b32 v1, 63, v0\nv_lshlrev_b32 v2, 2, v1")
        a.label(f"{N}_dg1")
    a(f"""
    s_barrier
    s_add_u32 m0, s57, {YL}
    s_add_u32 s56, s55, {hex(LY.YT)}
    buffer_load_dwordx4 v5, s[24:27], s56 offen sc1 lds
    s_add_u32 m0, s57, {YL + 1024}
    s_add_u32 s56, s55, {hex(LY.YT + 32768)}
    buffer_load_dwordx4 v5, s[24:27], s56 offen sc1 lds
    s_and_b32 s55, s39, 1
    s_lshl_b32 s55, s55, 15
    s_lshr_b32 s56, s39, 1
    s_lshl_b32 s56, s56, 12
    s_add_u32 s55, s55, s56
    s_lshl_b32 s56, s41, 16
    s_add_u32 s56, s56, s55
    s_mul_i32 s57, s3, {hex(LY.OFL)}
    s_add_u32 s56, s56, s57
    s_add_u32 s56, s56, {hex(LY.OF)}
    """)
    for ci in range(4):
        for n in range(4):
            a(f"s_add_u32 m0, s55, {65536 + ci*8192 + n*1024}")
            a(f"s_add_u32 s51, s56, {ci*8192 + n*1024}")
            a(f"buffer_load_dwordx4 v3, s[24:27], s51 offen sc1 lds")
    for ci in range(4):
        a(f"s_waitcnt vmcnt({12 - 4*ci})")
        a("s_barrier")
    a(f"s_branch {N}_opw")
    a.label(f"{N}_opb")
    for ci in range(5): a("s_barrier")
    a.label(f"{N}_opw")
    a(f"""
    s_barrier
    s_cmp_lg_u32 s3, 0
    s_cbranch_scc1 {N}_done
    s_branch {N}_qkv
    """)
    a.label(f"{N}_opc")
    RES, YR, ACC, FR, T, RF, G = 16, 24, 32, 48, 80, 88, 104
    a(f"""
    s_and_b32 s46, s40, 1
    s_lshr_b32 s47, s40, 1
    s_lshl_b32 s43, s41, 1
    s_add_u32 s43, s43, s46
    v_and_b32 v7, 31, v1
    v_lshlrev_b32 v8, 4, v7
    v_lshlrev_b32 v7, 10, v7
    v_lshrrev_b32 v6, 5, v1
    v_lshl_add_u32 v7, v6, 4, v7
    s_lshl_b32 s58, s43, 15
    s_lshl_b32 s56, s42, 7
    s_add_u32 s58, s58, s56
    s_lshl_b32 s56, s47, 6
    s_add_u32 s58, s58, s56
    s_lshl_b32 s55, s43, 15
    s_lshl_b32 s56, s42, 12
    s_add_u32 s55, s55, s56
    s_lshl_b32 s56, s47, 11
    s_add_u32 s55, s55, s56
    s_add_u32 s55, s55, {hex(LY.X2F)}
    s_mov_b32 s22, 0x200000
    s_mov_b32 s23, 0x00020000
    s_cmp_lg_u32 s3, 0
    s_cbranch_scc1 {N}_opr1
    s_mov_b32 s20, s4
    s_mov_b32 s21, s5
    buffer_load_dwordx4 v[{RES}:{RES+3}], v7, s[20:23], s58 offen
    buffer_load_dwordx4 v[{RES+4}:{RES+7}], v7, s[20:23], s58 offen offset:32
    s_branch {N}_opr2
    """)
    a.label(f"{N}_opr1")
    a(f"""
    s_mov_b32 s20, s8
    s_mov_b32 s21, s9
    buffer_load_dwordx4 v[{RES}:{RES+3}], v3, s[24:27], s55 offen sc1
    buffer_load_dwordx4 v[{RES+4}:{RES+7}], v3, s[24:27], s55 offen offset:1024 sc1
    """)
    a.label(f"{N}_opr2")
    a(f"""
    v_bfe_u32 v10, v1, 2, 2
    v_lshlrev_b32 v5, 10, v6
    v_lshl_add_u32 v4, v10, 7, v5
    v_lshl_add_u32 v5, v10, 6, v5
    v_bfe_u32 v10, v1, 4, 1
    v_lshl_add_u32 v5, v10, 5, v5
    v_lshl_add_u32 v4, v10, 5, v4
    v_and_b32 v10, 3, v1
    v_lshl_add_u32 v4, v10, 3, v4
    v_and_b32 v10, 1, v1
    v_lshl_add_u32 v5, v10, 4, v5
    v_bfe_u32 v10, v1, 1, 1
    v_lshl_add_u32 v5, v10, 3, v5
    s_lshl_b32 s57, s47, 9
    v_add_u32 v5, s57, v5
    s_lshl_b32 s57, s47, 12
    s_lshl_b32 s56, s46, 6
    s_add_u32 s57, s57, s56
    s_add_u32 s57, s57, {YL}
    v_add_u32 v4, s57, v4
    s_lshl_b32 s57, s46, 15
    s_add_u32 s57, s57, 65536
    v_add_u32 v9, s57, v3
    s_mul_i32 s59, s3, {hex(LY.GRL)}
    s_lshl_b32 s60, s43, 13
    s_add_u32 s59, s59, s60
    s_add_u32 s59, s59, {hex(LY.GR)}
    s_lshl_b32 s60, s42, 10
    s_lshl_b32 s61, s47, 9
    s_add_u32 s60, s60, s61
    s_add_u32 s60, s60, s59
    s_add_u32 s61, s59, 4096
    s_mov_b32 s62, 0x3f803f80
    s_barrier
    """)
    def rd(ks):
        b = FR + 8 * (ks & 3)
        a(f"ds_read_b128 v[{b}:{b+3}], v9 offset:{ks*1024}")
        a(f"ds_read_b64_tr_b16 v[{b+4}:{b+5}], v5 offset:{ks*2048}")
        a(f"ds_read_b64_tr_b16 v[{b+6}:{b+7}], v5 offset:{ks*2048 + 256}")
    for ci in range(4):
        a("s_barrier")
        if ci == 0: stamp(a, 5)
        for i in range(4): rd(8*ci + i)
        for i in range(8):
            ks = 8*ci + i
            left = min(3, 7 - i)
            a(f"s_waitcnt lgkmcnt({3*left})")
            b = FR + 8 * (ks & 3)
            mf(a, ACC, b + 4, b, "0" if ks == 0 else vr(ACC, 16))
            if i + 4 < 8: rd(ks + 4)
    for q in range(4):
        a(f"ds_read_b64_tr_b16 v[{YR+2*q}:{YR+2*q+1}], v4 offset:{(q >> 1)*2048 + (q & 1)*512}")
    a("s_waitcnt vmcnt(0)")
    for j in range(8):
        a(f"v_lshlrev_b32 v{RF+2*j}, 16, v{RES+j}")
        a(f"v_and_b32 v{RF+2*j+1}, 0xffff0000, v{RES+j}")
    a(f"""
    v_mov_b32 v12, 0
    v_mov_b32 v14, 0
    s_waitcnt lgkmcnt(0)
    s_barrier
    """)
    stamp(a, 6)
    for j in range(8): a(f"v_cvt_pk_bf16_f32 v{T+j}, v{ACC+2*j}, v{ACC+2*j+1}")
    for j in range(8):
        a(f"v_lshlrev_b32 v{ACC+2*j}, 16, v{T+j}")
        a(f"v_and_b32 v{ACC+2*j+1}, 0xffff0000, v{T+j}")
    for j in range(8): a(f"v_pk_add_f32 {p(ACC+2*j)}, {p(ACC+2*j)}, {p(RF+2*j)}")
    for j in range(8): a(f"v_cvt_pk_bf16_f32 v{T+j}, v{ACC+2*j}, v{ACC+2*j+1}")
    for j in range(8):
        a(f"v_dot2c_f32_bf16 v12, s62, v{T+j}")
        a(f"v_dot2c_f32_bf16 v14, v{T+j}, v{T+j}")
    a(f"""
    s_mov_b32 s69, 0x10000
    s_nop 1
    v_mov_b32 v13, v12
    v_mov_b32 v15, v14
    s_nop 1
    v_permlane32_swap_b32 v12, v13
    v_permlane32_swap_b32 v14, v15
    s_nop 1
    v_add_f32 v12, v12, v13
    v_add_f32 v14, v14, v15
    v_mov_b32 v13, 1
    v_mov_b32 v15, 1
    s_mov_b64 exec, 0xffffffff
    buffer_store_dwordx4 v[12:15], v8, s[24:27], s60 offen sc1
    s_mov_b64 exec, -1
    """)
    for j in range(8):
        a(f"v_lshlrev_b32 v{ACC+2*j}, 16, v{T+j}")
        a(f"v_and_b32 v{ACC+2*j+1}, 0xffff0000, v{T+j}")
        a(f"v_lshlrev_b32 v{RF+2*j}, 16, v{YR+j}")
        a(f"v_and_b32 v{RF+2*j+1}, 0xffff0000, v{YR+j}")
    a.label(f"{N}_gp")
    for i in range(8):
        a(f"buffer_load_dwordx4 v[{G+4*i}:{G+4*i+3}], v3, s[24:27], s{59 if i < 4 else 61} offen offset:{(i%4)*1024} sc1")
    a("s_waitcnt vmcnt(0)")
    a(f"v_and_b32 v10, v{G+1}, v{G+3}")
    for i in range(1, 8):
        a(f"v_and_b32 v11, v{G+4*i+1}, v{G+4*i+3}")
        a(f"v_and_b32 v10, v10, v11")
    a(f"""
    v_cmp_eq_u32 vcc, 1, v10
    s_sub_u32 s69, s69, 1
    s_cbranch_scc1 {N}_gpo
    s_cmp_eq_u64 vcc, -1
    s_cbranch_scc1 {N}_gpo
    s_sleep {GSLEEP}
    s_branch {N}_gp
    """)
    a.label(f"{N}_gpo")
    stamp(a, 7)
    for i in range(1, 8):
        a(f"v_add_f32 v{G}, v{G}, v{G+4*i}")
        a(f"v_add_f32 v{G+2}, v{G+2}, v{G+4*i+2}")
    a(f"""
    v_mov_b32 v{G+1}, v{G}
    v_mov_b32 v{G+3}, v{G+2}
    s_mov_b32 s56, {f32hex(1.0/512)}
    s_nop 0
    v_permlane32_swap_b32 v{G}, v{G+1}
    v_permlane32_swap_b32 v{G+2}, v{G+3}
    s_nop 1
    v_add_f32 v10, v{G}, v{G+1}
    v_add_f32 v11, v{G+2}, v{G+3}
    v_mul_f32 v10, s56, v10
    v_mul_f32 v11, s56, v11
    v_fma_f32 v11, -v10, v10, v11
    v_max_f32 v11, 0, v11
    v_add_f32 v11, {f32hex(1e-5)}, v11
    v_rsq_f32 v12, v11
    s_nop 0
    v_mul_f32 v14, v10, v12
    v_sub_f32 v14, 0, v14
    v_mov_b32 v13, v12
    v_mov_b32 v15, v14
    """)
    for j in range(8): a(f"v_pk_fma_f32 {p(FR+2*j)}, {p(ACC+2*j)}, v[12:13], v[14:15]")
    for j in range(8): a(f"v_pk_fma_f32 {p(FR+2*j)}, {p(FR+2*j)}, {p(RF+2*j)}, {p(ACC+2*j)}")
    for j in range(8): a(f"v_cvt_pk_bf16_f32 v{T+j}, v{FR+2*j}, v{FR+2*j+1}")
    a(f"""
    s_cmp_eq_u32 s3, 0
    s_cbranch_scc1 {N}_ops0
    buffer_store_dwordx4 v[{T}:{T+3}], v7, s[20:23], s58 offen
    buffer_store_dwordx4 v[{T+4}:{T+7}], v7, s[20:23], s58 offen offset:32
    """)
    stamp(a, 13)
    stamp_flush(a, 1, 14, 40, 14)
    a("s_endpgm")
    a.label(f"{N}_ops0")
    a(f"""
    buffer_store_dwordx4 v[{T}:{T+3}], v3, s[24:27], s55 offen sc1
    buffer_store_dwordx4 v[{T+4}:{T+7}], v3, s[24:27], s55 offen offset:1024 sc1
    v_mov_b32 v10, 0
    v_mov_b32 v11, 0
    """)
    for j in range(8):
        a(f"v_dot2c_f32_bf16 v10, s62, v{T+j}")
        a(f"v_dot2c_f32_bf16 v11, v{T+j}, v{T+j}")
    a(f"""
    v_lshrrev_b32 v8, 1, v8
    s_sub_u32 s60, s60, {hex(LY.GR)}
    s_lshr_b32 s61, s60, 1
    s_add_u32 s61, s61, {hex(LY.ST2)}
    v_mov_b32 v12, v10
    v_mov_b32 v13, v11
    s_lshr_b32 s60, s60, 7
    s_add_u32 s60, s60, {hex(LY.FX)}
    v_permlane32_swap_b32 v10, v12
    v_permlane32_swap_b32 v11, v13
    s_nop 0
    v_add_f32 v10, v10, v12
    v_add_f32 v11, v11, v13
    s_mov_b64 exec, 0xffffffff
    buffer_store_dwordx2 v[10:11], v8, s[24:27], s61 offen sc1
    s_mov_b64 exec, -1
    """)
    set_flag(a, 60)
    stamp(a, 8)

def qkv(a):
    a.comment("================= layer-2 QKV projection =================")
    a.label(f"{N}_qkv")
    XL = 98304
    a(f"""
    s_lshl_b32 s41, s36, 1
    s_and_b32 s46, s37, 1
    s_add_u32 s41, s41, s46
    s_lshr_b32 s42, s37, 1
    s_and_b32 s39, s40, 3
    s_lshl_b32 s43, s41, 2
    s_add_u32 s43, s43, s39
    s_cmp_lt_u32 s40, 4
    s_cbranch_scc1 {N}_qc
    s_sub_u32 s53, s40, 4
    s_mul_i32 s53, s53, 12288
    s_mul_i32 s52, s42, 98304
    s_add_u32 s52, s52, s53
    s_add_u32 s52, s52, {hex(LY.WP)}
    """)
    for m in range(12):
        a(f"s_add_u32 m0, s53, {m*1024}")
        a(f"s_add_u32 s51, s52, {m*1024}")
        a(f"buffer_load_dwordx4 v3, s[24:27], s51 offen lds")
    a(f"""
    s_cmp_lt_u32 s40, 8
    s_cbranch_scc1 {N}_qb
    s_lshl_b32 s53, s41, 8
    s_add_u32 s53, s53, {hex(LY.FX)}
    s_lshl_b32 s49, s43, 15
    s_add_u32 s49, s49, {hex(LY.X2F)}
    s_lshl_b32 s54, s39, 12
    s_add_u32 s54, s54, {XL}
    s_cmp_lg_u32 s40, 8
    s_cbranch_scc1 {N}_q_rv
    """)
    poll(a, 53, "x")
    a.label(f"{N}_q_rv")
    a("s_barrier")
    def xissue(j):
        for n in range(4):
            a(f"s_add_u32 m0, s54, {(j & 3)*16384 + n*1024}")
            a(f"s_add_u32 s51, s49, {j*4096 + n*1024}")
            a(f"buffer_load_dwordx4 v3, s[24:27], s51 offen sc1 lds")
    for j in range(4): xissue(j)
    for j in range(8):
        issued = min(8, 4 + max(0, j - 1))
        a(f"s_waitcnt vmcnt({4 * (issued - j - 1)})")
        a("s_barrier")
        if j >= 1 and j + 3 < 8: xissue(j + 3)
    a(f"""
    s_barrier
    s_branch {N}_qend
    """)
    a.label(f"{N}_qb")
    a(f"""
    v_lshlrev_b32 v7, 3, v1
    s_lshl_b32 s52, s43, 12
    s_add_u32 s52, s52, {hex(LY.ST2)}
    s_min_u32 s53, s39, 2
    s_lshl_b32 s51, s53, 11
    s_lshl_b32 s54, s42, 7
    s_add_u32 s51, s51, s54
    s_add_u32 s51, s51, {hex(LY.CSB)}
    v_and_b32 v4, 31, v1
    v_lshlrev_b32 v4, 2, v4
    buffer_load_dword v32, v4, s[24:27], s51 offen
    s_waitcnt vmcnt(0)
    s_barrier
    """)
    for i2 in range(8):
        a(f"buffer_load_dwordx2 v[{16+2*i2}:{17+2*i2}], v7, s[24:27], s52 offen offset:{512*i2} sc1")
    a(f"""
    s_barrier
    s_lshl_b32 s53, s53, 7
    s_add_u32 s53, s53, 2048
    v_add_u32 v5, s53, v4
    s_lshl_b32 s53, s39, 9
    v_add_u32 v4, s53, v4
    s_barrier
    s_waitcnt vmcnt(0)
    """)
    for i2 in range(1, 8):
        a(f"v_add_f32 v16, v16, v{16+2*i2}")
        a(f"v_add_f32 v17, v17, v{17+2*i2}")
    a(f"""
    v_mov_b32 v18, v16
    v_mov_b32 v19, v17
    s_mov_b32 s56, {f32hex(1.0/512)}
    s_nop 0
    v_permlane32_swap_b32 v16, v18
    v_permlane32_swap_b32 v17, v19
    s_nop 0
    v_add_f32 v16, v16, v18
    v_add_f32 v17, v17, v19
    v_mul_f32 v16, s56, v16
    v_mul_f32 v17, s56, v17
    v_fma_f32 v17, -v16, v16, v17
    v_max_f32 v17, 0, v17
    v_add_f32 v17, {f32hex(1e-5)}, v17
    v_rsq_f32 v17, v17
    s_nop 0
    v_mul_f32 v16, v16, v17
    v_sub_f32 v16, 0, v16
    ds_write_b32 v4, v17
    ds_write_b32 v4, v16 offset:128
    ds_write_b32 v5, v32
    s_waitcnt lgkmcnt(0)
    """)
    for j in range(7): a("s_barrier")
    a(f"s_branch {N}_qend")
    a.label(f"{N}_qc")
    XR, ACC, WFR, TQ, TV, PK = (24, 40), 56, 104, 24, 104, 140
    a(f"""
    v_lshrrev_b32 v6, 5, v1
    v_and_b32 v4, 31, v1
    v_lshlrev_b32 v21, 9, v6
    v_bfe_u32 v22, v1, 2, 2
    v_lshl_add_u32 v21, v22, 6, v21
    v_bfe_u32 v22, v1, 4, 1
    v_lshl_add_u32 v21, v22, 5, v21
    v_and_b32 v22, 3, v1
    v_lshl_add_u32 v21, v22, 3, v21
    v_add_u32 v22, 49152, v21
    s_lshl_b32 s56, s40, 12
    s_add_u32 s56, s56, {XL}
    v_add_u32 v23, s56, v3
    s_lshl_b32 s50, s40, 9
    v_lshl_add_u32 v12, v4, 2, s50
    v_lshl_add_u32 v11, v6, 4, s50
    v_lshlrev_b32 v13, 4, v6
    v_lshlrev_b32 v5, 2, v4
    s_lshl_b32 s57, s42, 17
    s_lshl_b32 s58, s43, 10
    s_add_u32 s57, s57, s58
    s_add_u32 s57, s57, {hex(LY.QKVL)}
    v_and_b32 v10, 3, v1
    v_bfe_u32 v9, v1, 2, 1
    v_lshl_or_b32 v10, v9, 3, v10
    v_bfe_u32 v9, v1, 3, 1
    v_lshl_or_b32 v10, v9, 2, v10
    v_lshlrev_b32 v10, 4, v10
    v_lshl_or_b32 v10, v6, 8, v10
    v_bfe_u32 v9, v1, 4, 1
    v_lshl_or_b32 v10, v9, 16, v10
    s_lshl_b32 s59, s42, 8
    s_lshl_b32 s60, s43, 2
    s_add_u32 s59, s59, s60
    s_add_u32 s59, s59, {hex(LY.FQ)}
    """)
    def wread(ks):
        j, kk = ks // 4, ks % 4
        b = WFR + 12 * (ks % 3)
        for f in range(3):
            for q in range(2):
                off = (j & 3) * 12288 + f*4096 + kk*1024 + q*256
                a(f"ds_read_b64_tr_b16 v[{b+4*f+2*q}:{b+4*f+2*q+1}], v{21 + (j >> 2)} offset:{off}")
    def xread(j):
        for kk in range(4):
            a(f"ds_read_b128 v[{XR[j&1]+4*kk}:{XR[j&1]+4*kk+3}], v23 offset:{(j & 3)*16384 + kk*1024}")
    a("s_barrier")
    a("s_barrier")
    stamp(a, 9)
    xread(0); wread(0)
    for ks in range(32):
        j, kk = ks // 4, ks % 4
        if kk == 0:
            a("s_waitcnt lgkmcnt(0)")
            wread(ks + 1); wread(ks + 2)
        elif kk == 1:
            a("s_waitcnt lgkmcnt(6)")
            wread(ks + 2)
        elif kk == 2:
            a("s_waitcnt lgkmcnt(6)")
        else:
            a("s_waitcnt lgkmcnt(0)")
            if j < 7:
                a("s_barrier")
                xread(j + 1); wread(ks + 1)
            else:
                a("ds_read_b32 v16, v12")
                a("ds_read_b32 v17, v12 offset:128")
                a("ds_read_b32 v20, v5 offset:2304")
                for g in range(4):
                    a(f"ds_read_b128 v[{TQ+4*g}:{TQ+4*g+3}], v13 offset:{2048 + 32*g}")
        b = WFR + 12 * (ks % 3)
        x = vr(XR[j & 1] + 4*kk, 4)
        for f in range(3):
            acc = vr(ACC + 16*f, 16)
            c = "0" if ks == 0 else acc
            w = vr(b + 4*f, 4)
            if f < 2: a(f"v_mfma_f32_32x32x16_bf16 {acc}, {w}, {x}, {c}")
            else:     a(f"v_mfma_f32_32x32x16_bf16 {acc}, {x}, {w}, {c}")
    stamp(a, 10)
    a("s_waitcnt lgkmcnt(0)")
    for g in range(4):
        a(f"ds_read_b128 v[{TQ+16+4*g}:{TQ+16+4*g+3}], v13 offset:{2176 + 32*g}")
        a(f"ds_read_b128 v[{TV+4*g}:{TV+4*g+3}], v11 offset:{32*g}")
        a(f"ds_read_b128 v[{TV+16+4*g}:{TV+16+4*g+3}], v11 offset:{128 + 32*g}")
    a(f"""
    s_mov_b32 s56, {f32hex(LY.QSCALE)}
    v_mul_f32 v6, s56, v16
    v_mul_f32 v8, s56, v17
    v_mov_b32 v7, v6
    v_mov_b32 v9, v8
    v_mov_b32 v18, v17
    v_mov_b32 v19, v17
    v_mov_b32 v17, v16
    v_mov_b32 v21, v20
    """)
    def qk(f, rs, mr):
        for j in range(8): a(f"v_pk_mul_f32 {p(ACC+16*f+2*j)}, {p(ACC+16*f+2*j)}, {p(rs)}")
        for j in range(8): a(f"v_pk_fma_f32 {p(ACC+16*f+2*j)}, {p(TQ+16*f+2*j)}, {p(mr)}, {p(ACC+16*f+2*j)}")
        for j in range(8): a(f"v_cvt_pk_bf16_f32 v{PK+8*f+j}, v{ACC+16*f+2*j}, v{ACC+16*f+2*j+1}")
        base = LY.QF if f == 0 else LY.KF
        a(f"s_add_u32 s58, s57, {hex(base)}")
        a(f"buffer_store_dwordx4 v[{PK+8*f}:{PK+8*f+3}], v3, s[24:27], s58 offen sc1")
        a(f"s_add_u32 s58, s57, {hex(base + 65536)}")
        a(f"buffer_store_dwordx4 v[{PK+8*f+4}:{PK+8*f+7}], v3, s[24:27], s58 offen sc1")
    a("s_nop 3")
    qk(0, 6, 8)
    a("s_waitcnt lgkmcnt(0)")
    a("s_barrier")
    qk(1, 16, 18)
    for j in range(8): a(f"v_pk_mul_f32 {p(ACC+32+2*j)}, {p(ACC+32+2*j)}, {p(TV+2*j)}")
    for j in range(8): a(f"v_pk_fma_f32 {p(ACC+32+2*j)}, {p(TV+16+2*j)}, v[20:21], {p(ACC+32+2*j)}")
    for j in range(8): a(f"v_cvt_pk_bf16_f32 v{PK+16+j}, v{ACC+32+2*j}, v{ACC+32+2*j+1}")
    a(f"""
    s_add_u32 s58, s57, {hex(LY.VF)}
    buffer_store_dwordx4 v[{PK+16}:{PK+19}], v10, s[24:27], s58 offen sc1
    buffer_store_dwordx4 v[{PK+20}:{PK+23}], v10, s[24:27], s58 offen offset:512 sc1
    """)
    set_flag(a, 59)
    stamp(a, 11)
    stamp_flush(a, 2, 12, 40, 14)
    if DIAGFIX(): a("s_mov_b64 exec, -1\nv_and_b32 v1, 63, v0\nv_lshlrev_b32 v2, 2, v1")
    a.label(f"{N}_qend")

def DIAGFIX():
    import asmlib
    return asmlib.DIAG
```

```python
import struct
from asmlib import *
import layout as LY

def f32hex(x):
    return hex(struct.unpack("<I", struct.pack("<f", x))[0])

NSLOT = 5
ZERO = 1
SLOT = 28672
STAT = NSLOT * SLOT
def lds_bytes(layer1):
    return STAT + 4 * 2048

def emit(a, name, layer1, prefetch=False):
    kernel_begin(a, name)
    done = f"{name}_done"
    a(f"""
    s_cmp_ge_u32 s2, 256
    s_cbranch_scc1 {done}
    s_load_dwordx4 s[4:7], s[0:1], 0
    s_load_dwordx2 s[14:15], s[0:1], 88
    """)
    a(f"""
    v_lshrrev_b32 v2, 6, v0
    v_and_b32 v1, 63, v0
    v_readfirstlane_b32 s40, v2
    s_and_b32 s44, s2, 7
    s_lshr_b32 s45, s2, 3
    """)
    if layer1:
        a("""
        s_and_b32 s41, s44, 3
        s_lshl_b32 s41, s41, 2
        s_and_b32 s46, s45, 3
        s_add_u32 s41, s41, s46
        s_lshr_b32 s42, s44, 2
        s_lshl_b32 s42, s42, 3
        s_lshr_b32 s46, s45, 2
        s_add_u32 s42, s42, s46
        """)
    else:
        a("""
        s_lshl_b32 s41, s44, 1
        s_and_b32 s46, s45, 1
        s_add_u32 s41, s41, s46
        s_lshr_b32 s42, s45, 1
        """)
    a(f"""
    s_and_b32 s39, s40, 3
    s_lshl_b32 s43, s41, 2
    s_add_u32 s43, s43, s39
    v_lshrrev_b32 v3, 5, v1
    v_and_b32 v4, 31, v1
    v_lshlrev_b32 v9, 4, v1
    s_lshl_b32 s49, s43, 15
    s_cmp_ge_u32 s40, 4
    s_cbranch_scc1 {name}_loader
    s_lshl_b32 s50, s40, 11
    s_add_u32 s50, s50, {STAT}
    s_waitcnt lgkmcnt(0)
    """)
    srd(a, 24, 14, LY.WS_USED)
    stamp(a, 0)
    XR = (64, 80)
    ACC = 96
    WFR = 144
    TQ = 24
    TV = 180
    SUM, SQ, CS = 14, 16, 18
    if not layer1:
        a.comment("column sums of W (written by layer 1): Q,K per register, V per lane; row-stat partials of x2")
        a(f"""
        v_lshlrev_b32 v5, 4, v3
        v_lshlrev_b32 v6, 2, v4
        s_lshl_b32 s51, s42, 7
        s_add_u32 s51, s51, {hex(LY.CSB)}
        v_lshlrev_b32 v7, 3, v1
        s_lshl_b32 s52, s43, 12
        s_add_u32 s52, s52, {hex(LY.ST2)}
        """)
        for i2 in range(8):
            a(f"buffer_load_dwordx2 v[{WFR+2*i2}:{WFR+2*i2+1}], v7, s[24:27], s52 offen offset:{512*i2}")
        for f in range(2):
            for g in range(4):
                a(f"buffer_load_dwordx4 v[{TQ+16*f+4*g}:{TQ+16*f+4*g+3}], v5, s[24:27], s51 offen offset:{f*2048 + 32*g}")
        a(f"s_add_u32 s51, s51, 4096")
        a(f"buffer_load_dword v20, v6, s[24:27], s51 offen")
    if layer1:
        a.comment("cold start: touch a distinct share of the lines this XCD will need, so all misses are in flight at once (speed only)")
        srd(a, 16, 4, 0x200000)
        srd(a, 20, 6, 0x180000)
        a(f"""
        s_and_b32 s51, s42, 7
        s_lshl_b32 s51, s51, 7
        s_add_u32 s51, s51, s49
        v_lshlrev_b32 v10, 10, v4
        buffer_load_dword v24, v10, s[16:19], s51 offen
        s_and_b32 s53, s41, 3
        s_lshl_b32 s53, s53, 1
        s_and_b32 s54, s42, 1
        s_add_u32 s53, s53, s54
        s_mul_i32 s53, s53, 3072
        s_lshl_b32 s54, s42, 6
        s_add_u32 s53, s53, s54
        s_min_u32 s54, s40, 2
        s_lshl_b32 s54, s54, 10
        s_add_u32 s53, s53, s54
        s_movk_i32 s54, {8*3072}
        v_mul_lo_u32 v10, v1, s54
        buffer_load_dword v25, v10, s[20:23], s53 offen
        """)
    if layer1 and ZERO:
        a.comment("zero the hand-off words of the second launch: 4 KB of stat granules per workgroup, 32 KB of flags")
        a(f"""
        v_mov_b32 v28, 0
        v_mov_b32 v29, 0
        v_mov_b32 v30, 0
        v_mov_b32 v31, 0
        s_lshl_b32 s51, s2, 12
        s_lshl_b32 s53, s40, 10
        s_add_u32 s51, s51, s53
        s_add_u32 s53, s51, {hex(LY.GR)}
        buffer_store_dwordx4 v[28:31], v9, s[24:27], s53 offen
        s_cmp_ge_u32 s2, 8
        s_cbranch_scc1 {name}_nz
        s_add_u32 s53, s51, {hex(LY.FLG)}
        buffer_store_dwordx4 v[28:31], v9, s[24:27], s53 offen
        """)
        a.label(f"{name}_nz")
    a(f"""
    s_mov_b32 s55, 0x3f803f80
    v_lshlrev_b32 v21, 9, v3
    v_bfe_u32 v22, v1, 2, 2
    v_lshl_add_u32 v21, v22, 6, v21
    v_bfe_u32 v22, v1, 4, 1
    v_lshl_add_u32 v21, v22, 5, v21
    v_and_b32 v22, 3, v1
    v_lshl_add_u32 v21, v22, 3, v21
    v_add_u32 v22, {2*SLOT}, v21
    v_add_u32 v23, {4*SLOT}, v21
    s_lshl_b32 s56, s40, 12
    s_add_u32 s56, s56, 12288
    """)
    if layer1:
        a(f"""
        v_bfe_u32 v13, v1, 1, 3
        v_xor_b32 v13, v13, v3
        v_lshlrev_b32 v13, 4, v13
        v_lshl_add_u32 v13, v4, 7, v13
        v_add_u32 v13, s56, v13
        """)
        for kk in range(4):
            a(f"v_xor_b32 v{56+kk}, {kk << 5}, v13")
            a(f"v_add_u32 v{60+kk}, {2*SLOT}, v{56+kk}")
            a(f"v_add_u32 v{5+kk}, {4*SLOT}, v{56+kk}")
        for r in (14, 15, 16, 17, 18, 19, 20):
            a(f"v_mov_b32 v{r}, 0")
    else:
        a(f"""
        v_add_u32 v56, s56, v9
        v_add_u32 v60, {2*SLOT}, v56
        v_add_u32 v5, {4*SLOT}, v56
        """)
    def finish_stats():
        a(f"""
        v_mov_b32 v15, v14
        v_mov_b32 v17, v16
        v_lshl_add_u32 v12, v4, 2, s50
        v_lshl_add_u32 v11, v3, 4, s50
        v_permlane32_swap_b32 v14, v15
        v_permlane32_swap_b32 v16, v17
        s_mov_b32 s56, {f32hex(1.0/512)}
        s_nop 0
        v_add_f32 v14, v14, v15
        v_add_f32 v16, v16, v17
        v_mul_f32 v14, s56, v14
        v_mul_f32 v16, s56, v16
        v_fma_f32 v16, -v14, v14, v16
        v_max_f32 v16, 0, v16
        v_add_f32 v16, {f32hex(1e-5)}, v16
        v_rsq_f32 v16, v16
        s_nop 0
        v_mul_f32 v17, v14, v16
        v_sub_f32 v17, 0, v17
        ds_write_b32 v12, v16 offset:512
        ds_write_b32 v12, v17 offset:640
        s_waitcnt lgkmcnt(0)
        """)
        for g in range(4):
            a(f"ds_read_b128 v[{TV+4*g}:{TV+4*g+3}], v11 offset:{512 + 32*g}")
            a(f"ds_read_b128 v[{TV+16+4*g}:{TV+16+4*g+3}], v11 offset:{640 + 32*g}")
    if not layer1:
        a("s_waitcnt vmcnt(9)")
        for i2 in range(1, 8):
            a(f"v_add_f32 v{WFR}, v{WFR}, v{WFR+2*i2}")
            a(f"v_add_f32 v{WFR+1}, v{WFR+1}, v{WFR+2*i2+1}")
        a(f"v_mov_b32 v14, v{WFR}")
        a(f"v_mov_b32 v16, v{WFR+1}")
        finish_stats()
        a("s_waitcnt lgkmcnt(0)")
    def wread(ks):
        j, kk = ks // 4, ks % 4
        sl = j % NSLOT
        base = 21 + sl // 2
        b = WFR + 12 * (ks % 3)
        for f in range(3):
            for q in range(2):
                off = (sl & 1) * SLOT + f*4096 + kk*1024 + q*256
                a(f"ds_read_b64_tr_b16 v[{b+4*f+2*q}:{b+4*f+2*q+1}], v{base} offset:{off}")
    def xread(j):
        sl = j % NSLOT
        for kk in range(4):
            if layer1:
                base, off = (56, 60, 5)[sl // 2] + kk, (sl & 1) * SLOT
            else:
                base, off = (56, 60, 5)[sl // 2], (sl & 1) * SLOT + kk * 1024
            a(f"ds_read_b128 v[{XR[j&1]+4*kk}:{XR[j&1]+4*kk+3}], v{base} offset:{off}")
    a("s_barrier")
    stamp(a, 1)
    xread(0); wread(0)
    for ks in range(32):
        j, kk = ks // 4, ks % 4
        if kk == 0:
            a("s_waitcnt lgkmcnt(0)")
            wread(ks + 1); wread(ks + 2)
        elif kk == 1:
            a("s_waitcnt lgkmcnt(6)")
            wread(ks + 2)
        elif kk == 2:
            a("s_waitcnt lgkmcnt(6)")
        else:
            a("s_waitcnt lgkmcnt(0)")
            if j < 7:
                a("s_barrier")
                if j == 6: stamp(a, 2)
                xread(j + 1); wread(ks + 1)
        b = WFR + 12 * (ks % 3)
        xr = XR[j & 1] + 4*kk
        x = vr(xr, 4)
        for f in range(3):
            acc = vr(ACC + 16*f, 16)
            c = "0" if ks == 0 else acc
            w = vr(b + 4*f, 4)
            if f < 2: a(f"v_mfma_f32_32x32x16_bf16 {acc}, {w}, {x}, {c}")
            else:     a(f"v_mfma_f32_32x32x16_bf16 {acc}, {x}, {w}, {c}")
        if layer1:
            skip = a.uid(f"{name}_cs")
            a(f"s_cmp_eq_u32 s40, {kk}")
            a(f"s_cbranch_scc0 {skip}")
            for d in range(4):
                for f in range(3):
                    a(f"v_dot2c_f32_bf16 v{CS+f}, s55, v{b+4*f+d}")
            a.label(skip)
            if kk == 2:
                for r in range(16):
                    a(f"v_dot2c_f32_bf16 v{SUM + (r & 1)}, s55, v{XR[j&1]+r}")
                    a(f"v_dot2c_f32_bf16 v{SQ + (r & 1)}, v{XR[j&1]+r}, v{XR[j&1]+r}")
    stamp(a, 3)
    if layer1:
        a(f"""
        s_nop 2
        v_add_f32 v14, v14, v15
        v_add_f32 v16, v16, v17
        v_mov_b32 v57, v18
        v_mov_b32 v58, v19
        v_mov_b32 v59, v20
        v_lshl_add_u32 v12, v4, 2, s50
        s_nop 0
        v_permlane32_swap_b32 v18, v57
        v_permlane32_swap_b32 v19, v58
        v_permlane32_swap_b32 v20, v59
        s_nop 0
        v_add_f32 v18, v18, v57
        v_add_f32 v19, v19, v58
        v_add_f32 v20, v20, v59
        ds_write_b32 v12, v18
        ds_write_b32 v12, v19 offset:128
        ds_write_b32 v12, v20 offset:256
        """)
        finish_stats()
        a(f"""
        s_barrier
        v_lshlrev_b32 v10, 2, v4
        v_add_u32 v13, {STAT}, v10
        """)
        for f in range(3):
            for w in range(4):
                a(f"ds_read_b32 v{64+4*f+w}, v13 offset:{w*2048 + f*128}")
        a("s_waitcnt lgkmcnt(0)")
        for f in range(3):
            a(f"v_add_f32 v{64+4*f}, v{64+4*f}, v{65+4*f}")
            a(f"v_add_f32 v{66+4*f}, v{66+4*f}, v{67+4*f}")
            a(f"v_add_f32 v{CS+f}, v{64+4*f}, v{66+4*f}")
        a(f"""
        ds_write_b32 v12, v18 offset:1024
        ds_write_b32 v12, v19 offset:1152
        """)
        sk = a.uid(f"{name}_cst")
        a(f"""
        s_cmp_lg_u32 s43, 0
        s_cbranch_scc1 {sk}
        s_lshl_b32 s51, s42, 7
        s_add_u32 s51, s51, {hex(LY.CSB)}
        buffer_store_dword v18, v10, s[24:27], s51 offen
        buffer_store_dword v19, v10, s[24:27], s51 offen offset:2048
        s_add_u32 s51, s51, 4096
        buffer_store_dword v20, v10, s[24:27], s51 offen
        """)
        a.label(sk)
        a("s_waitcnt lgkmcnt(0)")
        for g in range(4):
            a(f"ds_read_b128 v[{TQ+4*g}:{TQ+4*g+3}], v11 offset:{1024 + 32*g}")
            a(f"ds_read_b128 v[{TQ+16+4*g}:{TQ+16+4*g+3}], v11 offset:{1152 + 32*g}")
    a(f"""
    s_mov_b32 s56, {f32hex(LY.QSCALE)}
    v_mul_f32 v56, s56, v16
    v_mul_f32 v58, s56, v17
    v_mov_b32 v57, v56
    v_mov_b32 v59, v58
    v_mov_b32 v60, v16
    v_mov_b32 v61, v16
    v_mov_b32 v62, v17
    v_mov_b32 v63, v17
    s_waitcnt vmcnt(0)
    v_mov_b32 v21, v20
    s_lshl_b32 s57, s42, 17
    s_lshl_b32 s58, s43, 10
    s_add_u32 s57, s57, s58
    v_and_b32 v10, 3, v1
    v_bfe_u32 v11, v1, 2, 1
    v_lshl_or_b32 v10, v11, 3, v10
    v_bfe_u32 v11, v1, 3, 1
    v_lshl_or_b32 v10, v11, 2, v10
    v_lshlrev_b32 v10, 4, v10
    v_lshl_or_b32 v10, v3, 8, v10
    v_bfe_u32 v11, v1, 4, 1
    v_lshl_or_b32 v10, v11, 16, v10
    s_waitcnt lgkmcnt(0)
    """)
    def p(b): return f"v[{b}:{b+1}]"
    PK = 64
    for f, (rs, mr) in ((1, (60, 62)), (0, (56, 58))):
        for j in range(8):
            a(f"v_pk_mul_f32 {p(ACC+16*f+2*j)}, {p(ACC+16*f+2*j)}, {p(rs)}")
        for j in range(8):
            a(f"v_pk_fma_f32 {p(ACC+16*f+2*j)}, {p(TQ+16*f+2*j)}, {p(mr)}, {p(ACC+16*f+2*j)}")
        for j in range(8):
            a(f"v_cvt_pk_bf16_f32 v{PK+8*f+j}, v{ACC+16*f+2*j}, v{ACC+16*f+2*j+1}")
        base = LY.QF if f == 0 else LY.KF
        a(f"s_add_u32 s58, s57, {hex(base)}")
        a(f"buffer_store_dwordx4 v[{PK+8*f}:{PK+8*f+3}], v9, s[24:27], s58 offen")
        a(f"s_add_u32 s58, s57, {hex(base + 65536)}")
        a(f"buffer_store_dwordx4 v[{PK+8*f+4}:{PK+8*f+7}], v9, s[24:27], s58 offen")
    for j in range(8):
        a(f"v_pk_mul_f32 {p(ACC+32+2*j)}, {p(ACC+32+2*j)}, {p(TV+2*j)}")
    for j in range(8):
        a(f"v_pk_fma_f32 {p(ACC+32+2*j)}, {p(TV+16+2*j)}, v[20:21], {p(ACC+32+2*j)}")
    for j in range(8):
        a(f"v_cvt_pk_bf16_f32 v{PK+16+j}, v{ACC+32+2*j}, v{ACC+32+2*j+1}")
    a(f"""
    s_add_u32 s58, s57, {hex(LY.VF)}
    buffer_store_dwordx4 v[{PK+16}:{PK+19}], v10, s[24:27], s58 offen
    buffer_store_dwordx4 v[{PK+20}:{PK+23}], v10, s[24:27], s58 offen offset:512
    """)
    stamp(a, 4)
    stamp_flush(a, 0 if layer1 else 2, 5, 40, 14)
    a.label(done)
    a("s_endpgm")
    a.label(f"{name}_loader")
    a(f"""
    v_lshrrev_b32 v11, 2, v1
    s_movk_i32 s52, 3072
    v_mul_lo_u32 v11, v11, s52
    v_and_b32 v12, 3, v1
    v_lshl_add_u32 v11, v12, 4, v11
    s_lshl_b32 s52, s42, 6
    s_mul_i32 s53, s39, {16*3072}
    s_add_u32 s52, s52, s53
    s_lshl_b32 s53, s39, 10
    s_lshl_b32 s54, s39, 12
    s_add_u32 s54, s54, 12288
    """)
    if layer1:
        a(f"""
        v_lshrrev_b32 v13, 3, v1
        v_lshrrev_b32 v14, 4, v1
        v_and_b32 v15, 7, v1
        v_xor_b32 v15, v15, v14
        v_lshlrev_b32 v15, 4, v15
        v_lshl_add_u32 v15, v13, 10, v15
        v_xor_b32 v16, 64, v15
        """)
    else:
        a(f"""
        s_add_u32 s49, s49, {hex(LY.X2F)}
        s_mul_i32 s52, s42, {8*12288}
        s_add_u32 s52, s52, s53
        s_add_u32 s52, s52, {hex(LY.WP)}
        """)
    a("s_waitcnt lgkmcnt(0)")
    if layer1: srd(a, 20, 6, 0x180000)
    if layer1: srd(a, 16, 4, 0x200000)
    srd(a, 24, 14, LY.WS_USED)
    def issue(j):
        sl = (j % NSLOT) * SLOT
        for n in range(4):
            a(f"s_add_u32 m0, s54, {sl + n*1024}")
            if layer1:
                a(f"s_add_u32 s51, s49, {n*8192 + j*128}")
                a(f"buffer_load_dwordx4 v{15 + (n & 1)}, s[16:19], s51 offen lds")
            else:
                a(f"s_add_u32 s51, s49, {j*4096 + n*1024}")
                a(f"buffer_load_dwordx4 v9, s[24:27], s51 offen lds")
            if n < 3:
                a(f"s_add_u32 m0, s53, {sl + n*4096}")
                if layer1:
                    a(f"s_add_u32 s51, s52, {n*1024 + j*64*3072}")
                    a(f"buffer_load_dwordx4 v11, s[20:23], s51 offen lds")
                else:
                    a(f"s_add_u32 s51, s52, {n*4096 + j*12288}")
                    a(f"buffer_load_dwordx4 v9, s[24:27], s51 offen lds")
    LA = 3
    for j in range(LA): issue(j)
    nT1 = 2 if layer1 else 0
    def t1_loads():
        a.comment("packed copy of W for layer 2: rows [32rb,32rb+32), tile f = lw (lw 3 repeats f=2)")
        a(f"""
        s_min_u32 s56, s39, 2
        s_lshl_b32 s57, s56, 10
        s_lshl_b32 s58, s42, 6
        s_add_u32 s57, s57, s58
        s_mul_i32 s58, s41, {32*3072}
        s_add_u32 s57, s57, s58
        buffer_load_dwordx4 v[112:115], v11, s[20:23], s57 offen
        s_add_u32 s57, s57, {16*3072}
        buffer_load_dwordx4 v[116:119], v11, s[20:23], s57 offen
        s_mul_i32 s59, s42, {8*12288}
        s_lshr_b32 s58, s41, 1
        s_mul_i32 s58, s58, 12288
        s_add_u32 s59, s59, s58
        s_and_b32 s58, s41, 1
        s_lshl_b32 s58, s58, 11
        s_add_u32 s59, s59, s58
        s_lshl_b32 s56, s56, 12
        s_add_u32 s59, s59, s56
        s_add_u32 s59, s59, {hex(LY.WP)}
        """)
    for j in range(8):
        issued = min(8, LA + j)
        extra = nT1 if j >= 6 else 0
        a(f"s_waitcnt vmcnt({7 * (issued - j - 1) + extra})")
        a("s_barrier")
        if j + LA < 8: issue(j + LA)
        if j == 5 and layer1: t1_loads()
    if layer1:
        a("s_waitcnt vmcnt(0)")
        a("buffer_store_dwordx4 v[112:115], v9, s[24:27], s59 offen")
        a("buffer_store_dwordx4 v[116:119], v9, s[24:27], s59 offen offset:1024")
    a("s_endpgm")
    return 212
```

```python
QF  = 0x0000000
KF  = 0x0200000
VF  = 0x0400000
QKVL = 0x0600000
OF  = 0x0C00000
OFL = 0x0200000
X2F = 0x1000000
YT  = 0x1200000
GR  = 0x1400000
GRL = 0x0080000
CSB = 0x1500000
ST2 = 0x1510000
FLG = 0x1560000
FO  = FLG + 0x0000
FY  = FLG + 0x4000
FX  = FLG + 0x5000
FQ  = FLG + 0x6000
FU  = FLG + 0x0000
FF  = FLG + 0x1000
EP  = FLG + 0x2000
WP  = 0x1600000
UT  = 0x1800000
GD  = 0x1000000
WS_USED = 0x2600000
QSCALE = 0.25 * 1.4426950408889634
```

```python
import sys
sys.path.insert(0, "gen")
from asmlib import *
import asmlib
import k_qkv3 as k_qkv, k_mega

HEADER = open("interleave_layers__mha_block__ssm_conv_h3__prompt.s.ref").read().split("; Override launch")[0]

def build(path):
    a = Asm()
    descs = []
    launches = []
    def add(name, vg): descs.append(kernel_desc(name, vg))
    add("qkv1_kernel", k_qkv.emit(a, "qkv1_kernel", True))
    add("mega_kernel", k_mega.emit(a))
    L = lambda k, g, b, l: launches.append(f"; @launch kernel={k} grid=({g},1,1) block=({b},1,1) lds={l}")
    L("qkv1_kernel", 256, 512, k_qkv.lds_bytes(True))
    L("mega_kernel", 256, 768, k_mega.LDS_BYTES)
    txt = HEADER + "\n".join(launches) + "\n" + '.amdgcn_target "amdgcn-amd-amdhsa--gfx950"\n.text\n' + a.text()
    txt += '.section .rodata,"a"\n' + "".join(".p2align 6\n" + d for d in descs)
    open(path, "w").write(txt)

if __name__ == "__main__":
    out = sys.argv[1] if len(sys.argv) > 1 else "interleave_layers__mha_block__ssm_conv_h3__prompt.s"
    for opt in sys.argv[2:]:
        if opt == "diag": asmlib.DIAG = True
        elif "=" in opt:
            k, v = opt.split("="); mod, attr = k.split(".")
            setattr({"mega": k_mega, "qkv": k_qkv}[mod], attr, int(v))
    build(out)
```

```python
import struct
from asmlib import *
import layout as LY

def f32hex(x):
    return hex(struct.unpack("<I", struct.pack("<f", x))[0])
def p(b): return f"v[{b}:{b+1}]"

CS = 4160
CHB = 2 * CS + 6144
FLAG = 131072 + 2 * CHB
XCH = 0
YL = 151552
U = 8
FAST = 1
GATHER = 0
CUT_QA = 0
CUT_OQ = 0
SLEEP = 4
CSLEEP = 1
NFAIL = 24
DIAGL = 1
THR_A, THR_H, THR_O = 1, 3, 4
WDEPTH = 4
GSLEEP = 2
PLO, PHI = 13, 0
LDS_BYTES = 163840
N = "mega"


def poll(a, soff, tag):
    L = a.uid(f"{N}_pl{tag}")
    a(f"s_mov_b32 s69, 0x10000")
    a.label(L)
    a(f"""
    buffer_load_dword v15, v2, s[24:27], s{soff} offen sc1
    s_waitcnt vmcnt(0)
    v_cmp_ne_u32 vcc, 0, v15
    s_cmp_eq_u64 vcc, -1
    s_cbranch_scc1 {L}_d
    s_sub_u32 s69, s69, 1
    s_cbranch_scc1 {L}_d
    s_sleep {SLEEP}
    s_branch {L}
    """)
    a.label(L + "_d")

def set_flag(a, soff):
    a(f"""
    v_mov_b32 v15, 1
    v_mov_b32 v14, 0
    s_waitcnt vmcnt(0)
    s_mov_b64 exec, 1
    buffer_store_dword v15, v14, s[24:27], s{soff} offen sc1
    s_mov_b64 exec, -1
    """)

def maxchain(a, dst, regs):
    regs = list(regs)
    a(f"v_max3_u32 v{dst}, v{regs[0]}, v{regs[1]}, v{regs[2]}")
    rest = regs[3:]
    while len(rest) >= 2:
        a(f"v_max3_u32 v{dst}, v{dst}, v{rest[0]}, v{rest[1]}")
        rest = rest[2:]
    if rest: a(f"v_max_u32 v{dst}, v{dst}, v{rest[0]}")

def checked(a, loads, regs, first_wait=None, sleep=None, switch=None):
    L = a.uid(f"{N}_ck")
    a("s_mov_b32 s69, 0x8000")
    if first_wait is not None:
        a(f"s_waitcnt vmcnt({first_wait})")
        a(f"s_branch {L}_c")
    a.label(L)
    loads()
    a("s_waitcnt vmcnt(0)")
    a.label(L + "_c")
    maxchain(a, 15, regs)
    a(f"""
    v_cmp_eq_u32 vcc, -1, v15
    s_cmp_eq_u64 vcc, 0
    s_cbranch_scc1 {L}_d
    s_sub_u32 s69, s69, 1
    s_cbranch_scc1 {L}_d
    """)
    switch_copy(a, L, switch)
    a(f"""
    s_sleep {CSLEEP if sleep is None else sleep}
    s_branch {L}
    """)
    a.label(L + "_d")

def switch_copy(a, L, regs):
    if not regs: return
    a(f"""
    s_cmp_lg_u32 s69, {0x8000 - NFAIL}
    s_cbranch_scc1 {L}_ns
    """)
    for r in regs: a(f"v_or_b32 v{r}, {hex(LY.GD)}, v{r}")
    a.label(f"{L}_ns")

def checked_units(a, units, wait=None, sleep=None, switch=None):
    L = a.uid(f"{N}_cu")
    n = len(units)
    a("s_mov_b32 s69, 0x8000")
    a(f"s_mov_b32 s66, {hex((1 << n) - 1)}")
    wait()
    allregs = [r for (_, regs, _) in units for r in regs]
    maxchain(a, 15, allregs)
    a(f"""
    v_cmp_eq_u32 vcc, -1, v15
    s_cmp_eq_u64 vcc, 0
    s_cbranch_scc0 {L}_c
    """)
    for (_, _, ok) in units:
        if ok: ok()
    a(f"s_branch {L}_d")
    a.label(L)
    for i, (ld, regs, ok) in enumerate(units):
        a(f"s_bitcmp1_b32 s66, {i}")
        a(f"s_cbranch_scc0 {L}_l{i}")
        ld()
        a.label(f"{L}_l{i}")
    a("s_waitcnt vmcnt(0)")
    a.label(L + "_c")
    for i, (ld, regs, ok) in enumerate(units):
        a(f"s_bitcmp1_b32 s66, {i}")
        a(f"s_cbranch_scc0 {L}_k{i}")
        maxchain(a, 15, regs)
        a(f"""
        v_cmp_eq_u32 vcc, -1, v15
        s_cmp_eq_u64 vcc, 0
        s_cbranch_scc0 {L}_k{i}
        s_bitset0_b32 s66, {i}
        """)
        if ok: ok()
        a.label(f"{L}_k{i}")
    a(f"""
    s_cmp_eq_u32 s66, 0
    s_cbranch_scc1 {L}_d
    s_sub_u32 s69, s69, 1
    s_cbranch_scc1 {L}_d
    """)
    switch_copy(a, L, switch)
    a(f"""
    s_sleep {CSLEEP if sleep is None else sleep}
    s_branch {L}
    """)
    a.label(L + "_d")

def hint_wait(a, vaddr, soff, nl, sleep=None, switch=None, thr=0):
    L = a.uid(f"{N}_hw")
    a("s_mov_b32 s69, 0x8000")
    a.label(L)
    a(f"""
    s_mov_b64 exec, {hex((1 << nl) - 1)}
    buffer_load_dword v15, v{vaddr}, s[24:27], {soff} offen sc1
    s_waitcnt vmcnt(0)
    v_cmp_eq_u32 vcc, -1, v15
    s_mov_b64 exec, -1
    s_bcnt1_i32_b64 s66, vcc
    s_cmp_le_u32 s66, {thr}
    s_cbranch_scc1 {L}_d
    s_sub_u32 s69, s69, 1
    s_cbranch_scc1 {L}_d
    """)
    switch_copy(a, L, switch)
    a(f"""
    s_sleep {CSLEEP if sleep is None else sleep}
    s_branch {L}
    """)
    a.label(L + "_d")

def sanitize(a, regs):
    for r in regs: a(f"v_min_u32 v{r}, s67, v{r}")

def entries():
    e = [("mega_kernel", 0)]
    if CUT_OQ: e.append(("megaq_kernel", 2))
    if CUT_QA: e.append(("megab_kernel", 1))
    return e

def emit(a):
    for name, mode in entries()[1:]:
        kernel_begin(a, name)
        a(f"s_mov_b32 s3, {mode}")
        a(f"s_branch {N}_entry")
    kernel_begin(a, "mega_kernel")
    a("s_mov_b32 s3, 0")
    a.label(f"{N}_entry")
    a(f"""
    s_cmp_ge_u32 s2, 256
    s_cbranch_scc1 {N}_done
    s_load_dwordx2 s[4:5], s[0:1], 0
    s_load_dwordx2 s[6:7], s[0:1], 16
    s_load_dwordx2 s[8:9], s[0:1], 72
    s_load_dwordx2 s[10:11], s[0:1], 48
    s_load_dwordx2 s[12:13], s[0:1], 64
    s_load_dwordx2 s[14:15], s[0:1], 88
    s_load_dwordx2 s[16:17], s[0:1], 56
    s_load_dwordx4 s[28:31], s[0:1], 32
    v_lshrrev_b32 v2, 6, v0
    v_and_b32 v1, 63, v0
    v_readfirstlane_b32 s40, v2
    v_lshlrev_b32 v3, 4, v1
    v_lshlrev_b32 v2, 2, v1
    s_and_b32 s36, s2, 7
    s_lshr_b32 s37, s2, 3
    s_mov_b32 s67, 0xfffffffe
    s_waitcnt lgkmcnt(0)
    """)
    srd(a, 24, 14, LY.WS_USED)
    stamp(a, 0)
    if CUT_OQ:
        a(f"s_cmp_eq_u32 s3, 2")
        a(f"s_cbranch_scc1 {N}_qkv")
    a.label(f"{N}_layer")
    attention(a)
    oproj(a)
    qkv(a)
    if not CUT_QA:
        a(f"""
        s_mov_b32 s3, 1
        s_branch {N}_layer
        """)
    a.label(f"{N}_done")
    a("s_endpgm")
    attention_fallback(a)
    return 168

QA, QB, S, O, P, KB, VB = 4, 8, (16, 32), (48, 64), 80, (88, 92), (96, 104)
def mf(a, d, x, y, c): a(f"v_mfma_f32_32x32x16_bf16 {vr(d,16)}, {vr(x,4)}, {vr(y,4)}, {c}")

def attention(a):
    TS = 32
    a(f"""
    s_lshl_b32 s41, s36, 2
    s_and_b32 s46, s37, 3
    s_add_u32 s41, s41, s46
    s_mul_i32 s38, s3, {hex(LY.QKVL)}
    s_lshl_b32 s48, s41, 16
    s_add_u32 s48, s48, s38
    """)
    a.label(f"{N}_a_go")
    stamp(a, 1)
    a(f"""
    s_cmp_ge_u32 s40, 8
    s_cbranch_scc1 {N}_help
    s_lshr_b32 s42, s37, 2
    s_and_b32 s43, s40, 3
    s_lshr_b32 s47, s40, 2
    s_lshl_b32 s42, s42, 3
    s_lshl_b32 s46, s43, 1
    s_add_u32 s42, s42, s46
    s_lshl_b32 s49, s42, 10
    s_add_u32 s49, s49, s48
    s_lshl_b32 s50, s47, 5
    s_add_u32 s51, s50, s43
    s_lshl_b32 s51, s51, 10
    s_add_u32 s52, s48, s51
    s_add_u32 s53, s52, {hex(LY.KF)}
    s_add_u32 s54, s52, {hex(LY.KF + 4096)}
    s_add_u32 s55, s52, {hex(LY.VF)}
    s_add_u32 s58, s52, {hex(LY.VF + 4096)}
    """)
    fu = [
        (lambda: a(f"buffer_load_dwordx4 v[16:19], v3, s[24:27], s53 offen sc1"), range(16, 20), lambda: a("ds_write_b128 v32, v[16:19]")),
        (lambda: a(f"buffer_load_dwordx4 v[20:23], v3, s[24:27], s55 offen sc1"), range(20, 24), lambda: a("ds_write_b128 v33, v[20:23]")),
        (lambda: a(f"buffer_load_dwordx4 v[{QA}:{QA+3}], v3, s[24:27], s49 offen sc1"), range(QA, QA + 4), None),
        (lambda: a(f"buffer_load_dwordx4 v[{QB}:{QB+3}], v3, s[24:27], s49 offen offset:1024 sc1"), range(QB, QB + 4), None),
        (lambda: a(f"buffer_load_dwordx4 v[24:27], v3, s[24:27], s54 offen sc1"), range(24, 28), lambda: a("ds_write_b128 v32, v[24:27] offset:4096")),
        (lambda: a(f"buffer_load_dwordx4 v[28:31], v3, s[24:27], s58 offen sc1"), range(28, 32), lambda: a("ds_write_b128 v33, v[28:31] offset:4096")),
    ]
    a(f"""
    s_cmp_eq_u32 s3, 0
    s_cbranch_scc1 {N}_a_nh
    s_add_u32 s59, s49, 1024
    v_writelane_b32 v14, s55, 0
    v_writelane_b32 v14, s58, 1
    v_writelane_b32 v14, s49, 2
    v_writelane_b32 v14, s59, 3
    s_movk_i32 s59, 1020
    """)
    hint_wait(a, 14, "s59", 4, thr=THR_A)
    a.label(f"{N}_a_nh")
    for u in fu: u[0]()
    for r in range(16):
        a(f"v_mov_b32 v{O[0]+r}, 0")
        a(f"v_mov_b32 v{O[1]+r}, 0")
    a(f"""
    v_and_b32 v14, 27, v1
    v_cmp_eq_u32 vcc, 16, v14
    v_mov_b32 v15, 0x3f803f80
    s_lshl_b32 s59, s50, 10
    v_cndmask_b32 v14, 0, v15, vcc
    """)
    for r in range(16): a(f"v_mov_b32 v{VB[0]+r}, v14")
    for r in range(4): a(f"v_mov_b32 v{P+4+r}, 0")
    a(f"""
    v_add_u32 v12, s59, v3
    v_and_b32 v13, 15, v1
    v_lshlrev_b32 v13, 4, v13
    v_lshrrev_b32 v14, 5, v1
    v_lshl_add_u32 v13, v14, 8, v13
    s_add_u32 s59, s59, 0x10000
    v_add_u32 v13, s59, v13
    s_mov_b32 s56, 0xffff
    s_mov_b32 s57, 0xffff
    v_add_u32 v32, s51, v3
    v_add_u32 v33, 0x10000, v32
    """)
    checked_units(a, fu, wait=lambda: a("s_waitcnt vmcnt(0)"))
    a(f"""
    v_mov_b32 v14, {FLAG + 4}
    v_mov_b32 v112, 1
    s_waitcnt lgkmcnt(0)
    s_barrier
    """)
    stamp(a, 2)
    def kread(buf, t): a(f"ds_read_b128 v[{KB[buf]}:{KB[buf]+3}], v12 offset:{t*1024}")
    def vread(buf, t):
        a("s_mov_b64 exec, s[56:57]")
        a(f"ds_read_b128 v[{VB[buf]}:{VB[buf]+3}], v13 offset:{t*1024}")
        a(f"ds_read_b128 v[{VB[buf]+4}:{VB[buf]+7}], v13 offset:{t*1024+512}")
        a("s_mov_b64 exec, -1")
    kread(0, 0); vread(0, 0)
    a("s_waitcnt lgkmcnt(2)")
    mf(a, S[0], KB[0], QA, "0")
    a(f"""
    s_waitcnt lgkmcnt(0)
    s_mov_b32 s58, {TS // U}
    s_mov_b32 s59, 0
    s_nop 7
    s_nop 1
    """)
    a.label(f"{N}_loop")
    for t in range(U):
        cur, nxt = t & 1, (t + 1) & 1
        for ph in range(2):
            s, o, op, sp = S[ph], O[ph], O[1 - ph], S[1 - ph]
            e = lambda i: a(f"v_exp_f32 v{s+i}, v{s+i}")
            c = lambda j: a(f"v_cvt_pk_bf16_f32 v{P+j}, v{s+2*j}, v{s+2*j+1}")
            vprev = VB[cur] if ph == 1 else VB[nxt]
            if PLO >= 0 and 2 * t + ph in (PLO, PHI):
                sk = a.uid(f"{N}_pr")
                a(f"s_cmp_eq_u32 s47, 0")
                a(f"s_cbranch_scc1 {sk}")
                a(f"s_setprio {1 if 2 * t + ph == PHI else 0}")
                a.label(sk)
            e(0); e(1)
            mf(a, op, vprev + 4, P + 4, vr(op, 16))
            e(2); c(0); e(3); e(4); c(1); e(5)
            if ph == 0:
                mf(a, sp, KB[cur], QB, "0")
                if t == 7:
                    a(f"s_cmp_lg_u32 s59, 0")
                    a(f"s_cbranch_scc1 {N}_kvd")
                    a.label(f"{N}_kvw")
                    a(f"""
                    ds_read_b32 v15, v14
                    s_waitcnt lgkmcnt(0)
                    v_readfirstlane_b32 s59, v15
                    s_cmp_ge_u32 s59, 4
                    s_cbranch_scc0 {N}_kvw
                    """)
                    a.label(f"{N}_kvd")
                kread(nxt, t + 1); vread(nxt, t + 1)
            else:
                a("s_waitcnt lgkmcnt(2)")
                mf(a, sp, KB[nxt], QA, "0")
            e(6); c(2); e(7); e(8); c(3); e(9); e(10)
            mf(a, o, VB[cur], P, vr(o, 16))
            c(4); e(11); e(12); c(5); e(13); e(14); c(6); e(15)
            if ph == 1: a("s_waitcnt lgkmcnt(0)")
            elif t == U - 1: a(f"v_add_u32 v12, {U*1024}, v12")
            else: a("s_nop 0")
            c(7)
            if t == U - 1 and ph == 0: a(f"v_add_u32 v13, {U*1024}, v13")
    a(f"""
    s_cmp_lg_u32 s58, {TS // U - 16 // U + 1}
    s_cbranch_scc1 {N}_npg
    s_mov_b64 exec, 1
    ds_add_u32 v14, v112 offset:4
    s_mov_b64 exec, -1
    """)
    a.label(f"{N}_npg")
    a(f"""
    s_sub_u32 s58, s58, 1
    s_cmp_lg_u32 s58, 0
    s_cbranch_scc1 {N}_loop
    """)
    mf(a, O[1], VB[1] + 4, P + 4, vr(O[1], 16))
    stamp(a, 3)
    a(f"""
    s_setprio 0
    s_mul_i32 s54, s40, 2304
    s_add_u32 s54, s54, 131072
    v_add_u32 v14, s54, v2
    s_xor_b32 s55, s40, 4
    s_mul_i32 s55, s55, 2304
    s_add_u32 s55, s55, 131072
    v_add_u32 v13, s55, v2
    s_add_u32 s42, s42, s47
    s_nop 7
    s_barrier
    s_cmp_eq_u32 s47, 0
    s_cbranch_scc1 {N}_k1
    """)
    for r in range(9): a(f"ds_write_b32 v14, v{O[0]+r} offset:{r*256}")
    for r in range(9): a(f"v_mov_b32 v{O[0]+r}, v{O[1]+r}")
    for r in range(4): a(f"v_mov_b32 v{QA+r}, v{QB+r}")
    a(f"s_branch {N}_jn")
    a.label(f"{N}_k1")
    for r in range(9): a(f"ds_write_b32 v14, v{O[1]+r} offset:{r*256}")
    a.label(f"{N}_jn")
    a("s_waitcnt lgkmcnt(0)")
    a("s_barrier")
    for r in range(9): a(f"ds_read_b32 v{S[0]+r}, v13 offset:{r*256}")
    a("s_waitcnt lgkmcnt(0)")
    Oa = O[0]
    for r in range(9): a(f"v_add_f32 v{Oa+r}, v{Oa+r}, v{S[0]+r}")
    a(f"v_add_f32 v14, abs(v{Oa}), abs(v{Oa+1})")
    for r in range(2, 8): a(f"v_add_f32 v14, v14, abs(v{Oa+r})")
    a(f"""
    v_cmp_le_f32 vcc, {f32hex(2.0**-60)}, v{Oa+8}
    s_mov_b32 s61, {f32hex(2.0**60)}
    v_cmp_ge_f32 s[62:63], s61, v{Oa+8}
    s_and_b64 vcc, vcc, s[62:63]
    s_mov_b32 s61, 0x7f800000
    v_cmp_gt_f32 s[62:63], s61, v14
    s_and_b64 vcc, vcc, s[62:63]
    s_cmp_eq_u64 vcc, -1
    s_cbranch_scc0 {N}_fb
    """)
    a.label(f"{N}_fin")
    a(f"""
    v_rcp_f32 v14, v{Oa+8}
    s_lshl_b32 s54, s42, 15
    s_lshl_b32 s55, s41, 10
    s_add_u32 s54, s54, s55
    s_mul_i32 s55, s3, {hex(LY.OFL)}
    s_add_u32 s54, s54, s55
    s_add_u32 s54, s54, {hex(LY.OF)}
    """)
    for r in range(8): a(f"v_mul_f32 v{Oa+r}, v{Oa+r}, v14")
    for j in range(4): a(f"v_cvt_pk_bf16_f32 v{P+j}, v{Oa+2*j}, v{Oa+2*j+1}")
    sanitize(a, range(P, P + 4))
    a(f"buffer_store_dwordx4 v[{P}:{P+3}], v3, s[24:27], s54 offen sc1")
    stamp(a, 4)
    a(f"s_branch {N}_op")
    helper(a)

def attention_fallback(a):
    C, Oa = O[1], O[0]
    a.label(f"{N}_fb")
    a(f"""
    s_add_u32 s52, s48, {hex(LY.KF)}
    v_mov_b32 v14, 0xff800000
    s_mov_b32 s59, 64
    """)
    a.label(f"{N}_fbl")
    a(f"""
    buffer_load_dwordx4 v[{KB[0]}:{KB[0]+3}], v3, s[24:27], s52 offen sc1
    s_add_u32 s52, s52, 1024
    s_waitcnt vmcnt(0)
    v_mfma_f32_32x32x16_bf16 {vr(S[0],16)}, {vr(KB[0],4)}, {vr(QA,4)}, 0
    s_nop 15
    """)
    for j in range(8): a(f"v_max3_f32 v14, v14, v{S[0]+2*j}, v{S[0]+2*j+1}")
    a(f"""
    s_sub_u32 s59, s59, 1
    s_cmp_lg_u32 s59, 0
    s_cbranch_scc1 {N}_fbl
    v_mov_b32 v15, v14
    s_nop 1
    v_permlane32_swap_b32 v14, v15
    s_nop 1
    v_max_f32 v14, v14, v15
    v_sub_f32 v14, 0, v14
    """)
    for r in range(16):
        a(f"v_mov_b32 v{C+r}, v14")
        a(f"v_mov_b32 v{Oa+r}, 0")
    a(f"""
    v_and_b32 v13, 15, v1
    v_lshlrev_b32 v13, 4, v13
    v_lshrrev_b32 v14, 5, v1
    v_lshl_add_u32 v13, v14, 8, v13
    s_add_u32 s52, s48, {hex(LY.KF)}
    s_add_u32 s53, s48, {hex(LY.VF)}
    s_mov_b32 s59, 64
    """)
    a.label(f"{N}_fbm")
    a(f"""
    buffer_load_dwordx4 v[{KB[0]}:{KB[0]+3}], v3, s[24:27], s52 offen sc1
    s_mov_b64 exec, s[56:57]
    buffer_load_dwordx4 v[{VB[0]}:{VB[0]+3}], v13, s[24:27], s53 offen sc1
    buffer_load_dwordx4 v[{VB[0]+4}:{VB[0]+7}], v13, s[24:27], s53 offen offset:512 sc1
    s_mov_b64 exec, -1
    s_add_u32 s52, s52, 1024
    s_add_u32 s53, s53, 1024
    s_waitcnt vmcnt(0)
    v_mfma_f32_32x32x16_bf16 {vr(S[0],16)}, {vr(KB[0],4)}, {vr(QA,4)}, {vr(C,16)}
    s_nop 15
    """)
    for i in range(16): a(f"v_exp_f32 v{S[0]+i}, v{S[0]+i}")
    a("s_nop 0")
    for j in range(8): a(f"v_cvt_pk_bf16_f32 v{P+j}, v{S[0]+2*j}, v{S[0]+2*j+1}")
    a("s_nop 1")
    mf(a, Oa, VB[0], P, vr(Oa, 16))
    mf(a, Oa, VB[0] + 4, P + 4, vr(Oa, 16))
    a(f"""
    s_sub_u32 s59, s59, 1
    s_cmp_lg_u32 s59, 0
    s_cbranch_scc1 {N}_fbm
    s_nop 15
    s_branch {N}_fin
    """)

def helper(a):
    a.label(f"{N}_help")
    a(f"""
    s_sub_u32 s39, s40, 8
    s_lshl_b32 s51, s39, 10
    s_add_u32 s52, s48, s51
    v_mov_b32 v5, 0
    v_mov_b32 v8, 0
    v_mov_b32 v9, 0
    v_mov_b32 v10, 0
    v_mov_b32 v11, 0
    v_mov_b32 v4, {FLAG}
    ds_write_b128 v4, v[8:11]
    ds_write_b128 v4, v[8:11] offset:16
    ds_write_b128 v4, v[8:11] offset:32
    s_lshr_b32 s41, s39, 1
    s_and_b32 s42, s39, 1
    s_lshl_b32 s38, s36, 5
    s_add_u32 s38, s38, s37
    s_lshl_b32 s43, s38, 1
    s_add_u32 s43, s43, s41
    s_mul_i32 s45, s41, {CHB}
    s_add_u32 s45, s45, 131072
    s_lshl_b32 s46, s43, 12
    s_lshl_b32 s44, s38, 2
    s_lshl_b32 s48, s42, 11
    v_lshrrev_b32 v6, 5, v1
    v_and_b32 v7, 31, v1
    s_movk_i32 s53, 1536
    v_mul_lo_u32 v12, v6, s53
    v_lshl_add_u32 v12, v7, 4, v12
    s_mul_i32 s49, s42, 3072
    s_add_u32 s49, s49, s45
    s_add_u32 s53, s49, {2*CS}
    v_add_u32 v12, s53, v12
    ds_write_b128 v12, v[8:11]
    s_waitcnt lgkmcnt(0)
    s_barrier
    s_setprio 3
    """)
    a(f"""
    v_add_u32 v41, s51, v3
    v_add_u32 v42, 0x10000, v41
    s_add_u32 s53, s52, {hex(LY.KF)}
    s_add_u32 s54, s52, {hex(LY.KF + 32768)}
    s_add_u32 s55, s52, {hex(LY.VF)}
    s_add_u32 s56, s52, {hex(LY.VF + 32768)}
    """)
    KVS = 64
    def unit(b, i, q):
        n = 2 + 2*b + i
        r = KVS + 32*b + 16*i + 4*q
        sb = (53, 55, 54, 56)[q]
        def ld():
            a(f"s_add_u32 s57, s{sb}, {n*4096}")
            a(f"buffer_load_dwordx4 v[{r}:{r+3}], v3, s[24:27], s57 offen sc1")
        return (ld, range(r, r + 4), lambda: a(f"ds_write_b128 v{41 + (q & 1)}, v[{r}:{r+3}] offset:{n*4096 + (q >> 1)*32768}"))
    batches = [[unit(b, i, q) for i in range(2) for q in range(4)] for b in range(3)]
    a(f"""
    s_cmp_eq_u32 s3, 0
    s_cbranch_scc1 {N}_h_nh
    v_and_b32 v14, 1, v1
    v_lshlrev_b32 v14, 15, v14
    v_lshrrev_b32 v15, 1, v1
    v_lshl_add_u32 v14, v15, 12, v14
    s_add_u32 s57, s55, {8192 + 1020}
    """)
    hint_wait(a, 14, "s57", 12, thr=THR_H)
    a.label(f"{N}_h_nh")
    for bt in batches:
        for u in bt: u[0]()
    a(f"""
    s_cmp_lg_u32 s3, 0
    s_cbranch_scc1 {N}_hkv
    """)
    conv_loads(a)
    a.label(f"{N}_hkv")
    for b in range(3):
        def w(b=b):
            L = a.uid(f"{N}_hw")
            a(f"""
            s_cmp_lg_u32 s3, 0
            s_cbranch_scc1 {L}
            s_waitcnt vmcnt({16 - 8*b + (6 if GATHER else 7)})
            s_branch {L}_d
            """)
            a.label(L)
            a(f"s_waitcnt vmcnt({16 - 8*b})")
            a.label(L + "_d")
        checked_units(a, batches[b], wait=w)
    a(f"""
    v_mov_b32 v15, 1
    s_waitcnt lgkmcnt(0)
    s_mov_b64 exec, 1
    ds_add_u32 v4, v15 offset:4
    s_mov_b64 exec, -1
    s_cmp_lg_u32 s3, 0
    s_cbranch_scc1 {N}_hend
    """)
    conv_gathers(a)
    HL, T = 48, 16
    a(f"""
    s_add_u32 s52, s45, s48
    v_add_u32 v13, s52, v3
    s_waitcnt vmcnt({33 if GATHER else 14})
    """)
    for it in range(2):
        A, B = HL + 8*it, HL + 8*it + 4
        for j in range(4):
            a(f"v_alignbyte_b32 v{44+j}, v{B+j}, v{A+j}, 2")
        o = 64 + it * 1024
        a(f"ds_write_b128 v13, v[44:47] offset:{o}")
        a(f"ds_write_b128 v13, v[{B}:{B+3}] offset:{o + CS}")
    a(f"""
    s_cmp_lg_u32 s42, 0
    s_cbranch_scc1 {N}_hs
    v_lshlrev_b32 v44, 16, v40
    v_cmp_eq_u32 vcc, 3, v1
    s_nop 1
    v_cndmask_b32 v11, v11, v44, vcc
    v_cmp_eq_u32 vcc, 7, v1
    s_nop 1
    v_cndmask_b32 v11, v11, v40, vcc
    v_lshrrev_b32 v12, 2, v1
    s_movk_i32 s52, {CS}
    v_mul_lo_u32 v12, v12, s52
    v_and_b32 v14, 3, v1
    v_lshl_add_u32 v12, v14, 4, v12
    v_add_u32 v12, s45, v12
    s_mov_b64 exec, 0xff
    ds_write_b128 v12, v[8:11]
    s_mov_b64 exec, -1
    """)
    a.label(f"{N}_hs")
    if GATHER:
        KFp, VFp, WPr, RS = 64, 86, 102, 16
        D0 = 36
        a(f"""
        v_lshlrev_b32 v{WPr+0}, 16, v{D0}
        v_lshlrev_b32 v{WPr+1}, 16, v{D0+2}
        v_and_b32 v{WPr+2}, 0xffff0000, v{D0}
        v_and_b32 v{WPr+3}, 0xffff0000, v{D0+2}
        v_lshlrev_b32 v{WPr+4}, 16, v{D0+1}
        v_lshlrev_b32 v{WPr+5}, 16, v{D0+3}
        v_and_b32 v{WPr+6}, 0xffff0000, v{D0+1}
        v_and_b32 v{WPr+7}, 0xffff0000, v{D0+3}
        v_and_b32 v12, 3, v1
        s_movk_i32 s52, 1536
        v_mul_lo_u32 v12, v12, s52
        v_lshrrev_b32 v14, 2, v1
        v_lshl_add_u32 v14, v14, 4, v12
        s_lshl_b32 s52, s39, 8
        s_add_u32 s52, s52, {131072 + 2*CS + 512}
        v_add_u32 v14, s52, v14
        s_waitcnt vmcnt(14)
        """)
        for r in range(11):
            a(f"v_lshlrev_b32 v{KFp+2*r}, 16, v{T+r}")
            a(f"v_and_b32 v{KFp+2*r+1}, 0xffff0000, v{T+r}")
        for r in range(8):
            a(f"v_lshlrev_b32 v{VFp+2*r}, 16, v{T+11+r}")
            a(f"v_and_b32 v{VFp+2*r+1}, 0xffff0000, v{T+11+r}")
        for t in range(8):
            a(f"v_pk_mul_f32 {p(RS+2*t)}, {p(KFp+2*t)}, {p(WPr+6)}")
        for jj in (2, 1, 0):
            for t in range(8):
                a(f"v_pk_fma_f32 {p(RS+2*t)}, {p(KFp+2*(t+3-jj))}, {p(WPr+2*jj)}, {p(RS+2*t)}")
        for t in range(8):
            a(f"v_pk_mul_f32 {p(RS+2*t)}, {p(RS+2*t)}, {p(VFp+2*t)}")
        for q in range(4):
            a(f"v_cvt_pk_bf16_f32 v{32+q}, v{RS+2*(7-2*q)}, v{RS+2*(6-2*q)}")
            a(f"v_cvt_pk_bf16_f32 v{36+q}, v{RS+2*(7-2*q)+1}, v{RS+2*(6-2*q)+1}")
        a(f"""
        ds_write_b128 v14, v[32:35]
        ds_write_b128 v14, v[36:39] offset:{CHB}
        """)
    a(f"""
    v_mov_b32 v5, 1
    s_waitcnt lgkmcnt(0)
    s_mov_b64 exec, 1
    ds_add_u32 v4, v5
    s_mov_b64 exec, -1
    v_and_b32 v12, 1, v1
    s_movk_i32 s52, {CS - 2}
    v_mul_lo_u32 v12, v12, s52
    v_and_b32 v14, 19, v1
    v_lshl_add_u32 v12, v14, 1, v12
    v_bfe_u32 v14, v1, 2, 1
    v_lshl_add_u32 v12, v14, 4, v12
    v_bfe_u32 v14, v1, 3, 1
    v_lshl_add_u32 v12, v14, 3, v12
    v_lshlrev_b32 v14, 4, v6
    v_sub_u32 v12, v12, v14
    s_add_u32 s53, s45, 16
    v_add_u32 v12, s53, v12
    s_movk_i32 s52, 1536
    v_mul_lo_u32 v13, v6, s52
    v_lshl_add_u32 v13, v7, 4, v13
    s_lshl_b32 s59, s42, 9
    s_add_u32 s53, s45, s59
    s_add_u32 s53, s53, {2*CS}
    v_add_u32 v8, s53, v13
    v_subrev_u32 v13, 64, v8
    s_lshl_b32 s55, s42, 2
    s_add_u32 s55, s55, 8
    """)
    ACC = 64
    for r in range(16): a(f"v_mov_b32 v{ACC+r}, 0")
    a.label(f"{N}_cw")
    a(f"""
    ds_read_b32 v5, v4
    s_waitcnt lgkmcnt(0)
    v_readfirstlane_b32 s52, v5
    s_cmp_ge_u32 s52, 4
    s_cbranch_scc1 {N}_cwd
    s_sleep 2
    s_branch {N}_cw
    """)
    a.label(f"{N}_cwd")
    a(f"""
    v_lshlrev_b32 v80, 7, v1
    s_mul_i32 s53, s37, 49152
    s_mul_i32 s54, s39, 12288
    s_add_u32 s53, s53, s54
    s_add_u32 s53, s53, {hex(LY.WP)}
    buffer_load_dword v81, v80, s[24:27], s53 offen
    s_add_u32 s53, s53, 4096
    buffer_load_dword v81, v80, s[24:27], s53 offen
    s_lshl_b32 s53, s37, 14
    s_lshl_b32 s54, s39, 12
    s_add_u32 s53, s53, s54
    s_mov_b32 s20, s6
    s_mov_b32 s21, s7
    s_mov_b32 s22, 0x80000
    v_lshlrev_b32 v80, 6, v1
    buffer_load_dword v81, v80, s[20:23], s53 offen
    """)
    BUF = (16, 84)
    ACC2 = 116
    def reads(buf, d0):
        for dd in range(2):
            for kp in range(2):
                b = BUF[buf] + 16 * dd + 8 * kp
                ao = 8 * (2 * (d0 + dd) - kp + 1)
                a(f"ds_read2_b32 v[{b}:{b+1}], v12 offset0:{ao} offset1:{ao+1}")
                a(f"ds_read2_b32 v[{b+2}:{b+3}], v12 offset0:{ao+2} offset1:{ao+3}")
                a(f"ds_read_b128 v[{b+4}:{b+7}], v13 offset:{kp * 3072 + (32 - d0 - dd) * 16 + 64}")
    def mfmas(buf, acc):
        for q in range(4):
            b = BUF[buf] + 8 * q
            mf(a, acc, b, b + 4, vr(acc, 16))
    def cloop(tag, acc):
        reads(0, 0)
        a.label(f"{N}_clp{tag}")
        a("s_waitcnt lgkmcnt(0)")
        reads(1, 2)
        mfmas(0, acc)
        a("s_waitcnt lgkmcnt(0)")
        reads(0, 4)
        mfmas(1, acc)
        a(f"""
        v_add_u32 v12, 256, v12
        v_subrev_u32 v13, 64, v13
        s_sub_u32 s55, s55, 1
        s_cmp_lg_u32 s55, 0
        s_cbranch_scc1 {N}_clp{tag}
        s_waitcnt lgkmcnt(0)
        """)
    for r in range(16): a(f"v_mov_b32 v{ACC2+r}, 0")
    cloop("a", ACC)
    a(f"""
    s_lshl_b32 s52, s41, 12
    s_add_u32 s52, s52, {XCH}
    v_add_u32 v9, s52, v3
    s_lshl_b32 s52, s41, 2
    v_add_u32 v10, s52, v4
    s_cmp_lg_u32 s42, 0
    s_cbranch_scc1 {N}_cj1
    v_add_u32 v12, {16*64}, v12
    v_add_u32 v13, 256, v13
    s_mov_b32 s55, 4
    """)
    cloop("b", ACC2)
    a.label(f"{N}_cpg")
    a(f"""
    ds_read_b32 v5, v4 offset:8
    s_waitcnt lgkmcnt(0)
    v_readfirstlane_b32 s52, v5
    s_cmp_ge_u32 s52, 8
    s_cbranch_scc1 {N}_cpd
    s_sleep 4
    s_branch {N}_cpg
    """)
    a.label(f"{N}_cpd")
    a("s_nop 7")
    for g in range(4): a(f"ds_write_b128 v9, v[{ACC2+4*g}:{ACC2+4*g+3}] offset:{g*1024}")
    a(f"""
    v_mov_b32 v5, 1
    s_waitcnt lgkmcnt(0)
    s_mov_b64 exec, 1
    ds_write_b32 v10, v5 offset:12
    s_mov_b64 exec, -1
    s_branch {N}_cjd
    """)
    a.label(f"{N}_cj1")
    a(f"""
    ds_read_b32 v5, v10 offset:12
    s_waitcnt lgkmcnt(0)
    v_readfirstlane_b32 s52, v5
    s_cmp_lg_u32 s52, 0
    s_cbranch_scc1 {N}_cj2
    s_sleep 1
    s_branch {N}_cj1
    """)
    a.label(f"{N}_cj2")
    for g in range(4): a(f"ds_read_b128 v[{ACC2+4*g}:{ACC2+4*g+3}], v9 offset:{g*1024}")
    a("s_waitcnt lgkmcnt(0)")
    for r in range(16): a(f"v_add_f32 v{ACC+r}, v{ACC+r}, v{ACC2+r}")
    a.label(f"{N}_cjd")
    a(f"""
    ds_read_b128 v[16:19], v8 offset:512
    ds_read_b128 v[20:23], v8 offset:{3072 + 512}
    s_lshl_b32 s60, s47, 16
    s_and_b32 s61, s47, 0xffff0000
    s_cmp_eq_u32 s41, 0
    s_cselect_b32 s60, s60, s61
    v_lshlrev_b32 v12, 4, v7
    v_lshl_add_u32 v12, v6, 10, v12
    s_lshl_b32 s59, s42, 9
    s_add_u32 s58, s59, s46
    s_add_u32 s58, s58, {hex(LY.YT)}
    s_lshl_b32 s59, s42, 11
    s_waitcnt lgkmcnt(0)
    """)
    for kp in range(2):
        for j in range(4):
            a(f"v_lshlrev_b32 v{24+8*kp+7-2*j}, 16, v{16+4*kp+j}")
            a(f"v_and_b32 v{24+8*kp+6-2*j}, 0xffff0000, v{16+4*kp+j}")
    for r in range(16): a(f"v_fmac_f32 v{ACC+r}, s60, v{24+r}")
    for j in range(8): a(f"v_cvt_pk_bf16_f32 v{16+j}, v{ACC+2*j}, v{ACC+2*j+1}")
    a(f"""
    buffer_store_dwordx4 v[16:19], v12, s[24:27], s58 offen sc1
    buffer_store_dwordx4 v[20:23], v12, s[24:27], s58 offen offset:2048 sc1
    s_lshl_b32 s68, s43, 2
    s_add_u32 s68, s68, s59
    s_add_u32 s68, s68, {hex(LY.FY)}
    """)
    stamp(a, 12)
    a(f"""
    v_mov_b32 v5, 1
    s_mov_b64 exec, 1
    ds_add_u32 v4, v5
    s_mov_b64 exec, -1
    """)
    a.label(f"{N}_cw2")
    a(f"""
    ds_read_b32 v5, v4
    s_waitcnt lgkmcnt(0)
    v_readfirstlane_b32 s52, v5
    s_cmp_ge_u32 s52, 8
    s_cbranch_scc1 {N}_hend
    s_sleep 1
    s_branch {N}_cw2
    """)
    a.label(f"{N}_hend")
    wo_preload(a, "b")
    a(f"""
    s_setprio 0
    s_barrier
    s_barrier
    """)

def conv_loads(a):
    a(f"""
    s_load_dword s47, s[12:13], s44
    s_add_u32 s20, s16, s46
    s_addc_u32 s21, s17, 0
    s_movk_i32 s22, 0x1000
    s_mov_b32 s23, 0x00020000
    v_add_u32 v13, s48, v3
    """)
    srd(a, 32, 28, 0x200000)
    srd(a, 60, 30, 0x200000)
    HL = 48
    for it in range(2):
        for k in range(2):
            a(f"buffer_load_dwordx4 v[{HL+8*it+4*k}:{HL+8*it+4*k+3}], v13, s[20:23], 0 offen offset:{it*1024 + 4*k}")
    T = 16
    a(f"""
    buffer_load_dword v40, v5, s[20:23], 0 offen
    """)
    if GATHER:
        a(f"""
        s_mov_b32 s20, s10
        s_mov_b32 s21, s11
        s_lshl_b32 s50, s38, 4
        buffer_load_dwordx4 v[36:39], v5, s[20:23], s50 offen
        s_lshl_b32 s50, s39, 19
        s_add_u32 s50, s50, s44
        v_lshlrev_b32 v12, 13, v1
        v_add_u32 v12, s50, v12
        v_add_u32 v13, 0x1000, v12
        v_subrev_u32 v14, 0xc00, v12
        """)
    else:
        a(f"""
        s_add_u32 s50, s46, s48
        s_add_u32 m0, s49, {2*CS + 512}
        s_add_u32 s57, s50, {hex(LY.UT)}
        buffer_load_dwordx4 v3, s[24:27], s57 offen lds
        s_add_u32 m0, s49, {2*CS + 512 + 1536}
        s_add_u32 s57, s50, {hex(LY.UT + 1024)}
        buffer_load_dwordx4 v3, s[24:27], s57 offen lds
        """)

def conv_gathers(a):
    T = 16
    if not GATHER:
        prefill(a)
        return
    for r in range(3):
        a(f"buffer_load_dword v{T+r}, v14, s[32:35], 0 offen offset:{r*1024}")
    for r in range(8):
        a(f"buffer_load_dword v{T+3+r}, v{12 if r < 4 else 13}, s[32:35], 0 offen offset:{(r%4)*1024}")
    for r in range(8):
        a(f"buffer_load_dword v{T+11+r}, v{12 if r < 4 else 13}, s[60:63], 0 offen offset:{(r%4)*1024}")
    prefill(a)

def wo_preload(a, tag):
    a.label(f"{N}_wp{tag}")
    a(f"""
    ds_read_b32 v84, v4 offset:8
    s_waitcnt lgkmcnt(0)
    v_readfirstlane_b32 s52, v84
    s_cmp_ge_u32 s52, 8
    s_cbranch_scc1 {N}_wq{tag}
    s_sleep 8
    s_branch {N}_wp{tag}
    """)
    a.label(f"{N}_wq{tag}")
    a(f"""
    s_mov_b32 s20, s6
    s_mov_b32 s21, s7
    s_mov_b32 s22, 0x80000
    s_mov_b32 s23, 0x00020000
    v_bfe_u32 v84, v1, 2, 3
    v_lshlrev_b32 v84, 10, v84
    v_lshrrev_b32 v85, 5, v1
    v_lshl_add_u32 v84, v85, 6, v84
    v_and_b32 v85, 3, v1
    v_lshl_add_u32 v84, v85, 4, v84
    s_lshr_b32 s52, s37, 2
    s_lshl_b32 s52, s52, 7
    s_lshl_b32 s53, s39, 13
    s_add_u32 s52, s52, s53
    s_lshl_b32 s54, s39, 10
    """)
    for n in range(16):
        a(f"s_add_u32 m0, s54, {(n >> 2)*32768 + (n & 3)*4096}")
        a(f"s_add_u32 s53, s52, {n*32768}")
        a(f"buffer_load_dwordx4 v84, s[20:23], s53 offen lds")

def prefill(a):
    a(f"""
    v_mov_b32 v160, -1
    v_mov_b32 v161, -1
    v_mov_b32 v162, -1
    v_mov_b32 v163, -1
    s_lshl_b32 s58, s36, 2
    s_and_b32 s59, s37, 3
    s_add_u32 s58, s58, s59
    s_lshr_b32 s59, s37, 2
    s_lshl_b32 s50, s59, 18
    s_lshl_b32 s64, s39, 16
    s_add_u32 s50, s50, s64
    s_lshl_b32 s64, s58, 10
    s_add_u32 s50, s50, s64
    """)
    for L in (1,):
        for t in range(2):
            a(f"s_add_u32 s64, s50, {hex(LY.OF + L*LY.OFL + t*32768)}")
            a(f"buffer_store_dwordx4 v[160:163], v3, s[24:27], s64 offen sc1")
    a(f"""
    s_lshl_b32 s50, s58, 1
    s_add_u32 s50, s50, s42
    s_lshl_b32 s64, s50, 15
    s_lshl_b32 s65, s59, 12
    s_add_u32 s64, s64, s65
    s_lshl_b32 s65, s41, 11
    s_add_u32 s64, s64, s65
    s_add_u32 s64, s64, {hex(LY.X2F)}
    buffer_store_dwordx4 v[160:163], v3, s[24:27], s64 offen sc1
    buffer_store_dwordx4 v[160:163], v3, s[24:27], s64 offen offset:1024 sc1
    s_add_u32 s64, s64, {hex(LY.GD)}
    buffer_store_dwordx4 v[160:163], v3, s[24:27], s64 offen sc1
    buffer_store_dwordx4 v[160:163], v3, s[24:27], s64 offen offset:1024 sc1
    s_lshl_b32 s64, s50, 12
    s_lshl_b32 s65, s59, 9
    s_add_u32 s64, s64, s65
    s_lshl_b32 s65, s41, 8
    s_add_u32 s64, s64, s65
    s_add_u32 s64, s64, {hex(LY.ST2)}
    buffer_store_dword v160, v2, s[24:27], s64 offen sc1
    s_add_u32 s64, s64, {hex(LY.GD)}
    buffer_store_dword v160, v2, s[24:27], s64 offen sc1
    s_lshl_b32 s50, s36, 1
    s_and_b32 s64, s37, 1
    s_add_u32 s50, s50, s64
    s_lshl_b32 s50, s50, 2
    s_add_u32 s50, s50, s39
    s_lshl_b32 s50, s50, 10
    s_lshr_b32 s64, s37, 1
    s_lshl_b32 s64, s64, 17
    s_add_u32 s50, s50, s64
    """)
    for base in (LY.QF, LY.KF, LY.VF):
        for h in range(2):
            a(f"s_add_u32 s64, s50, {hex(LY.QKVL + base + h*65536)}")
            a(f"buffer_store_dwordx4 v[160:163], v3, s[24:27], s64 offen sc1")

def oproj(a):
    a.comment("================= out-projection + gated layer =================")
    a.label(f"{N}_op")
    a(f"""
    s_lshl_b32 s41, s36, 2
    s_and_b32 s46, s37, 3
    s_add_u32 s41, s41, s46
    s_lshr_b32 s42, s37, 2
    s_cmp_lt_u32 s40, 4
    s_cbranch_scc1 {N}_opc
    s_cmp_lt_u32 s40, 8
    s_cbranch_scc1 {N}_opb
    """)
    a(f"""
    s_cmp_lg_u32 s3, 0
    s_cbranch_scc1 {N}_oph
    v_mov_b32 v15, 1
    v_mov_b32 v14, 0
    s_waitcnt vmcnt(0)
    s_mov_b64 exec, 1
    buffer_store_dword v15, v14, s[24:27], s68 offen sc1
    s_mov_b64 exec, -1
    """)
    a.label(f"{N}_oph")
    a(f"""
    s_sub_u32 s53, s40, 8
    s_and_b32 s55, s53, 1
    s_lshl_b32 s55, s55, 15
    s_lshr_b32 s56, s53, 1
    s_lshl_b32 s56, s56, 14
    s_add_u32 s55, s55, s56
    s_lshl_b32 s56, s41, 16
    s_add_u32 s56, s56, s55
    s_mul_i32 s57, s3, {hex(LY.OFL)}
    s_add_u32 s56, s56, s57
    s_add_u32 s56, s56, {hex(LY.OF)}
    s_add_u32 s57, s56, 4096
    s_add_u32 s58, s56, 8192
    s_add_u32 s59, s56, 12288
    s_and_b32 s55, s53, 1
    s_lshl_b32 s55, s55, 16
    s_lshr_b32 s54, s53, 1
    s_lshl_b32 s54, s54, 15
    s_add_u32 s55, s55, s54
    s_add_u32 s55, s55, 16384
    v_add_u32 v6, s55, v3
    """)
    ou = [(lambda n=n: a(f"buffer_load_dwordx4 v[{16+4*n}:{19+4*n}], v3, s[24:27], s{56 + n // 4} offen offset:{(n % 4)*1024} sc1"),
           range(16 + 4*n, 20 + 4*n),
           lambda n=n: a(f"ds_write_b128 v6, v[{16+4*n}:{19+4*n}] offset:{n*1024}")) for n in range(16)]
    a("v_lshlrev_b32 v14, 10, v1")
    a("s_add_u32 s54, s56, 1020")
    stamp(a, 2)
    hint_wait(a, 14, "s54", 16, thr=THR_O)
    stamp(a, 3)
    for u in ou: u[0]()
    stamp(a, 4)
    checked_units(a, ou, wait=lambda: (a("s_waitcnt vmcnt(0)"), stamp(a, 5)))
    if DIAGFIX(): a("s_sub_u32 s76, 0x8000, s69\ns_add_u32 s76, s76, s70")
    a.label(f"{N}_opb")
    if DIAGFIX():
        stamp(a, 13)
        a(f"s_cmp_lg_u32 s3, {DIAGL}")
        a(f"s_cbranch_scc1 {N}_dg1")
        stamp_flush(a, 3, 14, 40, 14)
        a("s_mov_b64 exec, -1\nv_and_b32 v1, 63, v0\nv_lshlrev_b32 v2, 2, v1")
        a.label(f"{N}_dg1")
    a(f"""
    s_waitcnt lgkmcnt(0)
    s_barrier
    s_cmp_lg_u32 s40, 8
    s_cbranch_scc1 {N}_opw
    """)
    a(f"""
    s_cmp_lg_u32 s3, 0
    s_cbranch_scc1 {N}_ygo
    s_mov_b32 s69, 0x10000
    s_mov_b32 s53, {hex(LY.FY)}
    """)
    a.label(f"{N}_yp")
    for n in range(4):
        a(f"buffer_load_dwordx4 v[{16+4*n}:{19+4*n}], v3, s[24:27], s53 offen offset:{n*1024} sc1")
    a("s_waitcnt vmcnt(0)")
    a("v_min3_u32 v15, v16, v17, v18")
    for r in range(19, 31, 2): a(f"v_min3_u32 v15, v15, v{r}, v{r+1}")
    a(f"""
    v_min_u32 v15, v15, v31
    v_cmp_eq_u32 vcc, 0, v15
    s_cmp_eq_u64 vcc, 0
    s_cbranch_scc1 {N}_ygo
    s_sub_u32 s69, s69, 1
    s_cbranch_scc1 {N}_ygo
    s_sleep {SLEEP}
    s_branch {N}_yp
    """)
    a.label(f"{N}_ygo")
    a(f"""
    v_lshrrev_b32 v5, 3, v1
    v_lshlrev_b32 v5, 12, v5
    v_and_b32 v6, 3, v1
    v_lshl_add_u32 v5, v6, 10, v5
    v_bfe_u32 v6, v1, 2, 1
    v_lshl_add_u32 v5, v6, 4, v5
    s_lshl_b32 s55, s42, 18
    s_lshl_b32 s56, s41, 5
    s_add_u32 s55, s55, s56
    """)
    for n in range(8):
        a(f"s_mov_b32 m0, {YL + n*1024}")
        a(f"s_add_u32 s56, s55, {hex(LY.YT + n*32768)}")
        a(f"buffer_load_dwordx4 v5, s[24:27], s56 offen sc1 lds")
    a("s_waitcnt vmcnt(0)")
    a.label(f"{N}_opw")
    a(f"""
    s_barrier
    s_cmp_lg_u32 s3, 0
    s_cbranch_scc1 {N}_done
    s_branch {N}_qkv
    """)
    a.label(f"{N}_opc")
    RES, YR, ACC, FR, T, RF, G = 16, 24, 32, 48, 80, 88, 104
    a(f"""
    s_and_b32 s46, s40, 1
    s_lshr_b32 s47, s40, 1
    s_lshl_b32 s43, s41, 1
    s_add_u32 s43, s43, s46
    v_and_b32 v7, 31, v1
    v_lshlrev_b32 v8, 4, v7
    v_lshlrev_b32 v7, 10, v7
    v_lshrrev_b32 v6, 5, v1
    v_lshl_add_u32 v7, v6, 4, v7
    s_lshl_b32 s58, s43, 15
    s_lshl_b32 s56, s42, 7
    s_add_u32 s58, s58, s56
    s_lshl_b32 s56, s47, 6
    s_add_u32 s58, s58, s56
    s_lshl_b32 s55, s43, 15
    s_lshl_b32 s56, s42, 12
    s_add_u32 s55, s55, s56
    s_lshl_b32 s56, s47, 11
    s_add_u32 s55, s55, s56
    s_add_u32 s55, s55, {hex(LY.X2F)}
    s_mov_b32 s22, 0x200000
    s_mov_b32 s23, 0x00020000
    s_cmp_lg_u32 s3, 0
    s_cbranch_scc1 {N}_opr1
    s_mov_b32 s20, s4
    s_mov_b32 s21, s5
    buffer_load_dwordx4 v[{RES}:{RES+3}], v7, s[20:23], s58 offen
    buffer_load_dwordx4 v[{RES+4}:{RES+7}], v7, s[20:23], s58 offen offset:32
    s_branch {N}_opr2
    """)
    a.label(f"{N}_opr1")
    a(f"""
    s_mov_b32 s20, s8
    s_mov_b32 s21, s9
    buffer_load_dwordx4 v[{RES}:{RES+3}], v3, s[24:27], s55 offen sc1
    buffer_load_dwordx4 v[{RES+4}:{RES+7}], v3, s[24:27], s55 offen offset:1024 sc1
    """)
    a.label(f"{N}_opr2")
    a(f"""
    v_bfe_u32 v10, v1, 2, 2
    v_lshlrev_b32 v5, 10, v6
    v_lshl_add_u32 v4, v10, 7, v5
    v_lshl_add_u32 v5, v10, 6, v5
    v_bfe_u32 v10, v1, 4, 1
    v_lshl_add_u32 v5, v10, 5, v5
    v_lshl_add_u32 v4, v10, 5, v4
    v_and_b32 v10, 3, v1
    v_lshl_add_u32 v4, v10, 3, v4
    v_and_b32 v10, 1, v1
    v_lshl_add_u32 v5, v10, 4, v5
    v_bfe_u32 v10, v1, 1, 1
    v_lshl_add_u32 v5, v10, 3, v5
    s_lshl_b32 s57, s47, 9
    v_add_u32 v5, s57, v5
    s_lshl_b32 s57, s47, 12
    s_lshl_b32 s56, s46, 6
    s_add_u32 s57, s57, s56
    s_add_u32 s57, s57, {YL}
    v_add_u32 v4, s57, v4
    s_lshl_b32 s57, s46, 16
    s_add_u32 s57, s57, 16384
    v_add_u32 v9, s57, v3
    v_add_u32 v11, 0x10000, v5
    s_mul_i32 s59, s3, {hex(LY.GRL)}
    s_lshl_b32 s60, s43, 13
    s_add_u32 s59, s59, s60
    s_add_u32 s59, s59, {hex(LY.GR)}
    s_lshl_b32 s60, s42, 10
    s_lshl_b32 s61, s47, 9
    s_add_u32 s60, s60, s61
    s_add_u32 s60, s60, s59
    s_add_u32 s61, s59, 4096
    s_mov_b32 s62, 0x3f803f80
    s_barrier
    """)
    stamp(a, 5)
    def rd(ks):
        b = FR + 8 * (ks & 3)
        a(f"ds_read_b128 v[{b}:{b+3}], v9 offset:{(ks >> 4)*32768 + (ks & 15)*1024}")
        wb, wo_ = (5 if ks < 16 else 11), ((ks >> 3) & 1)*32768 + (ks & 7)*2048
        a(f"ds_read_b64_tr_b16 v[{b+4}:{b+5}], v{wb} offset:{wo_}")
        a(f"ds_read_b64_tr_b16 v[{b+6}:{b+7}], v{wb} offset:{wo_ + 256}")
    for i in range(4): rd(i)
    for ks in range(32):
        a(f"s_waitcnt lgkmcnt({3*min(3, 31 - ks)})")
        b = FR + 8 * (ks & 3)
        mf(a, ACC, b + 4, b, "0" if ks == 0 else vr(ACC, 16))
        if ks + 4 < 32: rd(ks + 4)
    a("s_waitcnt vmcnt(0)")
    for j in range(8):
        a(f"v_lshlrev_b32 v{RF+2*j}, 16, v{RES+j}")
        a(f"v_and_b32 v{RF+2*j+1}, 0xffff0000, v{RES+j}")
    a(f"""
    v_mov_b32 v12, 0
    v_mov_b32 v14, 0
    """)
    stamp(a, 6)
    for j in range(8): a(f"v_cvt_pk_bf16_f32 v{T+j}, v{ACC+2*j}, v{ACC+2*j+1}")
    for j in range(8):
        a(f"v_lshlrev_b32 v{ACC+2*j}, 16, v{T+j}")
        a(f"v_and_b32 v{ACC+2*j+1}, 0xffff0000, v{T+j}")
    for j in range(8): a(f"v_pk_add_f32 {p(ACC+2*j)}, {p(ACC+2*j)}, {p(RF+2*j)}")
    for j in range(8): a(f"v_cvt_pk_bf16_f32 v{T+j}, v{ACC+2*j}, v{ACC+2*j+1}")
    for j in range(8):
        a(f"v_dot2c_f32_bf16 v12, s62, v{T+j}")
        a(f"v_dot2c_f32_bf16 v14, v{T+j}, v{T+j}")
    a(f"""
    s_nop 2
    v_mov_b32 v13, v12
    v_mov_b32 v15, v14
    s_nop 1
    v_permlane32_swap_b32 v12, v13
    v_permlane32_swap_b32 v14, v15
    s_nop 1
    v_add_f32 v12, v12, v13
    v_add_f32 v14, v14, v15
    v_mov_b32 v13, 1
    v_mov_b32 v15, 1
    s_mov_b64 exec, 0xffffffff
    buffer_store_dwordx4 v[12:15], v8, s[24:27], s60 offen
    s_add_u32 s66, s60, {hex(LY.GD)}
    buffer_store_dwordx4 v[12:15], v8, s[24:27], s66 offen sc1
    s_mov_b64 exec, -1
    s_mov_b32 s69, 0x8000
    v_mov_b32 v6, v3
    s_barrier
    """)
    for q in range(4):
        a(f"ds_read_b64_tr_b16 v[{YR+2*q}:{YR+2*q+1}], v4 offset:{(q >> 1)*2048 + (q & 1)*512}")
    for j in range(8):
        a(f"v_lshlrev_b32 v{ACC+2*j}, 16, v{T+j}")
        a(f"v_and_b32 v{ACC+2*j+1}, 0xffff0000, v{T+j}")
    a("s_waitcnt lgkmcnt(0)")
    for j in range(8):
        a(f"v_lshlrev_b32 v{RF+2*j}, 16, v{YR+j}")
        a(f"v_and_b32 v{RF+2*j+1}, 0xffff0000, v{YR+j}")
    a.label(f"{N}_gp")
    for i in range(8):
        a(f"buffer_load_dwordx4 v[{G+4*i}:{G+4*i+3}], v6, s[24:27], s{59 if i < 4 else 61} offen offset:{(i%4)*1024} sc1")
    a("s_waitcnt vmcnt(0)")
    a(f"v_and_b32 v10, v{G+1}, v{G+3}")
    for i in range(1, 8):
        a(f"v_and_b32 v11, v{G+4*i+1}, v{G+4*i+3}")
        a(f"v_and_b32 v10, v10, v11")
    a(f"""
    v_cmp_eq_u32 vcc, 1, v10
    s_sub_u32 s69, s69, 1
    s_cbranch_scc1 {N}_gpo
    s_cmp_eq_u64 vcc, -1
    s_cbranch_scc1 {N}_gpo
    """)
    switch_copy(a, f"{N}_gp", [6])
    a(f"""
    s_sleep {GSLEEP}
    s_branch {N}_gp
    """)
    a.label(f"{N}_gpo")
    stamp(a, 7)
    for i in range(1, 8):
        a(f"v_add_f32 v{G}, v{G}, v{G+4*i}")
        a(f"v_add_f32 v{G+2}, v{G+2}, v{G+4*i+2}")
    a(f"""
    v_mov_b32 v{G+1}, v{G}
    v_mov_b32 v{G+3}, v{G+2}
    s_mov_b32 s56, {f32hex(1.0/512)}
    s_nop 0
    v_permlane32_swap_b32 v{G}, v{G+1}
    v_permlane32_swap_b32 v{G+2}, v{G+3}
    s_nop 1
    v_add_f32 v10, v{G}, v{G+1}
    v_add_f32 v11, v{G+2}, v{G+3}
    v_mul_f32 v10, s56, v10
    v_mul_f32 v11, s56, v11
    v_fma_f32 v11, -v10, v10, v11
    v_max_f32 v11, 0, v11
    v_add_f32 v11, {f32hex(1e-5)}, v11
    v_rsq_f32 v12, v11
    s_nop 0
    v_mul_f32 v14, v10, v12
    v_sub_f32 v14, 0, v14
    v_mov_b32 v13, v12
    v_mov_b32 v15, v14
    """)
    for j in range(8): a(f"v_pk_fma_f32 {p(FR+2*j)}, {p(ACC+2*j)}, v[12:13], v[14:15]")
    for j in range(8): a(f"v_pk_fma_f32 {p(FR+2*j)}, {p(FR+2*j)}, {p(RF+2*j)}, {p(ACC+2*j)}")
    for j in range(8): a(f"v_cvt_pk_bf16_f32 v{T+j}, v{FR+2*j}, v{FR+2*j+1}")
    a(f"""
    s_cmp_eq_u32 s3, 0
    s_cbranch_scc1 {N}_ops0
    buffer_store_dwordx4 v[{T}:{T+3}], v7, s[20:23], s58 offen
    buffer_store_dwordx4 v[{T+4}:{T+7}], v7, s[20:23], s58 offen offset:32
    """)
    stamp(a, 13)
    stamp_flush(a, 1, 14, 40, 14)
    a("s_endpgm")
    a.label(f"{N}_ops0")
    SX = "" if FAST else "sc1"
    sanitize(a, range(T, T + 8))
    a(f"""
    buffer_store_dwordx4 v[{T}:{T+3}], v3, s[24:27], s55 offen {SX}
    buffer_store_dwordx4 v[{T+4}:{T+7}], v3, s[24:27], s55 offen offset:1024 {SX}
    s_add_u32 s55, s55, {hex(LY.GD)}
    v_mov_b32 v10, 0
    v_mov_b32 v11, 0
    """)
    for j in range(8):
        a(f"v_dot2c_f32_bf16 v10, s62, v{T+j}")
        a(f"v_dot2c_f32_bf16 v11, v{T+j}, v{T+j}")
    a(f"""
    v_lshrrev_b32 v8, 1, v8
    s_sub_u32 s60, s60, {hex(LY.GR)}
    s_lshr_b32 s61, s60, 1
    s_add_u32 s61, s61, {hex(LY.ST2)}
    v_mov_b32 v12, v10
    v_mov_b32 v13, v11
    s_lshr_b32 s60, s60, 7
    s_add_u32 s60, s60, {hex(LY.FX)}
    v_permlane32_swap_b32 v10, v12
    v_permlane32_swap_b32 v11, v13
    s_nop 0
    v_add_f32 v10, v10, v12
    v_add_f32 v11, v11, v13
    v_min_u32 v10, s67, v10
    v_min_u32 v11, s67, v11
    s_mov_b64 exec, 0xffffffff
    buffer_store_dwordx2 v[10:11], v8, s[24:27], s61 offen
    s_add_u32 s61, s61, {hex(LY.GD)}
    buffer_store_dwordx2 v[10:11], v8, s[24:27], s61 offen sc1
    s_mov_b64 exec, -1
    buffer_store_dwordx4 v[{T}:{T+3}], v3, s[24:27], s55 offen sc1
    buffer_store_dwordx4 v[{T+4}:{T+7}], v3, s[24:27], s55 offen offset:1024 sc1
    """)
    stamp(a, 8)

def qkv(a):
    a.comment("================= layer-2 QKV projection =================")
    a.label(f"{N}_qkv")
    SC = 98304
    a(f"""
    s_lshl_b32 s41, s36, 1
    s_and_b32 s46, s37, 1
    s_add_u32 s41, s41, s46
    s_lshr_b32 s42, s37, 1
    s_and_b32 s39, s40, 3
    s_lshl_b32 s43, s41, 2
    s_add_u32 s43, s43, s39
    s_cmp_lt_u32 s40, 4
    s_cbranch_scc1 {N}_qc
    s_cmp_lt_u32 s40, 8
    s_cbranch_scc1 {N}_qb
    s_lshl_b32 s53, s39, 10
    s_mul_i32 s52, s42, 98304
    s_add_u32 s52, s52, s53
    s_add_u32 s52, s52, {hex(LY.WP)}
    """)
    for m in range(24):
        a(f"s_add_u32 m0, s53, {m*4096}")
        a(f"s_add_u32 s51, s52, {m*4096}")
        a(f"buffer_load_dwordx4 v3, s[24:27], s51 offen lds")
        if m >= WDEPTH - 1: a(f"s_waitcnt vmcnt({WDEPTH - 1})")
    a(f"""
    s_waitcnt vmcnt(0)
    s_barrier
    s_branch {N}_qw
    """)
    a.label(f"{N}_qb")
    a(f"""
    v_lshlrev_b32 v7, 3, v1
    s_lshl_b32 s52, s43, 12
    s_add_u32 s52, s52, {hex(LY.ST2)}
    s_min_u32 s53, s39, 2
    s_lshl_b32 s51, s53, 11
    s_lshl_b32 s54, s42, 7
    s_add_u32 s51, s51, s54
    s_add_u32 s51, s51, {hex(LY.CSB)}
    v_and_b32 v4, 31, v1
    v_lshlrev_b32 v4, 2, v4
    buffer_load_dword v32, v4, s[24:27], s51 offen
    s_lshl_b32 s53, s53, 7
    s_add_u32 s53, s53, {SC + 2048}
    v_add_u32 v5, s53, v4
    s_lshl_b32 s53, s39, 9
    s_add_u32 s53, s53, {SC}
    v_add_u32 v4, s53, v4
    """)
    a("s_mov_b32 s69, 0x8000")
    a.label(f"{N}_stp")
    for i2 in range(8):
        a(f"buffer_load_dwordx2 v[{16+2*i2}:{17+2*i2}], v7, s[24:27], s52 offen offset:{512*i2} sc1")
    a("s_waitcnt vmcnt(0)")
    maxchain(a, 15, range(16, 32))
    a(f"""
    v_cmp_eq_u32 vcc, -1, v15
    s_cmp_eq_u64 vcc, 0
    s_cbranch_scc1 {N}_std
    s_sub_u32 s69, s69, 1
    s_cbranch_scc1 {N}_std
    """)
    switch_copy(a, f"{N}_stp", [7])
    a(f"""
    s_sleep 1
    s_branch {N}_stp
    """)
    a.label(f"{N}_std")
    a(f"""
    s_lshl_b32 s58, s39, 2
    s_add_u32 s58, s58, {FLAG + 32}
    v_mov_b32 v6, s58
    v_or_b32 v8, 1, v7
    s_mov_b64 exec, 1
    ds_write_b32 v6, v8
    s_mov_b64 exec, -1
    """)
    for i2 in range(1, 8):
        a(f"v_add_f32 v16, v16, v{16+2*i2}")
        a(f"v_add_f32 v17, v17, v{17+2*i2}")
    a(f"""
    v_mov_b32 v18, v16
    v_mov_b32 v19, v17
    s_mov_b32 s56, {f32hex(1.0/512)}
    s_nop 0
    v_permlane32_swap_b32 v16, v18
    v_permlane32_swap_b32 v17, v19
    s_nop 0
    v_add_f32 v16, v16, v18
    v_add_f32 v17, v17, v19
    v_mul_f32 v16, s56, v16
    v_mul_f32 v17, s56, v17
    v_fma_f32 v17, -v16, v16, v17
    v_max_f32 v17, 0, v17
    v_add_f32 v17, {f32hex(1e-5)}, v17
    v_rsq_f32 v17, v17
    s_nop 0
    v_mul_f32 v16, v16, v17
    v_sub_f32 v16, 0, v16
    ds_write_b32 v4, v17
    ds_write_b32 v4, v16 offset:128
    ds_write_b32 v5, v32
    s_waitcnt lgkmcnt(0)
    s_barrier
    """)
    a.label(f"{N}_qw")
    a("s_barrier")
    a.label(f"{N}_qw2")
    a(f"""
    s_barrier
    s_branch {N}_qend
    """)
    a.label(f"{N}_qc")
    XR, ACC, WFR, TQ, TV, PK = 20, 84, 132, 20, 52, 132
    a(f"""
    s_lshl_b32 s49, s43, 15
    s_add_u32 s49, s49, {hex(LY.X2F)}
    """)
    for g in range(8): a(f"s_add_u32 s{58+g if g < 6 else 46+g}, s49, {g*4096}")
    def xl(ks):
        g = ks // 4
        r = XR + 4 * (ks & 15)
        a(f"buffer_load_dwordx4 v[{r}:{r+3}], v16, s[24:27], s{58+g if g < 6 else 46+g} offen offset:{(ks % 4)*1024} sc1")
    xu = [(lambda i=i: (xl(2*i), xl(2*i + 1)), range(XR + 8*i, XR + 8*i + 8), None) for i in range(8)]
    a(f"""
    s_lshl_b32 s50, s40, 2
    s_add_u32 s50, s50, {FLAG + 32}
    v_mov_b32 v14, s50
    """)
    a.label(f"{N}_xw")
    a(f"""
    ds_read_b32 v16, v14
    s_waitcnt lgkmcnt(0)
    v_readfirstlane_b32 s50, v16
    s_cmp_lg_u32 s50, 0
    s_cbranch_scc0 {N}_xw
    s_and_b32 s50, s50, {hex(LY.GD)}
    v_or_b32 v16, s50, v3
    """)
    for u in xu: u[0]()
    a(f"""
    v_lshrrev_b32 v6, 5, v1
    v_and_b32 v4, 31, v1
    v_lshlrev_b32 v18, 9, v6
    v_bfe_u32 v19, v1, 2, 2
    v_lshl_add_u32 v18, v19, 6, v18
    v_bfe_u32 v19, v1, 4, 1
    v_lshl_add_u32 v18, v19, 5, v18
    v_and_b32 v19, 3, v1
    v_lshl_add_u32 v18, v19, 3, v18
    v_add_u32 v19, 49152, v18
    s_lshl_b32 s50, s40, 9
    s_add_u32 s50, s50, {SC}
    v_lshl_add_u32 v12, v4, 2, s50
    v_lshl_add_u32 v11, v6, 4, s50
    v_lshlrev_b32 v13, 4, v6
    v_add_u32 v13, {SC}, v13
    v_lshlrev_b32 v5, 2, v4
    v_add_u32 v5, {SC}, v5
    s_lshl_b32 s57, s42, 17
    s_lshl_b32 s51, s43, 10
    s_add_u32 s57, s57, s51
    s_add_u32 s57, s57, {hex(LY.QKVL)}
    v_and_b32 v10, 3, v1
    v_bfe_u32 v9, v1, 2, 1
    v_lshl_or_b32 v10, v9, 3, v10
    v_bfe_u32 v9, v1, 3, 1
    v_lshl_or_b32 v10, v9, 2, v10
    v_lshlrev_b32 v10, 4, v10
    v_lshl_or_b32 v10, v6, 8, v10
    v_bfe_u32 v9, v1, 4, 1
    v_lshl_or_b32 v10, v9, 16, v10
    s_barrier
    """)
    def wread(ks):
        j, kk = ks // 4, ks % 4
        b = WFR + 12 * (ks % 3)
        for f in range(3):
            for q in range(2):
                off = (j & 3) * 12288 + f*4096 + kk*1024 + q*256
                a(f"ds_read_b64_tr_b16 v[{b+4*f+2*q}:{b+4*f+2*q+1}], v{18 + (j >> 2)} offset:{off}")
    wread(0); wread(1)
    for ks in range(32):
        if ks % 4 == 0:
            checked(a, lambda: [xl(k2) for k2 in range(ks, ks + 4)], range(XR + 4*(ks & 15), XR + 4*(ks & 15) + 16),
                    first_wait=min(12, 28 - ks), switch=[16])
        if ks == 0: stamp(a, 9)
        a(f"s_waitcnt lgkmcnt({6 if ks < 31 else 0})")
        if ks + 2 < 32: wread(ks + 2)
        if ks == 30:
            a("s_barrier")
        b = WFR + 12 * (ks % 3)
        x = vr(XR + 4*(ks & 15), 4)
        for f in range(3):
            acc = vr(ACC + 16*f, 16)
            c = "0" if ks == 0 else acc
            w = vr(b + 4*f, 4)
            if f < 2: a(f"v_mfma_f32_32x32x16_bf16 {acc}, {w}, {x}, {c}")
            else:     a(f"v_mfma_f32_32x32x16_bf16 {acc}, {x}, {w}, {c}")
        if ks < 16: xl(ks + 16)
        if ks == 30:
            a("ds_read_b32 v16, v12")
            a("ds_read_b32 v17, v12 offset:128")
            a("ds_read_b32 v14, v5 offset:2304")
            for g in range(4):
                a(f"ds_read_b128 v[{TQ+4*g}:{TQ+4*g+3}], v13 offset:{2048 + 32*g}")
    stamp(a, 10)
    for g in range(4):
        a(f"ds_read_b128 v[{TQ+16+4*g}:{TQ+16+4*g+3}], v13 offset:{2176 + 32*g}")
        a(f"ds_read_b128 v[{TV+4*g}:{TV+4*g+3}], v11 offset:{32*g}")
        a(f"ds_read_b128 v[{TV+16+4*g}:{TV+16+4*g+3}], v11 offset:{128 + 32*g}")
    a(f"""
    s_mov_b32 s56, {f32hex(LY.QSCALE)}
    v_mul_f32 v6, s56, v16
    v_mul_f32 v8, s56, v17
    v_mov_b32 v7, v6
    v_mov_b32 v9, v8
    v_mov_b32 v18, v17
    v_mov_b32 v19, v17
    v_mov_b32 v17, v16
    v_mov_b32 v15, v14
    """)
    def qk(f, rs, mr):
        for j in range(8): a(f"v_pk_mul_f32 {p(ACC+16*f+2*j)}, {p(ACC+16*f+2*j)}, {p(rs)}")
        for j in range(8): a(f"v_pk_fma_f32 {p(ACC+16*f+2*j)}, {p(TQ+16*f+2*j)}, {p(mr)}, {p(ACC+16*f+2*j)}")
        for j in range(8): a(f"v_cvt_pk_bf16_f32 v{PK+8*f+j}, v{ACC+16*f+2*j}, v{ACC+16*f+2*j+1}")
        sanitize(a, range(PK + 8*f, PK + 8*f + 8))
        base = LY.QF if f == 0 else LY.KF
        a(f"s_add_u32 s58, s57, {hex(base)}")
        a(f"buffer_store_dwordx4 v[{PK+8*f}:{PK+8*f+3}], v3, s[24:27], s58 offen sc1")
        a(f"s_add_u32 s58, s57, {hex(base + 65536)}")
        a(f"buffer_store_dwordx4 v[{PK+8*f+4}:{PK+8*f+7}], v3, s[24:27], s58 offen sc1")
    a("s_waitcnt lgkmcnt(0)")
    a("s_barrier")
    qk(1, 16, 18)
    for j in range(8): a(f"v_pk_mul_f32 {p(ACC+32+2*j)}, {p(ACC+32+2*j)}, {p(TV+2*j)}")
    for j in range(8): a(f"v_pk_fma_f32 {p(ACC+32+2*j)}, {p(TV+16+2*j)}, v[14:15], {p(ACC+32+2*j)}")
    for j in range(8): a(f"v_cvt_pk_bf16_f32 v{PK+16+j}, v{ACC+32+2*j}, v{ACC+32+2*j+1}")
    sanitize(a, range(PK + 16, PK + 24))
    a(f"""
    s_add_u32 s58, s57, {hex(LY.VF)}
    buffer_store_dwordx4 v[{PK+16}:{PK+19}], v10, s[24:27], s58 offen sc1
    buffer_store_dwordx4 v[{PK+20}:{PK+23}], v10, s[24:27], s58 offen offset:512 sc1
    """)
    qk(0, 6, 8)
    stamp(a, 11)
    stamp_flush(a, 2, 12, 40, 14)
    if DIAGFIX(): a("s_mov_b64 exec, -1\nv_and_b32 v1, 63, v0\nv_lshlrev_b32 v2, 2, v1")
    a.label(f"{N}_qend")

def DIAGFIX():
    import asmlib
    return asmlib.DIAG
```

```python
import struct
from asmlib import *
import layout as LY

def f32hex(x):
    return hex(struct.unpack("<I", struct.pack("<f", x))[0])

NSLOT = 5
ZERO = 1
T1 = 1
SLOT = 28672
STAT = NSLOT * SLOT
def lds_bytes(layer1):
    return STAT + 4 * 2048

def emit(a, name, layer1, prefetch=False):
    kernel_begin(a, name)
    done = f"{name}_done"
    a(f"""
    s_cmp_ge_u32 s2, 256
    s_cbranch_scc1 {done}
    s_load_dwordx4 s[4:7], s[0:1], 0
    s_load_dwordx2 s[14:15], s[0:1], 88
    """)
    if layer1 and T1:
        a("""
        s_load_dwordx4 s[8:11], s[0:1], 32
        s_load_dwordx2 s[12:13], s[0:1], 48
        """)
    a(f"""
    v_lshrrev_b32 v2, 6, v0
    v_and_b32 v1, 63, v0
    v_readfirstlane_b32 s40, v2
    s_and_b32 s44, s2, 7
    s_lshr_b32 s45, s2, 3
    """)
    if layer1:
        a("""
        s_and_b32 s41, s44, 3
        s_lshl_b32 s41, s41, 2
        s_and_b32 s46, s45, 3
        s_add_u32 s41, s41, s46
        s_lshr_b32 s42, s44, 2
        s_lshl_b32 s42, s42, 3
        s_lshr_b32 s46, s45, 2
        s_add_u32 s42, s42, s46
        """)
    else:
        a("""
        s_lshl_b32 s41, s44, 1
        s_and_b32 s46, s45, 1
        s_add_u32 s41, s41, s46
        s_lshr_b32 s42, s45, 1
        """)
    a(f"""
    s_and_b32 s39, s40, 3
    s_lshl_b32 s43, s41, 2
    s_add_u32 s43, s43, s39
    v_lshrrev_b32 v3, 5, v1
    v_and_b32 v4, 31, v1
    v_lshlrev_b32 v9, 4, v1
    s_lshl_b32 s49, s43, 15
    s_cmp_ge_u32 s40, 4
    s_cbranch_scc1 {name}_loader
    s_lshl_b32 s50, s40, 11
    s_add_u32 s50, s50, {STAT}
    s_waitcnt lgkmcnt(0)
    """)
    srd(a, 24, 14, LY.WS_USED)
    stamp(a, 0)
    XR = (64, 80)
    ACC = 96
    WFR = 144
    TQ = 24
    TV = 180
    SUM, SQ, CS = 14, 16, 18
    if not layer1:
        a.comment("column sums of W (written by layer 1): Q,K per register, V per lane; row-stat partials of x2")
        a(f"""
        v_lshlrev_b32 v5, 4, v3
        v_lshlrev_b32 v6, 2, v4
        s_lshl_b32 s51, s42, 7
        s_add_u32 s51, s51, {hex(LY.CSB)}
        v_lshlrev_b32 v7, 3, v1
        s_lshl_b32 s52, s43, 12
        s_add_u32 s52, s52, {hex(LY.ST2)}
        """)
        for i2 in range(8):
            a(f"buffer_load_dwordx2 v[{WFR+2*i2}:{WFR+2*i2+1}], v7, s[24:27], s52 offen offset:{512*i2}")
        for f in range(2):
            for g in range(4):
                a(f"buffer_load_dwordx4 v[{TQ+16*f+4*g}:{TQ+16*f+4*g+3}], v5, s[24:27], s51 offen offset:{f*2048 + 32*g}")
        a(f"s_add_u32 s51, s51, 4096")
        a(f"buffer_load_dword v20, v6, s[24:27], s51 offen")
    if layer1:
        a.comment("cold start: touch a distinct share of the lines this XCD will need, so all misses are in flight at once (speed only)")
        srd(a, 16, 4, 0x200000)
        srd(a, 20, 6, 0x180000)
        a(f"""
        s_and_b32 s51, s42, 7
        s_lshl_b32 s51, s51, 7
        s_add_u32 s51, s51, s49
        v_lshlrev_b32 v10, 10, v4
        buffer_load_dword v24, v10, s[16:19], s51 offen
        s_and_b32 s53, s41, 3
        s_lshl_b32 s53, s53, 1
        s_and_b32 s54, s42, 1
        s_add_u32 s53, s53, s54
        s_mul_i32 s53, s53, 3072
        s_lshl_b32 s54, s42, 6
        s_add_u32 s53, s53, s54
        s_min_u32 s54, s40, 2
        s_lshl_b32 s54, s54, 10
        s_add_u32 s53, s53, s54
        s_movk_i32 s54, {8*3072}
        v_mul_lo_u32 v10, v1, s54
        buffer_load_dword v25, v10, s[20:23], s53 offen
        """)
    if layer1 and ZERO:
        a.comment("zero the hand-off words of the second launch: 4 KB of stat granules per workgroup, 32 KB of flags")
        a(f"""
        v_mov_b32 v28, 0
        v_mov_b32 v29, 0
        v_mov_b32 v30, 0
        v_mov_b32 v31, 0
        s_lshl_b32 s51, s2, 12
        s_lshl_b32 s53, s40, 10
        s_add_u32 s51, s51, s53
        s_add_u32 s53, s51, {hex(LY.GR)}
        buffer_store_dwordx4 v[28:31], v9, s[24:27], s53 offen
        s_add_u32 s53, s53, {hex(LY.GD)}
        buffer_store_dwordx4 v[28:31], v9, s[24:27], s53 offen
        s_cmp_ge_u32 s2, 8
        s_cbranch_scc1 {name}_nz
        s_add_u32 s53, s51, {hex(LY.FLG)}
        buffer_store_dwordx4 v[28:31], v9, s[24:27], s53 offen
        """)
        a.label(f"{name}_nz")
        a(f"""
        v_mov_b32 v32, -1
        v_mov_b32 v33, -1
        v_mov_b32 v34, -1
        v_mov_b32 v35, -1
        s_lshl_b32 s53, s51, 1
        s_add_u32 s53, s53, {hex(LY.OF)}
        buffer_store_dwordx4 v[32:35], v9, s[24:27], s53 offen
        buffer_store_dwordx4 v[32:35], v9, s[24:27], s53 offen offset:1024
        s_mov_b32 s67, 0xfffffffe
        """)
    a(f"""
    s_mov_b32 s55, 0x3f803f80
    v_lshlrev_b32 v21, 9, v3
    v_bfe_u32 v22, v1, 2, 2
    v_lshl_add_u32 v21, v22, 6, v21
    v_bfe_u32 v22, v1, 4, 1
    v_lshl_add_u32 v21, v22, 5, v21
    v_and_b32 v22, 3, v1
    v_lshl_add_u32 v21, v22, 3, v21
    v_add_u32 v22, {2*SLOT}, v21
    v_add_u32 v23, {4*SLOT}, v21
    s_lshl_b32 s56, s40, 12
    s_add_u32 s56, s56, 12288
    """)
    if layer1:
        a(f"""
        v_bfe_u32 v13, v1, 1, 3
        v_xor_b32 v13, v13, v3
        v_lshlrev_b32 v13, 4, v13
        v_lshl_add_u32 v13, v4, 7, v13
        v_add_u32 v13, s56, v13
        """)
        for kk in range(4):
            a(f"v_xor_b32 v{56+kk}, {kk << 5}, v13")
            a(f"v_add_u32 v{60+kk}, {2*SLOT}, v{56+kk}")
            a(f"v_add_u32 v{5+kk}, {4*SLOT}, v{56+kk}")
        for r in (14, 15, 16, 17, 18, 19, 20):
            a(f"v_mov_b32 v{r}, 0")
    else:
        a(f"""
        v_add_u32 v56, s56, v9
        v_add_u32 v60, {2*SLOT}, v56
        v_add_u32 v5, {4*SLOT}, v56
        """)
    def finish_stats():
        a(f"""
        v_mov_b32 v15, v14
        v_mov_b32 v17, v16
        v_lshl_add_u32 v12, v4, 2, s50
        v_lshl_add_u32 v11, v3, 4, s50
        v_permlane32_swap_b32 v14, v15
        v_permlane32_swap_b32 v16, v17
        s_mov_b32 s56, {f32hex(1.0/512)}
        s_nop 0
        v_add_f32 v14, v14, v15
        v_add_f32 v16, v16, v17
        v_mul_f32 v14, s56, v14
        v_mul_f32 v16, s56, v16
        v_fma_f32 v16, -v14, v14, v16
        v_max_f32 v16, 0, v16
        v_add_f32 v16, {f32hex(1e-5)}, v16
        v_rsq_f32 v16, v16
        s_nop 0
        v_mul_f32 v17, v14, v16
        v_sub_f32 v17, 0, v17
        ds_write_b32 v12, v16 offset:512
        ds_write_b32 v12, v17 offset:640
        s_waitcnt lgkmcnt(0)
        """)
        for g in range(4):
            a(f"ds_read_b128 v[{TV+4*g}:{TV+4*g+3}], v11 offset:{512 + 32*g}")
            a(f"ds_read_b128 v[{TV+16+4*g}:{TV+16+4*g+3}], v11 offset:{640 + 32*g}")
    if not layer1:
        a("s_waitcnt vmcnt(9)")
        for i2 in range(1, 8):
            a(f"v_add_f32 v{WFR}, v{WFR}, v{WFR+2*i2}")
            a(f"v_add_f32 v{WFR+1}, v{WFR+1}, v{WFR+2*i2+1}")
        a(f"v_mov_b32 v14, v{WFR}")
        a(f"v_mov_b32 v16, v{WFR+1}")
        finish_stats()
        a("s_waitcnt lgkmcnt(0)")
    def wread(ks):
        j, kk = ks // 4, ks % 4
        sl = j % NSLOT
        base = 21 + sl // 2
        b = WFR + 12 * (ks % 3)
        for f in range(3):
            for q in range(2):
                off = (sl & 1) * SLOT + f*4096 + kk*1024 + q*256
                a(f"ds_read_b64_tr_b16 v[{b+4*f+2*q}:{b+4*f+2*q+1}], v{base} offset:{off}")
    def xread(j):
        sl = j % NSLOT
        for kk in range(4):
            if layer1:
                base, off = (56, 60, 5)[sl // 2] + kk, (sl & 1) * SLOT
            else:
                base, off = (56, 60, 5)[sl // 2], (sl & 1) * SLOT + kk * 1024
            a(f"ds_read_b128 v[{XR[j&1]+4*kk}:{XR[j&1]+4*kk+3}], v{base} offset:{off}")
    a("s_barrier")
    stamp(a, 1)
    xread(0); wread(0)
    for ks in range(32):
        j, kk = ks // 4, ks % 4
        if kk == 0:
            a("s_waitcnt lgkmcnt(0)")
            wread(ks + 1); wread(ks + 2)
        elif kk == 1:
            a("s_waitcnt lgkmcnt(6)")
            wread(ks + 2)
        elif kk == 2:
            a("s_waitcnt lgkmcnt(6)")
        else:
            a("s_waitcnt lgkmcnt(0)")
            if j < 7:
                a("s_barrier")
                if j == 6: stamp(a, 2)
                xread(j + 1); wread(ks + 1)
        b = WFR + 12 * (ks % 3)
        xr = XR[j & 1] + 4*kk
        x = vr(xr, 4)
        for f in range(3):
            acc = vr(ACC + 16*f, 16)
            c = "0" if ks == 0 else acc
            w = vr(b + 4*f, 4)
            if f < 2: a(f"v_mfma_f32_32x32x16_bf16 {acc}, {w}, {x}, {c}")
            else:     a(f"v_mfma_f32_32x32x16_bf16 {acc}, {x}, {w}, {c}")
        if layer1:
            skip = a.uid(f"{name}_cs")
            a(f"s_cmp_eq_u32 s40, {kk}")
            a(f"s_cbranch_scc0 {skip}")
            for d in range(4):
                for f in range(3):
                    a(f"v_dot2c_f32_bf16 v{CS+f}, s55, v{b+4*f+d}")
            a.label(skip)
            if kk == 2:
                for r in range(16):
                    a(f"v_dot2c_f32_bf16 v{SUM + (r & 1)}, s55, v{XR[j&1]+r}")
                    a(f"v_dot2c_f32_bf16 v{SQ + (r & 1)}, v{XR[j&1]+r}, v{XR[j&1]+r}")
    stamp(a, 3)
    if layer1:
        a(f"""
        s_nop 2
        v_add_f32 v14, v14, v15
        v_add_f32 v16, v16, v17
        v_mov_b32 v57, v18
        v_mov_b32 v58, v19
        v_mov_b32 v59, v20
        v_lshl_add_u32 v12, v4, 2, s50
        s_nop 0
        v_permlane32_swap_b32 v18, v57
        v_permlane32_swap_b32 v19, v58
        v_permlane32_swap_b32 v20, v59
        s_nop 0
        v_add_f32 v18, v18, v57
        v_add_f32 v19, v19, v58
        v_add_f32 v20, v20, v59
        ds_write_b32 v12, v18
        ds_write_b32 v12, v19 offset:128
        ds_write_b32 v12, v20 offset:256
        """)
        finish_stats()
        a(f"""
        s_barrier
        v_lshlrev_b32 v10, 2, v4
        v_add_u32 v13, {STAT}, v10
        """)
        for f in range(3):
            for w in range(4):
                a(f"ds_read_b32 v{64+4*f+w}, v13 offset:{w*2048 + f*128}")
        a("s_waitcnt lgkmcnt(0)")
        for f in range(3):
            a(f"v_add_f32 v{64+4*f}, v{64+4*f}, v{65+4*f}")
            a(f"v_add_f32 v{66+4*f}, v{66+4*f}, v{67+4*f}")
            a(f"v_add_f32 v{CS+f}, v{64+4*f}, v{66+4*f}")
        a(f"""
        ds_write_b32 v12, v18 offset:1024
        ds_write_b32 v12, v19 offset:1152
        """)
        sk = a.uid(f"{name}_cst")
        a(f"""
        s_cmp_lg_u32 s43, 0
        s_cbranch_scc1 {sk}
        s_lshl_b32 s51, s42, 7
        s_add_u32 s51, s51, {hex(LY.CSB)}
        buffer_store_dword v18, v10, s[24:27], s51 offen
        buffer_store_dword v19, v10, s[24:27], s51 offen offset:2048
        s_add_u32 s51, s51, 4096
        buffer_store_dword v20, v10, s[24:27], s51 offen
        """)
        a.label(sk)
        a("s_waitcnt lgkmcnt(0)")
        for g in range(4):
            a(f"ds_read_b128 v[{TQ+4*g}:{TQ+4*g+3}], v11 offset:{1024 + 32*g}")
            a(f"ds_read_b128 v[{TQ+16+4*g}:{TQ+16+4*g+3}], v11 offset:{1152 + 32*g}")
    a(f"""
    s_mov_b32 s56, {f32hex(LY.QSCALE)}
    v_mul_f32 v56, s56, v16
    v_mul_f32 v58, s56, v17
    v_mov_b32 v57, v56
    v_mov_b32 v59, v58
    v_mov_b32 v60, v16
    v_mov_b32 v61, v16
    v_mov_b32 v62, v17
    v_mov_b32 v63, v17
    s_waitcnt vmcnt(0)
    v_mov_b32 v21, v20
    s_lshl_b32 s57, s42, 17
    s_lshl_b32 s58, s43, 10
    s_add_u32 s57, s57, s58
    v_and_b32 v10, 3, v1
    v_bfe_u32 v11, v1, 2, 1
    v_lshl_or_b32 v10, v11, 3, v10
    v_bfe_u32 v11, v1, 3, 1
    v_lshl_or_b32 v10, v11, 2, v10
    v_lshlrev_b32 v10, 4, v10
    v_lshl_or_b32 v10, v3, 8, v10
    v_bfe_u32 v11, v1, 4, 1
    v_lshl_or_b32 v10, v11, 16, v10
    s_waitcnt lgkmcnt(0)
    """)
    def p(b): return f"v[{b}:{b+1}]"
    PK = 64
    for f, (rs, mr) in ((1, (60, 62)), (0, (56, 58))):
        for j in range(8):
            a(f"v_pk_mul_f32 {p(ACC+16*f+2*j)}, {p(ACC+16*f+2*j)}, {p(rs)}")
        for j in range(8):
            a(f"v_pk_fma_f32 {p(ACC+16*f+2*j)}, {p(TQ+16*f+2*j)}, {p(mr)}, {p(ACC+16*f+2*j)}")
        for j in range(8):
            a(f"v_cvt_pk_bf16_f32 v{PK+8*f+j}, v{ACC+16*f+2*j}, v{ACC+16*f+2*j+1}")
        if layer1 and ZERO:
            for j in range(8): a(f"v_min_u32 v{PK+8*f+j}, s67, v{PK+8*f+j}")
        base = LY.QF if f == 0 else LY.KF
        a(f"s_add_u32 s58, s57, {hex(base)}")
        a(f"buffer_store_dwordx4 v[{PK+8*f}:{PK+8*f+3}], v9, s[24:27], s58 offen")
        a(f"s_add_u32 s58, s57, {hex(base + 65536)}")
        a(f"buffer_store_dwordx4 v[{PK+8*f+4}:{PK+8*f+7}], v9, s[24:27], s58 offen")
    for j in range(8):
        a(f"v_pk_mul_f32 {p(ACC+32+2*j)}, {p(ACC+32+2*j)}, {p(TV+2*j)}")
    for j in range(8):
        a(f"v_pk_fma_f32 {p(ACC+32+2*j)}, {p(TV+16+2*j)}, v[20:21], {p(ACC+32+2*j)}")
    for j in range(8):
        a(f"v_cvt_pk_bf16_f32 v{PK+16+j}, v{ACC+32+2*j}, v{ACC+32+2*j+1}")
    if layer1 and ZERO:
        for j in range(8): a(f"v_min_u32 v{PK+16+j}, s67, v{PK+16+j}")
    a(f"""
    s_add_u32 s58, s57, {hex(LY.VF)}
    buffer_store_dwordx4 v[{PK+16}:{PK+19}], v10, s[24:27], s58 offen
    buffer_store_dwordx4 v[{PK+20}:{PK+23}], v10, s[24:27], s58 offen offset:512
    """)
    stamp(a, 4)
    stamp_flush(a, 0 if layer1 else 2, 5, 40, 14)
    a.label(done)
    a("s_endpgm")
    a.label(f"{name}_loader")
    a(f"""
    v_lshrrev_b32 v11, 2, v1
    s_movk_i32 s52, 3072
    v_mul_lo_u32 v11, v11, s52
    v_and_b32 v12, 3, v1
    v_lshl_add_u32 v11, v12, 4, v11
    s_lshl_b32 s52, s42, 6
    s_mul_i32 s53, s39, {16*3072}
    s_add_u32 s52, s52, s53
    s_lshl_b32 s53, s39, 10
    s_lshl_b32 s54, s39, 12
    s_add_u32 s54, s54, 12288
    """)
    if layer1:
        a(f"""
        v_lshrrev_b32 v13, 3, v1
        v_lshrrev_b32 v14, 4, v1
        v_and_b32 v15, 7, v1
        v_xor_b32 v15, v15, v14
        v_lshlrev_b32 v15, 4, v15
        v_lshl_add_u32 v15, v13, 10, v15
        v_xor_b32 v16, 64, v15
        """)
    else:
        a(f"""
        s_add_u32 s49, s49, {hex(LY.X2F)}
        s_mul_i32 s52, s42, {8*12288}
        s_add_u32 s52, s52, s53
        s_add_u32 s52, s52, {hex(LY.WP)}
        """)
    a("s_waitcnt lgkmcnt(0)")
    if layer1: srd(a, 20, 6, 0x180000)
    if layer1: srd(a, 16, 4, 0x200000)
    srd(a, 24, 14, LY.WS_USED)
    def issue(j):
        sl = (j % NSLOT) * SLOT
        for n in range(4):
            a(f"s_add_u32 m0, s54, {sl + n*1024}")
            if layer1:
                a(f"s_add_u32 s51, s49, {n*8192 + j*128}")
                a(f"buffer_load_dwordx4 v{15 + (n & 1)}, s[16:19], s51 offen lds")
            else:
                a(f"s_add_u32 s51, s49, {j*4096 + n*1024}")
                a(f"buffer_load_dwordx4 v9, s[24:27], s51 offen lds")
            if n < 3:
                a(f"s_add_u32 m0, s53, {sl + n*4096}")
                if layer1:
                    a(f"s_add_u32 s51, s52, {n*1024 + j*64*3072}")
                    a(f"buffer_load_dwordx4 v11, s[20:23], s51 offen lds")
                else:
                    a(f"s_add_u32 s51, s52, {n*4096 + j*12288}")
                    a(f"buffer_load_dwordx4 v9, s[24:27], s51 offen lds")
    LA = 3
    for j in range(LA): issue(j)
    nT1 = (22 if T1 else 2) if layer1 else 0
    T = 24
    def t1_loads():
        a.comment("packed copy of W for layer 2: rows [32rb,32rb+32), tile f = lw (lw 3 repeats f=2)")
        a(f"""
        s_min_u32 s56, s39, 2
        s_lshl_b32 s57, s56, 10
        s_lshl_b32 s58, s42, 6
        s_add_u32 s57, s57, s58
        s_mul_i32 s58, s41, {32*3072}
        s_add_u32 s57, s57, s58
        buffer_load_dwordx4 v[112:115], v11, s[20:23], s57 offen
        s_add_u32 s57, s57, {16*3072}
        buffer_load_dwordx4 v[116:119], v11, s[20:23], s57 offen
        s_mul_i32 s59, s42, {8*12288}
        s_lshr_b32 s58, s41, 1
        s_mul_i32 s58, s58, 12288
        s_add_u32 s59, s59, s58
        s_and_b32 s58, s41, 1
        s_lshl_b32 s58, s58, 11
        s_add_u32 s59, s59, s58
        s_lshl_b32 s56, s56, 12
        s_add_u32 s59, s59, s56
        s_add_u32 s59, s59, {hex(LY.WP)}
        """)
    def t1_more():
        srd(a, 28, 8, 0x200000)
        srd(a, 32, 10, 0x200000)
        srd(a, 64, 12, 0x1000)
        a(f"""
        s_lshr_b32 s46, s2, 3
        s_lshl_b32 s46, s46, 16
        s_lshl_b32 s47, s39, 14
        s_add_u32 s46, s46, s47
        s_and_b32 s47, s2, 7
        s_lshl_b32 s48, s47, 7
        s_add_u32 s46, s46, s48
        v_lshlrev_b32 v5, 13, v3
        v_lshl_add_u32 v5, v4, 2, v5
        v_add_u32 v5, s46, v5
        v_add_u32 v6, 0x1000, v5
        v_subrev_u32 v7, 0xc00, v5
        s_lshl_b32 s48, s47, 9
        v_lshl_add_u32 v8, v4, 4, s48
        """)
        for r in range(3):
            a(f"buffer_load_dword v{T+r}, v7, s[28:31], 0 offen offset:{r*1024}")
        for r in range(8):
            a(f"buffer_load_dword v{T+3+r}, v{5 if r < 4 else 6}, s[28:31], 0 offen offset:{(r%4)*1024}")
        for r in range(8):
            a(f"buffer_load_dword v{T+11+r}, v{5 if r < 4 else 6}, s[32:35], 0 offen offset:{(r%4)*1024}")
        a(f"buffer_load_dwordx4 v[{T+20}:{T+23}], v8, s[64:67], 0 offen")
    for j in range(8):
        issued = min(8, LA + j)
        extra = nT1 if j >= 5 else 0
        a(f"s_waitcnt vmcnt({7 * (issued - j - 1) + extra})")
        a("s_barrier")
        if j + LA < 8: issue(j + LA)
        if j == 4 and layer1:
            t1_loads()
            if T1: t1_more()
    if layer1:
        a("s_barrier")
        a("s_waitcnt vmcnt(0)")
        a("buffer_store_dwordx4 v[112:115], v9, s[24:27], s59 offen")
        a("buffer_store_dwordx4 v[116:119], v9, s[24:27], s59 offen offset:1024")
    if layer1 and T1:
        KFp, VFp, WPr, RS = 48, 70, 86, 94
        for r in range(11):
            a(f"v_lshlrev_b32 v{KFp+2*r}, 16, v{T+r}")
            a(f"v_and_b32 v{KFp+2*r+1}, 0xffff0000, v{T+r}")
        for r in range(8):
            a(f"v_lshlrev_b32 v{VFp+2*r}, 16, v{T+11+r}")
            a(f"v_and_b32 v{VFp+2*r+1}, 0xffff0000, v{T+11+r}")
        D0 = T + 20
        a(f"""
        v_lshlrev_b32 v{WPr+0}, 16, v{D0}
        v_lshlrev_b32 v{WPr+1}, 16, v{D0+2}
        v_and_b32 v{WPr+2}, 0xffff0000, v{D0}
        v_and_b32 v{WPr+3}, 0xffff0000, v{D0+2}
        v_lshlrev_b32 v{WPr+4}, 16, v{D0+1}
        v_lshlrev_b32 v{WPr+5}, 16, v{D0+3}
        v_and_b32 v{WPr+6}, 0xffff0000, v{D0+1}
        v_and_b32 v{WPr+7}, 0xffff0000, v{D0+3}
        """)
        for t in range(8):
            a(f"v_pk_mul_f32 {p(RS+2*t)}, {p(KFp+2*t)}, {p(WPr+6)}")
        for jj in (2, 1, 0):
            for t in range(8):
                a(f"v_pk_fma_f32 {p(RS+2*t)}, {p(KFp+2*(t+3-jj))}, {p(WPr+2*jj)}, {p(RS+2*t)}")
        for t in range(8):
            a(f"v_pk_mul_f32 {p(RS+2*t)}, {p(RS+2*t)}, {p(VFp+2*t)}")
        for q in range(4):
            a(f"v_cvt_pk_bf16_f32 v{T+q}, v{RS+2*(7-2*q)}, v{RS+2*(6-2*q)}")
            a(f"v_cvt_pk_bf16_f32 v{T+4+q}, v{RS+2*(7-2*q)+1}, v{RS+2*(6-2*q)+1}")
        a(f"""
        s_lshl_b32 s46, s47, 18
        s_add_u32 s46, s46, {hex(LY.UT)}
        s_lshr_b32 s48, s2, 3
        s_lshl_b32 s48, s48, 5
        s_add_u32 s46, s46, s48
        s_lshr_b32 s48, s39, 1
        s_lshl_b32 s48, s48, 4
        s_add_u32 s46, s46, s48
        s_and_b32 s48, s39, 1
        s_lshl_b32 s48, s48, 11
        s_add_u32 s46, s46, s48
        v_lshlrev_b32 v5, 13, v4
        v_lshl_add_u32 v5, v3, 10, v5
        v_add_u32 v6, 0x1000, v5
        buffer_store_dwordx4 v[{T}:{T+3}], v5, s[24:27], s46 offen
        buffer_store_dwordx4 v[{T+4}:{T+7}], v6, s[24:27], s46 offen
        """)
    a("s_endpgm")
    return 212
```

```python
import sys
sys.path.insert(0, "gen")
from asmlib import *
import asmlib
import k_qkv3 as k_qkv, k_mega2 as k_mega

HEADER = open("interleave_layers__mha_block__ssm_conv_h3__prompt.s.ref").read().split("; Override launch")[0]

def build(path):
    a = Asm()
    descs = []
    launches = []
    def add(name, vg): descs.append(kernel_desc(name, vg))
    add("qkv1_kernel", k_qkv.emit(a, "qkv1_kernel", True))
    vg = k_mega.emit(a)
    for nm, _ in k_mega.entries(): add(nm, vg)
    a.label("all_code_end")
    L = lambda k, g, b, l: launches.append(f"; @launch kernel={k} grid=({g},1,1) block=({b},1,1) lds={l}")
    L("qkv1_kernel", 256, 512, k_qkv.lds_bytes(True))
    for nm, _ in k_mega.entries(): L(nm, 256, 768, k_mega.LDS_BYTES)
    txt = HEADER + "\n".join(launches) + "\n" + '.amdgcn_target "amdgcn-amd-amdhsa--gfx950"\n.text\n' + a.text()
    txt += '.section .rodata,"a"\n' + "".join(".p2align 6\n" + d for d in descs)
    open(path, "w").write(txt)

if __name__ == "__main__":
    out = sys.argv[1] if len(sys.argv) > 1 else "interleave_layers__mha_block__ssm_conv_h3__prompt.s"
    for opt in sys.argv[2:]:
        if opt == "diag": asmlib.DIAG = True
        elif opt == "rtdbg": asmlib.DIAG = True; asmlib.RTDBG = True
        elif "=" in opt:
            k, v = opt.split("="); mod, attr = k.split(".")
            setattr({"mega": k_mega, "qkv": k_qkv}[mod], attr, int(v))
    build(out)
```

```python
import struct
from asmlib import *
import layout as LY

def f32hex(x):
    return hex(struct.unpack("<I", struct.pack("<f", x))[0])
def p(b): return f"v[{b}:{b+1}]"

CS = 4160
CHB = 2 * CS + 6144
FLAG = 131072 + 2 * CHB
XCH = 0
YL = 151552
U = 8
FAST = 1
GATHER = 0
CUT_QA = 0
CUT_OQ = 0
SLEEP = 4
CSLEEP = 1
NFAIL = 24
DIAGL = 1
THR_A, THR_H, THR_O = 1, 3, 4
WDEPTH = 8
GSLEEP = 2
PLO, PHI = 13, 0
LDS_BYTES = 163840
N = "mega"


def poll(a, soff, tag):
    L = a.uid(f"{N}_pl{tag}")
    a(f"s_mov_b32 s69, 0x10000")
    a.label(L)
    a(f"""
    buffer_load_dword v15, v2, s[24:27], s{soff} offen sc1
    s_waitcnt vmcnt(0)
    v_cmp_ne_u32 vcc, 0, v15
    s_cmp_eq_u64 vcc, -1
    s_cbranch_scc1 {L}_d
    s_sub_u32 s69, s69, 1
    s_cbranch_scc1 {L}_d
    s_sleep {SLEEP}
    s_branch {L}
    """)
    a.label(L + "_d")

def set_flag(a, soff):
    a(f"""
    v_mov_b32 v15, 1
    v_mov_b32 v14, 0
    s_waitcnt vmcnt(0)
    s_mov_b64 exec, 1
    buffer_store_dword v15, v14, s[24:27], s{soff} offen sc1
    s_mov_b64 exec, -1
    """)

def maxchain(a, dst, regs):
    regs = list(regs)
    a(f"v_max3_u32 v{dst}, v{regs[0]}, v{regs[1]}, v{regs[2]}")
    rest = regs[3:]
    while len(rest) >= 2:
        a(f"v_max3_u32 v{dst}, v{dst}, v{rest[0]}, v{rest[1]}")
        rest = rest[2:]
    if rest: a(f"v_max_u32 v{dst}, v{dst}, v{rest[0]}")

def checked(a, loads, regs, first_wait=None, sleep=None, switch=None):
    L = a.uid(f"{N}_ck")
    a("s_mov_b32 s69, 0x8000")
    if first_wait is not None:
        a(f"s_waitcnt vmcnt({first_wait})")
        a(f"s_branch {L}_c")
    a.label(L)
    loads()
    a("s_waitcnt vmcnt(0)")
    a.label(L + "_c")
    maxchain(a, 15, regs)
    a(f"""
    v_cmp_eq_u32 vcc, -1, v15
    s_cmp_eq_u64 vcc, 0
    s_cbranch_scc1 {L}_d
    s_sub_u32 s69, s69, 1
    s_cbranch_scc1 {L}_d
    """)
    switch_copy(a, L, switch)
    a(f"""
    s_sleep {CSLEEP if sleep is None else sleep}
    s_branch {L}
    """)
    a.label(L + "_d")

def switch_copy(a, L, regs):
    if not regs: return
    a(f"""
    s_cmp_lg_u32 s69, {0x8000 - NFAIL}
    s_cbranch_scc1 {L}_ns
    """)
    for r in regs: a(f"v_or_b32 v{r}, {hex(LY.GD)}, v{r}")
    a.label(f"{L}_ns")

def checked_units(a, units, wait=None, sleep=None, switch=None):
    L = a.uid(f"{N}_cu")
    n = len(units)
    a("s_mov_b32 s69, 0x8000")
    a(f"s_mov_b32 s66, {hex((1 << n) - 1)}")
    wait()
    allregs = [r for (_, regs, _) in units for r in regs]
    maxchain(a, 15, allregs)
    a(f"""
    v_cmp_eq_u32 vcc, -1, v15
    s_cmp_eq_u64 vcc, 0
    s_cbranch_scc0 {L}_c
    """)
    for (_, _, ok) in units:
        if ok: ok()
    a(f"s_branch {L}_d")
    a.label(L)
    for i, (ld, regs, ok) in enumerate(units):
        a(f"s_bitcmp1_b32 s66, {i}")
        a(f"s_cbranch_scc0 {L}_l{i}")
        ld()
        a.label(f"{L}_l{i}")
    a("s_waitcnt vmcnt(0)")
    a.label(L + "_c")
    for i, (ld, regs, ok) in enumerate(units):
        a(f"s_bitcmp1_b32 s66, {i}")
        a(f"s_cbranch_scc0 {L}_k{i}")
        maxchain(a, 15, regs)
        a(f"""
        v_cmp_eq_u32 vcc, -1, v15
        s_cmp_eq_u64 vcc, 0
        s_cbranch_scc0 {L}_k{i}
        s_bitset0_b32 s66, {i}
        """)
        if ok: ok()
        a.label(f"{L}_k{i}")
    a(f"""
    s_cmp_eq_u32 s66, 0
    s_cbranch_scc1 {L}_d
    s_sub_u32 s69, s69, 1
    s_cbranch_scc1 {L}_d
    """)
    switch_copy(a, L, switch)
    a(f"""
    s_sleep {CSLEEP if sleep is None else sleep}
    s_branch {L}
    """)
    a.label(L + "_d")

def hint_wait(a, vaddr, soff, nl, sleep=None, switch=None, thr=0):
    L = a.uid(f"{N}_hw")
    a("s_mov_b32 s69, 0x8000")
    a.label(L)
    a(f"""
    s_mov_b64 exec, {hex((1 << nl) - 1)}
    buffer_load_dword v15, v{vaddr}, s[24:27], {soff} offen sc1
    s_waitcnt vmcnt(0)
    v_cmp_eq_u32 vcc, -1, v15
    s_mov_b64 exec, -1
    s_bcnt1_i32_b64 s66, vcc
    s_cmp_le_u32 s66, {thr}
    s_cbranch_scc1 {L}_d
    s_sub_u32 s69, s69, 1
    s_cbranch_scc1 {L}_d
    """)
    switch_copy(a, L, switch)
    a(f"""
    s_sleep {CSLEEP if sleep is None else sleep}
    s_branch {L}
    """)
    a.label(L + "_d")

def sanitize(a, regs):
    for r in regs: a(f"v_min_u32 v{r}, s67, v{r}")

def entries():
    e = [("mega_kernel", 0)]
    if CUT_OQ: e.append(("megaq_kernel", 2))
    if CUT_QA: e.append(("megab_kernel", 1))
    return e

def emit(a):
    for name, mode in entries()[1:]:
        kernel_begin(a, name)
        a(f"s_mov_b32 s3, {mode}")
        a(f"s_branch {N}_entry")
    kernel_begin(a, "mega_kernel")
    a("s_mov_b32 s3, 0")
    a.label(f"{N}_entry")
    a(f"""
    s_cmp_ge_u32 s2, 256
    s_cbranch_scc1 {N}_done
    s_load_dwordx2 s[4:5], s[0:1], 0
    s_load_dwordx2 s[6:7], s[0:1], 16
    s_load_dwordx2 s[8:9], s[0:1], 72
    s_load_dwordx2 s[10:11], s[0:1], 48
    s_load_dwordx2 s[12:13], s[0:1], 64
    s_load_dwordx2 s[14:15], s[0:1], 88
    s_load_dwordx2 s[16:17], s[0:1], 56
    s_load_dwordx4 s[28:31], s[0:1], 32
    v_lshrrev_b32 v2, 6, v0
    v_and_b32 v1, 63, v0
    v_readfirstlane_b32 s40, v2
    v_lshlrev_b32 v3, 4, v1
    v_lshlrev_b32 v2, 2, v1
    s_and_b32 s36, s2, 7
    s_lshr_b32 s37, s2, 3
    s_mov_b32 s67, 0xfffffffe
    s_waitcnt lgkmcnt(0)
    """)
    srd(a, 24, 14, LY.WS_USED)
    stamp(a, 0)
    if CUT_OQ:
        a(f"s_cmp_eq_u32 s3, 2")
        a(f"s_cbranch_scc1 {N}_qkv")
    a.label(f"{N}_layer")
    attention(a)
    oproj(a)
    qkv(a)
    if not CUT_QA:
        a(f"""
        s_mov_b32 s3, 1
        s_branch {N}_layer
        """)
    a.label(f"{N}_done")
    a("s_endpgm")
    attention_fallback(a)
    return 168

QA, QB, S, O, P, KB, VB = 4, 8, (16, 32), (48, 64), 80, (88, 92), (96, 104)
def mf(a, d, x, y, c): a(f"v_mfma_f32_32x32x16_bf16 {vr(d,16)}, {vr(x,4)}, {vr(y,4)}, {c}")

def attention(a):
    TS = 32
    a(f"""
    s_lshl_b32 s41, s36, 2
    s_and_b32 s46, s37, 3
    s_add_u32 s41, s41, s46
    s_mul_i32 s38, s3, {hex(LY.QKVL)}
    s_lshl_b32 s48, s41, 16
    s_add_u32 s48, s48, s38
    """)
    a.label(f"{N}_a_go")
    stamp(a, 1)
    a(f"""
    s_cmp_ge_u32 s40, 8
    s_cbranch_scc1 {N}_help
    s_lshr_b32 s42, s37, 2
    s_and_b32 s43, s40, 3
    s_lshr_b32 s47, s40, 2
    s_lshl_b32 s42, s42, 3
    s_lshl_b32 s46, s43, 1
    s_add_u32 s42, s42, s46
    s_lshl_b32 s49, s42, 10
    s_add_u32 s49, s49, s48
    s_lshl_b32 s50, s47, 5
    s_add_u32 s51, s50, s43
    s_lshl_b32 s51, s51, 10
    s_add_u32 s52, s48, s51
    s_add_u32 s53, s52, {hex(LY.KF)}
    s_add_u32 s54, s52, {hex(LY.KF + 4096)}
    s_add_u32 s55, s52, {hex(LY.VF)}
    s_add_u32 s58, s52, {hex(LY.VF + 4096)}
    """)
    fu = [
        (lambda: a(f"buffer_load_dwordx4 v[16:19], v3, s[24:27], s53 offen sc1"), range(16, 20), lambda: a("ds_write_b128 v32, v[16:19]")),
        (lambda: a(f"buffer_load_dwordx4 v[20:23], v3, s[24:27], s55 offen sc1"), range(20, 24), lambda: a("ds_write_b128 v33, v[20:23]")),
        (lambda: a(f"buffer_load_dwordx4 v[{QA}:{QA+3}], v3, s[24:27], s49 offen sc1"), range(QA, QA + 4), None),
        (lambda: a(f"buffer_load_dwordx4 v[{QB}:{QB+3}], v3, s[24:27], s49 offen offset:1024 sc1"), range(QB, QB + 4), None),
        (lambda: a(f"buffer_load_dwordx4 v[24:27], v3, s[24:27], s54 offen sc1"), range(24, 28), lambda: a("ds_write_b128 v32, v[24:27] offset:4096")),
        (lambda: a(f"buffer_load_dwordx4 v[28:31], v3, s[24:27], s58 offen sc1"), range(28, 32), lambda: a("ds_write_b128 v33, v[28:31] offset:4096")),
    ]
    a(f"""
    s_cmp_eq_u32 s3, 0
    s_cbranch_scc1 {N}_a_nh
    s_add_u32 s59, s49, 1024
    v_writelane_b32 v14, s55, 0
    v_writelane_b32 v14, s58, 1
    v_writelane_b32 v14, s49, 2
    v_writelane_b32 v14, s59, 3
    s_movk_i32 s59, 1020
    """)
    hint_wait(a, 14, "s59", 4, thr=THR_A)
    a.label(f"{N}_a_nh")
    for u in fu: u[0]()
    for r in range(16):
        a(f"v_mov_b32 v{O[0]+r}, 0")
        a(f"v_mov_b32 v{O[1]+r}, 0")
    a(f"""
    v_and_b32 v14, 27, v1
    v_cmp_eq_u32 vcc, 16, v14
    v_mov_b32 v15, 0x3f803f80
    s_lshl_b32 s59, s50, 10
    v_cndmask_b32 v14, 0, v15, vcc
    """)
    for r in range(16): a(f"v_mov_b32 v{VB[0]+r}, v14")
    for r in range(4): a(f"v_mov_b32 v{P+4+r}, 0")
    a(f"""
    v_add_u32 v12, s59, v3
    v_and_b32 v13, 15, v1
    v_lshlrev_b32 v13, 4, v13
    v_lshrrev_b32 v14, 5, v1
    v_lshl_add_u32 v13, v14, 8, v13
    s_add_u32 s59, s59, 0x10000
    v_add_u32 v13, s59, v13
    s_mov_b32 s56, 0xffff
    s_mov_b32 s57, 0xffff
    v_add_u32 v32, s51, v3
    v_add_u32 v33, 0x10000, v32
    """)
    checked_units(a, fu, wait=lambda: a("s_waitcnt vmcnt(0)"))
    a(f"""
    v_mov_b32 v14, {FLAG + 4}
    v_mov_b32 v112, 1
    s_waitcnt lgkmcnt(0)
    s_barrier
    """)
    stamp(a, 2)
    def kread(buf, t): a(f"ds_read_b128 v[{KB[buf]}:{KB[buf]+3}], v12 offset:{t*1024}")
    def vread(buf, t):
        a("s_mov_b64 exec, s[56:57]")
        a(f"ds_read_b128 v[{VB[buf]}:{VB[buf]+3}], v13 offset:{t*1024}")
        a(f"ds_read_b128 v[{VB[buf]+4}:{VB[buf]+7}], v13 offset:{t*1024+512}")
        a("s_mov_b64 exec, -1")
    kread(0, 0); vread(0, 0)
    a("s_waitcnt lgkmcnt(2)")
    mf(a, S[0], KB[0], QA, "0")
    a(f"""
    s_waitcnt lgkmcnt(0)
    s_mov_b32 s58, {TS // U}
    s_mov_b32 s59, 0
    s_nop 7
    s_nop 1
    """)
    a.label(f"{N}_loop")
    for t in range(U):
        cur, nxt = t & 1, (t + 1) & 1
        for ph in range(2):
            s, o, op, sp = S[ph], O[ph], O[1 - ph], S[1 - ph]
            e = lambda i: a(f"v_exp_f32 v{s+i}, v{s+i}")
            c = lambda j: a(f"v_cvt_pk_bf16_f32 v{P+j}, v{s+2*j}, v{s+2*j+1}")
            vprev = VB[cur] if ph == 1 else VB[nxt]
            if PLO >= 0 and 2 * t + ph in (PLO, PHI):
                sk = a.uid(f"{N}_pr")
                a(f"s_cmp_eq_u32 s47, 0")
                a(f"s_cbranch_scc1 {sk}")
                a(f"s_setprio {1 if 2 * t + ph == PHI else 0}")
                a.label(sk)
            e(0); e(1)
            mf(a, op, vprev + 4, P + 4, vr(op, 16))
            e(2); c(0); e(3); e(4); c(1); e(5)
            if ph == 0:
                mf(a, sp, KB[cur], QB, "0")
                if t == 7:
                    a(f"s_cmp_lg_u32 s59, 0")
                    a(f"s_cbranch_scc1 {N}_kvd")
                    a.label(f"{N}_kvw")
                    a(f"""
                    ds_read_b32 v15, v14
                    s_waitcnt lgkmcnt(0)
                    v_readfirstlane_b32 s59, v15
                    s_cmp_ge_u32 s59, 4
                    s_cbranch_scc0 {N}_kvw
                    """)
                    a.label(f"{N}_kvd")
                kread(nxt, t + 1); vread(nxt, t + 1)
            else:
                a("s_waitcnt lgkmcnt(2)")
                mf(a, sp, KB[nxt], QA, "0")
            e(6); c(2); e(7); e(8); c(3); e(9); e(10)
            mf(a, o, VB[cur], P, vr(o, 16))
            c(4); e(11); e(12); c(5); e(13); e(14); c(6); e(15)
            if ph == 1: a("s_waitcnt lgkmcnt(0)")
            elif t == U - 1: a(f"v_add_u32 v12, {U*1024}, v12")
            else: a("s_nop 0")
            c(7)
            if t == U - 1 and ph == 0: a(f"v_add_u32 v13, {U*1024}, v13")
    a(f"""
    s_cmp_lg_u32 s58, {TS // U - 16 // U + 1}
    s_cbranch_scc1 {N}_npg
    s_mov_b64 exec, 1
    ds_add_u32 v14, v112 offset:4
    s_mov_b64 exec, -1
    """)
    a.label(f"{N}_npg")
    a(f"""
    s_sub_u32 s58, s58, 1
    s_cmp_lg_u32 s58, 0
    s_cbranch_scc1 {N}_loop
    """)
    mf(a, O[1], VB[1] + 4, P + 4, vr(O[1], 16))
    stamp(a, 3)
    a(f"""
    s_setprio 0
    s_mul_i32 s54, s40, 2304
    s_add_u32 s54, s54, 131072
    v_add_u32 v14, s54, v2
    s_xor_b32 s55, s40, 4
    s_mul_i32 s55, s55, 2304
    s_add_u32 s55, s55, 131072
    v_add_u32 v13, s55, v2
    s_add_u32 s42, s42, s47
    s_nop 7
    s_barrier
    s_cmp_eq_u32 s47, 0
    s_cbranch_scc1 {N}_k1
    """)
    for r in range(9): a(f"ds_write_b32 v14, v{O[0]+r} offset:{r*256}")
    for r in range(9): a(f"v_mov_b32 v{O[0]+r}, v{O[1]+r}")
    for r in range(4): a(f"v_mov_b32 v{QA+r}, v{QB+r}")
    a(f"s_branch {N}_jn")
    a.label(f"{N}_k1")
    for r in range(9): a(f"ds_write_b32 v14, v{O[1]+r} offset:{r*256}")
    a.label(f"{N}_jn")
    a("s_waitcnt lgkmcnt(0)")
    a("s_barrier")
    for r in range(9): a(f"ds_read_b32 v{S[0]+r}, v13 offset:{r*256}")
    a("s_waitcnt lgkmcnt(0)")
    Oa = O[0]
    for r in range(9): a(f"v_add_f32 v{Oa+r}, v{Oa+r}, v{S[0]+r}")
    a(f"v_add_f32 v14, abs(v{Oa}), abs(v{Oa+1})")
    for r in range(2, 8): a(f"v_add_f32 v14, v14, abs(v{Oa+r})")
    a(f"""
    v_cmp_le_f32 vcc, {f32hex(2.0**-60)}, v{Oa+8}
    s_mov_b32 s61, {f32hex(2.0**60)}
    v_cmp_ge_f32 s[62:63], s61, v{Oa+8}
    s_and_b64 vcc, vcc, s[62:63]
    s_mov_b32 s61, 0x7f800000
    v_cmp_gt_f32 s[62:63], s61, v14
    s_and_b64 vcc, vcc, s[62:63]
    s_cmp_eq_u64 vcc, -1
    s_cbranch_scc0 {N}_fb
    """)
    a.label(f"{N}_fin")
    a(f"""
    v_rcp_f32 v14, v{Oa+8}
    s_lshl_b32 s54, s42, 15
    s_lshl_b32 s55, s41, 10
    s_add_u32 s54, s54, s55
    s_mul_i32 s55, s3, {hex(LY.OFL)}
    s_add_u32 s54, s54, s55
    s_add_u32 s54, s54, {hex(LY.OF)}
    """)
    for r in range(8): a(f"v_mul_f32 v{Oa+r}, v{Oa+r}, v14")
    for j in range(4): a(f"v_cvt_pk_bf16_f32 v{P+j}, v{Oa+2*j}, v{Oa+2*j+1}")
    sanitize(a, range(P, P + 4))
    a(f"buffer_store_dwordx4 v[{P}:{P+3}], v3, s[24:27], s54 offen sc1")
    stamp(a, 4)
    a(f"s_branch {N}_op")
    helper(a)

def attention_fallback(a):
    C, Oa = O[1], O[0]
    a.label(f"{N}_fb")
    a(f"""
    s_add_u32 s52, s48, {hex(LY.KF)}
    v_mov_b32 v14, 0xff800000
    s_mov_b32 s59, 64
    """)
    a.label(f"{N}_fbl")
    a(f"""
    buffer_load_dwordx4 v[{KB[0]}:{KB[0]+3}], v3, s[24:27], s52 offen sc1
    s_add_u32 s52, s52, 1024
    s_waitcnt vmcnt(0)
    v_mfma_f32_32x32x16_bf16 {vr(S[0],16)}, {vr(KB[0],4)}, {vr(QA,4)}, 0
    s_nop 15
    """)
    for j in range(8): a(f"v_max3_f32 v14, v14, v{S[0]+2*j}, v{S[0]+2*j+1}")
    a(f"""
    s_sub_u32 s59, s59, 1
    s_cmp_lg_u32 s59, 0
    s_cbranch_scc1 {N}_fbl
    v_mov_b32 v15, v14
    s_nop 1
    v_permlane32_swap_b32 v14, v15
    s_nop 1
    v_max_f32 v14, v14, v15
    v_sub_f32 v14, 0, v14
    """)
    for r in range(16):
        a(f"v_mov_b32 v{C+r}, v14")
        a(f"v_mov_b32 v{Oa+r}, 0")
    a(f"""
    v_and_b32 v13, 15, v1
    v_lshlrev_b32 v13, 4, v13
    v_lshrrev_b32 v14, 5, v1
    v_lshl_add_u32 v13, v14, 8, v13
    s_add_u32 s52, s48, {hex(LY.KF)}
    s_add_u32 s53, s48, {hex(LY.VF)}
    s_mov_b32 s59, 64
    """)
    a.label(f"{N}_fbm")
    a(f"""
    buffer_load_dwordx4 v[{KB[0]}:{KB[0]+3}], v3, s[24:27], s52 offen sc1
    s_mov_b64 exec, s[56:57]
    buffer_load_dwordx4 v[{VB[0]}:{VB[0]+3}], v13, s[24:27], s53 offen sc1
    buffer_load_dwordx4 v[{VB[0]+4}:{VB[0]+7}], v13, s[24:27], s53 offen offset:512 sc1
    s_mov_b64 exec, -1
    s_add_u32 s52, s52, 1024
    s_add_u32 s53, s53, 1024
    s_waitcnt vmcnt(0)
    v_mfma_f32_32x32x16_bf16 {vr(S[0],16)}, {vr(KB[0],4)}, {vr(QA,4)}, {vr(C,16)}
    s_nop 15
    """)
    for i in range(16): a(f"v_exp_f32 v{S[0]+i}, v{S[0]+i}")
    a("s_nop 0")
    for j in range(8): a(f"v_cvt_pk_bf16_f32 v{P+j}, v{S[0]+2*j}, v{S[0]+2*j+1}")
    a("s_nop 1")
    mf(a, Oa, VB[0], P, vr(Oa, 16))
    mf(a, Oa, VB[0] + 4, P + 4, vr(Oa, 16))
    a(f"""
    s_sub_u32 s59, s59, 1
    s_cmp_lg_u32 s59, 0
    s_cbranch_scc1 {N}_fbm
    s_nop 15
    s_branch {N}_fin
    """)

def helper(a):
    a.label(f"{N}_help")
    a(f"""
    s_sub_u32 s39, s40, 8
    s_lshl_b32 s51, s39, 10
    s_add_u32 s52, s48, s51
    v_mov_b32 v5, 0
    v_mov_b32 v8, 0
    v_mov_b32 v9, 0
    v_mov_b32 v10, 0
    v_mov_b32 v11, 0
    v_mov_b32 v4, {FLAG}
    ds_write_b128 v4, v[8:11]
    ds_write_b128 v4, v[8:11] offset:16
    ds_write_b128 v4, v[8:11] offset:32
    s_lshr_b32 s41, s39, 1
    s_and_b32 s42, s39, 1
    s_lshl_b32 s38, s36, 5
    s_add_u32 s38, s38, s37
    s_lshl_b32 s43, s38, 1
    s_add_u32 s43, s43, s41
    s_mul_i32 s45, s41, {CHB}
    s_add_u32 s45, s45, 131072
    s_lshl_b32 s46, s43, 12
    s_lshl_b32 s44, s38, 2
    s_lshl_b32 s48, s42, 11
    v_lshrrev_b32 v6, 5, v1
    v_and_b32 v7, 31, v1
    s_movk_i32 s53, 1536
    v_mul_lo_u32 v12, v6, s53
    v_lshl_add_u32 v12, v7, 4, v12
    s_mul_i32 s49, s42, 3072
    s_add_u32 s49, s49, s45
    s_add_u32 s53, s49, {2*CS}
    v_add_u32 v12, s53, v12
    ds_write_b128 v12, v[8:11]
    s_waitcnt lgkmcnt(0)
    s_barrier
    s_setprio 3
    """)
    a(f"""
    v_add_u32 v41, s51, v3
    v_add_u32 v42, 0x10000, v41
    s_add_u32 s53, s52, {hex(LY.KF)}
    s_add_u32 s54, s52, {hex(LY.KF + 32768)}
    s_add_u32 s55, s52, {hex(LY.VF)}
    s_add_u32 s56, s52, {hex(LY.VF + 32768)}
    """)
    KVS = 64
    def unit(b, i, q):
        n = 2 + 2*b + i
        r = KVS + 32*b + 16*i + 4*q
        sb = (53, 55, 54, 56)[q]
        def ld():
            a(f"s_add_u32 s57, s{sb}, {n*4096}")
            a(f"buffer_load_dwordx4 v[{r}:{r+3}], v3, s[24:27], s57 offen sc1")
        return (ld, range(r, r + 4), lambda: a(f"ds_write_b128 v{41 + (q & 1)}, v[{r}:{r+3}] offset:{n*4096 + (q >> 1)*32768}"))
    batches = [[unit(b, i, q) for i in range(2) for q in range(4)] for b in range(3)]
    a(f"""
    s_cmp_eq_u32 s3, 0
    s_cbranch_scc1 {N}_h_nh
    v_and_b32 v14, 1, v1
    v_lshlrev_b32 v14, 15, v14
    v_lshrrev_b32 v15, 1, v1
    v_lshl_add_u32 v14, v15, 12, v14
    s_add_u32 s57, s55, {8192 + 1020}
    """)
    hint_wait(a, 14, "s57", 12, thr=THR_H)
    a.label(f"{N}_h_nh")
    for bt in batches:
        for u in bt: u[0]()
    a(f"""
    s_cmp_lg_u32 s3, 0
    s_cbranch_scc1 {N}_hkv
    """)
    conv_loads(a)
    a.label(f"{N}_hkv")
    for b in range(3):
        def w(b=b):
            L = a.uid(f"{N}_hw")
            a(f"""
            s_cmp_lg_u32 s3, 0
            s_cbranch_scc1 {L}
            s_waitcnt vmcnt({16 - 8*b + (6 if GATHER else 7)})
            s_branch {L}_d
            """)
            a.label(L)
            a(f"s_waitcnt vmcnt({16 - 8*b})")
            a.label(L + "_d")
        checked_units(a, batches[b], wait=w)
    a(f"""
    v_mov_b32 v15, 1
    s_waitcnt lgkmcnt(0)
    s_mov_b64 exec, 1
    ds_add_u32 v4, v15 offset:4
    s_mov_b64 exec, -1
    s_cmp_lg_u32 s3, 0
    s_cbranch_scc1 {N}_hend
    """)
    conv_gathers(a)
    HL, T = 48, 16
    a(f"""
    s_add_u32 s52, s45, s48
    v_add_u32 v13, s52, v3
    s_waitcnt vmcnt({33 if GATHER else 14})
    """)
    for it in range(2):
        A, B = HL + 8*it, HL + 8*it + 4
        for j in range(4):
            a(f"v_alignbyte_b32 v{44+j}, v{B+j}, v{A+j}, 2")
        o = 64 + it * 1024
        a(f"ds_write_b128 v13, v[44:47] offset:{o}")
        a(f"ds_write_b128 v13, v[{B}:{B+3}] offset:{o + CS}")
    a(f"""
    s_cmp_lg_u32 s42, 0
    s_cbranch_scc1 {N}_hs
    v_lshlrev_b32 v44, 16, v40
    v_cmp_eq_u32 vcc, 3, v1
    s_nop 1
    v_cndmask_b32 v11, v11, v44, vcc
    v_cmp_eq_u32 vcc, 7, v1
    s_nop 1
    v_cndmask_b32 v11, v11, v40, vcc
    v_lshrrev_b32 v12, 2, v1
    s_movk_i32 s52, {CS}
    v_mul_lo_u32 v12, v12, s52
    v_and_b32 v14, 3, v1
    v_lshl_add_u32 v12, v14, 4, v12
    v_add_u32 v12, s45, v12
    s_mov_b64 exec, 0xff
    ds_write_b128 v12, v[8:11]
    s_mov_b64 exec, -1
    """)
    a.label(f"{N}_hs")
    if GATHER:
        KFp, VFp, WPr, RS = 64, 86, 102, 16
        D0 = 36
        a(f"""
        v_lshlrev_b32 v{WPr+0}, 16, v{D0}
        v_lshlrev_b32 v{WPr+1}, 16, v{D0+2}
        v_and_b32 v{WPr+2}, 0xffff0000, v{D0}
        v_and_b32 v{WPr+3}, 0xffff0000, v{D0+2}
        v_lshlrev_b32 v{WPr+4}, 16, v{D0+1}
        v_lshlrev_b32 v{WPr+5}, 16, v{D0+3}
        v_and_b32 v{WPr+6}, 0xffff0000, v{D0+1}
        v_and_b32 v{WPr+7}, 0xffff0000, v{D0+3}
        v_and_b32 v12, 3, v1
        s_movk_i32 s52, 1536
        v_mul_lo_u32 v12, v12, s52
        v_lshrrev_b32 v14, 2, v1
        v_lshl_add_u32 v14, v14, 4, v12
        s_lshl_b32 s52, s39, 8
        s_add_u32 s52, s52, {131072 + 2*CS + 512}
        v_add_u32 v14, s52, v14
        s_waitcnt vmcnt(14)
        """)
        for r in range(11):
            a(f"v_lshlrev_b32 v{KFp+2*r}, 16, v{T+r}")
            a(f"v_and_b32 v{KFp+2*r+1}, 0xffff0000, v{T+r}")
        for r in range(8):
            a(f"v_lshlrev_b32 v{VFp+2*r}, 16, v{T+11+r}")
            a(f"v_and_b32 v{VFp+2*r+1}, 0xffff0000, v{T+11+r}")
        for t in range(8):
            a(f"v_pk_mul_f32 {p(RS+2*t)}, {p(KFp+2*t)}, {p(WPr+6)}")
        for jj in (2, 1, 0):
            for t in range(8):
                a(f"v_pk_fma_f32 {p(RS+2*t)}, {p(KFp+2*(t+3-jj))}, {p(WPr+2*jj)}, {p(RS+2*t)}")
        for t in range(8):
            a(f"v_pk_mul_f32 {p(RS+2*t)}, {p(RS+2*t)}, {p(VFp+2*t)}")
        for q in range(4):
            a(f"v_cvt_pk_bf16_f32 v{32+q}, v{RS+2*(7-2*q)}, v{RS+2*(6-2*q)}")
            a(f"v_cvt_pk_bf16_f32 v{36+q}, v{RS+2*(7-2*q)+1}, v{RS+2*(6-2*q)+1}")
        a(f"""
        ds_write_b128 v14, v[32:35]
        ds_write_b128 v14, v[36:39] offset:{CHB}
        """)
    a(f"""
    v_mov_b32 v5, 1
    s_waitcnt lgkmcnt(0)
    s_mov_b64 exec, 1
    ds_add_u32 v4, v5
    s_mov_b64 exec, -1
    v_and_b32 v12, 1, v1
    s_movk_i32 s52, {CS - 2}
    v_mul_lo_u32 v12, v12, s52
    v_and_b32 v14, 19, v1
    v_lshl_add_u32 v12, v14, 1, v12
    v_bfe_u32 v14, v1, 2, 1
    v_lshl_add_u32 v12, v14, 4, v12
    v_bfe_u32 v14, v1, 3, 1
    v_lshl_add_u32 v12, v14, 3, v12
    v_lshlrev_b32 v14, 4, v6
    v_sub_u32 v12, v12, v14
    s_add_u32 s53, s45, 16
    v_add_u32 v12, s53, v12
    s_movk_i32 s52, 1536
    v_mul_lo_u32 v13, v6, s52
    v_lshl_add_u32 v13, v7, 4, v13
    s_lshl_b32 s59, s42, 9
    s_add_u32 s53, s45, s59
    s_add_u32 s53, s53, {2*CS}
    v_add_u32 v8, s53, v13
    v_subrev_u32 v13, 64, v8
    s_lshl_b32 s55, s42, 2
    s_add_u32 s55, s55, 8
    """)
    ACC = 64
    for r in range(16): a(f"v_mov_b32 v{ACC+r}, 0")
    a.label(f"{N}_cw")
    a(f"""
    ds_read_b32 v5, v4
    s_waitcnt lgkmcnt(0)
    v_readfirstlane_b32 s52, v5
    s_cmp_ge_u32 s52, 4
    s_cbranch_scc1 {N}_cwd
    s_sleep 2
    s_branch {N}_cw
    """)
    a.label(f"{N}_cwd")
    a(f"""
    v_lshlrev_b32 v80, 7, v1
    s_mul_i32 s53, s37, 49152
    s_mul_i32 s54, s39, 12288
    s_add_u32 s53, s53, s54
    s_add_u32 s53, s53, {hex(LY.WP)}
    buffer_load_dword v81, v80, s[24:27], s53 offen
    s_add_u32 s53, s53, 4096
    buffer_load_dword v81, v80, s[24:27], s53 offen
    s_lshl_b32 s53, s37, 14
    s_lshl_b32 s54, s39, 12
    s_add_u32 s53, s53, s54
    s_mov_b32 s20, s6
    s_mov_b32 s21, s7
    s_mov_b32 s22, 0x80000
    v_lshlrev_b32 v80, 6, v1
    buffer_load_dword v81, v80, s[20:23], s53 offen
    """)
    BUF = (16, 84)
    ACC2 = 116
    def reads(buf, d0):
        for dd in range(2):
            for kp in range(2):
                b = BUF[buf] + 16 * dd + 8 * kp
                ao = 8 * (2 * (d0 + dd) - kp + 1)
                a(f"ds_read2_b32 v[{b}:{b+1}], v12 offset0:{ao} offset1:{ao+1}")
                a(f"ds_read2_b32 v[{b+2}:{b+3}], v12 offset0:{ao+2} offset1:{ao+3}")
                a(f"ds_read_b128 v[{b+4}:{b+7}], v13 offset:{kp * 3072 + (32 - d0 - dd) * 16 + 64}")
    def mfmas(buf, acc):
        for q in range(4):
            b = BUF[buf] + 8 * q
            mf(a, acc, b, b + 4, vr(acc, 16))
    def cloop(tag, acc):
        reads(0, 0)
        a.label(f"{N}_clp{tag}")
        a("s_waitcnt lgkmcnt(0)")
        reads(1, 2)
        mfmas(0, acc)
        a("s_waitcnt lgkmcnt(0)")
        reads(0, 4)
        mfmas(1, acc)
        a(f"""
        v_add_u32 v12, 256, v12
        v_subrev_u32 v13, 64, v13
        s_sub_u32 s55, s55, 1
        s_cmp_lg_u32 s55, 0
        s_cbranch_scc1 {N}_clp{tag}
        s_waitcnt lgkmcnt(0)
        """)
    for r in range(16): a(f"v_mov_b32 v{ACC2+r}, 0")
    cloop("a", ACC)
    a(f"""
    s_lshl_b32 s52, s41, 12
    s_add_u32 s52, s52, {XCH}
    v_add_u32 v9, s52, v3
    s_lshl_b32 s52, s41, 2
    v_add_u32 v10, s52, v4
    s_cmp_lg_u32 s42, 0
    s_cbranch_scc1 {N}_cj1
    v_add_u32 v12, {16*64}, v12
    v_add_u32 v13, 256, v13
    s_mov_b32 s55, 4
    """)
    cloop("b", ACC2)
    a.label(f"{N}_cpg")
    a(f"""
    ds_read_b32 v5, v4 offset:8
    s_waitcnt lgkmcnt(0)
    v_readfirstlane_b32 s52, v5
    s_cmp_ge_u32 s52, 8
    s_cbranch_scc1 {N}_cpd
    s_sleep 4
    s_branch {N}_cpg
    """)
    a.label(f"{N}_cpd")
    a("s_nop 7")
    for g in range(4): a(f"ds_write_b128 v9, v[{ACC2+4*g}:{ACC2+4*g+3}] offset:{g*1024}")
    a(f"""
    v_mov_b32 v5, 1
    s_waitcnt lgkmcnt(0)
    s_mov_b64 exec, 1
    ds_write_b32 v10, v5 offset:12
    s_mov_b64 exec, -1
    s_branch {N}_cjd
    """)
    a.label(f"{N}_cj1")
    a(f"""
    ds_read_b32 v5, v10 offset:12
    s_waitcnt lgkmcnt(0)
    v_readfirstlane_b32 s52, v5
    s_cmp_lg_u32 s52, 0
    s_cbranch_scc1 {N}_cj2
    s_sleep 1
    s_branch {N}_cj1
    """)
    a.label(f"{N}_cj2")
    for g in range(4): a(f"ds_read_b128 v[{ACC2+4*g}:{ACC2+4*g+3}], v9 offset:{g*1024}")
    a("s_waitcnt lgkmcnt(0)")
    for r in range(16): a(f"v_add_f32 v{ACC+r}, v{ACC+r}, v{ACC2+r}")
    a.label(f"{N}_cjd")
    a(f"""
    ds_read_b128 v[16:19], v8 offset:512
    ds_read_b128 v[20:23], v8 offset:{3072 + 512}
    s_lshl_b32 s60, s47, 16
    s_and_b32 s61, s47, 0xffff0000
    s_cmp_eq_u32 s41, 0
    s_cselect_b32 s60, s60, s61
    v_lshlrev_b32 v12, 4, v7
    v_lshl_add_u32 v12, v6, 10, v12
    s_lshl_b32 s59, s42, 9
    s_add_u32 s58, s59, s46
    s_add_u32 s58, s58, {hex(LY.YT)}
    s_lshl_b32 s59, s42, 11
    s_waitcnt lgkmcnt(0)
    """)
    for kp in range(2):
        for j in range(4):
            a(f"v_lshlrev_b32 v{24+8*kp+7-2*j}, 16, v{16+4*kp+j}")
            a(f"v_and_b32 v{24+8*kp+6-2*j}, 0xffff0000, v{16+4*kp+j}")
    for r in range(16): a(f"v_fmac_f32 v{ACC+r}, s60, v{24+r}")
    for j in range(8): a(f"v_cvt_pk_bf16_f32 v{16+j}, v{ACC+2*j}, v{ACC+2*j+1}")
    a(f"""
    buffer_store_dwordx4 v[16:19], v12, s[24:27], s58 offen sc1
    buffer_store_dwordx4 v[20:23], v12, s[24:27], s58 offen offset:2048 sc1
    s_lshl_b32 s68, s43, 2
    s_add_u32 s68, s68, s59
    s_add_u32 s68, s68, {hex(LY.FY)}
    """)
    stamp(a, 12)
    a(f"""
    v_mov_b32 v5, 1
    s_mov_b64 exec, 1
    ds_add_u32 v4, v5
    s_mov_b64 exec, -1
    """)
    a.label(f"{N}_cw2")
    a(f"""
    ds_read_b32 v5, v4
    s_waitcnt lgkmcnt(0)
    v_readfirstlane_b32 s52, v5
    s_cmp_ge_u32 s52, 8
    s_cbranch_scc1 {N}_hend
    s_sleep 1
    s_branch {N}_cw2
    """)
    a.label(f"{N}_hend")
    wo_preload(a, "b")
    a(f"""
    s_setprio 0
    s_barrier
    s_barrier
    """)

def conv_loads(a):
    a(f"""
    s_load_dword s47, s[12:13], s44
    s_add_u32 s20, s16, s46
    s_addc_u32 s21, s17, 0
    s_movk_i32 s22, 0x1000
    s_mov_b32 s23, 0x00020000
    v_add_u32 v13, s48, v3
    """)
    srd(a, 32, 28, 0x200000)
    srd(a, 60, 30, 0x200000)
    HL = 48
    for it in range(2):
        for k in range(2):
            a(f"buffer_load_dwordx4 v[{HL+8*it+4*k}:{HL+8*it+4*k+3}], v13, s[20:23], 0 offen offset:{it*1024 + 4*k}")
    T = 16
    a(f"""
    buffer_load_dword v40, v5, s[20:23], 0 offen
    """)
    if GATHER:
        a(f"""
        s_mov_b32 s20, s10
        s_mov_b32 s21, s11
        s_lshl_b32 s50, s38, 4
        buffer_load_dwordx4 v[36:39], v5, s[20:23], s50 offen
        s_lshl_b32 s50, s39, 19
        s_add_u32 s50, s50, s44
        v_lshlrev_b32 v12, 13, v1
        v_add_u32 v12, s50, v12
        v_add_u32 v13, 0x1000, v12
        v_subrev_u32 v14, 0xc00, v12
        """)
    else:
        a(f"""
        s_add_u32 s50, s46, s48
        s_add_u32 m0, s49, {2*CS + 512}
        s_add_u32 s57, s50, {hex(LY.UT)}
        buffer_load_dwordx4 v3, s[24:27], s57 offen lds
        s_add_u32 m0, s49, {2*CS + 512 + 1536}
        s_add_u32 s57, s50, {hex(LY.UT + 1024)}
        buffer_load_dwordx4 v3, s[24:27], s57 offen lds
        """)

def conv_gathers(a):
    T = 16
    if not GATHER:
        prefill(a)
        return
    for r in range(3):
        a(f"buffer_load_dword v{T+r}, v14, s[32:35], 0 offen offset:{r*1024}")
    for r in range(8):
        a(f"buffer_load_dword v{T+3+r}, v{12 if r < 4 else 13}, s[32:35], 0 offen offset:{(r%4)*1024}")
    for r in range(8):
        a(f"buffer_load_dword v{T+11+r}, v{12 if r < 4 else 13}, s[60:63], 0 offen offset:{(r%4)*1024}")
    prefill(a)

def wo_preload(a, tag):
    a.label(f"{N}_wp{tag}")
    a(f"""
    ds_read_b32 v84, v4 offset:8
    s_waitcnt lgkmcnt(0)
    v_readfirstlane_b32 s52, v84
    s_cmp_ge_u32 s52, 8
    s_cbranch_scc1 {N}_wq{tag}
    s_sleep 8
    s_branch {N}_wp{tag}
    """)
    a.label(f"{N}_wq{tag}")
    a(f"""
    s_mov_b32 s20, s6
    s_mov_b32 s21, s7
    s_mov_b32 s22, 0x80000
    s_mov_b32 s23, 0x00020000
    v_bfe_u32 v84, v1, 2, 3
    v_lshlrev_b32 v84, 10, v84
    v_lshrrev_b32 v85, 5, v1
    v_lshl_add_u32 v84, v85, 6, v84
    v_and_b32 v85, 3, v1
    v_lshl_add_u32 v84, v85, 4, v84
    s_lshr_b32 s52, s37, 2
    s_lshl_b32 s52, s52, 7
    s_lshl_b32 s53, s39, 13
    s_add_u32 s52, s52, s53
    s_lshl_b32 s54, s39, 10
    """)
    for n in range(16):
        a(f"s_add_u32 m0, s54, {(n >> 2)*32768 + (n & 3)*4096}")
        a(f"s_add_u32 s53, s52, {n*32768}")
        a(f"buffer_load_dwordx4 v84, s[20:23], s53 offen lds")

def prefill(a):
    a(f"""
    v_mov_b32 v160, -1
    v_mov_b32 v161, -1
    v_mov_b32 v162, -1
    v_mov_b32 v163, -1
    s_lshl_b32 s58, s36, 2
    s_and_b32 s59, s37, 3
    s_add_u32 s58, s58, s59
    s_lshr_b32 s59, s37, 2
    s_lshl_b32 s50, s59, 18
    s_lshl_b32 s64, s39, 16
    s_add_u32 s50, s50, s64
    s_lshl_b32 s64, s58, 10
    s_add_u32 s50, s50, s64
    """)
    for L in (1,):
        for t in range(2):
            a(f"s_add_u32 s64, s50, {hex(LY.OF + L*LY.OFL + t*32768)}")
            a(f"buffer_store_dwordx4 v[160:163], v3, s[24:27], s64 offen sc1")
    a(f"""
    s_lshl_b32 s50, s58, 1
    s_add_u32 s50, s50, s42
    s_lshl_b32 s64, s50, 15
    s_lshl_b32 s65, s59, 12
    s_add_u32 s64, s64, s65
    s_lshl_b32 s65, s41, 11
    s_add_u32 s64, s64, s65
    s_add_u32 s64, s64, {hex(LY.X2F)}
    buffer_store_dwordx4 v[160:163], v3, s[24:27], s64 offen sc1
    buffer_store_dwordx4 v[160:163], v3, s[24:27], s64 offen offset:1024 sc1
    s_add_u32 s64, s64, {hex(LY.GD)}
    buffer_store_dwordx4 v[160:163], v3, s[24:27], s64 offen sc1
    buffer_store_dwordx4 v[160:163], v3, s[24:27], s64 offen offset:1024 sc1
    s_lshl_b32 s64, s50, 12
    s_lshl_b32 s65, s59, 9
    s_add_u32 s64, s64, s65
    s_lshl_b32 s65, s41, 8
    s_add_u32 s64, s64, s65
    s_add_u32 s64, s64, {hex(LY.ST2)}
    buffer_store_dword v160, v2, s[24:27], s64 offen sc1
    s_add_u32 s64, s64, {hex(LY.GD)}
    buffer_store_dword v160, v2, s[24:27], s64 offen sc1
    s_lshl_b32 s50, s36, 1
    s_and_b32 s64, s37, 1
    s_add_u32 s50, s50, s64
    s_lshl_b32 s50, s50, 2
    s_add_u32 s50, s50, s39
    s_lshl_b32 s50, s50, 10
    s_lshr_b32 s64, s37, 1
    s_lshl_b32 s64, s64, 17
    s_add_u32 s50, s50, s64
    """)
    for base in (LY.QF, LY.KF, LY.VF):
        for h in range(2):
            a(f"s_add_u32 s64, s50, {hex(LY.QKVL + base + h*65536)}")
            a(f"buffer_store_dwordx4 v[160:163], v3, s[24:27], s64 offen sc1")

def oproj(a):
    a.comment("================= out-projection + gated layer =================")
    a.label(f"{N}_op")
    a(f"""
    s_lshl_b32 s41, s36, 2
    s_and_b32 s46, s37, 3
    s_add_u32 s41, s41, s46
    s_lshr_b32 s42, s37, 2
    s_cmp_lt_u32 s40, 4
    s_cbranch_scc1 {N}_opc
    s_cmp_lt_u32 s40, 8
    s_cbranch_scc1 {N}_opb
    """)
    a(f"""
    s_cmp_lg_u32 s3, 0
    s_cbranch_scc1 {N}_oph
    v_mov_b32 v15, 1
    v_mov_b32 v14, 0
    s_waitcnt vmcnt(0)
    s_mov_b64 exec, 1
    buffer_store_dword v15, v14, s[24:27], s68 offen sc1
    s_mov_b64 exec, -1
    """)
    a.label(f"{N}_oph")
    a(f"""
    s_sub_u32 s53, s40, 8
    s_and_b32 s55, s53, 1
    s_lshl_b32 s55, s55, 15
    s_lshr_b32 s56, s53, 1
    s_lshl_b32 s56, s56, 14
    s_add_u32 s55, s55, s56
    s_lshl_b32 s56, s41, 16
    s_add_u32 s56, s56, s55
    s_mul_i32 s57, s3, {hex(LY.OFL)}
    s_add_u32 s56, s56, s57
    s_add_u32 s56, s56, {hex(LY.OF)}
    s_add_u32 s57, s56, 4096
    s_add_u32 s58, s56, 8192
    s_add_u32 s59, s56, 12288
    s_and_b32 s55, s53, 1
    s_lshl_b32 s55, s55, 16
    s_lshr_b32 s54, s53, 1
    s_lshl_b32 s54, s54, 15
    s_add_u32 s55, s55, s54
    s_add_u32 s55, s55, 16384
    v_add_u32 v6, s55, v3
    """)
    ou = [(lambda n=n: a(f"buffer_load_dwordx4 v[{16+4*n}:{19+4*n}], v3, s[24:27], s{56 + n // 4} offen offset:{(n % 4)*1024} sc1"),
           range(16 + 4*n, 20 + 4*n),
           lambda n=n: a(f"ds_write_b128 v6, v[{16+4*n}:{19+4*n}] offset:{n*1024}")) for n in range(16)]
    a("v_lshlrev_b32 v14, 10, v1")
    a("s_add_u32 s54, s56, 1020")
    stamp(a, 2)
    hint_wait(a, 14, "s54", 16, thr=THR_O)
    stamp(a, 3)
    for u in ou: u[0]()
    stamp(a, 4)
    checked_units(a, ou, wait=lambda: (a("s_waitcnt vmcnt(0)"), stamp(a, 5)))
    if DIAGFIX(): a("s_sub_u32 s76, 0x8000, s69\ns_add_u32 s76, s76, s70")
    a(f"s_branch {N}_opj")
    a.label(f"{N}_opb")
    a(f"""
    s_cmp_lg_u32 s40, 4
    s_cbranch_scc1 {N}_opj
    """)
    a(f"""
    s_cmp_lg_u32 s3, 0
    s_cbranch_scc1 {N}_ygo
    s_mov_b32 s69, 0x10000
    s_mov_b32 s53, {hex(LY.FY)}
    """)
    a.label(f"{N}_yp")
    for n in range(4):
        a(f"buffer_load_dwordx4 v[{16+4*n}:{19+4*n}], v3, s[24:27], s53 offen offset:{n*1024} sc1")
    a("s_waitcnt vmcnt(0)")
    a("v_min3_u32 v15, v16, v17, v18")
    for r in range(19, 31, 2): a(f"v_min3_u32 v15, v15, v{r}, v{r+1}")
    a(f"""
    v_min_u32 v15, v15, v31
    v_cmp_eq_u32 vcc, 0, v15
    s_cmp_eq_u64 vcc, 0
    s_cbranch_scc1 {N}_ygo
    s_sub_u32 s69, s69, 1
    s_cbranch_scc1 {N}_ygo
    s_sleep {SLEEP}
    s_branch {N}_yp
    """)
    a.label(f"{N}_ygo")
    a(f"""
    v_lshrrev_b32 v5, 3, v1
    v_lshlrev_b32 v5, 12, v5
    v_and_b32 v6, 3, v1
    v_lshl_add_u32 v5, v6, 10, v5
    v_bfe_u32 v6, v1, 2, 1
    v_lshl_add_u32 v5, v6, 4, v5
    s_lshl_b32 s55, s42, 18
    s_lshl_b32 s56, s41, 5
    s_add_u32 s55, s55, s56
    """)
    for n in range(8):
        a(f"s_mov_b32 m0, {YL + n*1024}")
        a(f"s_add_u32 s56, s55, {hex(LY.YT + n*32768)}")
        a(f"buffer_load_dwordx4 v5, s[24:27], s56 offen sc1 lds")
    a("s_waitcnt vmcnt(0)")
    a.label(f"{N}_opj")
    if DIAGFIX():
        stamp(a, 13)
        a(f"s_cmp_lg_u32 s3, {DIAGL}")
        a(f"s_cbranch_scc1 {N}_dg1")
        stamp_flush(a, 3, 14, 40, 14)
        a("s_mov_b64 exec, -1\nv_and_b32 v1, 63, v0\nv_lshlrev_b32 v2, 2, v1")
        a.label(f"{N}_dg1")
    a(f"""
    s_waitcnt lgkmcnt(0)
    s_barrier
    """)
    a.label(f"{N}_opw")
    a(f"""
    s_barrier
    s_cmp_lg_u32 s3, 0
    s_cbranch_scc1 {N}_done
    s_branch {N}_qkv
    """)
    a.label(f"{N}_opc")
    RES, YR, ACC, FR, T, RF, G = 16, 24, 32, 48, 80, 88, 104
    a(f"""
    s_and_b32 s46, s40, 1
    s_lshr_b32 s47, s40, 1
    s_lshl_b32 s43, s41, 1
    s_add_u32 s43, s43, s46
    v_and_b32 v7, 31, v1
    v_lshlrev_b32 v8, 4, v7
    v_lshlrev_b32 v7, 10, v7
    v_lshrrev_b32 v6, 5, v1
    v_lshl_add_u32 v7, v6, 4, v7
    s_lshl_b32 s58, s43, 15
    s_lshl_b32 s56, s42, 7
    s_add_u32 s58, s58, s56
    s_lshl_b32 s56, s47, 6
    s_add_u32 s58, s58, s56
    s_lshl_b32 s55, s43, 15
    s_lshl_b32 s56, s42, 12
    s_add_u32 s55, s55, s56
    s_lshl_b32 s56, s47, 11
    s_add_u32 s55, s55, s56
    s_add_u32 s55, s55, {hex(LY.X2F)}
    s_mov_b32 s22, 0x200000
    s_mov_b32 s23, 0x00020000
    s_cmp_lg_u32 s3, 0
    s_cbranch_scc1 {N}_opr1
    s_mov_b32 s20, s4
    s_mov_b32 s21, s5
    buffer_load_dwordx4 v[{RES}:{RES+3}], v7, s[20:23], s58 offen
    buffer_load_dwordx4 v[{RES+4}:{RES+7}], v7, s[20:23], s58 offen offset:32
    s_branch {N}_opr2
    """)
    a.label(f"{N}_opr1")
    a(f"""
    s_mov_b32 s20, s8
    s_mov_b32 s21, s9
    buffer_load_dwordx4 v[{RES}:{RES+3}], v3, s[24:27], s55 offen sc1
    buffer_load_dwordx4 v[{RES+4}:{RES+7}], v3, s[24:27], s55 offen offset:1024 sc1
    """)
    a.label(f"{N}_opr2")
    a(f"""
    v_bfe_u32 v10, v1, 2, 2
    v_lshlrev_b32 v5, 10, v6
    v_lshl_add_u32 v4, v10, 7, v5
    v_lshl_add_u32 v5, v10, 6, v5
    v_bfe_u32 v10, v1, 4, 1
    v_lshl_add_u32 v5, v10, 5, v5
    v_lshl_add_u32 v4, v10, 5, v4
    v_and_b32 v10, 3, v1
    v_lshl_add_u32 v4, v10, 3, v4
    v_and_b32 v10, 1, v1
    v_lshl_add_u32 v5, v10, 4, v5
    v_bfe_u32 v10, v1, 1, 1
    v_lshl_add_u32 v5, v10, 3, v5
    s_lshl_b32 s57, s47, 9
    v_add_u32 v5, s57, v5
    s_lshl_b32 s57, s47, 12
    s_lshl_b32 s56, s46, 6
    s_add_u32 s57, s57, s56
    s_add_u32 s57, s57, {YL}
    v_add_u32 v4, s57, v4
    s_lshl_b32 s57, s46, 16
    s_add_u32 s57, s57, 16384
    v_add_u32 v9, s57, v3
    v_add_u32 v11, 0x10000, v5
    s_mul_i32 s59, s3, {hex(LY.GRL)}
    s_lshl_b32 s60, s43, 13
    s_add_u32 s59, s59, s60
    s_add_u32 s59, s59, {hex(LY.GR)}
    s_lshl_b32 s60, s42, 10
    s_lshl_b32 s61, s47, 9
    s_add_u32 s60, s60, s61
    s_add_u32 s60, s60, s59
    s_add_u32 s61, s59, 4096
    s_mov_b32 s62, 0x3f803f80
    s_barrier
    """)
    stamp(a, 5)
    def rd(ks):
        b = FR + 8 * (ks & 3)
        a(f"ds_read_b128 v[{b}:{b+3}], v9 offset:{(ks >> 4)*32768 + (ks & 15)*1024}")
        wb, wo_ = (5 if ks < 16 else 11), ((ks >> 3) & 1)*32768 + (ks & 7)*2048
        a(f"ds_read_b64_tr_b16 v[{b+4}:{b+5}], v{wb} offset:{wo_}")
        a(f"ds_read_b64_tr_b16 v[{b+6}:{b+7}], v{wb} offset:{wo_ + 256}")
    for i in range(4): rd(i)
    for ks in range(32):
        a(f"s_waitcnt lgkmcnt({3*min(3, 31 - ks)})")
        b = FR + 8 * (ks & 3)
        mf(a, ACC, b + 4, b, "0" if ks == 0 else vr(ACC, 16))
        if ks + 4 < 32: rd(ks + 4)
    for q in range(4):
        a(f"ds_read_b64_tr_b16 v[{YR+2*q}:{YR+2*q+1}], v4 offset:{(q >> 1)*2048 + (q & 1)*512}")
    a("s_barrier")
    a("s_waitcnt vmcnt(0)")
    for j in range(8):
        a(f"v_lshlrev_b32 v{RF+2*j}, 16, v{RES+j}")
        a(f"v_and_b32 v{RF+2*j+1}, 0xffff0000, v{RES+j}")
    a(f"""
    v_mov_b32 v12, 0
    v_mov_b32 v14, 0
    """)
    stamp(a, 6)
    for j in range(8): a(f"v_cvt_pk_bf16_f32 v{T+j}, v{ACC+2*j}, v{ACC+2*j+1}")
    for j in range(8):
        a(f"v_lshlrev_b32 v{ACC+2*j}, 16, v{T+j}")
        a(f"v_and_b32 v{ACC+2*j+1}, 0xffff0000, v{T+j}")
    for j in range(8): a(f"v_pk_add_f32 {p(ACC+2*j)}, {p(ACC+2*j)}, {p(RF+2*j)}")
    for j in range(8): a(f"v_cvt_pk_bf16_f32 v{T+j}, v{ACC+2*j}, v{ACC+2*j+1}")
    for j in range(8):
        a(f"v_dot2c_f32_bf16 v12, s62, v{T+j}")
        a(f"v_dot2c_f32_bf16 v14, v{T+j}, v{T+j}")
    a(f"""
    s_nop 2
    v_mov_b32 v13, v12
    v_mov_b32 v15, v14
    s_nop 1
    v_permlane32_swap_b32 v12, v13
    v_permlane32_swap_b32 v14, v15
    s_nop 1
    v_add_f32 v12, v12, v13
    v_add_f32 v14, v14, v15
    v_mov_b32 v13, 1
    v_mov_b32 v15, 1
    s_mov_b64 exec, 0xffffffff
    buffer_store_dwordx4 v[12:15], v8, s[24:27], s60 offen
    s_add_u32 s66, s60, {hex(LY.GD)}
    buffer_store_dwordx4 v[12:15], v8, s[24:27], s66 offen sc1
    s_mov_b64 exec, -1
    s_mov_b32 s69, 0x8000
    v_mov_b32 v6, v3
    """)
    for j in range(8):
        a(f"v_lshlrev_b32 v{ACC+2*j}, 16, v{T+j}")
        a(f"v_and_b32 v{ACC+2*j+1}, 0xffff0000, v{T+j}")
    a("s_waitcnt lgkmcnt(0)")
    for j in range(8):
        a(f"v_lshlrev_b32 v{RF+2*j}, 16, v{YR+j}")
        a(f"v_and_b32 v{RF+2*j+1}, 0xffff0000, v{YR+j}")
    a.label(f"{N}_gp")
    for i in range(8):
        a(f"buffer_load_dwordx4 v[{G+4*i}:{G+4*i+3}], v6, s[24:27], s{59 if i < 4 else 61} offen offset:{(i%4)*1024} sc1")
    a("s_waitcnt vmcnt(0)")
    a(f"v_and_b32 v10, v{G+1}, v{G+3}")
    for i in range(1, 8):
        a(f"v_and_b32 v11, v{G+4*i+1}, v{G+4*i+3}")
        a(f"v_and_b32 v10, v10, v11")
    a(f"""
    v_cmp_eq_u32 vcc, 1, v10
    s_sub_u32 s69, s69, 1
    s_cbranch_scc1 {N}_gpo
    s_cmp_eq_u64 vcc, -1
    s_cbranch_scc1 {N}_gpo
    """)
    switch_copy(a, f"{N}_gp", [6])
    a(f"""
    s_sleep {GSLEEP}
    s_branch {N}_gp
    """)
    a.label(f"{N}_gpo")
    stamp(a, 7)
    for i in range(1, 8):
        a(f"v_add_f32 v{G}, v{G}, v{G+4*i}")
        a(f"v_add_f32 v{G+2}, v{G+2}, v{G+4*i+2}")
    a(f"""
    v_mov_b32 v{G+1}, v{G}
    v_mov_b32 v{G+3}, v{G+2}
    s_mov_b32 s56, {f32hex(1.0/512)}
    s_nop 0
    v_permlane32_swap_b32 v{G}, v{G+1}
    v_permlane32_swap_b32 v{G+2}, v{G+3}
    s_nop 1
    v_add_f32 v10, v{G}, v{G+1}
    v_add_f32 v11, v{G+2}, v{G+3}
    v_mul_f32 v10, s56, v10
    v_mul_f32 v11, s56, v11
    v_fma_f32 v11, -v10, v10, v11
    v_max_f32 v11, 0, v11
    v_add_f32 v11, {f32hex(1e-5)}, v11
    v_rsq_f32 v12, v11
    s_nop 0
    v_mul_f32 v14, v10, v12
    v_sub_f32 v14, 0, v14
    v_mov_b32 v13, v12
    v_mov_b32 v15, v14
    """)
    for j in range(8): a(f"v_pk_fma_f32 {p(FR+2*j)}, {p(ACC+2*j)}, v[12:13], v[14:15]")
    for j in range(8): a(f"v_pk_fma_f32 {p(FR+2*j)}, {p(FR+2*j)}, {p(RF+2*j)}, {p(ACC+2*j)}")
    for j in range(8): a(f"v_cvt_pk_bf16_f32 v{T+j}, v{FR+2*j}, v{FR+2*j+1}")
    a(f"""
    s_cmp_eq_u32 s3, 0
    s_cbranch_scc1 {N}_ops0
    buffer_store_dwordx4 v[{T}:{T+3}], v7, s[20:23], s58 offen
    buffer_store_dwordx4 v[{T+4}:{T+7}], v7, s[20:23], s58 offen offset:32
    """)
    stamp(a, 13)
    stamp_flush(a, 1, 14, 40, 14)
    a("s_endpgm")
    a.label(f"{N}_ops0")
    SX = "" if FAST else "sc1"
    sanitize(a, range(T, T + 8))
    a(f"""
    buffer_store_dwordx4 v[{T}:{T+3}], v3, s[24:27], s55 offen {SX}
    buffer_store_dwordx4 v[{T+4}:{T+7}], v3, s[24:27], s55 offen offset:1024 {SX}
    s_add_u32 s55, s55, {hex(LY.GD)}
    v_mov_b32 v10, 0
    v_mov_b32 v11, 0
    """)
    for j in range(8):
        a(f"v_dot2c_f32_bf16 v10, s62, v{T+j}")
        a(f"v_dot2c_f32_bf16 v11, v{T+j}, v{T+j}")
    a(f"""
    v_lshrrev_b32 v8, 1, v8
    s_sub_u32 s60, s60, {hex(LY.GR)}
    s_lshr_b32 s61, s60, 1
    s_add_u32 s61, s61, {hex(LY.ST2)}
    v_mov_b32 v12, v10
    v_mov_b32 v13, v11
    s_lshr_b32 s60, s60, 7
    s_add_u32 s60, s60, {hex(LY.FX)}
    v_permlane32_swap_b32 v10, v12
    v_permlane32_swap_b32 v11, v13
    s_nop 0
    v_add_f32 v10, v10, v12
    v_add_f32 v11, v11, v13
    v_min_u32 v10, s67, v10
    v_min_u32 v11, s67, v11
    s_mov_b64 exec, 0xffffffff
    buffer_store_dwordx2 v[10:11], v8, s[24:27], s61 offen
    s_add_u32 s61, s61, {hex(LY.GD)}
    buffer_store_dwordx2 v[10:11], v8, s[24:27], s61 offen sc1
    s_mov_b64 exec, -1
    buffer_store_dwordx4 v[{T}:{T+3}], v3, s[24:27], s55 offen sc1
    buffer_store_dwordx4 v[{T+4}:{T+7}], v3, s[24:27], s55 offen offset:1024 sc1
    """)
    stamp(a, 8)

def qkv(a):
    a.comment("================= layer-2 QKV projection =================")
    a.label(f"{N}_qkv")
    SC = 98304
    a(f"""
    s_lshl_b32 s41, s36, 1
    s_and_b32 s46, s37, 1
    s_add_u32 s41, s41, s46
    s_lshr_b32 s42, s37, 1
    s_and_b32 s39, s40, 3
    s_lshl_b32 s43, s41, 2
    s_add_u32 s43, s43, s39
    s_cmp_lt_u32 s40, 4
    s_cbranch_scc1 {N}_qc
    s_cmp_lt_u32 s40, 8
    s_cbranch_scc1 {N}_qb
    s_lshl_b32 s53, s39, 10
    s_mul_i32 s52, s42, 98304
    s_add_u32 s52, s52, s53
    s_add_u32 s52, s52, {hex(LY.WP)}
    """)
    for m in range(24):
        a(f"s_add_u32 m0, s53, {m*4096}")
        a(f"s_add_u32 s51, s52, {m*4096}")
        a(f"buffer_load_dwordx4 v3, s[24:27], s51 offen lds")
        if m >= WDEPTH - 1: a(f"s_waitcnt vmcnt({WDEPTH - 1})")
    a(f"""
    s_waitcnt vmcnt(0)
    s_barrier
    s_branch {N}_qw
    """)
    a.label(f"{N}_qb")
    a(f"""
    v_lshlrev_b32 v7, 3, v1
    s_lshl_b32 s52, s43, 12
    s_add_u32 s52, s52, {hex(LY.ST2)}
    s_min_u32 s53, s39, 2
    s_lshl_b32 s51, s53, 11
    s_lshl_b32 s54, s42, 7
    s_add_u32 s51, s51, s54
    s_add_u32 s51, s51, {hex(LY.CSB)}
    v_and_b32 v4, 31, v1
    v_lshlrev_b32 v4, 2, v4
    buffer_load_dword v32, v4, s[24:27], s51 offen
    s_lshl_b32 s53, s53, 7
    s_add_u32 s53, s53, {SC + 2048}
    v_add_u32 v5, s53, v4
    s_lshl_b32 s53, s39, 9
    s_add_u32 s53, s53, {SC}
    v_add_u32 v4, s53, v4
    """)
    a("s_mov_b32 s69, 0x8000")
    a.label(f"{N}_stp")
    for i2 in range(8):
        a(f"buffer_load_dwordx2 v[{16+2*i2}:{17+2*i2}], v7, s[24:27], s52 offen offset:{512*i2} sc1")
    a("s_waitcnt vmcnt(0)")
    maxchain(a, 15, range(16, 32))
    a(f"""
    v_cmp_eq_u32 vcc, -1, v15
    s_cmp_eq_u64 vcc, 0
    s_cbranch_scc1 {N}_std
    s_sub_u32 s69, s69, 1
    s_cbranch_scc1 {N}_std
    """)
    switch_copy(a, f"{N}_stp", [7])
    a(f"""
    s_sleep 1
    s_branch {N}_stp
    """)
    a.label(f"{N}_std")
    a(f"""
    s_lshl_b32 s58, s39, 2
    s_add_u32 s58, s58, {FLAG + 32}
    v_mov_b32 v6, s58
    v_or_b32 v8, 1, v7
    s_mov_b64 exec, 1
    ds_write_b32 v6, v8
    s_mov_b64 exec, -1
    """)
    for i2 in range(1, 8):
        a(f"v_add_f32 v16, v16, v{16+2*i2}")
        a(f"v_add_f32 v17, v17, v{17+2*i2}")
    a(f"""
    v_mov_b32 v18, v16
    v_mov_b32 v19, v17
    s_mov_b32 s56, {f32hex(1.0/512)}
    s_nop 0
    v_permlane32_swap_b32 v16, v18
    v_permlane32_swap_b32 v17, v19
    s_nop 0
    v_add_f32 v16, v16, v18
    v_add_f32 v17, v17, v19
    v_mul_f32 v16, s56, v16
    v_mul_f32 v17, s56, v17
    v_fma_f32 v17, -v16, v16, v17
    v_max_f32 v17, 0, v17
    v_add_f32 v17, {f32hex(1e-5)}, v17
    v_rsq_f32 v17, v17
    s_nop 0
    v_mul_f32 v16, v16, v17
    v_sub_f32 v16, 0, v16
    ds_write_b32 v4, v17
    ds_write_b32 v4, v16 offset:128
    ds_write_b32 v5, v32
    s_waitcnt lgkmcnt(0)
    s_barrier
    """)
    a.label(f"{N}_qw")
    a("s_barrier")
    a.label(f"{N}_qw2")
    a(f"""
    s_barrier
    s_branch {N}_qend
    """)
    a.label(f"{N}_qc")
    XR, ACC, WFR, TQ, TV, PK = 20, 84, 132, 20, 52, 132
    a(f"""
    s_lshl_b32 s49, s43, 15
    s_add_u32 s49, s49, {hex(LY.X2F)}
    """)
    for g in range(8): a(f"s_add_u32 s{58+g if g < 6 else 46+g}, s49, {g*4096}")
    def xl(ks):
        g = ks // 4
        r = XR + 4 * (ks & 15)
        a(f"buffer_load_dwordx4 v[{r}:{r+3}], v16, s[24:27], s{58+g if g < 6 else 46+g} offen offset:{(ks % 4)*1024} sc1")
    xu = [(lambda i=i: (xl(2*i), xl(2*i + 1)), range(XR + 8*i, XR + 8*i + 8), None) for i in range(8)]
    a(f"""
    s_lshl_b32 s50, s40, 2
    s_add_u32 s50, s50, {FLAG + 32}
    v_mov_b32 v14, s50
    """)
    a.label(f"{N}_xw")
    a(f"""
    ds_read_b32 v16, v14
    s_waitcnt lgkmcnt(0)
    v_readfirstlane_b32 s50, v16
    s_cmp_lg_u32 s50, 0
    s_cbranch_scc0 {N}_xw
    s_and_b32 s50, s50, {hex(LY.GD)}
    v_or_b32 v16, s50, v3
    """)
    stamp(a, 1)
    for u in xu: u[0]()
    stamp(a, 2)
    a(f"""
    v_lshrrev_b32 v6, 5, v1
    v_and_b32 v4, 31, v1
    v_lshlrev_b32 v18, 9, v6
    v_bfe_u32 v19, v1, 2, 2
    v_lshl_add_u32 v18, v19, 6, v18
    v_bfe_u32 v19, v1, 4, 1
    v_lshl_add_u32 v18, v19, 5, v18
    v_and_b32 v19, 3, v1
    v_lshl_add_u32 v18, v19, 3, v18
    v_add_u32 v19, 49152, v18
    s_lshl_b32 s50, s40, 9
    s_add_u32 s50, s50, {SC}
    v_lshl_add_u32 v12, v4, 2, s50
    v_lshl_add_u32 v11, v6, 4, s50
    v_lshlrev_b32 v13, 4, v6
    v_add_u32 v13, {SC}, v13
    v_lshlrev_b32 v5, 2, v4
    v_add_u32 v5, {SC}, v5
    s_lshl_b32 s57, s42, 17
    s_lshl_b32 s51, s43, 10
    s_add_u32 s57, s57, s51
    s_add_u32 s57, s57, {hex(LY.QKVL)}
    v_and_b32 v10, 3, v1
    v_bfe_u32 v9, v1, 2, 1
    v_lshl_or_b32 v10, v9, 3, v10
    v_bfe_u32 v9, v1, 3, 1
    v_lshl_or_b32 v10, v9, 2, v10
    v_lshlrev_b32 v10, 4, v10
    v_lshl_or_b32 v10, v6, 8, v10
    v_bfe_u32 v9, v1, 4, 1
    v_lshl_or_b32 v10, v9, 16, v10
    s_barrier
    """)
    def wread(ks, fs=(0, 1, 2)):
        j, kk = ks // 4, ks % 4
        b = WFR + 12 * (ks % 3)
        for f in fs:
            for q in range(2):
                off = (j & 3) * 12288 + f*4096 + kk*1024 + q*256
                a(f"ds_read_b64_tr_b16 v[{b+4*f+2*q}:{b+4*f+2*q+1}], v{18 + (j >> 2)} offset:{off}")
    stamp(a, 3)
    wread(0); wread(1)
    for ks in range(32):
        def gcheck(k0, w):
            checked(a, lambda: [xl(k2) for k2 in range(k0, k0 + 4)], range(XR + 4*(k0 & 15), XR + 4*(k0 & 15) + 16),
                    first_wait=w, switch=[16])
        if ks == 0:
            gcheck(0, 12)
            stamp(a, 9)
        a(f"s_waitcnt lgkmcnt({6 if ks < 31 else 0})")
        if ks == 30:
            a("s_barrier")
        b = WFR + 12 * (ks % 3)
        x = vr(XR + 4*(ks & 15), 4)
        for f in range(3):
            acc = vr(ACC + 16*f, 16)
            c = "0" if ks == 0 else acc
            w = vr(b + 4*f, 4)
            if f < 2: a(f"v_mfma_f32_32x32x16_bf16 {acc}, {w}, {x}, {c}")
            else:     a(f"v_mfma_f32_32x32x16_bf16 {acc}, {x}, {w}, {c}")
            if ks + 2 < 32: wread(ks + 2, (f,))
        if ks % 4 == 3 and ks < 31: gcheck(ks + 1, min(11, 27 - ks))
        if ks < 16: xl(ks + 16)
        if ks == 30:
            a("ds_read_b32 v16, v12")
            a("ds_read_b32 v17, v12 offset:128")
            a("ds_read_b32 v14, v5 offset:2304")
            for g in range(4):
                a(f"ds_read_b128 v[{TQ+4*g}:{TQ+4*g+3}], v13 offset:{2048 + 32*g}")
    stamp(a, 10)
    for g in range(4):
        a(f"ds_read_b128 v[{TQ+16+4*g}:{TQ+16+4*g+3}], v13 offset:{2176 + 32*g}")
        a(f"ds_read_b128 v[{TV+4*g}:{TV+4*g+3}], v11 offset:{32*g}")
        a(f"ds_read_b128 v[{TV+16+4*g}:{TV+16+4*g+3}], v11 offset:{128 + 32*g}")
    a(f"""
    s_mov_b32 s56, {f32hex(LY.QSCALE)}
    v_mul_f32 v6, s56, v16
    v_mul_f32 v8, s56, v17
    v_mov_b32 v7, v6
    v_mov_b32 v9, v8
    v_mov_b32 v18, v17
    v_mov_b32 v19, v17
    v_mov_b32 v17, v16
    v_mov_b32 v15, v14
    """)
    def qk(f, rs, mr):
        for j in range(8): a(f"v_pk_mul_f32 {p(ACC+16*f+2*j)}, {p(ACC+16*f+2*j)}, {p(rs)}")
        for j in range(8): a(f"v_pk_fma_f32 {p(ACC+16*f+2*j)}, {p(TQ+16*f+2*j)}, {p(mr)}, {p(ACC+16*f+2*j)}")
        for j in range(8): a(f"v_cvt_pk_bf16_f32 v{PK+8*f+j}, v{ACC+16*f+2*j}, v{ACC+16*f+2*j+1}")
        sanitize(a, range(PK + 8*f, PK + 8*f + 8))
        base = LY.QF if f == 0 else LY.KF
        a(f"s_add_u32 s58, s57, {hex(base)}")
        a(f"buffer_store_dwordx4 v[{PK+8*f}:{PK+8*f+3}], v3, s[24:27], s58 offen sc1")
        a(f"s_add_u32 s58, s57, {hex(base + 65536)}")
        a(f"buffer_store_dwordx4 v[{PK+8*f+4}:{PK+8*f+7}], v3, s[24:27], s58 offen sc1")
    a("s_waitcnt lgkmcnt(0)")
    a("s_barrier")
    qk(1, 16, 18)
    for j in range(8): a(f"v_pk_mul_f32 {p(ACC+32+2*j)}, {p(ACC+32+2*j)}, {p(TV+2*j)}")
    for j in range(8): a(f"v_pk_fma_f32 {p(ACC+32+2*j)}, {p(TV+16+2*j)}, v[14:15], {p(ACC+32+2*j)}")
    for j in range(8): a(f"v_cvt_pk_bf16_f32 v{PK+16+j}, v{ACC+32+2*j}, v{ACC+32+2*j+1}")
    sanitize(a, range(PK + 16, PK + 24))
    a(f"""
    s_add_u32 s58, s57, {hex(LY.VF)}
    buffer_store_dwordx4 v[{PK+16}:{PK+19}], v10, s[24:27], s58 offen sc1
    buffer_store_dwordx4 v[{PK+20}:{PK+23}], v10, s[24:27], s58 offen offset:512 sc1
    """)
    qk(0, 6, 8)
    stamp(a, 11)
    stamp_flush(a, 2, 12, 40, 14)
    if DIAGFIX(): a("s_mov_b64 exec, -1\nv_and_b32 v1, 63, v0\nv_lshlrev_b32 v2, 2, v1")
    a.label(f"{N}_qend")

def DIAGFIX():
    import asmlib
    return asmlib.DIAG
```

```python
import struct
from asmlib import *
import layout as LY

def f32hex(x):
    return hex(struct.unpack("<I", struct.pack("<f", x))[0])

NSLOT = 5
ZERO = 1
T1 = 1
CODEPF = 0
SLOT = 28672
STAT = NSLOT * SLOT
def lds_bytes(layer1):
    return STAT + 4 * 2048

def emit(a, name, layer1, prefetch=False):
    kernel_begin(a, name)
    done = f"{name}_done"
    a(f"""
    s_cmp_ge_u32 s2, 256
    s_cbranch_scc1 {done}
    s_load_dwordx4 s[4:7], s[0:1], 0
    s_load_dwordx2 s[14:15], s[0:1], 88
    """)
    if layer1 and T1:
        a("""
        s_load_dwordx4 s[8:11], s[0:1], 32
        s_load_dwordx2 s[12:13], s[0:1], 48
        """)
    a(f"""
    v_lshrrev_b32 v2, 6, v0
    v_and_b32 v1, 63, v0
    v_readfirstlane_b32 s40, v2
    s_and_b32 s44, s2, 7
    s_lshr_b32 s45, s2, 3
    """)
    if layer1:
        a("""
        s_and_b32 s41, s44, 3
        s_lshl_b32 s41, s41, 2
        s_and_b32 s46, s45, 3
        s_add_u32 s41, s41, s46
        s_lshr_b32 s42, s44, 2
        s_lshl_b32 s42, s42, 3
        s_lshr_b32 s46, s45, 2
        s_add_u32 s42, s42, s46
        """)
    else:
        a("""
        s_lshl_b32 s41, s44, 1
        s_and_b32 s46, s45, 1
        s_add_u32 s41, s41, s46
        s_lshr_b32 s42, s45, 1
        """)
    a(f"""
    s_and_b32 s39, s40, 3
    s_lshl_b32 s43, s41, 2
    s_add_u32 s43, s43, s39
    v_lshrrev_b32 v3, 5, v1
    v_and_b32 v4, 31, v1
    v_lshlrev_b32 v9, 4, v1
    s_lshl_b32 s49, s43, 15
    s_cmp_ge_u32 s40, 4
    s_cbranch_scc1 {name}_loader
    s_lshl_b32 s50, s40, 11
    s_add_u32 s50, s50, {STAT}
    s_waitcnt lgkmcnt(0)
    """)
    srd(a, 24, 14, LY.WS_USED)
    stamp(a, 0)
    XR = (64, 80)
    ACC = 96
    WFR = 144
    TQ = 24
    TV = 180
    SUM, SQ, CS = 14, 16, 18
    if not layer1:
        a.comment("column sums of W (written by layer 1): Q,K per register, V per lane; row-stat partials of x2")
        a(f"""
        v_lshlrev_b32 v5, 4, v3
        v_lshlrev_b32 v6, 2, v4
        s_lshl_b32 s51, s42, 7
        s_add_u32 s51, s51, {hex(LY.CSB)}
        v_lshlrev_b32 v7, 3, v1
        s_lshl_b32 s52, s43, 12
        s_add_u32 s52, s52, {hex(LY.ST2)}
        """)
        for i2 in range(8):
            a(f"buffer_load_dwordx2 v[{WFR+2*i2}:{WFR+2*i2+1}], v7, s[24:27], s52 offen offset:{512*i2}")
        for f in range(2):
            for g in range(4):
                a(f"buffer_load_dwordx4 v[{TQ+16*f+4*g}:{TQ+16*f+4*g+3}], v5, s[24:27], s51 offen offset:{f*2048 + 32*g}")
        a(f"s_add_u32 s51, s51, 4096")
        a(f"buffer_load_dword v20, v6, s[24:27], s51 offen")
    if layer1:
        a.comment("cold start: touch a distinct share of the lines this XCD will need, so all misses are in flight at once (speed only)")
        srd(a, 16, 4, 0x200000)
        srd(a, 20, 6, 0x180000)
        a(f"""
        s_and_b32 s51, s42, 7
        s_lshl_b32 s51, s51, 7
        s_add_u32 s51, s51, s49
        v_lshlrev_b32 v10, 10, v4
        buffer_load_dword v24, v10, s[16:19], s51 offen
        s_and_b32 s53, s41, 3
        s_lshl_b32 s53, s53, 1
        s_and_b32 s54, s42, 1
        s_add_u32 s53, s53, s54
        s_mul_i32 s53, s53, 3072
        s_lshl_b32 s54, s42, 6
        s_add_u32 s53, s53, s54
        s_min_u32 s54, s40, 2
        s_lshl_b32 s54, s54, 10
        s_add_u32 s53, s53, s54
        s_movk_i32 s54, {8*3072}
        v_mul_lo_u32 v10, v1, s54
        buffer_load_dword v25, v10, s[20:23], s53 offen
        """)
    if layer1 and CODEPF:
        a.comment("pull the instruction bytes of both kernels into this XCD's L2 while waiting for the first tiles (speed only)")
        a(f"""
        s_getpc_b64 s[60:61]
        s_and_b32 s60, s60, 0xffffff00
        s_lshl_b32 s53, s45, 2
        s_add_u32 s53, s53, s40
        s_lshl_b32 s53, s53, 8
        v_lshlrev_b32 v10, 7, v1
        v_add_u32 v10, s53, v10
        s_cmp_ge_u32 s53, all_code_end - {name} - 1024
        s_cbranch_scc1 {name}_ncp
        s_mov_b64 exec, 3
        global_load_dword v26, v10, s[60:61]
        s_mov_b64 exec, -1
        """)
        a.label(f"{name}_ncp")
    if layer1 and ZERO:
        a.comment("zero the hand-off words of the second launch: 4 KB of stat granules per workgroup, 32 KB of flags")
        a(f"""
        v_mov_b32 v28, 0
        v_mov_b32 v29, 0
        v_mov_b32 v30, 0
        v_mov_b32 v31, 0
        s_lshl_b32 s51, s2, 12
        s_lshl_b32 s53, s40, 10
        s_add_u32 s51, s51, s53
        s_add_u32 s53, s51, {hex(LY.GR)}
        buffer_store_dwordx4 v[28:31], v9, s[24:27], s53 offen
        s_add_u32 s53, s53, {hex(LY.GD)}
        buffer_store_dwordx4 v[28:31], v9, s[24:27], s53 offen
        s_cmp_ge_u32 s2, 8
        s_cbranch_scc1 {name}_nz
        s_add_u32 s53, s51, {hex(LY.FLG)}
        buffer_store_dwordx4 v[28:31], v9, s[24:27], s53 offen
        """)
        a.label(f"{name}_nz")
        a(f"""
        v_mov_b32 v32, -1
        v_mov_b32 v33, -1
        v_mov_b32 v34, -1
        v_mov_b32 v35, -1
        s_lshl_b32 s53, s51, 1
        s_add_u32 s53, s53, {hex(LY.OF)}
        buffer_store_dwordx4 v[32:35], v9, s[24:27], s53 offen
        buffer_store_dwordx4 v[32:35], v9, s[24:27], s53 offen offset:1024
        s_mov_b32 s67, 0xfffffffe
        """)
    a(f"""
    s_mov_b32 s55, 0x3f803f80
    v_lshlrev_b32 v21, 9, v3
    v_bfe_u32 v22, v1, 2, 2
    v_lshl_add_u32 v21, v22, 6, v21
    v_bfe_u32 v22, v1, 4, 1
    v_lshl_add_u32 v21, v22, 5, v21
    v_and_b32 v22, 3, v1
    v_lshl_add_u32 v21, v22, 3, v21
    v_add_u32 v22, {2*SLOT}, v21
    v_add_u32 v23, {4*SLOT}, v21
    s_lshl_b32 s56, s40, 12
    s_add_u32 s56, s56, 12288
    """)
    if layer1:
        a(f"""
        v_bfe_u32 v13, v1, 1, 3
        v_xor_b32 v13, v13, v3
        v_lshlrev_b32 v13, 4, v13
        v_lshl_add_u32 v13, v4, 7, v13
        v_add_u32 v13, s56, v13
        """)
        for kk in range(4):
            a(f"v_xor_b32 v{56+kk}, {kk << 5}, v13")
            a(f"v_add_u32 v{60+kk}, {2*SLOT}, v{56+kk}")
            a(f"v_add_u32 v{5+kk}, {4*SLOT}, v{56+kk}")
        for r in (14, 15, 16, 17, 18, 19, 20):
            a(f"v_mov_b32 v{r}, 0")
    else:
        a(f"""
        v_add_u32 v56, s56, v9
        v_add_u32 v60, {2*SLOT}, v56
        v_add_u32 v5, {4*SLOT}, v56
        """)
    def finish_stats():
        a(f"""
        v_mov_b32 v15, v14
        v_mov_b32 v17, v16
        v_lshl_add_u32 v12, v4, 2, s50
        v_lshl_add_u32 v11, v3, 4, s50
        v_permlane32_swap_b32 v14, v15
        v_permlane32_swap_b32 v16, v17
        s_mov_b32 s56, {f32hex(1.0/512)}
        s_nop 0
        v_add_f32 v14, v14, v15
        v_add_f32 v16, v16, v17
        v_mul_f32 v14, s56, v14
        v_mul_f32 v16, s56, v16
        v_fma_f32 v16, -v14, v14, v16
        v_max_f32 v16, 0, v16
        v_add_f32 v16, {f32hex(1e-5)}, v16
        v_rsq_f32 v16, v16
        s_nop 0
        v_mul_f32 v17, v14, v16
        v_sub_f32 v17, 0, v17
        ds_write_b32 v12, v16 offset:512
        ds_write_b32 v12, v17 offset:640
        s_waitcnt lgkmcnt(0)
        """)
        for g in range(4):
            a(f"ds_read_b128 v[{TV+4*g}:{TV+4*g+3}], v11 offset:{512 + 32*g}")
            a(f"ds_read_b128 v[{TV+16+4*g}:{TV+16+4*g+3}], v11 offset:{640 + 32*g}")
    if not layer1:
        a("s_waitcnt vmcnt(9)")
        for i2 in range(1, 8):
            a(f"v_add_f32 v{WFR}, v{WFR}, v{WFR+2*i2}")
            a(f"v_add_f32 v{WFR+1}, v{WFR+1}, v{WFR+2*i2+1}")
        a(f"v_mov_b32 v14, v{WFR}")
        a(f"v_mov_b32 v16, v{WFR+1}")
        finish_stats()
        a("s_waitcnt lgkmcnt(0)")
    def wread(ks):
        j, kk = ks // 4, ks % 4
        sl = j % NSLOT
        base = 21 + sl // 2
        b = WFR + 12 * (ks % 3)
        for f in range(3):
            for q in range(2):
                off = (sl & 1) * SLOT + f*4096 + kk*1024 + q*256
                a(f"ds_read_b64_tr_b16 v[{b+4*f+2*q}:{b+4*f+2*q+1}], v{base} offset:{off}")
    def xread(j):
        sl = j % NSLOT
        for kk in range(4):
            if layer1:
                base, off = (56, 60, 5)[sl // 2] + kk, (sl & 1) * SLOT
            else:
                base, off = (56, 60, 5)[sl // 2], (sl & 1) * SLOT + kk * 1024
            a(f"ds_read_b128 v[{XR[j&1]+4*kk}:{XR[j&1]+4*kk+3}], v{base} offset:{off}")
    a("s_barrier")
    stamp(a, 1)
    xread(0); wread(0)
    for ks in range(32):
        j, kk = ks // 4, ks % 4
        if kk == 0:
            a("s_waitcnt lgkmcnt(0)")
            wread(ks + 1); wread(ks + 2)
        elif kk == 1:
            a("s_waitcnt lgkmcnt(6)")
            wread(ks + 2)
        elif kk == 2:
            a("s_waitcnt lgkmcnt(6)")
        else:
            a("s_waitcnt lgkmcnt(0)")
            if j < 7:
                a("s_barrier")
                if j == 6: stamp(a, 2)
                xread(j + 1); wread(ks + 1)
        b = WFR + 12 * (ks % 3)
        xr = XR[j & 1] + 4*kk
        x = vr(xr, 4)
        for f in range(3):
            acc = vr(ACC + 16*f, 16)
            c = "0" if ks == 0 else acc
            w = vr(b + 4*f, 4)
            if f < 2: a(f"v_mfma_f32_32x32x16_bf16 {acc}, {w}, {x}, {c}")
            else:     a(f"v_mfma_f32_32x32x16_bf16 {acc}, {x}, {w}, {c}")
        if layer1:
            skip = a.uid(f"{name}_cs")
            a(f"s_cmp_eq_u32 s40, {kk}")
            a(f"s_cbranch_scc0 {skip}")
            for d in range(4):
                for f in range(3):
                    a(f"v_dot2c_f32_bf16 v{CS+f}, s55, v{b+4*f+d}")
            a.label(skip)
            if kk == 2:
                for r in range(16):
                    a(f"v_dot2c_f32_bf16 v{SUM + (r & 1)}, s55, v{XR[j&1]+r}")
                    a(f"v_dot2c_f32_bf16 v{SQ + (r & 1)}, v{XR[j&1]+r}, v{XR[j&1]+r}")
    stamp(a, 3)
    if layer1:
        a(f"""
        s_nop 2
        v_add_f32 v14, v14, v15
        v_add_f32 v16, v16, v17
        v_mov_b32 v57, v18
        v_mov_b32 v58, v19
        v_mov_b32 v59, v20
        v_lshl_add_u32 v12, v4, 2, s50
        s_nop 0
        v_permlane32_swap_b32 v18, v57
        v_permlane32_swap_b32 v19, v58
        v_permlane32_swap_b32 v20, v59
        s_nop 0
        v_add_f32 v18, v18, v57
        v_add_f32 v19, v19, v58
        v_add_f32 v20, v20, v59
        ds_write_b32 v12, v18
        ds_write_b32 v12, v19 offset:128
        ds_write_b32 v12, v20 offset:256
        """)
        finish_stats()
        a(f"""
        s_barrier
        v_lshlrev_b32 v10, 2, v4
        v_add_u32 v13, {STAT}, v10
        """)
        for f in range(3):
            for w in range(4):
                a(f"ds_read_b32 v{64+4*f+w}, v13 offset:{w*2048 + f*128}")
        a("s_waitcnt lgkmcnt(0)")
        for f in range(3):
            a(f"v_add_f32 v{64+4*f}, v{64+4*f}, v{65+4*f}")
            a(f"v_add_f32 v{66+4*f}, v{66+4*f}, v{67+4*f}")
            a(f"v_add_f32 v{CS+f}, v{64+4*f}, v{66+4*f}")
        a(f"""
        ds_write_b32 v12, v18 offset:1024
        ds_write_b32 v12, v19 offset:1152
        """)
        sk = a.uid(f"{name}_cst")
        a(f"""
        s_cmp_lg_u32 s43, 0
        s_cbranch_scc1 {sk}
        s_lshl_b32 s51, s42, 7
        s_add_u32 s51, s51, {hex(LY.CSB)}
        buffer_store_dword v18, v10, s[24:27], s51 offen
        buffer_store_dword v19, v10, s[24:27], s51 offen offset:2048
        s_add_u32 s51, s51, 4096
        buffer_store_dword v20, v10, s[24:27], s51 offen
        """)
        a.label(sk)
        a("s_waitcnt lgkmcnt(0)")
        for g in range(4):
            a(f"ds_read_b128 v[{TQ+4*g}:{TQ+4*g+3}], v11 offset:{1024 + 32*g}")
            a(f"ds_read_b128 v[{TQ+16+4*g}:{TQ+16+4*g+3}], v11 offset:{1152 + 32*g}")
    a(f"""
    s_mov_b32 s56, {f32hex(LY.QSCALE)}
    v_mul_f32 v56, s56, v16
    v_mul_f32 v58, s56, v17
    v_mov_b32 v57, v56
    v_mov_b32 v59, v58
    v_mov_b32 v60, v16
    v_mov_b32 v61, v16
    v_mov_b32 v62, v17
    v_mov_b32 v63, v17
    s_waitcnt vmcnt(0)
    v_mov_b32 v21, v20
    s_lshl_b32 s57, s42, 17
    s_lshl_b32 s58, s43, 10
    s_add_u32 s57, s57, s58
    v_and_b32 v10, 3, v1
    v_bfe_u32 v11, v1, 2, 1
    v_lshl_or_b32 v10, v11, 3, v10
    v_bfe_u32 v11, v1, 3, 1
    v_lshl_or_b32 v10, v11, 2, v10
    v_lshlrev_b32 v10, 4, v10
    v_lshl_or_b32 v10, v3, 8, v10
    v_bfe_u32 v11, v1, 4, 1
    v_lshl_or_b32 v10, v11, 16, v10
    s_waitcnt lgkmcnt(0)
    """)
    def p(b): return f"v[{b}:{b+1}]"
    PK = 64
    for f, (rs, mr) in ((1, (60, 62)), (0, (56, 58))):
        for j in range(8):
            a(f"v_pk_mul_f32 {p(ACC+16*f+2*j)}, {p(ACC+16*f+2*j)}, {p(rs)}")
        for j in range(8):
            a(f"v_pk_fma_f32 {p(ACC+16*f+2*j)}, {p(TQ+16*f+2*j)}, {p(mr)}, {p(ACC+16*f+2*j)}")
        for j in range(8):
            a(f"v_cvt_pk_bf16_f32 v{PK+8*f+j}, v{ACC+16*f+2*j}, v{ACC+16*f+2*j+1}")
        if layer1 and ZERO:
            for j in range(8): a(f"v_min_u32 v{PK+8*f+j}, s67, v{PK+8*f+j}")
        base = LY.QF if f == 0 else LY.KF
        a(f"s_add_u32 s58, s57, {hex(base)}")
        a(f"buffer_store_dwordx4 v[{PK+8*f}:{PK+8*f+3}], v9, s[24:27], s58 offen")
        a(f"s_add_u32 s58, s57, {hex(base + 65536)}")
        a(f"buffer_store_dwordx4 v[{PK+8*f+4}:{PK+8*f+7}], v9, s[24:27], s58 offen")
    for j in range(8):
        a(f"v_pk_mul_f32 {p(ACC+32+2*j)}, {p(ACC+32+2*j)}, {p(TV+2*j)}")
    for j in range(8):
        a(f"v_pk_fma_f32 {p(ACC+32+2*j)}, {p(TV+16+2*j)}, v[20:21], {p(ACC+32+2*j)}")
    for j in range(8):
        a(f"v_cvt_pk_bf16_f32 v{PK+16+j}, v{ACC+32+2*j}, v{ACC+32+2*j+1}")
    if layer1 and ZERO:
        for j in range(8): a(f"v_min_u32 v{PK+16+j}, s67, v{PK+16+j}")
    a(f"""
    s_add_u32 s58, s57, {hex(LY.VF)}
    buffer_store_dwordx4 v[{PK+16}:{PK+19}], v10, s[24:27], s58 offen
    buffer_store_dwordx4 v[{PK+20}:{PK+23}], v10, s[24:27], s58 offen offset:512
    """)
    stamp(a, 4)
    stamp_flush(a, 0 if layer1 else 2, 5, 40, 14)
    a.label(done)
    a("s_endpgm")
    a.label(f"{name}_loader")
    a(f"""
    v_lshrrev_b32 v11, 2, v1
    s_movk_i32 s52, 3072
    v_mul_lo_u32 v11, v11, s52
    v_and_b32 v12, 3, v1
    v_lshl_add_u32 v11, v12, 4, v11
    s_lshl_b32 s52, s42, 6
    s_mul_i32 s53, s39, {16*3072}
    s_add_u32 s52, s52, s53
    s_lshl_b32 s53, s39, 10
    s_lshl_b32 s54, s39, 12
    s_add_u32 s54, s54, 12288
    """)
    if layer1:
        a(f"""
        v_lshrrev_b32 v13, 3, v1
        v_lshrrev_b32 v14, 4, v1
        v_and_b32 v15, 7, v1
        v_xor_b32 v15, v15, v14
        v_lshlrev_b32 v15, 4, v15
        v_lshl_add_u32 v15, v13, 10, v15
        v_xor_b32 v16, 64, v15
        """)
    else:
        a(f"""
        s_add_u32 s49, s49, {hex(LY.X2F)}
        s_mul_i32 s52, s42, {8*12288}
        s_add_u32 s52, s52, s53
        s_add_u32 s52, s52, {hex(LY.WP)}
        """)
    a("s_waitcnt lgkmcnt(0)")
    if layer1: srd(a, 20, 6, 0x180000)
    if layer1: srd(a, 16, 4, 0x200000)
    srd(a, 24, 14, LY.WS_USED)
    def issue(j):
        sl = (j % NSLOT) * SLOT
        for n in range(4):
            a(f"s_add_u32 m0, s54, {sl + n*1024}")
            if layer1:
                a(f"s_add_u32 s51, s49, {n*8192 + j*128}")
                a(f"buffer_load_dwordx4 v{15 + (n & 1)}, s[16:19], s51 offen lds")
            else:
                a(f"s_add_u32 s51, s49, {j*4096 + n*1024}")
                a(f"buffer_load_dwordx4 v9, s[24:27], s51 offen lds")
            if n < 3:
                a(f"s_add_u32 m0, s53, {sl + n*4096}")
                if layer1:
                    a(f"s_add_u32 s51, s52, {n*1024 + j*64*3072}")
                    a(f"buffer_load_dwordx4 v11, s[20:23], s51 offen lds")
                else:
                    a(f"s_add_u32 s51, s52, {n*4096 + j*12288}")
                    a(f"buffer_load_dwordx4 v9, s[24:27], s51 offen lds")
    LA = 3
    for j in range(LA): issue(j)
    nT1 = (22 if T1 else 2) if layer1 else 0
    T = 24
    def t1_loads():
        a.comment("packed copy of W for layer 2: rows [32rb,32rb+32), tile f = lw (lw 3 repeats f=2)")
        a(f"""
        s_min_u32 s56, s39, 2
        s_lshl_b32 s57, s56, 10
        s_lshl_b32 s58, s42, 6
        s_add_u32 s57, s57, s58
        s_mul_i32 s58, s41, {32*3072}
        s_add_u32 s57, s57, s58
        buffer_load_dwordx4 v[112:115], v11, s[20:23], s57 offen
        s_add_u32 s57, s57, {16*3072}
        buffer_load_dwordx4 v[116:119], v11, s[20:23], s57 offen
        s_mul_i32 s59, s42, {8*12288}
        s_lshr_b32 s58, s41, 1
        s_mul_i32 s58, s58, 12288
        s_add_u32 s59, s59, s58
        s_and_b32 s58, s41, 1
        s_lshl_b32 s58, s58, 11
        s_add_u32 s59, s59, s58
        s_lshl_b32 s56, s56, 12
        s_add_u32 s59, s59, s56
        s_add_u32 s59, s59, {hex(LY.WP)}
        """)
    def t1_more():
        srd(a, 28, 8, 0x200000)
        srd(a, 32, 10, 0x200000)
        srd(a, 64, 12, 0x1000)
        a(f"""
        s_lshr_b32 s46, s2, 3
        s_lshl_b32 s46, s46, 16
        s_lshl_b32 s47, s39, 14
        s_add_u32 s46, s46, s47
        s_and_b32 s47, s2, 7
        s_lshl_b32 s48, s47, 7
        s_add_u32 s46, s46, s48
        v_lshlrev_b32 v5, 13, v3
        v_lshl_add_u32 v5, v4, 2, v5
        v_add_u32 v5, s46, v5
        v_add_u32 v6, 0x1000, v5
        v_subrev_u32 v7, 0xc00, v5
        s_lshl_b32 s48, s47, 9
        v_lshl_add_u32 v8, v4, 4, s48
        """)
        for r in range(3):
            a(f"buffer_load_dword v{T+r}, v7, s[28:31], 0 offen offset:{r*1024}")
        for r in range(8):
            a(f"buffer_load_dword v{T+3+r}, v{5 if r < 4 else 6}, s[28:31], 0 offen offset:{(r%4)*1024}")
        for r in range(8):
            a(f"buffer_load_dword v{T+11+r}, v{5 if r < 4 else 6}, s[32:35], 0 offen offset:{(r%4)*1024}")
        a(f"buffer_load_dwordx4 v[{T+20}:{T+23}], v8, s[64:67], 0 offen")
    for j in range(8):
        issued = min(8, LA + j)
        extra = nT1 if j >= 5 else 0
        a(f"s_waitcnt vmcnt({7 * (issued - j - 1) + extra})")
        a("s_barrier")
        if j + LA < 8: issue(j + LA)
        if j == 4 and layer1:
            t1_loads()
            if T1: t1_more()
    if layer1:
        a("s_barrier")
        a("s_waitcnt vmcnt(0)")
        a("buffer_store_dwordx4 v[112:115], v9, s[24:27], s59 offen")
        a("buffer_store_dwordx4 v[116:119], v9, s[24:27], s59 offen offset:1024")
    if layer1 and T1:
        KFp, VFp, WPr, RS = 48, 70, 86, 94
        for r in range(11):
            a(f"v_lshlrev_b32 v{KFp+2*r}, 16, v{T+r}")
            a(f"v_and_b32 v{KFp+2*r+1}, 0xffff0000, v{T+r}")
        for r in range(8):
            a(f"v_lshlrev_b32 v{VFp+2*r}, 16, v{T+11+r}")
            a(f"v_and_b32 v{VFp+2*r+1}, 0xffff0000, v{T+11+r}")
        D0 = T + 20
        a(f"""
        v_lshlrev_b32 v{WPr+0}, 16, v{D0}
        v_lshlrev_b32 v{WPr+1}, 16, v{D0+2}
        v_and_b32 v{WPr+2}, 0xffff0000, v{D0}
        v_and_b32 v{WPr+3}, 0xffff0000, v{D0+2}
        v_lshlrev_b32 v{WPr+4}, 16, v{D0+1}
        v_lshlrev_b32 v{WPr+5}, 16, v{D0+3}
        v_and_b32 v{WPr+6}, 0xffff0000, v{D0+1}
        v_and_b32 v{WPr+7}, 0xffff0000, v{D0+3}
        """)
        for t in range(8):
            a(f"v_pk_mul_f32 {p(RS+2*t)}, {p(KFp+2*t)}, {p(WPr+6)}")
        for jj in (2, 1, 0):
            for t in range(8):
                a(f"v_pk_fma_f32 {p(RS+2*t)}, {p(KFp+2*(t+3-jj))}, {p(WPr+2*jj)}, {p(RS+2*t)}")
        for t in range(8):
            a(f"v_pk_mul_f32 {p(RS+2*t)}, {p(RS+2*t)}, {p(VFp+2*t)}")
        for q in range(4):
            a(f"v_cvt_pk_bf16_f32 v{T+q}, v{RS+2*(7-2*q)}, v{RS+2*(6-2*q)}")
            a(f"v_cvt_pk_bf16_f32 v{T+4+q}, v{RS+2*(7-2*q)+1}, v{RS+2*(6-2*q)+1}")
        a(f"""
        s_lshl_b32 s46, s47, 18
        s_add_u32 s46, s46, {hex(LY.UT)}
        s_lshr_b32 s48, s2, 3
        s_lshl_b32 s48, s48, 5
        s_add_u32 s46, s46, s48
        s_lshr_b32 s48, s39, 1
        s_lshl_b32 s48, s48, 4
        s_add_u32 s46, s46, s48
        s_and_b32 s48, s39, 1
        s_lshl_b32 s48, s48, 11
        s_add_u32 s46, s46, s48
        v_lshlrev_b32 v5, 13, v4
        v_lshl_add_u32 v5, v3, 10, v5
        v_add_u32 v6, 0x1000, v5
        buffer_store_dwordx4 v[{T}:{T+3}], v5, s[24:27], s46 offen
        buffer_store_dwordx4 v[{T+4}:{T+7}], v6, s[24:27], s46 offen
        """)
    a("s_endpgm")
    return 212
```

```python
class Asm:
    def __init__(self):
        self.out = []
        self._uid = 0
    def __call__(self, s):
        for line in s.strip("\n").split("\n"):
            self.out.append("    " + line.strip())
    def label(self, name):
        self.out.append(name + ":")
    def comment(self, s):
        self.out.append("    ; " + s)
    def raw(self, s):
        self.out.append(s)
    def uid(self, base):
        self._uid += 1
        return f"{base}_{self._uid}"
    def text(self):
        return "\n".join(self.out) + "\n"

def vr(base, n=1):
    return f"v{base}" if n == 1 else f"v[{base}:{base+n-1}]"
def sr(base, n=1):
    return f"s{base}" if n == 1 else f"s[{base}:{base+n-1}]"

def kernel_begin(a, name):
    a.raw(f".globl {name}")
    a.raw(".p2align 8")
    a.raw(f".type {name},@function")
    a.raw(f"{name}:")

def kernel_desc(name, vgpr, sgpr=96):
    acc = (vgpr + 3) // 4 * 4
    return f""".amdhsa_kernel {name}
  .amdhsa_next_free_vgpr {vgpr}
  .amdhsa_next_free_sgpr {sgpr}
  .amdhsa_accum_offset {acc}
  .amdhsa_group_segment_fixed_size 0
  .amdhsa_kernarg_size 96
  .amdhsa_user_sgpr_count 2
  .amdhsa_user_sgpr_kernarg_segment_ptr 1
  .amdhsa_system_sgpr_workgroup_id_x 1
.end_amdhsa_kernel
"""

def srd(a, d, base, size, off=0):
    if off:
        a(f"s_add_u32 s{d}, s{base}, {hex(off)}")
        a(f"s_addc_u32 s{d+1}, s{base+1}, 0")
    else:
        a(f"s_mov_b32 s{d}, s{base}")
        a(f"s_mov_b32 s{d+1}, s{base+1}")
    a(f"s_mov_b32 s{d+2}, {hex(size)}")
    a(f"s_mov_b32 s{d+3}, 0x00020000")


DIAG = False
RTDBG = False
DIAG_OFF = 0x3000000
def stamp(a, i):
    if not DIAG: return
    if RTDBG:
        a("s_memrealtime s[86:87]")
        a("s_waitcnt lgkmcnt(0)")
        a(f"s_mov_b32 s{70+i}, s86")
        return
    a(f"s_memtime s[86:87]")
    if i == 0:
        a(f"s_memrealtime s[88:89]")
    a("s_waitcnt lgkmcnt(0)")
    a(f"s_mov_b32 s{70+i}, s86")
    if i == 0:
        a("s_mov_b32 s84, s88")
def stamp_flush(a, slot, n, wave_sgpr, ws_lo):
    if not DIAG: return
    if RTDBG:
        lst = {0: ((0, 0), (4, 1)), 2: tuple((i, 2 + k) for k, i in enumerate((0, 10, 3, 4, 5, 7, 8, 9, 11))), 1: ((2, 11), (3, 12), (5, 13), (7, 14), (13, 15))}.get(slot)
        if lst is None: return
        L = a.uid("rtd")
        a(f"""
        s_or_b32 s90, s2, s{wave_sgpr}
        s_cmp_lg_u32 s90, 0
        s_cbranch_scc1 {L}
        s_load_dwordx2 s[92:93], s[0:1], 80
        s_waitcnt lgkmcnt(0)
        s_add_u32 s92, s92, {512 if slot == 0 else 0}
        s_addc_u32 s93, s93, 0
        s_mov_b32 s94, 256
        s_mov_b32 s95, 0x00020000
        v_mov_b32 v1, 0
        s_mov_b64 exec, 1
        """)
        for i, k in lst:
            a(f"v_mov_b32 v2, s{70+i}")
            a(f"buffer_store_dword v2, v1, s[92:95], 0 offen offset:{4*k}")
        a.label(L)
        return
    a(f"""
    s_memrealtime s[88:89]
    s_waitcnt lgkmcnt(0)
    s_mov_b32 s85, s88
    s_add_u32 s92, s{ws_lo}, {hex(DIAG_OFF + slot * 0x40000)}
    s_addc_u32 s93, s{ws_lo+1}, 0
    s_mov_b32 s94, 0x40000
    s_mov_b32 s95, 0x00020000
    s_lshl_b32 s90, s2, 10
    s_lshl_b32 s91, s{wave_sgpr}, 6
    s_add_u32 s90, s90, s91
    v_mov_b32 v1, s90
    s_mov_b64 exec, 1
    """)
    for i in list(range(n)) + [14, 15]:
        a(f"v_mov_b32 v2, s{70+i}")
        a(f"buffer_store_dword v2, v1, s[92:95], 0 offen offset:{4*i}")
```

```python
import struct
from asmlib import *
import layout as LY

def f32hex(x):
    return hex(struct.unpack("<I", struct.pack("<f", x))[0])

NSLOT = 5
ZERO = 1
T1 = 1
CODEPF = 1
SLOT = 28672
STAT = NSLOT * SLOT
def lds_bytes(layer1):
    return STAT + 4 * 2048

def emit(a, name, layer1, prefetch=False):
    kernel_begin(a, name)
    done = f"{name}_done"
    a(f"""
    s_cmp_ge_u32 s2, 256
    s_cbranch_scc1 {done}
    s_load_dwordx4 s[4:7], s[0:1], 0
    s_load_dwordx2 s[14:15], s[0:1], 88
    """)
    if layer1 and T1:
        a("""
        s_load_dwordx4 s[8:11], s[0:1], 32
        s_load_dwordx2 s[12:13], s[0:1], 48
        """)
    a(f"""
    v_lshrrev_b32 v2, 6, v0
    v_and_b32 v1, 63, v0
    v_readfirstlane_b32 s40, v2
    s_and_b32 s44, s2, 7
    s_lshr_b32 s45, s2, 3
    """)
    if layer1:
        a("""
        s_and_b32 s41, s44, 3
        s_lshl_b32 s41, s41, 2
        s_and_b32 s46, s45, 3
        s_add_u32 s41, s41, s46
        s_lshr_b32 s42, s44, 2
        s_lshl_b32 s42, s42, 3
        s_lshr_b32 s46, s45, 2
        s_add_u32 s42, s42, s46
        """)
    else:
        a("""
        s_lshl_b32 s41, s44, 1
        s_and_b32 s46, s45, 1
        s_add_u32 s41, s41, s46
        s_lshr_b32 s42, s45, 1
        """)
    a(f"""
    s_and_b32 s39, s40, 3
    s_lshl_b32 s43, s41, 2
    s_add_u32 s43, s43, s39
    v_lshrrev_b32 v3, 5, v1
    v_and_b32 v4, 31, v1
    v_lshlrev_b32 v9, 4, v1
    s_lshl_b32 s49, s43, 15
    s_cmp_ge_u32 s40, 4
    s_cbranch_scc1 {name}_loader
    s_lshl_b32 s50, s40, 11
    s_add_u32 s50, s50, {STAT}
    s_waitcnt lgkmcnt(0)
    """)
    srd(a, 24, 14, LY.WS_USED)
    stamp(a, 0)
    XR = (64, 80)
    ACC = 96
    WFR = 144
    TQ = 24
    TV = 180
    SUM, SQ, CS = 14, 16, 18
    if not layer1:
        a.comment("column sums of W (written by layer 1): Q,K per register, V per lane; row-stat partials of x2")
        a(f"""
        v_lshlrev_b32 v5, 4, v3
        v_lshlrev_b32 v6, 2, v4
        s_lshl_b32 s51, s42, 7
        s_add_u32 s51, s51, {hex(LY.CSB)}
        v_lshlrev_b32 v7, 3, v1
        s_lshl_b32 s52, s43, 12
        s_add_u32 s52, s52, {hex(LY.ST2)}
        """)
        for i2 in range(8):
            a(f"buffer_load_dwordx2 v[{WFR+2*i2}:{WFR+2*i2+1}], v7, s[24:27], s52 offen offset:{512*i2}")
        for f in range(2):
            for g in range(4):
                a(f"buffer_load_dwordx4 v[{TQ+16*f+4*g}:{TQ+16*f+4*g+3}], v5, s[24:27], s51 offen offset:{f*2048 + 32*g}")
        a(f"s_add_u32 s51, s51, 4096")
        a(f"buffer_load_dword v20, v6, s[24:27], s51 offen")
    if layer1:
        a.comment("cold start: touch a distinct share of the lines this XCD will need, so all misses are in flight at once (speed only)")
        srd(a, 16, 4, 0x200000)
        srd(a, 20, 6, 0x180000)
        a(f"""
        s_and_b32 s51, s42, 7
        s_lshl_b32 s51, s51, 7
        s_add_u32 s51, s51, s49
        v_lshlrev_b32 v10, 10, v4
        buffer_load_dword v24, v10, s[16:19], s51 offen
        s_and_b32 s53, s41, 3
        s_lshl_b32 s53, s53, 1
        s_and_b32 s54, s42, 1
        s_add_u32 s53, s53, s54
        s_mul_i32 s53, s53, 3072
        s_lshl_b32 s54, s42, 6
        s_add_u32 s53, s53, s54
        s_min_u32 s54, s40, 2
        s_lshl_b32 s54, s54, 10
        s_add_u32 s53, s53, s54
        s_movk_i32 s54, {8*3072}
        v_mul_lo_u32 v10, v1, s54
        buffer_load_dword v25, v10, s[20:23], s53 offen
        """)
    if layer1 and CODEPF:
        a.comment("pull the instruction bytes of both kernels into this XCD's L2 while waiting for the first tiles (speed only)")
        a(f"""
        s_getpc_b64 s[60:61]
        s_and_b32 s60, s60, 0xffffff00
        s_lshl_b32 s53, s45, 2
        s_add_u32 s53, s53, s40
        s_lshl_b32 s53, s53, 8
        v_lshlrev_b32 v10, 7, v1
        v_add_u32 v10, s53, v10
        s_mov_b64 exec, 3
        global_load_dword v26, v10, s[60:61]
        s_mov_b64 exec, -1
        """)
    if layer1 and ZERO:
        a.comment("zero the hand-off words of the second launch: 4 KB of stat granules per workgroup, 32 KB of flags")
        a(f"""
        v_mov_b32 v28, 0
        v_mov_b32 v29, 0
        v_mov_b32 v30, 0
        v_mov_b32 v31, 0
        s_lshl_b32 s51, s2, 12
        s_lshl_b32 s53, s40, 10
        s_add_u32 s51, s51, s53
        s_add_u32 s53, s51, {hex(LY.GR)}
        buffer_store_dwordx4 v[28:31], v9, s[24:27], s53 offen
        s_add_u32 s53, s53, {hex(LY.GD)}
        buffer_store_dwordx4 v[28:31], v9, s[24:27], s53 offen
        s_cmp_ge_u32 s2, 8
        s_cbranch_scc1 {name}_nz
        s_add_u32 s53, s51, {hex(LY.FLG)}
        buffer_store_dwordx4 v[28:31], v9, s[24:27], s53 offen
        """)
        a.label(f"{name}_nz")
        a(f"""
        v_mov_b32 v32, -1
        v_mov_b32 v33, -1
        v_mov_b32 v34, -1
        v_mov_b32 v35, -1
        s_lshl_b32 s53, s51, 1
        s_add_u32 s53, s53, {hex(LY.OF)}
        buffer_store_dwordx4 v[32:35], v9, s[24:27], s53 offen
        buffer_store_dwordx4 v[32:35], v9, s[24:27], s53 offen offset:1024
        s_mov_b32 s67, 0xfffffffe
        """)
    a(f"""
    s_mov_b32 s55, 0x3f803f80
    v_lshlrev_b32 v21, 9, v3
    v_bfe_u32 v22, v1, 2, 2
    v_lshl_add_u32 v21, v22, 6, v21
    v_bfe_u32 v22, v1, 4, 1
    v_lshl_add_u32 v21, v22, 5, v21
    v_and_b32 v22, 3, v1
    v_lshl_add_u32 v21, v22, 3, v21
    v_add_u32 v22, {2*SLOT}, v21
    v_add_u32 v23, {4*SLOT}, v21
    s_lshl_b32 s56, s40, 12
    s_add_u32 s56, s56, 12288
    """)
    if layer1:
        a(f"""
        v_bfe_u32 v13, v1, 1, 3
        v_xor_b32 v13, v13, v3
        v_lshlrev_b32 v13, 4, v13
        v_lshl_add_u32 v13, v4, 7, v13
        v_add_u32 v13, s56, v13
        """)
        for kk in range(4):
            a(f"v_xor_b32 v{56+kk}, {kk << 5}, v13")
            a(f"v_add_u32 v{60+kk}, {2*SLOT}, v{56+kk}")
            a(f"v_add_u32 v{5+kk}, {4*SLOT}, v{56+kk}")
        for r in (14, 15, 16, 17, 18, 19, 20):
            a(f"v_mov_b32 v{r}, 0")
    else:
        a(f"""
        v_add_u32 v56, s56, v9
        v_add_u32 v60, {2*SLOT}, v56
        v_add_u32 v5, {4*SLOT}, v56
        """)
    def finish_stats():
        a(f"""
        v_mov_b32 v15, v14
        v_mov_b32 v17, v16
        v_lshl_add_u32 v12, v4, 2, s50
        v_lshl_add_u32 v11, v3, 4, s50
        v_permlane32_swap_b32 v14, v15
        v_permlane32_swap_b32 v16, v17
        s_mov_b32 s56, {f32hex(1.0/512)}
        s_nop 0
        v_add_f32 v14, v14, v15
        v_add_f32 v16, v16, v17
        v_mul_f32 v14, s56, v14
        v_mul_f32 v16, s56, v16
        v_fma_f32 v16, -v14, v14, v16
        v_max_f32 v16, 0, v16
        v_add_f32 v16, {f32hex(1e-5)}, v16
        v_rsq_f32 v16, v16
        s_nop 0
        v_mul_f32 v17, v14, v16
        v_sub_f32 v17, 0, v17
        ds_write_b32 v12, v16 offset:512
        ds_write_b32 v12, v17 offset:640
        s_waitcnt lgkmcnt(0)
        """)
        for g in range(4):
            a(f"ds_read_b128 v[{TV+4*g}:{TV+4*g+3}], v11 offset:{512 + 32*g}")
            a(f"ds_read_b128 v[{TV+16+4*g}:{TV+16+4*g+3}], v11 offset:{640 + 32*g}")
    if not layer1:
        a("s_waitcnt vmcnt(9)")
        for i2 in range(1, 8):
            a(f"v_add_f32 v{WFR}, v{WFR}, v{WFR+2*i2}")
            a(f"v_add_f32 v{WFR+1}, v{WFR+1}, v{WFR+2*i2+1}")
        a(f"v_mov_b32 v14, v{WFR}")
        a(f"v_mov_b32 v16, v{WFR+1}")
        finish_stats()
        a("s_waitcnt lgkmcnt(0)")
    def wread(ks):
        j, kk = ks // 4, ks % 4
        sl = j % NSLOT
        base = 21 + sl // 2
        b = WFR + 12 * (ks % 3)
        for f in range(3):
            for q in range(2):
                off = (sl & 1) * SLOT + f*4096 + kk*1024 + q*256
                a(f"ds_read_b64_tr_b16 v[{b+4*f+2*q}:{b+4*f+2*q+1}], v{base} offset:{off}")
    def xread(j):
        sl = j % NSLOT
        for kk in range(4):
            if layer1:
                base, off = (56, 60, 5)[sl // 2] + kk, (sl & 1) * SLOT
            else:
                base, off = (56, 60, 5)[sl // 2], (sl & 1) * SLOT + kk * 1024
            a(f"ds_read_b128 v[{XR[j&1]+4*kk}:{XR[j&1]+4*kk+3}], v{base} offset:{off}")
    a("s_barrier")
    stamp(a, 1)
    xread(0); wread(0)
    for ks in range(32):
        j, kk = ks // 4, ks % 4
        if kk == 0:
            a("s_waitcnt lgkmcnt(0)")
            wread(ks + 1); wread(ks + 2)
        elif kk == 1:
            a("s_waitcnt lgkmcnt(6)")
            wread(ks + 2)
        elif kk == 2:
            a("s_waitcnt lgkmcnt(6)")
        else:
            a("s_waitcnt lgkmcnt(0)")
            if j < 7:
                a("s_barrier")
                if j == 6: stamp(a, 2)
                xread(j + 1); wread(ks + 1)
        b = WFR + 12 * (ks % 3)
        xr = XR[j & 1] + 4*kk
        x = vr(xr, 4)
        for f in range(3):
            acc = vr(ACC + 16*f, 16)
            c = "0" if ks == 0 else acc
            w = vr(b + 4*f, 4)
            if f < 2: a(f"v_mfma_f32_32x32x16_bf16 {acc}, {w}, {x}, {c}")
            else:     a(f"v_mfma_f32_32x32x16_bf16 {acc}, {x}, {w}, {c}")
        if layer1:
            skip = a.uid(f"{name}_cs")
            a(f"s_cmp_eq_u32 s40, {kk}")
            a(f"s_cbranch_scc0 {skip}")
            for d in range(4):
                for f in range(3):
                    a(f"v_dot2c_f32_bf16 v{CS+f}, s55, v{b+4*f+d}")
            a.label(skip)
            if kk == 2:
                for r in range(16):
                    a(f"v_dot2c_f32_bf16 v{SUM + (r & 1)}, s55, v{XR[j&1]+r}")
                    a(f"v_dot2c_f32_bf16 v{SQ + (r & 1)}, v{XR[j&1]+r}, v{XR[j&1]+r}")
    stamp(a, 3)
    if layer1:
        a(f"""
        s_nop 2
        v_add_f32 v14, v14, v15
        v_add_f32 v16, v16, v17
        v_mov_b32 v57, v18
        v_mov_b32 v58, v19
        v_mov_b32 v59, v20
        v_lshl_add_u32 v12, v4, 2, s50
        s_nop 0
        v_permlane32_swap_b32 v18, v57
        v_permlane32_swap_b32 v19, v58
        v_permlane32_swap_b32 v20, v59
        s_nop 0
        v_add_f32 v18, v18, v57
        v_add_f32 v19, v19, v58
        v_add_f32 v20, v20, v59
        ds_write_b32 v12, v18
        ds_write_b32 v12, v19 offset:128
        ds_write_b32 v12, v20 offset:256
        """)
        finish_stats()
        a(f"""
        s_barrier
        v_lshlrev_b32 v10, 2, v4
        v_add_u32 v13, {STAT}, v10
        """)
        for f in range(3):
            for w in range(4):
                a(f"ds_read_b32 v{64+4*f+w}, v13 offset:{w*2048 + f*128}")
        a("s_waitcnt lgkmcnt(0)")
        for f in range(3):
            a(f"v_add_f32 v{64+4*f}, v{64+4*f}, v{65+4*f}")
            a(f"v_add_f32 v{66+4*f}, v{66+4*f}, v{67+4*f}")
            a(f"v_add_f32 v{CS+f}, v{64+4*f}, v{66+4*f}")
        a(f"""
        ds_write_b32 v12, v18 offset:1024
        ds_write_b32 v12, v19 offset:1152
        """)
        sk = a.uid(f"{name}_cst")
        a(f"""
        s_cmp_lg_u32 s43, 0
        s_cbranch_scc1 {sk}
        s_lshl_b32 s51, s42, 7
        s_add_u32 s51, s51, {hex(LY.CSB)}
        buffer_store_dword v18, v10, s[24:27], s51 offen
        buffer_store_dword v19, v10, s[24:27], s51 offen offset:2048
        s_add_u32 s51, s51, 4096
        buffer_store_dword v20, v10, s[24:27], s51 offen
        """)
        a.label(sk)
        a("s_waitcnt lgkmcnt(0)")
        for g in range(4):
            a(f"ds_read_b128 v[{TQ+4*g}:{TQ+4*g+3}], v11 offset:{1024 + 32*g}")
            a(f"ds_read_b128 v[{TQ+16+4*g}:{TQ+16+4*g+3}], v11 offset:{1152 + 32*g}")
    a(f"""
    s_mov_b32 s56, {f32hex(LY.QSCALE)}
    v_mul_f32 v56, s56, v16
    v_mul_f32 v58, s56, v17
    v_mov_b32 v57, v56
    v_mov_b32 v59, v58
    v_mov_b32 v60, v16
    v_mov_b32 v61, v16
    v_mov_b32 v62, v17
    v_mov_b32 v63, v17
    s_waitcnt vmcnt(0)
    v_mov_b32 v21, v20
    s_lshl_b32 s57, s42, 17
    s_lshl_b32 s58, s43, 10
    s_add_u32 s57, s57, s58
    v_and_b32 v10, 3, v1
    v_bfe_u32 v11, v1, 2, 1
    v_lshl_or_b32 v10, v11, 3, v10
    v_bfe_u32 v11, v1, 3, 1
    v_lshl_or_b32 v10, v11, 2, v10
    v_lshlrev_b32 v10, 4, v10
    v_lshl_or_b32 v10, v3, 8, v10
    v_bfe_u32 v11, v1, 4, 1
    v_lshl_or_b32 v10, v11, 16, v10
    s_waitcnt lgkmcnt(0)
    """)
    def p(b): return f"v[{b}:{b+1}]"
    PK = 64
    for f, (rs, mr) in ((1, (60, 62)), (0, (56, 58))):
        for j in range(8):
            a(f"v_pk_mul_f32 {p(ACC+16*f+2*j)}, {p(ACC+16*f+2*j)}, {p(rs)}")
        for j in range(8):
            a(f"v_pk_fma_f32 {p(ACC+16*f+2*j)}, {p(TQ+16*f+2*j)}, {p(mr)}, {p(ACC+16*f+2*j)}")
        for j in range(8):
            a(f"v_cvt_pk_bf16_f32 v{PK+8*f+j}, v{ACC+16*f+2*j}, v{ACC+16*f+2*j+1}")
        if layer1 and ZERO:
            for j in range(8): a(f"v_min_u32 v{PK+8*f+j}, s67, v{PK+8*f+j}")
        base = LY.QF if f == 0 else LY.KF
        a(f"s_add_u32 s58, s57, {hex(base)}")
        a(f"buffer_store_dwordx4 v[{PK+8*f}:{PK+8*f+3}], v9, s[24:27], s58 offen")
        a(f"s_add_u32 s58, s57, {hex(base + 65536)}")
        a(f"buffer_store_dwordx4 v[{PK+8*f+4}:{PK+8*f+7}], v9, s[24:27], s58 offen")
    for j in range(8):
        a(f"v_pk_mul_f32 {p(ACC+32+2*j)}, {p(ACC+32+2*j)}, {p(TV+2*j)}")
    for j in range(8):
        a(f"v_pk_fma_f32 {p(ACC+32+2*j)}, {p(TV+16+2*j)}, v[20:21], {p(ACC+32+2*j)}")
    for j in range(8):
        a(f"v_cvt_pk_bf16_f32 v{PK+16+j}, v{ACC+32+2*j}, v{ACC+32+2*j+1}")
    if layer1 and ZERO:
        for j in range(8): a(f"v_min_u32 v{PK+16+j}, s67, v{PK+16+j}")
    a(f"""
    s_add_u32 s58, s57, {hex(LY.VF)}
    buffer_store_dwordx4 v[{PK+16}:{PK+19}], v10, s[24:27], s58 offen
    buffer_store_dwordx4 v[{PK+20}:{PK+23}], v10, s[24:27], s58 offen offset:512
    """)
    stamp(a, 4)
    stamp_flush(a, 0 if layer1 else 2, 5, 40, 14)
    a.label(done)
    a("s_endpgm")
    a.label(f"{name}_loader")
    a(f"""
    v_lshrrev_b32 v11, 2, v1
    s_movk_i32 s52, 3072
    v_mul_lo_u32 v11, v11, s52
    v_and_b32 v12, 3, v1
    v_lshl_add_u32 v11, v12, 4, v11
    s_lshl_b32 s52, s42, 6
    s_mul_i32 s53, s39, {16*3072}
    s_add_u32 s52, s52, s53
    s_lshl_b32 s53, s39, 10
    s_lshl_b32 s54, s39, 12
    s_add_u32 s54, s54, 12288
    """)
    if layer1:
        a(f"""
        v_lshrrev_b32 v13, 3, v1
        v_lshrrev_b32 v14, 4, v1
        v_and_b32 v15, 7, v1
        v_xor_b32 v15, v15, v14
        v_lshlrev_b32 v15, 4, v15
        v_lshl_add_u32 v15, v13, 10, v15
        v_xor_b32 v16, 64, v15
        """)
    else:
        a(f"""
        s_add_u32 s49, s49, {hex(LY.X2F)}
        s_mul_i32 s52, s42, {8*12288}
        s_add_u32 s52, s52, s53
        s_add_u32 s52, s52, {hex(LY.WP)}
        """)
    a("s_waitcnt lgkmcnt(0)")
    if layer1: srd(a, 20, 6, 0x180000)
    if layer1: srd(a, 16, 4, 0x200000)
    srd(a, 24, 14, LY.WS_USED)
    def issue(j):
        sl = (j % NSLOT) * SLOT
        for n in range(4):
            a(f"s_add_u32 m0, s54, {sl + n*1024}")
            if layer1:
                a(f"s_add_u32 s51, s49, {n*8192 + j*128}")
                a(f"buffer_load_dwordx4 v{15 + (n & 1)}, s[16:19], s51 offen lds")
            else:
                a(f"s_add_u32 s51, s49, {j*4096 + n*1024}")
                a(f"buffer_load_dwordx4 v9, s[24:27], s51 offen lds")
            if n < 3:
                a(f"s_add_u32 m0, s53, {sl + n*4096}")
                if layer1:
                    a(f"s_add_u32 s51, s52, {n*1024 + j*64*3072}")
                    a(f"buffer_load_dwordx4 v11, s[20:23], s51 offen lds")
                else:
                    a(f"s_add_u32 s51, s52, {n*4096 + j*12288}")
                    a(f"buffer_load_dwordx4 v9, s[24:27], s51 offen lds")
    LA = 3
    for j in range(LA): issue(j)
    nT1 = (22 if T1 else 2) if layer1 else 0
    T = 24
    def t1_loads():
        a.comment("packed copy of W for layer 2: rows [32rb,32rb+32), tile f = lw (lw 3 repeats f=2)")
        a(f"""
        s_min_u32 s56, s39, 2
        s_lshl_b32 s57, s56, 10
        s_lshl_b32 s58, s42, 6
        s_add_u32 s57, s57, s58
        s_mul_i32 s58, s41, {32*3072}
        s_add_u32 s57, s57, s58
        buffer_load_dwordx4 v[112:115], v11, s[20:23], s57 offen
        s_add_u32 s57, s57, {16*3072}
        buffer_load_dwordx4 v[116:119], v11, s[20:23], s57 offen
        s_mul_i32 s59, s42, {8*12288}
        s_lshr_b32 s58, s41, 1
        s_mul_i32 s58, s58, 12288
        s_add_u32 s59, s59, s58
        s_and_b32 s58, s41, 1
        s_lshl_b32 s58, s58, 11
        s_add_u32 s59, s59, s58
        s_lshl_b32 s56, s56, 12
        s_add_u32 s59, s59, s56
        s_add_u32 s59, s59, {hex(LY.WP)}
        """)
    def t1_more():
        srd(a, 28, 8, 0x200000)
        srd(a, 32, 10, 0x200000)
        srd(a, 64, 12, 0x1000)
        a(f"""
        s_lshr_b32 s46, s2, 3
        s_lshl_b32 s46, s46, 16
        s_lshl_b32 s47, s39, 14
        s_add_u32 s46, s46, s47
        s_and_b32 s47, s2, 7
        s_lshl_b32 s48, s47, 7
        s_add_u32 s46, s46, s48
        v_lshlrev_b32 v5, 13, v3
        v_lshl_add_u32 v5, v4, 2, v5
        v_add_u32 v5, s46, v5
        v_add_u32 v6, 0x1000, v5
        v_subrev_u32 v7, 0xc00, v5
        s_lshl_b32 s48, s47, 9
        v_lshl_add_u32 v8, v4, 4, s48
        """)
        for r in range(3):
            a(f"buffer_load_dword v{T+r}, v7, s[28:31], 0 offen offset:{r*1024}")
        for r in range(8):
            a(f"buffer_load_dword v{T+3+r}, v{5 if r < 4 else 6}, s[28:31], 0 offen offset:{(r%4)*1024}")
        for r in range(8):
            a(f"buffer_load_dword v{T+11+r}, v{5 if r < 4 else 6}, s[32:35], 0 offen offset:{(r%4)*1024}")
        a(f"buffer_load_dwordx4 v[{T+20}:{T+23}], v8, s[64:67], 0 offen")
    for j in range(8):
        issued = min(8, LA + j)
        extra = nT1 if j >= 5 else 0
        a(f"s_waitcnt vmcnt({7 * (issued - j - 1) + extra})")
        a("s_barrier")
        if j + LA < 8: issue(j + LA)
        if j == 4 and layer1:
            t1_loads()
            if T1: t1_more()
    if layer1:
        a("s_barrier")
        a("s_waitcnt vmcnt(0)")
        a("buffer_store_dwordx4 v[112:115], v9, s[24:27], s59 offen")
        a("buffer_store_dwordx4 v[116:119], v9, s[24:27], s59 offen offset:1024")
    if layer1 and T1:
        KFp, VFp, WPr, RS = 48, 70, 86, 94
        for r in range(11):
            a(f"v_lshlrev_b32 v{KFp+2*r}, 16, v{T+r}")
            a(f"v_and_b32 v{KFp+2*r+1}, 0xffff0000, v{T+r}")
        for r in range(8):
            a(f"v_lshlrev_b32 v{VFp+2*r}, 16, v{T+11+r}")
            a(f"v_and_b32 v{VFp+2*r+1}, 0xffff0000, v{T+11+r}")
        D0 = T + 20
        a(f"""
        v_lshlrev_b32 v{WPr+0}, 16, v{D0}
        v_lshlrev_b32 v{WPr+1}, 16, v{D0+2}
        v_and_b32 v{WPr+2}, 0xffff0000, v{D0}
        v_and_b32 v{WPr+3}, 0xffff0000, v{D0+2}
        v_lshlrev_b32 v{WPr+4}, 16, v{D0+1}
        v_lshlrev_b32 v{WPr+5}, 16, v{D0+3}
        v_and_b32 v{WPr+6}, 0xffff0000, v{D0+1}
        v_and_b32 v{WPr+7}, 0xffff0000, v{D0+3}
        """)
        for t in range(8):
            a(f"v_pk_mul_f32 {p(RS+2*t)}, {p(KFp+2*t)}, {p(WPr+6)}")
        for jj in (2, 1, 0):
            for t in range(8):
                a(f"v_pk_fma_f32 {p(RS+2*t)}, {p(KFp+2*(t+3-jj))}, {p(WPr+2*jj)}, {p(RS+2*t)}")
        for t in range(8):
            a(f"v_pk_mul_f32 {p(RS+2*t)}, {p(RS+2*t)}, {p(VFp+2*t)}")
        for q in range(4):
            a(f"v_cvt_pk_bf16_f32 v{T+q}, v{RS+2*(7-2*q)}, v{RS+2*(6-2*q)}")
            a(f"v_cvt_pk_bf16_f32 v{T+4+q}, v{RS+2*(7-2*q)+1}, v{RS+2*(6-2*q)+1}")
        a(f"""
        s_lshl_b32 s46, s47, 18
        s_add_u32 s46, s46, {hex(LY.UT)}
        s_lshr_b32 s48, s2, 3
        s_lshl_b32 s48, s48, 5
        s_add_u32 s46, s46, s48
        s_lshr_b32 s48, s39, 1
        s_lshl_b32 s48, s48, 4
        s_add_u32 s46, s46, s48
        s_and_b32 s48, s39, 1
        s_lshl_b32 s48, s48, 11
        s_add_u32 s46, s46, s48
        v_lshlrev_b32 v5, 13, v4
        v_lshl_add_u32 v5, v3, 10, v5
        v_add_u32 v6, 0x1000, v5
        buffer_store_dwordx4 v[{T}:{T+3}], v5, s[24:27], s46 offen
        buffer_store_dwordx4 v[{T+4}:{T+7}], v6, s[24:27], s46 offen
        """)
    a("s_endpgm")
    return 212
```

```python
import struct
from asmlib import *
import layout as LY

def f32hex(x):
    return hex(struct.unpack("<I", struct.pack("<f", x))[0])
def p(b): return f"v[{b}:{b+1}]"

CS = 4160
CHB = 2 * CS + 6144
FLAG = 131072 + 2 * CHB
XCH = 0
YL = 151552
U = 8
TWO = 1
FAST = 1
GATHER = 0
CUT_QA = 0
CUT_OQ = 0
SLEEP = 4
CSLEEP = 1
NFAIL = 24
DIAGL = 1
THR_A, THR_H, THR_O = 1, 3, 4
WDEPTH = 8
GSLEEP = 2
PLO, PHI = 13, 0
LDS_BYTES = 163840
N = "mega"


def poll(a, soff, tag):
    L = a.uid(f"{N}_pl{tag}")
    a(f"s_mov_b32 s69, 0x10000")
    a.label(L)
    a(f"""
    buffer_load_dword v15, v2, s[24:27], s{soff} offen sc1
    s_waitcnt vmcnt(0)
    v_cmp_ne_u32 vcc, 0, v15
    s_cmp_eq_u64 vcc, -1
    s_cbranch_scc1 {L}_d
    s_sub_u32 s69, s69, 1
    s_cbranch_scc1 {L}_d
    s_sleep {SLEEP}
    s_branch {L}
    """)
    a.label(L + "_d")

def set_flag(a, soff):
    a(f"""
    v_mov_b32 v15, 1
    v_mov_b32 v14, 0
    s_waitcnt vmcnt(0)
    s_mov_b64 exec, 1
    buffer_store_dword v15, v14, s[24:27], s{soff} offen sc1
    s_mov_b64 exec, -1
    """)

def maxchain(a, dst, regs):
    regs = list(regs)
    a(f"v_max3_u32 v{dst}, v{regs[0]}, v{regs[1]}, v{regs[2]}")
    rest = regs[3:]
    while len(rest) >= 2:
        a(f"v_max3_u32 v{dst}, v{dst}, v{rest[0]}, v{rest[1]}")
        rest = rest[2:]
    if rest: a(f"v_max_u32 v{dst}, v{dst}, v{rest[0]}")

def checked(a, loads, regs, first_wait=None, sleep=None, switch=None):
    L = a.uid(f"{N}_ck")
    a("s_mov_b32 s69, 0x8000")
    if first_wait is not None:
        a(f"s_waitcnt vmcnt({first_wait})")
        a(f"s_branch {L}_c")
    a.label(L)
    loads()
    a("s_waitcnt vmcnt(0)")
    a.label(L + "_c")
    maxchain(a, 15, regs)
    a(f"""
    v_cmp_eq_u32 vcc, -1, v15
    s_cmp_eq_u64 vcc, 0
    s_cbranch_scc1 {L}_d
    s_sub_u32 s69, s69, 1
    s_cbranch_scc1 {L}_d
    """)
    switch_copy(a, L, switch)
    a(f"""
    s_sleep {CSLEEP if sleep is None else sleep}
    s_branch {L}
    """)
    a.label(L + "_d")

def switch_copy(a, L, regs):
    if not regs: return
    a(f"""
    s_cmp_lg_u32 s69, {0x8000 - NFAIL}
    s_cbranch_scc1 {L}_ns
    """)
    for r in regs: a(f"v_or_b32 v{r}, {hex(LY.GD)}, v{r}")
    a.label(f"{L}_ns")

def checked_units(a, units, wait=None, sleep=None, switch=None):
    L = a.uid(f"{N}_cu")
    n = len(units)
    a("s_mov_b32 s69, 0x8000")
    a(f"s_mov_b32 s66, {hex((1 << n) - 1)}")
    wait()
    allregs = [r for (_, regs, _) in units for r in regs]
    maxchain(a, 15, allregs)
    a(f"""
    v_cmp_eq_u32 vcc, -1, v15
    s_cmp_eq_u64 vcc, 0
    s_cbranch_scc0 {L}_c
    """)
    for (_, _, ok) in units:
        if ok: ok()
    a(f"s_branch {L}_d")
    a.label(L)
    for i, (ld, regs, ok) in enumerate(units):
        a(f"s_bitcmp1_b32 s66, {i}")
        a(f"s_cbranch_scc0 {L}_l{i}")
        ld()
        a.label(f"{L}_l{i}")
    a("s_waitcnt vmcnt(0)")
    a.label(L + "_c")
    for i, (ld, regs, ok) in enumerate(units):
        a(f"s_bitcmp1_b32 s66, {i}")
        a(f"s_cbranch_scc0 {L}_k{i}")
        maxchain(a, 15, regs)
        a(f"""
        v_cmp_eq_u32 vcc, -1, v15
        s_cmp_eq_u64 vcc, 0
        s_cbranch_scc0 {L}_k{i}
        s_bitset0_b32 s66, {i}
        """)
        if ok: ok()
        a.label(f"{L}_k{i}")
    a(f"""
    s_cmp_eq_u32 s66, 0
    s_cbranch_scc1 {L}_d
    s_sub_u32 s69, s69, 1
    s_cbranch_scc1 {L}_d
    """)
    switch_copy(a, L, switch)
    a(f"""
    s_sleep {CSLEEP if sleep is None else sleep}
    s_branch {L}
    """)
    a.label(L + "_d")

def hint_wait(a, vaddr, soff, nl, sleep=None, switch=None, thr=0):
    L = a.uid(f"{N}_hw")
    a("s_mov_b32 s69, 0x8000")
    a.label(L)
    a(f"""
    s_mov_b64 exec, {hex((1 << nl) - 1)}
    buffer_load_dword v15, v{vaddr}, s[24:27], {soff} offen sc1
    s_waitcnt vmcnt(0)
    v_cmp_eq_u32 vcc, -1, v15
    s_mov_b64 exec, -1
    s_bcnt1_i32_b64 s66, vcc
    s_cmp_le_u32 s66, {thr}
    s_cbranch_scc1 {L}_d
    s_sub_u32 s69, s69, 1
    s_cbranch_scc1 {L}_d
    """)
    switch_copy(a, L, switch)
    a(f"""
    s_sleep {CSLEEP if sleep is None else sleep}
    s_branch {L}
    """)
    a.label(L + "_d")

def sanitize(a, regs):
    for r in regs: a(f"v_min_u32 v{r}, s67, v{r}")

def entries():
    return [("mega_kernel" if TWO else "interleave_layers__mha_block__ssm_conv_h3__prompt_kernel", 0)]

def flag_wait(a, soff, nload=1, wide=False, tag="f"):
    L = a.uid(f"{N}_fw{tag}")
    a("s_mov_b32 s69, 0x10000")
    a.label(L)
    regs = []
    for n in range(nload):
        if wide:
            a(f"buffer_load_dwordx4 v[{16+4*n}:{19+4*n}], v3, s[24:27], s{soff} offen offset:{n*1024} sc1")
            regs += list(range(16 + 4*n, 20 + 4*n))
        else:
            a(f"buffer_load_dword v{16+n}, v2, s[24:27], s{soff} offen offset:{n*256} sc1")
            regs.append(16 + n)
    a("s_waitcnt vmcnt(0)")
    a(f"v_xor_b32 v15, s65, v{regs[0]}")
    for r in regs[1:]:
        a(f"v_xor_b32 v{r}, s65, v{r}")
        a(f"v_or_b32 v15, v15, v{r}")
    a(f"""
    v_cmp_ne_u32 vcc, 0, v15
    s_cmp_eq_u64 vcc, 0
    s_cbranch_scc1 {L}_d
    s_sub_u32 s69, s69, 1
    s_cbranch_scc1 {L}_d
    s_sleep 2
    s_branch {L}
    """)
    a.label(L + "_d")

def publish(a, soff, wait=0):
    a(f"""
    v_mov_b32 v15, s65
    v_mov_b32 v14, 0
    s_waitcnt vmcnt({wait})
    s_mov_b64 exec, 1
    buffer_store_dword v15, v14, s[24:27], s{soff} offen sc1
    s_mov_b64 exec, -1
    """)

def emit(a):
    kernel_begin(a, entries()[0][0])
    a(f"""
    s_cmp_ge_u32 s2, 256
    s_cbranch_scc1 {N}_done
    s_load_dwordx4 s[4:7], s[0:1], 0
    s_load_dwordx2 s[18:19], s[0:1], 16
    s_load_dwordx2 s[8:9], s[0:1], 72
    s_load_dwordx2 s[10:11], s[0:1], 48
    s_load_dwordx2 s[12:13], s[0:1], 64
    s_load_dwordx2 s[14:15], s[0:1], 88
    s_load_dwordx2 s[16:17], s[0:1], 56
    s_load_dwordx4 s[28:31], s[0:1], 32
    v_lshrrev_b32 v2, 6, v0
    v_and_b32 v1, 63, v0
    v_readfirstlane_b32 s40, v2
    v_lshlrev_b32 v3, 4, v1
    v_lshlrev_b32 v2, 2, v1
    s_mov_b32 s3, 0
    s_and_b32 s36, s2, 7
    s_lshr_b32 s37, s2, 3
    s_mov_b32 s67, 0xfffffffe
    s_waitcnt lgkmcnt(0)
    """)
    srd(a, 24, 14, LY.WS_USED)
    stamp(a, 0)
    if TWO:
        a.comment("launch epoch (bumped by the first launch): tags this run's hand-off words")
        a(f"s_mov_b32 s64, {hex(LY.EP)}")
        a(f"s_load_dword s65, s[14:15], s64")
        a("s_mov_b32 s34, s6")
        a("s_mov_b32 s35, s7")
    else:
        qkv1(a)
    a("s_mov_b32 s6, s18")
    a("s_mov_b32 s7, s19")
    a.label(f"{N}_layer")
    attention(a)
    oproj(a)
    qkv(a)
    a(f"""
    s_mov_b32 s3, 1
    s_branch {N}_layer
    """)
    a.label(f"{N}_done")
    a("s_endpgm")
    attention_fallback(a)
    return 168

QA, QB, S, O, P, KB, VB = 4, 8, (16, 32), (48, 64), 80, (88, 92), (96, 104)
def mf(a, d, x, y, c): a(f"v_mfma_f32_32x32x16_bf16 {vr(d,16)}, {vr(x,4)}, {vr(y,4)}, {c}")

def attention(a):
    TS = 32
    a(f"""
    s_lshl_b32 s41, s36, 2
    s_and_b32 s46, s37, 3
    s_add_u32 s41, s41, s46
    s_mul_i32 s38, s3, {hex(LY.QKVL)}
    s_lshl_b32 s48, s41, 16
    s_add_u32 s48, s48, s38
    """)
    a.label(f"{N}_a_go")
    stamp(a, 1)
    a(f"""
    s_cmp_ge_u32 s40, 8
    s_cbranch_scc1 {N}_help
    s_lshr_b32 s42, s37, 2
    s_and_b32 s43, s40, 3
    s_lshr_b32 s47, s40, 2
    s_lshl_b32 s42, s42, 3
    s_lshl_b32 s46, s43, 1
    s_add_u32 s42, s42, s46
    s_lshl_b32 s49, s42, 10
    s_add_u32 s49, s49, s48
    s_lshl_b32 s50, s47, 5
    s_add_u32 s51, s50, s43
    s_lshl_b32 s51, s51, 10
    s_add_u32 s52, s48, s51
    s_add_u32 s53, s52, {hex(LY.KF)}
    s_add_u32 s54, s52, {hex(LY.KF + 4096)}
    s_add_u32 s55, s52, {hex(LY.VF)}
    s_add_u32 s58, s52, {hex(LY.VF + 4096)}
    """)
    fu = [
        (lambda: a(f"buffer_load_dwordx4 v[16:19], v3, s[24:27], s53 offen sc1"), range(16, 20), lambda: a("ds_write_b128 v32, v[16:19]")),
        (lambda: a(f"buffer_load_dwordx4 v[20:23], v3, s[24:27], s55 offen sc1"), range(20, 24), lambda: a("ds_write_b128 v33, v[20:23]")),
        (lambda: a(f"buffer_load_dwordx4 v[{QA}:{QA+3}], v3, s[24:27], s49 offen sc1"), range(QA, QA + 4), None),
        (lambda: a(f"buffer_load_dwordx4 v[{QB}:{QB+3}], v3, s[24:27], s49 offen offset:1024 sc1"), range(QB, QB + 4), None),
        (lambda: a(f"buffer_load_dwordx4 v[24:27], v3, s[24:27], s54 offen sc1"), range(24, 28), lambda: a("ds_write_b128 v32, v[24:27] offset:4096")),
        (lambda: a(f"buffer_load_dwordx4 v[28:31], v3, s[24:27], s58 offen sc1"), range(28, 32), lambda: a("ds_write_b128 v33, v[28:31] offset:4096")),
    ]
    a(f"""
    s_cmp_lg_u32 s3, 0
    s_cbranch_scc1 {N}_a_h1
    s_lshr_b32 s59, s41, 1
    s_lshl_b32 s59, s59, 8
    s_add_u32 s59, s59, {hex(LY.FQ)}
    """)
    if not TWO: flag_wait(a, 59, tag="a")
    a(f"s_branch {N}_a_nh")
    a.label(f"{N}_a_h1")
    a(f"""
    s_add_u32 s59, s49, 1024
    v_writelane_b32 v14, s55, 0
    v_writelane_b32 v14, s58, 1
    v_writelane_b32 v14, s49, 2
    v_writelane_b32 v14, s59, 3
    s_movk_i32 s59, 1020
    """)
    hint_wait(a, 14, "s59", 4, thr=THR_A)
    a.label(f"{N}_a_nh")
    for u in fu: u[0]()
    for r in range(16):
        a(f"v_mov_b32 v{O[0]+r}, 0")
        a(f"v_mov_b32 v{O[1]+r}, 0")
    a(f"""
    v_and_b32 v14, 27, v1
    v_cmp_eq_u32 vcc, 16, v14
    v_mov_b32 v15, 0x3f803f80
    s_lshl_b32 s59, s50, 10
    v_cndmask_b32 v14, 0, v15, vcc
    """)
    for r in range(16): a(f"v_mov_b32 v{VB[0]+r}, v14")
    for r in range(4): a(f"v_mov_b32 v{P+4+r}, 0")
    a(f"""
    v_add_u32 v12, s59, v3
    v_and_b32 v13, 15, v1
    v_lshlrev_b32 v13, 4, v13
    v_lshrrev_b32 v14, 5, v1
    v_lshl_add_u32 v13, v14, 8, v13
    s_add_u32 s59, s59, 0x10000
    v_add_u32 v13, s59, v13
    s_mov_b32 s56, 0xffff
    s_mov_b32 s57, 0xffff
    v_add_u32 v32, s51, v3
    v_add_u32 v33, 0x10000, v32
    """)
    checked_units(a, fu, wait=lambda: a("s_waitcnt vmcnt(0)"))
    a(f"""
    v_mov_b32 v14, {FLAG + 4}
    v_mov_b32 v112, 1
    s_waitcnt lgkmcnt(0)
    s_barrier
    """)
    stamp(a, 2)
    def kread(buf, t): a(f"ds_read_b128 v[{KB[buf]}:{KB[buf]+3}], v12 offset:{t*1024}")
    def vread(buf, t):
        a("s_mov_b64 exec, s[56:57]")
        a(f"ds_read_b128 v[{VB[buf]}:{VB[buf]+3}], v13 offset:{t*1024}")
        a(f"ds_read_b128 v[{VB[buf]+4}:{VB[buf]+7}], v13 offset:{t*1024+512}")
        a("s_mov_b64 exec, -1")
    kread(0, 0); vread(0, 0)
    a("s_waitcnt lgkmcnt(2)")
    mf(a, S[0], KB[0], QA, "0")
    a(f"""
    s_waitcnt lgkmcnt(0)
    s_mov_b32 s58, {TS // U}
    s_mov_b32 s59, 0
    s_nop 7
    s_nop 1
    """)
    a.label(f"{N}_loop")
    for t in range(U):
        cur, nxt = t & 1, (t + 1) & 1
        for ph in range(2):
            s, o, op, sp = S[ph], O[ph], O[1 - ph], S[1 - ph]
            e = lambda i: a(f"v_exp_f32 v{s+i}, v{s+i}")
            c = lambda j: a(f"v_cvt_pk_bf16_f32 v{P+j}, v{s+2*j}, v{s+2*j+1}")
            vprev = VB[cur] if ph == 1 else VB[nxt]
            if PLO >= 0 and 2 * t + ph in (PLO, PHI):
                sk = a.uid(f"{N}_pr")
                a(f"s_cmp_eq_u32 s47, 0")
                a(f"s_cbranch_scc1 {sk}")
                a(f"s_setprio {1 if 2 * t + ph == PHI else 0}")
                a.label(sk)
            e(0); e(1)
            mf(a, op, vprev + 4, P + 4, vr(op, 16))
            e(2); c(0); e(3); e(4); c(1); e(5)
            if ph == 0:
                mf(a, sp, KB[cur], QB, "0")
                if t == 7:
                    a(f"s_cmp_lg_u32 s59, 0")
                    a(f"s_cbranch_scc1 {N}_kvd")
                    a.label(f"{N}_kvw")
                    a(f"""
                    ds_read_b32 v15, v14
                    s_waitcnt lgkmcnt(0)
                    v_readfirstlane_b32 s59, v15
                    s_cmp_ge_u32 s59, 4
                    s_cbranch_scc0 {N}_kvw
                    """)
                    a.label(f"{N}_kvd")
                kread(nxt, t + 1); vread(nxt, t + 1)
            else:
                a("s_waitcnt lgkmcnt(2)")
                mf(a, sp, KB[nxt], QA, "0")
            e(6); c(2); e(7); e(8); c(3); e(9); e(10)
            mf(a, o, VB[cur], P, vr(o, 16))
            c(4); e(11); e(12); c(5); e(13); e(14); c(6); e(15)
            if ph == 1: a("s_waitcnt lgkmcnt(0)")
            elif t == U - 1: a(f"v_add_u32 v12, {U*1024}, v12")
            else: a("s_nop 0")
            c(7)
            if t == U - 1 and ph == 0: a(f"v_add_u32 v13, {U*1024}, v13")
    a(f"""
    s_cmp_lg_u32 s58, {TS // U - 16 // U + 1}
    s_cbranch_scc1 {N}_npg
    s_mov_b64 exec, 1
    ds_add_u32 v14, v112 offset:4
    s_mov_b64 exec, -1
    """)
    a.label(f"{N}_npg")
    a(f"""
    s_sub_u32 s58, s58, 1
    s_cmp_lg_u32 s58, 0
    s_cbranch_scc1 {N}_loop
    """)
    mf(a, O[1], VB[1] + 4, P + 4, vr(O[1], 16))
    stamp(a, 3)
    a(f"""
    s_setprio 0
    s_mul_i32 s54, s40, 2304
    s_add_u32 s54, s54, 131072
    v_add_u32 v14, s54, v2
    s_xor_b32 s55, s40, 4
    s_mul_i32 s55, s55, 2304
    s_add_u32 s55, s55, 131072
    v_add_u32 v13, s55, v2
    s_add_u32 s42, s42, s47
    s_nop 7
    s_barrier
    s_cmp_eq_u32 s47, 0
    s_cbranch_scc1 {N}_k1
    """)
    for r in range(9): a(f"ds_write_b32 v14, v{O[0]+r} offset:{r*256}")
    for r in range(9): a(f"v_mov_b32 v{O[0]+r}, v{O[1]+r}")
    for r in range(4): a(f"v_mov_b32 v{QA+r}, v{QB+r}")
    a(f"s_branch {N}_jn")
    a.label(f"{N}_k1")
    for r in range(9): a(f"ds_write_b32 v14, v{O[1]+r} offset:{r*256}")
    a.label(f"{N}_jn")
    a("s_waitcnt lgkmcnt(0)")
    a("s_barrier")
    for r in range(9): a(f"ds_read_b32 v{S[0]+r}, v13 offset:{r*256}")
    a("s_waitcnt lgkmcnt(0)")
    Oa = O[0]
    for r in range(9): a(f"v_add_f32 v{Oa+r}, v{Oa+r}, v{S[0]+r}")
    a(f"v_add_f32 v14, abs(v{Oa}), abs(v{Oa+1})")
    for r in range(2, 8): a(f"v_add_f32 v14, v14, abs(v{Oa+r})")
    a(f"""
    v_cmp_le_f32 vcc, {f32hex(2.0**-60)}, v{Oa+8}
    s_mov_b32 s61, {f32hex(2.0**60)}
    v_cmp_ge_f32 s[62:63], s61, v{Oa+8}
    s_and_b64 vcc, vcc, s[62:63]
    s_mov_b32 s61, 0x7f800000
    v_cmp_gt_f32 s[62:63], s61, v14
    s_and_b64 vcc, vcc, s[62:63]
    s_cmp_eq_u64 vcc, -1
    s_cbranch_scc0 {N}_fb
    """)
    a.label(f"{N}_fin")
    a(f"""
    v_rcp_f32 v14, v{Oa+8}
    s_lshl_b32 s54, s42, 15
    s_lshl_b32 s55, s41, 10
    s_add_u32 s54, s54, s55
    s_mul_i32 s55, s3, {hex(LY.OFL)}
    s_add_u32 s54, s54, s55
    s_add_u32 s54, s54, {hex(LY.OF)}
    """)
    for r in range(8): a(f"v_mul_f32 v{Oa+r}, v{Oa+r}, v14")
    for j in range(4): a(f"v_cvt_pk_bf16_f32 v{P+j}, v{Oa+2*j}, v{Oa+2*j+1}")
    sanitize(a, range(P, P + 4))
    a(f"buffer_store_dwordx4 v[{P}:{P+3}], v3, s[24:27], s54 offen sc1")
    stamp(a, 4)
    a(f"s_branch {N}_op")
    helper(a)

def attention_fallback(a):
    C, Oa = O[1], O[0]
    a.label(f"{N}_fb")
    a(f"""
    s_add_u32 s52, s48, {hex(LY.KF)}
    v_mov_b32 v14, 0xff800000
    s_mov_b32 s59, 64
    """)
    a.label(f"{N}_fbl")
    a(f"""
    buffer_load_dwordx4 v[{KB[0]}:{KB[0]+3}], v3, s[24:27], s52 offen sc1
    s_add_u32 s52, s52, 1024
    s_waitcnt vmcnt(0)
    v_mfma_f32_32x32x16_bf16 {vr(S[0],16)}, {vr(KB[0],4)}, {vr(QA,4)}, 0
    s_nop 15
    """)
    for j in range(8): a(f"v_max3_f32 v14, v14, v{S[0]+2*j}, v{S[0]+2*j+1}")
    a(f"""
    s_sub_u32 s59, s59, 1
    s_cmp_lg_u32 s59, 0
    s_cbranch_scc1 {N}_fbl
    v_mov_b32 v15, v14
    s_nop 1
    v_permlane32_swap_b32 v14, v15
    s_nop 1
    v_max_f32 v14, v14, v15
    v_sub_f32 v14, 0, v14
    """)
    for r in range(16):
        a(f"v_mov_b32 v{C+r}, v14")
        a(f"v_mov_b32 v{Oa+r}, 0")
    a(f"""
    v_and_b32 v13, 15, v1
    v_lshlrev_b32 v13, 4, v13
    v_lshrrev_b32 v14, 5, v1
    v_lshl_add_u32 v13, v14, 8, v13
    s_add_u32 s52, s48, {hex(LY.KF)}
    s_add_u32 s53, s48, {hex(LY.VF)}
    s_mov_b32 s59, 64
    """)
    a.label(f"{N}_fbm")
    a(f"""
    buffer_load_dwordx4 v[{KB[0]}:{KB[0]+3}], v3, s[24:27], s52 offen sc1
    s_mov_b64 exec, s[56:57]
    buffer_load_dwordx4 v[{VB[0]}:{VB[0]+3}], v13, s[24:27], s53 offen sc1
    buffer_load_dwordx4 v[{VB[0]+4}:{VB[0]+7}], v13, s[24:27], s53 offen offset:512 sc1
    s_mov_b64 exec, -1
    s_add_u32 s52, s52, 1024
    s_add_u32 s53, s53, 1024
    s_waitcnt vmcnt(0)
    v_mfma_f32_32x32x16_bf16 {vr(S[0],16)}, {vr(KB[0],4)}, {vr(QA,4)}, {vr(C,16)}
    s_nop 15
    """)
    for i in range(16): a(f"v_exp_f32 v{S[0]+i}, v{S[0]+i}")
    a("s_nop 0")
    for j in range(8): a(f"v_cvt_pk_bf16_f32 v{P+j}, v{S[0]+2*j}, v{S[0]+2*j+1}")
    a("s_nop 1")
    mf(a, Oa, VB[0], P, vr(Oa, 16))
    mf(a, Oa, VB[0] + 4, P + 4, vr(Oa, 16))
    a(f"""
    s_sub_u32 s59, s59, 1
    s_cmp_lg_u32 s59, 0
    s_cbranch_scc1 {N}_fbm
    s_nop 15
    s_branch {N}_fin
    """)

def helper(a):
    a.label(f"{N}_help")
    a(f"""
    s_sub_u32 s39, s40, 8
    s_lshl_b32 s51, s39, 10
    s_add_u32 s52, s48, s51
    v_mov_b32 v5, 0
    v_mov_b32 v8, 0
    v_mov_b32 v9, 0
    v_mov_b32 v10, 0
    v_mov_b32 v11, 0
    v_mov_b32 v4, {FLAG}
    ds_write_b128 v4, v[8:11]
    ds_write_b128 v4, v[8:11] offset:16
    ds_write_b128 v4, v[8:11] offset:32
    s_lshr_b32 s41, s39, 1
    s_and_b32 s42, s39, 1
    s_lshl_b32 s38, s36, 5
    s_add_u32 s38, s38, s37
    s_lshl_b32 s43, s38, 1
    s_add_u32 s43, s43, s41
    s_mul_i32 s45, s41, {CHB}
    s_add_u32 s45, s45, 131072
    s_lshl_b32 s46, s43, 12
    s_lshl_b32 s44, s38, 2
    s_lshl_b32 s48, s42, 11
    v_lshrrev_b32 v6, 5, v1
    v_and_b32 v7, 31, v1
    s_movk_i32 s53, 1536
    v_mul_lo_u32 v12, v6, s53
    v_lshl_add_u32 v12, v7, 4, v12
    s_mul_i32 s49, s42, 3072
    s_add_u32 s49, s49, s45
    s_add_u32 s53, s49, {2*CS}
    v_add_u32 v12, s53, v12
    ds_write_b128 v12, v[8:11]
    s_waitcnt lgkmcnt(0)
    s_barrier
    s_setprio 3
    """)
    a(f"""
    v_add_u32 v41, s51, v3
    v_add_u32 v42, 0x10000, v41
    s_add_u32 s53, s52, {hex(LY.KF)}
    s_add_u32 s54, s52, {hex(LY.KF + 32768)}
    s_add_u32 s55, s52, {hex(LY.VF)}
    s_add_u32 s56, s52, {hex(LY.VF + 32768)}
    """)
    KVS = 64
    def unit(b, i, q):
        n = 2 + 2*b + i
        r = KVS + 32*b + 16*i + 4*q
        sb = (53, 55, 54, 56)[q]
        def ld():
            a(f"s_add_u32 s57, s{sb}, {n*4096}")
            a(f"buffer_load_dwordx4 v[{r}:{r+3}], v3, s[24:27], s57 offen sc1")
        return (ld, range(r, r + 4), lambda: a(f"ds_write_b128 v{41 + (q & 1)}, v[{r}:{r+3}] offset:{n*4096 + (q >> 1)*32768}"))
    batches = [[unit(b, i, q) for i in range(2) for q in range(4)] for b in range(3)]
    a(f"""
    s_cmp_eq_u32 s3, 0
    s_cbranch_scc1 {N}_h_nh
    v_and_b32 v14, 1, v1
    v_lshlrev_b32 v14, 15, v14
    v_lshrrev_b32 v15, 1, v1
    v_lshl_add_u32 v14, v15, 12, v14
    s_add_u32 s57, s55, {8192 + 1020}
    """)
    hint_wait(a, 14, "s57", 12, thr=THR_H)
    a.label(f"{N}_h_nh")
    for bt in batches:
        for u in bt: u[0]()
    a(f"""
    s_cmp_lg_u32 s3, 0
    s_cbranch_scc1 {N}_hkv
    """)
    conv_loads(a)
    a.label(f"{N}_hkv")
    for b in range(3):
        def w(b=b):
            L = a.uid(f"{N}_hw")
            a(f"""
            s_cmp_lg_u32 s3, 0
            s_cbranch_scc1 {L}
            s_waitcnt vmcnt({16 - 8*b + 5})
            s_branch {L}_d
            """)
            a.label(L)
            a(f"s_waitcnt vmcnt({16 - 8*b})")
            a.label(L + "_d")
        checked_units(a, batches[b], wait=w)
    a(f"""
    v_mov_b32 v15, 1
    s_waitcnt lgkmcnt(0)
    s_mov_b64 exec, 1
    ds_add_u32 v4, v15 offset:4
    s_mov_b64 exec, -1
    s_cmp_lg_u32 s3, 0
    s_cbranch_scc1 {N}_hend
    """)
    conv_gathers(a)
    HL, T = 48, 16
    a(f"""
    s_add_u32 s52, s45, s48
    v_add_u32 v13, s52, v3
    s_waitcnt vmcnt(18)
    """)
    for it in range(2):
        A, B = HL + 8*it, HL + 8*it + 4
        for j in range(4):
            a(f"v_alignbyte_b32 v{44+j}, v{B+j}, v{A+j}, 2")
        o = 64 + it * 1024
        a(f"ds_write_b128 v13, v[44:47] offset:{o}")
        a(f"ds_write_b128 v13, v[{B}:{B+3}] offset:{o + CS}")
    a(f"""
    s_cmp_lg_u32 s42, 0
    s_cbranch_scc1 {N}_hs
    v_lshlrev_b32 v44, 16, v40
    v_cmp_eq_u32 vcc, 3, v1
    s_nop 1
    v_cndmask_b32 v11, v11, v44, vcc
    v_cmp_eq_u32 vcc, 7, v1
    s_nop 1
    v_cndmask_b32 v11, v11, v40, vcc
    v_lshrrev_b32 v12, 2, v1
    s_movk_i32 s52, {CS}
    v_mul_lo_u32 v12, v12, s52
    v_and_b32 v14, 3, v1
    v_lshl_add_u32 v12, v14, 4, v12
    v_add_u32 v12, s45, v12
    s_mov_b64 exec, 0xff
    ds_write_b128 v12, v[8:11]
    s_mov_b64 exec, -1
    """)
    a.label(f"{N}_hs")
    if GATHER:
        KFp, VFp, WPr, RS = 64, 86, 102, 16
        D0 = 36
        a(f"""
        v_lshlrev_b32 v{WPr+0}, 16, v{D0}
        v_lshlrev_b32 v{WPr+1}, 16, v{D0+2}
        v_and_b32 v{WPr+2}, 0xffff0000, v{D0}
        v_and_b32 v{WPr+3}, 0xffff0000, v{D0+2}
        v_lshlrev_b32 v{WPr+4}, 16, v{D0+1}
        v_lshlrev_b32 v{WPr+5}, 16, v{D0+3}
        v_and_b32 v{WPr+6}, 0xffff0000, v{D0+1}
        v_and_b32 v{WPr+7}, 0xffff0000, v{D0+3}
        v_and_b32 v12, 3, v1
        s_movk_i32 s52, 1536
        v_mul_lo_u32 v12, v12, s52
        v_lshrrev_b32 v14, 2, v1
        v_lshl_add_u32 v14, v14, 4, v12
        s_lshl_b32 s52, s39, 8
        s_add_u32 s52, s52, {131072 + 2*CS + 512}
        v_add_u32 v14, s52, v14
        s_waitcnt vmcnt(14)
        """)
        for r in range(11):
            a(f"v_lshlrev_b32 v{KFp+2*r}, 16, v{T+r}")
            a(f"v_and_b32 v{KFp+2*r+1}, 0xffff0000, v{T+r}")
        for r in range(8):
            a(f"v_lshlrev_b32 v{VFp+2*r}, 16, v{T+11+r}")
            a(f"v_and_b32 v{VFp+2*r+1}, 0xffff0000, v{T+11+r}")
        for t in range(8):
            a(f"v_pk_mul_f32 {p(RS+2*t)}, {p(KFp+2*t)}, {p(WPr+6)}")
        for jj in (2, 1, 0):
            for t in range(8):
                a(f"v_pk_fma_f32 {p(RS+2*t)}, {p(KFp+2*(t+3-jj))}, {p(WPr+2*jj)}, {p(RS+2*t)}")
        for t in range(8):
            a(f"v_pk_mul_f32 {p(RS+2*t)}, {p(RS+2*t)}, {p(VFp+2*t)}")
        for q in range(4):
            a(f"v_cvt_pk_bf16_f32 v{32+q}, v{RS+2*(7-2*q)}, v{RS+2*(6-2*q)}")
            a(f"v_cvt_pk_bf16_f32 v{36+q}, v{RS+2*(7-2*q)+1}, v{RS+2*(6-2*q)+1}")
        a(f"""
        ds_write_b128 v14, v[32:35]
        ds_write_b128 v14, v[36:39] offset:{CHB}
        """)
    a(f"""
    v_mov_b32 v5, 1
    s_waitcnt lgkmcnt(0)
    s_mov_b64 exec, 1
    ds_add_u32 v4, v5
    s_mov_b64 exec, -1
    v_and_b32 v12, 1, v1
    s_movk_i32 s52, {CS - 2}
    v_mul_lo_u32 v12, v12, s52
    v_and_b32 v14, 19, v1
    v_lshl_add_u32 v12, v14, 1, v12
    v_bfe_u32 v14, v1, 2, 1
    v_lshl_add_u32 v12, v14, 4, v12
    v_bfe_u32 v14, v1, 3, 1
    v_lshl_add_u32 v12, v14, 3, v12
    v_lshlrev_b32 v14, 4, v6
    v_sub_u32 v12, v12, v14
    s_add_u32 s53, s45, 16
    v_add_u32 v12, s53, v12
    s_movk_i32 s52, 1536
    v_mul_lo_u32 v13, v6, s52
    v_lshl_add_u32 v13, v7, 4, v13
    s_lshl_b32 s59, s42, 9
    s_add_u32 s53, s45, s59
    s_add_u32 s53, s53, {2*CS}
    v_add_u32 v8, s53, v13
    v_subrev_u32 v13, 64, v8
    s_lshl_b32 s55, s42, 2
    s_add_u32 s55, s55, 8
    """)
    ACC = 64
    for r in range(16): a(f"v_mov_b32 v{ACC+r}, 0")
    a.label(f"{N}_cw")
    a(f"""
    ds_read_b32 v5, v4
    s_waitcnt lgkmcnt(0)
    v_readfirstlane_b32 s52, v5
    s_cmp_ge_u32 s52, 4
    s_cbranch_scc1 {N}_cwd
    s_sleep 2
    s_branch {N}_cw
    """)
    a.label(f"{N}_cwd")
    if TWO:
        a(f"""
        buffer_store_dwordx4 v[152:155], v3, s[24:27], s33 offen sc1
        buffer_store_dwordx4 v[156:159], v3, s[24:27], s33 offen offset:1024 sc1
        """)
    a(f"""
    s_lshl_b32 s53, s2, 4
    s_lshl_b32 s54, s39, 2
    s_add_u32 s53, s53, s54
    s_add_u32 s53, s53, {hex(LY.FF)}
    """)
    publish(a, 53)
    a(f"""
    s_lshl_b32 s53, s37, 14
    s_lshl_b32 s54, s39, 12
    s_add_u32 s53, s53, s54
    s_mov_b32 s20, s6
    s_mov_b32 s21, s7
    s_mov_b32 s22, 0x80000
    v_lshlrev_b32 v80, 6, v1
    buffer_load_dword v81, v80, s[20:23], s53 offen
    """)
    BUF = (16, 84)
    ACC2 = 116
    def reads(buf, d0):
        for dd in range(2):
            for kp in range(2):
                b = BUF[buf] + 16 * dd + 8 * kp
                ao = 8 * (2 * (d0 + dd) - kp + 1)
                a(f"ds_read2_b32 v[{b}:{b+1}], v12 offset0:{ao} offset1:{ao+1}")
                a(f"ds_read2_b32 v[{b+2}:{b+3}], v12 offset0:{ao+2} offset1:{ao+3}")
                a(f"ds_read_b128 v[{b+4}:{b+7}], v13 offset:{kp * 3072 + (32 - d0 - dd) * 16 + 64}")
    def mfmas(buf, acc):
        for q in range(4):
            b = BUF[buf] + 8 * q
            mf(a, acc, b, b + 4, vr(acc, 16))
    def cloop(tag, acc):
        reads(0, 0)
        a.label(f"{N}_clp{tag}")
        a("s_waitcnt lgkmcnt(0)")
        reads(1, 2)
        mfmas(0, acc)
        a("s_waitcnt lgkmcnt(0)")
        reads(0, 4)
        mfmas(1, acc)
        a(f"""
        v_add_u32 v12, 256, v12
        v_subrev_u32 v13, 64, v13
        s_sub_u32 s55, s55, 1
        s_cmp_lg_u32 s55, 0
        s_cbranch_scc1 {N}_clp{tag}
        s_waitcnt lgkmcnt(0)
        """)
    for r in range(16): a(f"v_mov_b32 v{ACC2+r}, 0")
    cloop("a", ACC)
    a(f"""
    s_lshl_b32 s52, s41, 12
    s_add_u32 s52, s52, {XCH}
    v_add_u32 v9, s52, v3
    s_lshl_b32 s52, s41, 2
    v_add_u32 v10, s52, v4
    s_cmp_lg_u32 s42, 0
    s_cbranch_scc1 {N}_cj1
    v_add_u32 v12, {16*64}, v12
    v_add_u32 v13, 256, v13
    s_mov_b32 s55, 4
    """)
    cloop("b", ACC2)
    a.label(f"{N}_cpg")
    a(f"""
    ds_read_b32 v5, v4 offset:8
    s_waitcnt lgkmcnt(0)
    v_readfirstlane_b32 s52, v5
    s_cmp_ge_u32 s52, 8
    s_cbranch_scc1 {N}_cpd
    s_sleep 4
    s_branch {N}_cpg
    """)
    a.label(f"{N}_cpd")
    a("s_nop 7")
    for g in range(4): a(f"ds_write_b128 v9, v[{ACC2+4*g}:{ACC2+4*g+3}] offset:{g*1024}")
    a(f"""
    v_mov_b32 v5, 1
    s_waitcnt lgkmcnt(0)
    s_mov_b64 exec, 1
    ds_write_b32 v10, v5 offset:12
    s_mov_b64 exec, -1
    s_branch {N}_cjd
    """)
    a.label(f"{N}_cj1")
    a(f"""
    ds_read_b32 v5, v10 offset:12
    s_waitcnt lgkmcnt(0)
    v_readfirstlane_b32 s52, v5
    s_cmp_lg_u32 s52, 0
    s_cbranch_scc1 {N}_cj2
    s_sleep 1
    s_branch {N}_cj1
    """)
    a.label(f"{N}_cj2")
    for g in range(4): a(f"ds_read_b128 v[{ACC2+4*g}:{ACC2+4*g+3}], v9 offset:{g*1024}")
    a("s_waitcnt lgkmcnt(0)")
    for r in range(16): a(f"v_add_f32 v{ACC+r}, v{ACC+r}, v{ACC2+r}")
    a.label(f"{N}_cjd")
    a(f"""
    ds_read_b128 v[16:19], v8 offset:512
    ds_read_b128 v[20:23], v8 offset:{3072 + 512}
    s_lshl_b32 s60, s47, 16
    s_and_b32 s61, s47, 0xffff0000
    s_cmp_eq_u32 s41, 0
    s_cselect_b32 s60, s60, s61
    v_lshlrev_b32 v12, 4, v7
    v_lshl_add_u32 v12, v6, 10, v12
    s_lshl_b32 s59, s42, 9
    s_add_u32 s58, s59, s46
    s_add_u32 s58, s58, {hex(LY.YT)}
    s_lshl_b32 s59, s42, 11
    s_waitcnt lgkmcnt(0)
    """)
    for kp in range(2):
        for j in range(4):
            a(f"v_lshlrev_b32 v{24+8*kp+7-2*j}, 16, v{16+4*kp+j}")
            a(f"v_and_b32 v{24+8*kp+6-2*j}, 0xffff0000, v{16+4*kp+j}")
    for r in range(16): a(f"v_fmac_f32 v{ACC+r}, s60, v{24+r}")
    for j in range(8): a(f"v_cvt_pk_bf16_f32 v{16+j}, v{ACC+2*j}, v{ACC+2*j+1}")
    a(f"""
    buffer_store_dwordx4 v[16:19], v12, s[24:27], s58 offen sc1
    buffer_store_dwordx4 v[20:23], v12, s[24:27], s58 offen offset:2048 sc1
    s_lshl_b32 s68, s43, 2
    s_add_u32 s68, s68, s59
    s_add_u32 s68, s68, {hex(LY.FY)}
    """)
    stamp(a, 12)
    a(f"""
    s_cmp_lg_u32 s39, 0
    s_cbranch_scc1 {N}_nall
    s_mov_b32 s53, {hex(LY.FU)}
    """)
    if not TWO: flag_wait(a, 53, nload=4, wide=True, tag="x")
    a(f"s_mov_b32 s53, {hex(LY.FF)}")
    flag_wait(a, 53, nload=4, wide=True, tag="y")
    if not TWO:
        a(f"s_mov_b32 s53, {hex(LY.FQ)}")
        flag_wait(a, 53, nload=4, wide=True, tag="z")
    a.label(f"{N}_nall")
    a(f"""
    v_mov_b32 v5, 1
    s_mov_b64 exec, 1
    ds_add_u32 v4, v5
    s_mov_b64 exec, -1
    """)
    a.label(f"{N}_cw2")
    a(f"""
    ds_read_b32 v5, v4
    s_waitcnt lgkmcnt(0)
    v_readfirstlane_b32 s52, v5
    s_cmp_ge_u32 s52, 8
    s_cbranch_scc1 {N}_cw3
    s_sleep 1
    s_branch {N}_cw2
    """)
    a.label(f"{N}_cw3")
    a(f"""
    v_lshlrev_b32 v80, 7, v1
    s_mul_i32 s53, s37, 49152
    s_mul_i32 s54, s39, 12288
    s_add_u32 s53, s53, s54
    s_add_u32 s53, s53, {hex(LY.WP)}
    buffer_load_dword v81, v80, s[24:27], s53 offen
    s_add_u32 s53, s53, 4096
    buffer_load_dword v81, v80, s[24:27], s53 offen
    """)
    a.label(f"{N}_hend")
    wo_preload(a, "b")
    a(f"""
    s_setprio 0
    s_barrier
    s_barrier
    """)

def conv_loads(a):
    a(f"""
    s_load_dword s47, s[12:13], s44
    s_add_u32 s20, s16, s46
    s_addc_u32 s21, s17, 0
    s_movk_i32 s22, 0x1000
    s_mov_b32 s23, 0x00020000
    v_add_u32 v13, s48, v3
    """)
    if GATHER:
        srd(a, 32, 28, 0x200000)
        srd(a, 60, 30, 0x200000)
    HL = 48
    for it in range(2):
        for k in range(2):
            a(f"buffer_load_dwordx4 v[{HL+8*it+4*k}:{HL+8*it+4*k+3}], v13, s[20:23], 0 offen offset:{it*1024 + 4*k}")
    T = 16
    a(f"""
    buffer_load_dword v40, v5, s[20:23], 0 offen
    """)
    if GATHER:
        a(f"""
        s_mov_b32 s20, s10
        s_mov_b32 s21, s11
        s_lshl_b32 s50, s38, 4
        buffer_load_dwordx4 v[36:39], v5, s[20:23], s50 offen
        s_lshl_b32 s50, s39, 19
        s_add_u32 s50, s50, s44
        v_lshlrev_b32 v12, 13, v1
        v_add_u32 v12, s50, v12
        v_add_u32 v13, 0x1000, v12
        v_subrev_u32 v14, 0xc00, v12
        """)
    else:
        pass

def conv_u(a):
    if True:
        a(f"""
        s_lshl_b32 s50, s36, 9
        s_add_u32 s50, s50, {hex(LY.FU)}
        """)
        if not TWO: flag_wait(a, 50, nload=2, tag="u")
        a(f"""
        s_add_u32 s50, s46, s48
        s_add_u32 m0, s49, {2*CS + 512}
        s_add_u32 s57, s50, {hex(LY.UT)}
        buffer_load_dwordx4 v3, s[24:27], s57 offen sc1 lds
        s_add_u32 m0, s49, {2*CS + 512 + 1536}
        s_add_u32 s57, s50, {hex(LY.UT + 1024)}
        buffer_load_dwordx4 v3, s[24:27], s57 offen sc1 lds
        """)

def conv_gathers(a):
    T = 16
    if not GATHER:
        conv_u(a)
        if TWO:
            a.comment("packed copy of wqkv for layer 2: rows [32r,32r+32) of column tile c', tile f = cw (3 repeats 2)")
            a(f"""
            s_mov_b32 s20, s34
            s_mov_b32 s21, s35
            s_mov_b32 s22, 0x180000
            v_lshrrev_b32 v12, 2, v1
            s_movk_i32 s52, 3072
            v_mul_lo_u32 v12, v12, s52
            v_and_b32 v13, 3, v1
            v_lshl_add_u32 v12, v13, 4, v12
            s_lshr_b32 s52, s2, 4
            s_and_b32 s53, s2, 15
            s_min_u32 s56, s39, 2
            s_lshl_b32 s57, s56, 10
            s_lshl_b32 s58, s53, 6
            s_add_u32 s57, s57, s58
            s_mul_i32 s58, s52, {32*3072}
            s_add_u32 s57, s57, s58
            buffer_load_dwordx4 v[152:155], v12, s[20:23], s57 offen
            s_add_u32 s57, s57, {16*3072}
            buffer_load_dwordx4 v[156:159], v12, s[20:23], s57 offen
            s_mul_i32 s55, s53, {8*12288}
            s_lshr_b32 s58, s52, 1
            s_mul_i32 s58, s58, 12288
            s_add_u32 s55, s55, s58
            s_and_b32 s58, s52, 1
            s_lshl_b32 s58, s58, 11
            s_add_u32 s55, s55, s58
            s_lshl_b32 s56, s56, 12
            s_add_u32 s55, s55, s56
            s_add_u32 s33, s55, {hex(LY.WP)}
            """)
        prefill(a)
        return
    for r in range(3):
        a(f"buffer_load_dword v{T+r}, v14, s[32:35], 0 offen offset:{r*1024}")
    for r in range(8):
        a(f"buffer_load_dword v{T+3+r}, v{12 if r < 4 else 13}, s[32:35], 0 offen offset:{(r%4)*1024}")
    for r in range(8):
        a(f"buffer_load_dword v{T+11+r}, v{12 if r < 4 else 13}, s[60:63], 0 offen offset:{(r%4)*1024}")
    prefill(a)

def wo_preload(a, tag):
    a.label(f"{N}_wp{tag}")
    a(f"""
    ds_read_b32 v84, v4 offset:8
    s_waitcnt lgkmcnt(0)
    v_readfirstlane_b32 s52, v84
    s_cmp_ge_u32 s52, 8
    s_cbranch_scc1 {N}_wq{tag}
    s_sleep 8
    s_branch {N}_wp{tag}
    """)
    a.label(f"{N}_wq{tag}")
    a(f"""
    s_mov_b32 s20, s6
    s_mov_b32 s21, s7
    s_mov_b32 s22, 0x80000
    s_mov_b32 s23, 0x00020000
    v_bfe_u32 v84, v1, 2, 3
    v_lshlrev_b32 v84, 10, v84
    v_lshrrev_b32 v85, 5, v1
    v_lshl_add_u32 v84, v85, 6, v84
    v_and_b32 v85, 3, v1
    v_lshl_add_u32 v84, v85, 4, v84
    s_lshr_b32 s52, s37, 2
    s_lshl_b32 s52, s52, 7
    s_lshl_b32 s53, s39, 13
    s_add_u32 s52, s52, s53
    s_lshl_b32 s54, s39, 10
    """)
    for n in range(16):
        a(f"s_add_u32 m0, s54, {(n >> 2)*32768 + (n & 3)*4096}")
        a(f"s_add_u32 s53, s52, {n*32768}")
        a(f"buffer_load_dwordx4 v84, s[20:23], s53 offen lds")

def prefill(a):
    a(f"""
    v_mov_b32 v160, -1
    v_mov_b32 v161, -1
    v_mov_b32 v162, -1
    v_mov_b32 v163, -1
    s_lshl_b32 s58, s36, 2
    s_and_b32 s59, s37, 3
    s_add_u32 s58, s58, s59
    s_lshr_b32 s59, s37, 2
    s_lshl_b32 s50, s59, 18
    s_lshl_b32 s64, s39, 16
    s_add_u32 s50, s50, s64
    s_lshl_b32 s64, s58, 10
    s_add_u32 s50, s50, s64
    """)
    for L in (0, 1):
        for t in range(2):
            a(f"s_add_u32 s64, s50, {hex(LY.OF + L*LY.OFL + t*32768)}")
            a(f"buffer_store_dwordx4 v[160:163], v3, s[24:27], s64 offen sc1")
    a(f"""
    s_lshl_b32 s50, s58, 1
    s_add_u32 s50, s50, s42
    s_lshl_b32 s64, s50, 15
    s_lshl_b32 s66, s59, 12
    s_add_u32 s64, s64, s66
    s_lshl_b32 s66, s41, 11
    s_add_u32 s64, s64, s66
    s_add_u32 s64, s64, {hex(LY.X2F)}
    buffer_store_dwordx4 v[160:163], v3, s[24:27], s64 offen sc1
    buffer_store_dwordx4 v[160:163], v3, s[24:27], s64 offen offset:1024 sc1
    s_add_u32 s64, s64, {hex(LY.GD)}
    buffer_store_dwordx4 v[160:163], v3, s[24:27], s64 offen sc1
    buffer_store_dwordx4 v[160:163], v3, s[24:27], s64 offen offset:1024 sc1
    s_lshl_b32 s64, s50, 12
    s_lshl_b32 s66, s59, 9
    s_add_u32 s64, s64, s66
    s_lshl_b32 s66, s41, 8
    s_add_u32 s64, s64, s66
    s_add_u32 s64, s64, {hex(LY.ST2)}
    buffer_store_dword v160, v2, s[24:27], s64 offen sc1
    s_add_u32 s64, s64, {hex(LY.GD)}
    buffer_store_dword v160, v2, s[24:27], s64 offen sc1
    s_sub_u32 s64, s64, {hex(LY.GD + LY.ST2)}
    s_lshl_b32 s64, s64, 1
    s_add_u32 s64, s64, {hex(LY.GR)}
    s_mov_b64 exec, 0xffffffff
    buffer_store_dwordx4 v[160:163], v3, s[24:27], s64 offen
    s_add_u32 s64, s64, {hex(LY.GRL)}
    buffer_store_dwordx4 v[160:163], v3, s[24:27], s64 offen
    s_mov_b64 exec, -1
    s_lshl_b32 s50, s36, 1
    s_and_b32 s64, s37, 1
    s_add_u32 s50, s50, s64
    s_lshl_b32 s50, s50, 2
    s_add_u32 s50, s50, s39
    s_lshl_b32 s50, s50, 10
    s_lshr_b32 s64, s37, 1
    s_lshl_b32 s64, s64, 17
    s_add_u32 s50, s50, s64
    """)
    for base in (LY.QF, LY.KF, LY.VF):
        for h in range(2):
            a(f"s_add_u32 s64, s50, {hex(LY.QKVL + base + h*65536)}")
            a(f"buffer_store_dwordx4 v[160:163], v3, s[24:27], s64 offen sc1")

def oproj(a):
    a.comment("================= out-projection + gated layer =================")
    a.label(f"{N}_op")
    a(f"""
    s_lshl_b32 s41, s36, 2
    s_and_b32 s46, s37, 3
    s_add_u32 s41, s41, s46
    s_lshr_b32 s42, s37, 2
    s_cmp_lt_u32 s40, 4
    s_cbranch_scc1 {N}_opc
    s_cmp_lt_u32 s40, 8
    s_cbranch_scc1 {N}_opb
    """)
    a(f"""
    s_cmp_lg_u32 s3, 0
    s_cbranch_scc1 {N}_oph
    """)
    publish(a, 68)
    a.label(f"{N}_oph")
    a(f"""
    s_sub_u32 s53, s40, 8
    s_and_b32 s55, s53, 1
    s_lshl_b32 s55, s55, 15
    s_lshr_b32 s56, s53, 1
    s_lshl_b32 s56, s56, 14
    s_add_u32 s55, s55, s56
    s_lshl_b32 s56, s41, 16
    s_add_u32 s56, s56, s55
    s_mul_i32 s57, s3, {hex(LY.OFL)}
    s_add_u32 s56, s56, s57
    s_add_u32 s56, s56, {hex(LY.OF)}
    s_add_u32 s57, s56, 4096
    s_add_u32 s58, s56, 8192
    s_add_u32 s59, s56, 12288
    s_and_b32 s55, s53, 1
    s_lshl_b32 s55, s55, 16
    s_lshr_b32 s54, s53, 1
    s_lshl_b32 s54, s54, 15
    s_add_u32 s55, s55, s54
    s_add_u32 s55, s55, 16384
    v_add_u32 v6, s55, v3
    """)
    ou = [(lambda n=n: a(f"buffer_load_dwordx4 v[{16+4*n}:{19+4*n}], v3, s[24:27], s{56 + n // 4} offen offset:{(n % 4)*1024} sc1"),
           range(16 + 4*n, 20 + 4*n),
           lambda n=n: a(f"ds_write_b128 v6, v[{16+4*n}:{19+4*n}] offset:{n*1024}")) for n in range(16)]
    a("v_lshlrev_b32 v14, 10, v1")
    a("s_add_u32 s54, s56, 1020")
    stamp(a, 2)
    hint_wait(a, 14, "s54", 16, thr=THR_O)
    stamp(a, 3)
    for u in ou: u[0]()
    stamp(a, 4)
    checked_units(a, ou, wait=lambda: (a("s_waitcnt vmcnt(0)"), stamp(a, 5)))
    if DIAGFIX(): a("s_sub_u32 s76, 0x8000, s69\ns_add_u32 s76, s76, s70")
    a(f"s_branch {N}_opj")
    a.label(f"{N}_opb")
    a(f"""
    s_cmp_lg_u32 s40, 4
    s_cbranch_scc1 {N}_opj
    """)
    a(f"""
    s_cmp_lg_u32 s3, 0
    s_cbranch_scc1 {N}_ygo
    s_lshr_b32 s53, s41, 4
    s_lshl_b32 s53, s53, 11
    s_lshl_b32 s55, s42, 8
    s_add_u32 s53, s53, s55
    s_add_u32 s53, s53, {hex(LY.FY)}
    """)
    flag_wait(a, 53, tag="w")
    a.label(f"{N}_ygo")
    a(f"""
    v_lshrrev_b32 v5, 3, v1
    v_lshlrev_b32 v5, 12, v5
    v_and_b32 v6, 3, v1
    v_lshl_add_u32 v5, v6, 10, v5
    v_bfe_u32 v6, v1, 2, 1
    v_lshl_add_u32 v5, v6, 4, v5
    s_lshl_b32 s55, s42, 18
    s_lshl_b32 s56, s41, 5
    s_add_u32 s55, s55, s56
    """)
    for n in range(8):
        a(f"s_mov_b32 m0, {YL + n*1024}")
        a(f"s_add_u32 s56, s55, {hex(LY.YT + n*32768)}")
        a(f"buffer_load_dwordx4 v5, s[24:27], s56 offen sc1 lds")
    a("s_waitcnt vmcnt(0)")
    a.label(f"{N}_opj")
    if DIAGFIX():
        stamp(a, 13)
        a(f"s_cmp_lg_u32 s3, {DIAGL}")
        a(f"s_cbranch_scc1 {N}_dg1")
        stamp_flush(a, 3, 14, 40, 14)
        a("s_mov_b64 exec, -1\nv_and_b32 v1, 63, v0\nv_lshlrev_b32 v2, 2, v1")
        a.label(f"{N}_dg1")
    a(f"""
    s_waitcnt lgkmcnt(0)
    s_barrier
    """)
    a.label(f"{N}_opw")
    a(f"""
    s_barrier
    s_cmp_lg_u32 s3, 0
    s_cbranch_scc1 {N}_done
    s_branch {N}_qkv
    """)
    a.label(f"{N}_opc")
    RES, YR, ACC, FR, T, RF, G = 16, 24, 32, 48, 80, 88, 104
    a(f"""
    s_and_b32 s46, s40, 1
    s_lshr_b32 s47, s40, 1
    s_lshl_b32 s43, s41, 1
    s_add_u32 s43, s43, s46
    v_and_b32 v7, 31, v1
    v_lshlrev_b32 v8, 4, v7
    v_lshlrev_b32 v7, 10, v7
    v_lshrrev_b32 v6, 5, v1
    v_lshl_add_u32 v7, v6, 4, v7
    s_lshl_b32 s58, s43, 15
    s_lshl_b32 s56, s42, 7
    s_add_u32 s58, s58, s56
    s_lshl_b32 s56, s47, 6
    s_add_u32 s58, s58, s56
    s_lshl_b32 s55, s43, 15
    s_lshl_b32 s56, s42, 12
    s_add_u32 s55, s55, s56
    s_lshl_b32 s56, s47, 11
    s_add_u32 s55, s55, s56
    s_add_u32 s55, s55, {hex(LY.X2F)}
    s_mov_b32 s22, 0x200000
    s_mov_b32 s23, 0x00020000
    s_cmp_lg_u32 s3, 0
    s_cbranch_scc1 {N}_opr1
    s_mov_b32 s20, s4
    s_mov_b32 s21, s5
    buffer_load_dwordx4 v[{RES}:{RES+3}], v7, s[20:23], s58 offen
    buffer_load_dwordx4 v[{RES+4}:{RES+7}], v7, s[20:23], s58 offen offset:32
    s_branch {N}_opr2
    """)
    a.label(f"{N}_opr1")
    a(f"""
    s_mov_b32 s20, s8
    s_mov_b32 s21, s9
    buffer_load_dwordx4 v[{RES}:{RES+3}], v3, s[24:27], s55 offen sc1
    buffer_load_dwordx4 v[{RES+4}:{RES+7}], v3, s[24:27], s55 offen offset:1024 sc1
    """)
    a.label(f"{N}_opr2")
    a(f"""
    v_bfe_u32 v10, v1, 2, 2
    v_lshlrev_b32 v5, 10, v6
    v_lshl_add_u32 v4, v10, 7, v5
    v_lshl_add_u32 v5, v10, 6, v5
    v_bfe_u32 v10, v1, 4, 1
    v_lshl_add_u32 v5, v10, 5, v5
    v_lshl_add_u32 v4, v10, 5, v4
    v_and_b32 v10, 3, v1
    v_lshl_add_u32 v4, v10, 3, v4
    v_and_b32 v10, 1, v1
    v_lshl_add_u32 v5, v10, 4, v5
    v_bfe_u32 v10, v1, 1, 1
    v_lshl_add_u32 v5, v10, 3, v5
    s_lshl_b32 s57, s47, 9
    v_add_u32 v5, s57, v5
    s_lshl_b32 s57, s47, 12
    s_lshl_b32 s56, s46, 6
    s_add_u32 s57, s57, s56
    s_add_u32 s57, s57, {YL}
    v_add_u32 v4, s57, v4
    s_lshl_b32 s57, s46, 16
    s_add_u32 s57, s57, 16384
    v_add_u32 v9, s57, v3
    v_add_u32 v11, 0x10000, v5
    s_mul_i32 s59, s3, {hex(LY.GRL)}
    s_lshl_b32 s60, s43, 13
    s_add_u32 s59, s59, s60
    s_add_u32 s59, s59, {hex(LY.GR)}
    s_lshl_b32 s60, s42, 10
    s_lshl_b32 s61, s47, 9
    s_add_u32 s60, s60, s61
    s_add_u32 s60, s60, s59
    s_add_u32 s61, s59, 4096
    s_mov_b32 s62, 0x3f803f80
    s_barrier
    """)
    stamp(a, 5)
    def rd(ks):
        b = FR + 8 * (ks & 3)
        a(f"ds_read_b128 v[{b}:{b+3}], v9 offset:{(ks >> 4)*32768 + (ks & 15)*1024}")
        wb, wo_ = (5 if ks < 16 else 11), ((ks >> 3) & 1)*32768 + (ks & 7)*2048
        a(f"ds_read_b64_tr_b16 v[{b+4}:{b+5}], v{wb} offset:{wo_}")
        a(f"ds_read_b64_tr_b16 v[{b+6}:{b+7}], v{wb} offset:{wo_ + 256}")
    for i in range(4): rd(i)
    for ks in range(32):
        a(f"s_waitcnt lgkmcnt({3*min(3, 31 - ks)})")
        b = FR + 8 * (ks & 3)
        mf(a, ACC, b + 4, b, "0" if ks == 0 else vr(ACC, 16))
        if ks + 4 < 32: rd(ks + 4)
    for q in range(4):
        a(f"ds_read_b64_tr_b16 v[{YR+2*q}:{YR+2*q+1}], v4 offset:{(q >> 1)*2048 + (q & 1)*512}")
    a("s_barrier")
    a("s_waitcnt vmcnt(0)")
    for j in range(8):
        a(f"v_lshlrev_b32 v{RF+2*j}, 16, v{RES+j}")
        a(f"v_and_b32 v{RF+2*j+1}, 0xffff0000, v{RES+j}")
    a(f"""
    v_mov_b32 v12, 0
    v_mov_b32 v14, 0
    """)
    stamp(a, 6)
    for j in range(8): a(f"v_cvt_pk_bf16_f32 v{T+j}, v{ACC+2*j}, v{ACC+2*j+1}")
    for j in range(8):
        a(f"v_lshlrev_b32 v{ACC+2*j}, 16, v{T+j}")
        a(f"v_and_b32 v{ACC+2*j+1}, 0xffff0000, v{T+j}")
    for j in range(8): a(f"v_pk_add_f32 {p(ACC+2*j)}, {p(ACC+2*j)}, {p(RF+2*j)}")
    for j in range(8): a(f"v_cvt_pk_bf16_f32 v{T+j}, v{ACC+2*j}, v{ACC+2*j+1}")
    for j in range(8):
        a(f"v_dot2c_f32_bf16 v12, s62, v{T+j}")
        a(f"v_dot2c_f32_bf16 v14, v{T+j}, v{T+j}")
    a(f"""
    s_nop 2
    v_mov_b32 v13, v12
    v_mov_b32 v15, v14
    s_nop 1
    v_permlane32_swap_b32 v12, v13
    v_permlane32_swap_b32 v14, v15
    s_nop 1
    v_add_f32 v12, v12, v13
    v_add_f32 v14, v14, v15
    v_mov_b32 v13, s65
    v_mov_b32 v15, s65
    s_mov_b64 exec, 0xffffffff
    buffer_store_dwordx4 v[12:15], v8, s[24:27], s60 offen
    s_add_u32 s66, s60, {hex(LY.GD)}
    buffer_store_dwordx4 v[12:15], v8, s[24:27], s66 offen sc1
    s_mov_b64 exec, -1
    s_mov_b32 s69, 0x8000
    v_mov_b32 v6, v3
    """)
    for j in range(8):
        a(f"v_lshlrev_b32 v{ACC+2*j}, 16, v{T+j}")
        a(f"v_and_b32 v{ACC+2*j+1}, 0xffff0000, v{T+j}")
    a("s_waitcnt lgkmcnt(0)")
    for j in range(8):
        a(f"v_lshlrev_b32 v{RF+2*j}, 16, v{YR+j}")
        a(f"v_and_b32 v{RF+2*j+1}, 0xffff0000, v{YR+j}")
    a.label(f"{N}_gp")
    for i in range(8):
        a(f"buffer_load_dwordx4 v[{G+4*i}:{G+4*i+3}], v6, s[24:27], s{59 if i < 4 else 61} offen offset:{(i%4)*1024} sc1")
    a("s_waitcnt vmcnt(0)")
    tags = [G + 4*i + k for i in range(8) for k in (1, 3)]
    a(f"v_min3_u32 v10, v{tags[0]}, v{tags[1]}, v{tags[2]}")
    a(f"v_max3_u32 v11, v{tags[0]}, v{tags[1]}, v{tags[2]}")
    for q in range(3, 15, 2):
        a(f"v_min3_u32 v10, v10, v{tags[q]}, v{tags[q+1]}")
        a(f"v_max3_u32 v11, v11, v{tags[q]}, v{tags[q+1]}")
    a(f"""
    v_min_u32 v10, v10, v{tags[15]}
    v_max_u32 v11, v11, v{tags[15]}
    v_xor_b32 v10, s65, v10
    v_xor_b32 v11, s65, v11
    v_or_b32 v10, v10, v11
    v_cmp_eq_u32 vcc, 0, v10
    s_sub_u32 s69, s69, 1
    s_cbranch_scc1 {N}_gpo
    s_cmp_eq_u64 vcc, -1
    s_cbranch_scc1 {N}_gpo
    """)
    switch_copy(a, f"{N}_gp", [6])
    a(f"""
    s_sleep {GSLEEP}
    s_branch {N}_gp
    """)
    a.label(f"{N}_gpo")
    stamp(a, 7)
    for i in range(1, 8):
        a(f"v_add_f32 v{G}, v{G}, v{G+4*i}")
        a(f"v_add_f32 v{G+2}, v{G+2}, v{G+4*i+2}")
    a(f"""
    v_mov_b32 v{G+1}, v{G}
    v_mov_b32 v{G+3}, v{G+2}
    s_mov_b32 s56, {f32hex(1.0/512)}
    s_nop 0
    v_permlane32_swap_b32 v{G}, v{G+1}
    v_permlane32_swap_b32 v{G+2}, v{G+3}
    s_nop 1
    v_add_f32 v10, v{G}, v{G+1}
    v_add_f32 v11, v{G+2}, v{G+3}
    v_mul_f32 v10, s56, v10
    v_mul_f32 v11, s56, v11
    v_fma_f32 v11, -v10, v10, v11
    v_max_f32 v11, 0, v11
    v_add_f32 v11, {f32hex(1e-5)}, v11
    v_rsq_f32 v12, v11
    s_nop 0
    v_mul_f32 v14, v10, v12
    v_sub_f32 v14, 0, v14
    v_mov_b32 v13, v12
    v_mov_b32 v15, v14
    """)
    for j in range(8): a(f"v_pk_fma_f32 {p(FR+2*j)}, {p(ACC+2*j)}, v[12:13], v[14:15]")
    for j in range(8): a(f"v_pk_fma_f32 {p(FR+2*j)}, {p(FR+2*j)}, {p(RF+2*j)}, {p(ACC+2*j)}")
    for j in range(8): a(f"v_cvt_pk_bf16_f32 v{T+j}, v{FR+2*j}, v{FR+2*j+1}")
    a(f"""
    s_cmp_eq_u32 s3, 0
    s_cbranch_scc1 {N}_ops0
    buffer_store_dwordx4 v[{T}:{T+3}], v7, s[20:23], s58 offen
    buffer_store_dwordx4 v[{T+4}:{T+7}], v7, s[20:23], s58 offen offset:32
    """)
    stamp(a, 13)
    stamp_flush(a, 1, 14, 40, 14)
    a("s_endpgm")
    a.label(f"{N}_ops0")
    SX = "" if FAST else "sc1"
    sanitize(a, range(T, T + 8))
    a(f"""
    buffer_store_dwordx4 v[{T}:{T+3}], v3, s[24:27], s55 offen {SX}
    buffer_store_dwordx4 v[{T+4}:{T+7}], v3, s[24:27], s55 offen offset:1024 {SX}
    s_add_u32 s55, s55, {hex(LY.GD)}
    v_mov_b32 v10, 0
    v_mov_b32 v11, 0
    """)
    for j in range(8):
        a(f"v_dot2c_f32_bf16 v10, s62, v{T+j}")
        a(f"v_dot2c_f32_bf16 v11, v{T+j}, v{T+j}")
    a(f"""
    v_lshrrev_b32 v8, 1, v8
    s_sub_u32 s60, s60, {hex(LY.GR)}
    s_lshr_b32 s61, s60, 1
    s_add_u32 s61, s61, {hex(LY.ST2)}
    v_mov_b32 v12, v10
    v_mov_b32 v13, v11
    s_lshr_b32 s60, s60, 7
    s_add_u32 s60, s60, {hex(LY.FX)}
    v_permlane32_swap_b32 v10, v12
    v_permlane32_swap_b32 v11, v13
    s_nop 0
    v_add_f32 v10, v10, v12
    v_add_f32 v11, v11, v13
    v_min_u32 v10, s67, v10
    v_min_u32 v11, s67, v11
    s_mov_b64 exec, 0xffffffff
    buffer_store_dwordx2 v[10:11], v8, s[24:27], s61 offen
    s_add_u32 s61, s61, {hex(LY.GD)}
    buffer_store_dwordx2 v[10:11], v8, s[24:27], s61 offen sc1
    s_mov_b64 exec, -1
    buffer_store_dwordx4 v[{T}:{T+3}], v3, s[24:27], s55 offen sc1
    buffer_store_dwordx4 v[{T+4}:{T+7}], v3, s[24:27], s55 offen offset:1024 sc1
    """)
    stamp(a, 8)

def qkv(a):
    a.comment("================= layer-2 QKV projection =================")
    a.label(f"{N}_qkv")
    SC = 98304
    a(f"""
    s_lshl_b32 s41, s36, 1
    s_and_b32 s46, s37, 1
    s_add_u32 s41, s41, s46
    s_lshr_b32 s42, s37, 1
    s_and_b32 s39, s40, 3
    s_lshl_b32 s43, s41, 2
    s_add_u32 s43, s43, s39
    s_cmp_lt_u32 s40, 4
    s_cbranch_scc1 {N}_qc
    s_cmp_lt_u32 s40, 8
    s_cbranch_scc1 {N}_qb
    s_lshl_b32 s53, s39, 10
    s_mul_i32 s52, s42, 98304
    s_add_u32 s52, s52, s53
    s_add_u32 s52, s52, {hex(LY.WP)}
    """)
    for m in range(24):
        a(f"s_add_u32 m0, s53, {m*4096}")
        a(f"s_add_u32 s51, s52, {m*4096}")
        a(f"buffer_load_dwordx4 v3, s[24:27], s51 offen sc1 lds")
        if m >= WDEPTH - 1: a(f"s_waitcnt vmcnt({WDEPTH - 1})")
    a(f"""
    s_waitcnt vmcnt(0)
    s_barrier
    s_branch {N}_qw
    """)
    a.label(f"{N}_qb")
    a(f"""
    v_lshlrev_b32 v7, 3, v1
    s_lshl_b32 s52, s43, 12
    s_add_u32 s52, s52, {hex(LY.ST2)}
    s_min_u32 s53, s39, 2
    s_lshl_b32 s51, s53, 11
    s_lshl_b32 s54, s42, 7
    s_add_u32 s51, s51, s54
    s_add_u32 s51, s51, {hex(LY.CSB)}
    v_and_b32 v4, 31, v1
    v_lshlrev_b32 v4, 2, v4
    buffer_load_dword v32, v4, s[24:27], s51 offen sc1
    s_lshl_b32 s53, s53, 7
    s_add_u32 s53, s53, {SC + 2048}
    v_add_u32 v5, s53, v4
    s_lshl_b32 s53, s39, 9
    s_add_u32 s53, s53, {SC}
    v_add_u32 v4, s53, v4
    """)
    a("s_mov_b32 s69, 0x8000")
    a.label(f"{N}_stp")
    for i2 in range(8):
        a(f"buffer_load_dwordx2 v[{16+2*i2}:{17+2*i2}], v7, s[24:27], s52 offen offset:{512*i2} sc1")
    a("s_waitcnt vmcnt(0)")
    maxchain(a, 15, range(16, 32))
    a(f"""
    v_cmp_eq_u32 vcc, -1, v15
    s_cmp_eq_u64 vcc, 0
    s_cbranch_scc1 {N}_std
    s_sub_u32 s69, s69, 1
    s_cbranch_scc1 {N}_std
    """)
    switch_copy(a, f"{N}_stp", [7])
    a(f"""
    s_sleep 1
    s_branch {N}_stp
    """)
    a.label(f"{N}_std")
    a(f"""
    s_lshl_b32 s58, s39, 2
    s_add_u32 s58, s58, {FLAG + 32}
    v_mov_b32 v6, s58
    v_or_b32 v8, 1, v7
    s_mov_b64 exec, 1
    ds_write_b32 v6, v8
    s_mov_b64 exec, -1
    """)
    for i2 in range(1, 8):
        a(f"v_add_f32 v16, v16, v{16+2*i2}")
        a(f"v_add_f32 v17, v17, v{17+2*i2}")
    a(f"""
    v_mov_b32 v18, v16
    v_mov_b32 v19, v17
    s_mov_b32 s56, {f32hex(1.0/512)}
    s_nop 0
    v_permlane32_swap_b32 v16, v18
    v_permlane32_swap_b32 v17, v19
    s_nop 0
    v_add_f32 v16, v16, v18
    v_add_f32 v17, v17, v19
    v_mul_f32 v16, s56, v16
    v_mul_f32 v17, s56, v17
    v_fma_f32 v17, -v16, v16, v17
    v_max_f32 v17, 0, v17
    v_add_f32 v17, {f32hex(1e-5)}, v17
    v_rsq_f32 v17, v17
    s_nop 0
    v_mul_f32 v16, v16, v17
    v_sub_f32 v16, 0, v16
    ds_write_b32 v4, v17
    ds_write_b32 v4, v16 offset:128
    ds_write_b32 v5, v32
    s_waitcnt lgkmcnt(0)
    s_barrier
    """)
    a.label(f"{N}_qw")
    a("s_barrier")
    a.label(f"{N}_qw2")
    a(f"""
    s_barrier
    s_branch {N}_qend
    """)
    a.label(f"{N}_qc")
    XR, ACC, WFR, TQ, TV, PK = 20, 84, 132, 20, 52, 132
    a(f"""
    s_lshl_b32 s49, s43, 15
    s_add_u32 s49, s49, {hex(LY.X2F)}
    """)
    for g in range(8): a(f"s_add_u32 s{58+g if g < 6 else 46+g}, s49, {g*4096}")
    def xl(ks):
        g = ks // 4
        r = XR + 4 * (ks & 15)
        a(f"buffer_load_dwordx4 v[{r}:{r+3}], v16, s[24:27], s{58+g if g < 6 else 46+g} offen offset:{(ks % 4)*1024} sc1")
    xu = [(lambda i=i: (xl(2*i), xl(2*i + 1)), range(XR + 8*i, XR + 8*i + 8), None) for i in range(8)]
    a(f"""
    s_lshl_b32 s50, s40, 2
    s_add_u32 s50, s50, {FLAG + 32}
    v_mov_b32 v14, s50
    """)
    a.label(f"{N}_xw")
    a(f"""
    ds_read_b32 v16, v14
    s_waitcnt lgkmcnt(0)
    v_readfirstlane_b32 s50, v16
    s_cmp_lg_u32 s50, 0
    s_cbranch_scc0 {N}_xw
    s_and_b32 s50, s50, {hex(LY.GD)}
    v_or_b32 v16, s50, v3
    """)
    stamp(a, 1)
    for u in xu: u[0]()
    stamp(a, 2)
    a(f"""
    v_lshrrev_b32 v6, 5, v1
    v_and_b32 v4, 31, v1
    v_lshlrev_b32 v18, 9, v6
    v_bfe_u32 v19, v1, 2, 2
    v_lshl_add_u32 v18, v19, 6, v18
    v_bfe_u32 v19, v1, 4, 1
    v_lshl_add_u32 v18, v19, 5, v18
    v_and_b32 v19, 3, v1
    v_lshl_add_u32 v18, v19, 3, v18
    v_add_u32 v19, 49152, v18
    s_lshl_b32 s50, s40, 9
    s_add_u32 s50, s50, {SC}
    v_lshl_add_u32 v12, v4, 2, s50
    v_lshl_add_u32 v11, v6, 4, s50
    v_lshlrev_b32 v13, 4, v6
    v_add_u32 v13, {SC}, v13
    v_lshlrev_b32 v5, 2, v4
    v_add_u32 v5, {SC}, v5
    s_lshl_b32 s57, s42, 17
    s_lshl_b32 s51, s43, 10
    s_add_u32 s57, s57, s51
    s_add_u32 s57, s57, {hex(LY.QKVL)}
    v_and_b32 v10, 3, v1
    v_bfe_u32 v9, v1, 2, 1
    v_lshl_or_b32 v10, v9, 3, v10
    v_bfe_u32 v9, v1, 3, 1
    v_lshl_or_b32 v10, v9, 2, v10
    v_lshlrev_b32 v10, 4, v10
    v_lshl_or_b32 v10, v6, 8, v10
    v_bfe_u32 v9, v1, 4, 1
    v_lshl_or_b32 v10, v9, 16, v10
    s_barrier
    """)
    def wread(ks, fs=(0, 1, 2)):
        j, kk = ks // 4, ks % 4
        b = WFR + 12 * (ks % 3)
        for f in fs:
            for q in range(2):
                off = (j & 3) * 12288 + f*4096 + kk*1024 + q*256
                a(f"ds_read_b64_tr_b16 v[{b+4*f+2*q}:{b+4*f+2*q+1}], v{18 + (j >> 2)} offset:{off}")
    stamp(a, 3)
    wread(0); wread(1)
    for ks in range(32):
        def gcheck(k0, w):
            checked(a, lambda: [xl(k2) for k2 in range(k0, k0 + 4)], range(XR + 4*(k0 & 15), XR + 4*(k0 & 15) + 16),
                    first_wait=w, switch=[16])
        if ks == 0:
            gcheck(0, 12)
            stamp(a, 9)
        a(f"s_waitcnt lgkmcnt({6 if ks < 31 else 0})")
        if ks == 30:
            a("s_barrier")
        b = WFR + 12 * (ks % 3)
        x = vr(XR + 4*(ks & 15), 4)
        for f in range(3):
            acc = vr(ACC + 16*f, 16)
            c = "0" if ks == 0 else acc
            w = vr(b + 4*f, 4)
            if f < 2: a(f"v_mfma_f32_32x32x16_bf16 {acc}, {w}, {x}, {c}")
            else:     a(f"v_mfma_f32_32x32x16_bf16 {acc}, {x}, {w}, {c}")
            if ks + 2 < 32: wread(ks + 2, (f,))
        if ks % 4 == 3 and ks < 31: gcheck(ks + 1, min(11, 27 - ks))
        if ks < 16: xl(ks + 16)
        if ks == 30:
            a("ds_read_b32 v16, v12")
            a("ds_read_b32 v17, v12 offset:128")
            a("ds_read_b32 v14, v5 offset:2304")
            for g in range(4):
                a(f"ds_read_b128 v[{TQ+4*g}:{TQ+4*g+3}], v13 offset:{2048 + 32*g}")
    stamp(a, 10)
    for g in range(4):
        a(f"ds_read_b128 v[{TQ+16+4*g}:{TQ+16+4*g+3}], v13 offset:{2176 + 32*g}")
        a(f"ds_read_b128 v[{TV+4*g}:{TV+4*g+3}], v11 offset:{32*g}")
        a(f"ds_read_b128 v[{TV+16+4*g}:{TV+16+4*g+3}], v11 offset:{128 + 32*g}")
    a(f"""
    s_mov_b32 s56, {f32hex(LY.QSCALE)}
    v_mul_f32 v6, s56, v16
    v_mul_f32 v8, s56, v17
    v_mov_b32 v7, v6
    v_mov_b32 v9, v8
    v_mov_b32 v18, v17
    v_mov_b32 v19, v17
    v_mov_b32 v17, v16
    v_mov_b32 v15, v14
    """)
    def qk(f, rs, mr):
        for j in range(8): a(f"v_pk_mul_f32 {p(ACC+16*f+2*j)}, {p(ACC+16*f+2*j)}, {p(rs)}")
        for j in range(8): a(f"v_pk_fma_f32 {p(ACC+16*f+2*j)}, {p(TQ+16*f+2*j)}, {p(mr)}, {p(ACC+16*f+2*j)}")
        for j in range(8): a(f"v_cvt_pk_bf16_f32 v{PK+8*f+j}, v{ACC+16*f+2*j}, v{ACC+16*f+2*j+1}")
        sanitize(a, range(PK + 8*f, PK + 8*f + 8))
        base = LY.QF if f == 0 else LY.KF
        a(f"s_add_u32 s58, s57, {hex(base)}")
        a(f"buffer_store_dwordx4 v[{PK+8*f}:{PK+8*f+3}], v3, s[24:27], s58 offen sc1")
        a(f"s_add_u32 s58, s57, {hex(base + 65536)}")
        a(f"buffer_store_dwordx4 v[{PK+8*f+4}:{PK+8*f+7}], v3, s[24:27], s58 offen sc1")
    a("s_waitcnt lgkmcnt(0)")
    a("s_barrier")
    qk(1, 16, 18)
    for j in range(8): a(f"v_pk_mul_f32 {p(ACC+32+2*j)}, {p(ACC+32+2*j)}, {p(TV+2*j)}")
    for j in range(8): a(f"v_pk_fma_f32 {p(ACC+32+2*j)}, {p(TV+16+2*j)}, v[14:15], {p(ACC+32+2*j)}")
    for j in range(8): a(f"v_cvt_pk_bf16_f32 v{PK+16+j}, v{ACC+32+2*j}, v{ACC+32+2*j+1}")
    sanitize(a, range(PK + 16, PK + 24))
    a(f"""
    s_add_u32 s58, s57, {hex(LY.VF)}
    buffer_store_dwordx4 v[{PK+16}:{PK+19}], v10, s[24:27], s58 offen sc1
    buffer_store_dwordx4 v[{PK+20}:{PK+23}], v10, s[24:27], s58 offen offset:512 sc1
    """)
    qk(0, 6, 8)
    stamp(a, 11)
    stamp_flush(a, 2, 12, 40, 14)
    if DIAGFIX(): a("s_mov_b64 exec, -1\nv_and_b32 v1, 63, v0\nv_lshlrev_b32 v2, 2, v1")
    a.label(f"{N}_qend")


NSLOT, SLOT, LA = 5, 28672, 3
SC1 = NSLOT * SLOT
EPL = FLAG + 48

def qkv1(a):
    a.comment("================= layer-1 QKV projection =================")
    a(f"""
    s_and_b32 s41, s36, 3
    s_lshl_b32 s41, s41, 2
    s_and_b32 s46, s37, 3
    s_add_u32 s41, s41, s46
    s_lshr_b32 s42, s36, 2
    s_lshl_b32 s42, s42, 3
    s_lshr_b32 s46, s37, 2
    s_add_u32 s42, s42, s46
    s_and_b32 s39, s40, 3
    s_lshl_b32 s43, s41, 2
    s_add_u32 s43, s43, s39
    s_lshl_b32 s49, s43, 15
    v_lshrrev_b32 v6, 5, v1
    v_and_b32 v4, 31, v1
    """)
    srd(a, 32, 4, 0x200000)
    srd(a, 20, 6, 0x180000)
    a(f"""
    s_cmp_ge_u32 s40, 4
    s_cbranch_scc1 {N}_p_nc
    """)
    a(f"""
    s_and_b32 s51, s42, 7
    s_lshl_b32 s51, s51, 7
    s_add_u32 s51, s51, s49
    v_lshlrev_b32 v10, 10, v4
    buffer_load_dword v160, v10, s[32:35], s51 offen
    s_and_b32 s53, s41, 3
    s_lshl_b32 s53, s53, 1
    s_and_b32 s54, s42, 1
    s_add_u32 s53, s53, s54
    s_mul_i32 s53, s53, 3072
    s_lshl_b32 s54, s42, 6
    s_add_u32 s53, s53, s54
    s_min_u32 s54, s40, 2
    s_lshl_b32 s54, s54, 10
    s_add_u32 s53, s53, s54
    s_movk_i32 s54, {8*3072}
    v_mul_lo_u32 v10, v1, s54
    buffer_load_dword v161, v10, s[20:23], s53 offen
    """)
    a.label(f"{N}_p_nc")
    a(f"""
    s_cmp_lt_u32 s40, 4
    s_cbranch_scc1 {N}_p_ad
    s_cmp_lt_u32 s40, 8
    s_cbranch_scc1 {N}_p_ld
    """)
    a.label(f"{N}_p_ad")
    a(f"""
    v_lshlrev_b32 v21, 9, v6
    v_bfe_u32 v22, v1, 2, 2
    v_lshl_add_u32 v21, v22, 6, v21
    v_bfe_u32 v22, v1, 4, 1
    v_lshl_add_u32 v21, v22, 5, v21
    v_and_b32 v22, 3, v1
    v_lshl_add_u32 v21, v22, 3, v21
    v_add_u32 v22, {2*SLOT}, v21
    v_add_u32 v23, {4*SLOT}, v21
    s_lshl_b32 s56, s39, 12
    s_add_u32 s56, s56, 12288
    v_bfe_u32 v13, v1, 1, 3
    v_xor_b32 v13, v13, v6
    v_lshlrev_b32 v13, 4, v13
    v_lshl_add_u32 v13, v4, 7, v13
    v_add_u32 v13, s56, v13
    """)
    for kk in range(4):
        a(f"v_xor_b32 v{56+kk}, {kk << 5}, v13")
        a(f"v_add_u32 v{60+kk}, {2*SLOT}, v{56+kk}")
        a(f"v_add_u32 v{16+kk}, {4*SLOT}, v{56+kk}")
    a(f"""
    s_lshl_b32 s50, s39, 9
    s_add_u32 s50, s50, {SC1}
    v_lshl_add_u32 v12, v4, 2, s50
    v_lshlrev_b32 v5, 2, v4
    v_add_u32 v5, {SC1}, v5
    v_mov_b32 v7, {EPL}
    s_cmp_ge_u32 s40, 8
    s_cbranch_scc1 {N}_p_st
    """)
    XR, ACC, WFR, TQ, TV, PK = (24, 40), 64, 112, 24, 112, 144
    def xread(j, dst):
        sl = j % NSLOT
        for kk in range(4):
            a(f"ds_read_b128 v[{dst+4*kk}:{dst+4*kk+3}], v{(56, 60, 16)[sl // 2] + kk} offset:{(sl & 1) * SLOT}")
    def wread(ks, fs=(0, 1, 2)):
        j, kk = ks // 4, ks % 4
        sl = j % NSLOT
        b = WFR + 12 * (ks % 3)
        for f in fs:
            for q in range(2):
                a(f"ds_read_b64_tr_b16 v[{b+4*f+2*q}:{b+4*f+2*q+1}], v{21 + sl // 2} offset:{(sl & 1) * SLOT + f*4096 + kk*1024 + q*256}")
    a(f"""
    v_lshl_add_u32 v11, v6, 4, s50
    v_lshlrev_b32 v13, 4, v6
    v_add_u32 v13, {SC1}, v13
    s_lshl_b32 s57, s42, 17
    s_lshl_b32 s58, s43, 10
    s_add_u32 s57, s57, s58
    v_and_b32 v10, 3, v1
    v_bfe_u32 v9, v1, 2, 1
    v_lshl_or_b32 v10, v9, 3, v10
    v_bfe_u32 v9, v1, 3, 1
    v_lshl_or_b32 v10, v9, 2, v10
    v_lshlrev_b32 v10, 4, v10
    v_lshl_or_b32 v10, v6, 8, v10
    v_bfe_u32 v9, v1, 4, 1
    v_lshl_or_b32 v10, v9, 16, v10
    s_lshl_b32 s59, s42, 8
    s_lshl_b32 s60, s43, 2
    s_add_u32 s59, s59, s60
    s_add_u32 s59, s59, {hex(LY.FQ)}
    s_barrier
    """)
    stamp(a, 9)
    xread(0, XR[0]); wread(0)
    for ks in range(32):
        j, kk = ks // 4, ks % 4
        later = []
        if kk == 0:
            a("s_waitcnt lgkmcnt(0)")
            wread(ks + 1)
            later = [ks + 2]
        elif kk == 1:
            a("s_waitcnt lgkmcnt(6)")
            later = [ks + 2]
        elif kk == 2:
            a("s_waitcnt lgkmcnt(6)")
        else:
            a("s_waitcnt lgkmcnt(0)")
            if j < 7:
                a("s_barrier")
                xread(j + 1, XR[(j + 1) & 1])
                later = [ks + 1]
        b = WFR + 12 * (ks % 3)
        x = vr(XR[j & 1] + 4*kk, 4)
        for f in range(3):
            acc = vr(ACC + 16*f, 16)
            c = "0" if ks == 0 else acc
            w = vr(b + 4*f, 4)
            if f < 2: a(f"v_mfma_f32_32x32x16_bf16 {acc}, {w}, {x}, {c}")
            else:     a(f"v_mfma_f32_32x32x16_bf16 {acc}, {x}, {w}, {c}")
            for k2 in later: wread(k2, (f,))
    stamp(a, 10)
    a(f"""
    s_waitcnt vmcnt(0)
    s_barrier
    ds_read_b32 v16, v12
    ds_read_b32 v17, v12 offset:128
    ds_read_b32 v14, v5 offset:2304
    ds_read_b32 v15, v7
    """)
    for g in range(4):
        a(f"ds_read_b128 v[{TQ+16+4*g}:{TQ+16+4*g+3}], v13 offset:{2176 + 32*g}")
    for g in range(4):
        a(f"ds_read_b128 v[{TV+4*g}:{TV+4*g+3}], v11 offset:{32*g}")
    a("s_waitcnt lgkmcnt(8)")
    for g in range(4):
        a(f"ds_read_b128 v[{TV+16+4*g}:{TV+16+4*g+3}], v11 offset:{128 + 32*g}")
    a(f"""
    v_readfirstlane_b32 s65, v15
    s_mov_b32 s56, {f32hex(LY.QSCALE)}
    v_mul_f32 v6, s56, v16
    v_mul_f32 v8, s56, v17
    s_waitcnt lgkmcnt(8)
    """)
    for g in range(4):
        a(f"ds_read_b128 v[{TQ+4*g}:{TQ+4*g+3}], v13 offset:{2048 + 32*g}")
    a(f"""
    v_mov_b32 v7, v6
    v_mov_b32 v9, v8
    v_mov_b32 v18, v17
    v_mov_b32 v19, v17
    v_mov_b32 v17, v16
    v_mov_b32 v15, v14
    """)
    def qk(f, rs, mr):
        for j in range(8): a(f"v_pk_mul_f32 {p(ACC+16*f+2*j)}, {p(ACC+16*f+2*j)}, {p(rs)}")
        for j in range(8): a(f"v_pk_fma_f32 {p(ACC+16*f+2*j)}, {p(TQ+16*f+2*j)}, {p(mr)}, {p(ACC+16*f+2*j)}")
        for j in range(8): a(f"v_cvt_pk_bf16_f32 v{PK+8*f+j}, v{ACC+16*f+2*j}, v{ACC+16*f+2*j+1}")
        sanitize(a, range(PK + 8*f, PK + 8*f + 8))
        base = LY.QF if f == 0 else LY.KF
        a(f"s_add_u32 s58, s57, {hex(base)}")
        a(f"buffer_store_dwordx4 v[{PK+8*f}:{PK+8*f+3}], v3, s[24:27], s58 offen sc1")
        a(f"s_add_u32 s58, s57, {hex(base + 65536)}")
        a(f"buffer_store_dwordx4 v[{PK+8*f+4}:{PK+8*f+7}], v3, s[24:27], s58 offen sc1")
    qk(1, 16, 18)
    a("s_waitcnt lgkmcnt(0)")
    a("s_barrier")
    for j in range(8): a(f"v_pk_mul_f32 {p(ACC+32+2*j)}, {p(ACC+32+2*j)}, {p(TV+2*j)}")
    for j in range(8): a(f"v_pk_fma_f32 {p(ACC+32+2*j)}, {p(TV+16+2*j)}, v[14:15], {p(ACC+32+2*j)}")
    for j in range(8): a(f"v_cvt_pk_bf16_f32 v{PK+16+j}, v{ACC+32+2*j}, v{ACC+32+2*j+1}")
    sanitize(a, range(PK + 16, PK + 24))
    a(f"""
    s_add_u32 s58, s57, {hex(LY.VF)}
    buffer_store_dwordx4 v[{PK+16}:{PK+19}], v10, s[24:27], s58 offen sc1
    buffer_store_dwordx4 v[{PK+20}:{PK+23}], v10, s[24:27], s58 offen offset:512 sc1
    """)
    qk(0, 6, 8)
    publish(a, 59)
    stamp(a, 11)
    stamp_flush(a, 0, 12, 40, 14)
    if DIAGFIX(): a("s_mov_b64 exec, -1\nv_and_b32 v1, 63, v0\nv_lshlrev_b32 v2, 2, v1")
    a(f"s_branch {N}_p_end")

    a.label(f"{N}_p_st")
    a(f"""
    s_load_dwordx2 s[60:61], s[0:1], 80
    s_mov_b32 s55, 0x3f803f80
    s_min_u32 s51, s39, 2
    s_lshl_b32 s51, s51, 12
    v_add_u32 v21, s51, v21
    v_add_u32 v22, s51, v22
    v_add_u32 v23, s51, v23
    v_mov_b32 v8, 0
    v_mov_b32 v9, 0
    v_mov_b32 v10, 0
    v_mov_b32 v11, 0
    v_mov_b32 v13, 0
    v_mov_b32 v14, 0
    s_mov_b32 s62, 256
    s_mov_b32 s63, 0x00020000
    s_mov_b32 s53, {hex(LY.EP)}
    s_waitcnt lgkmcnt(0)
    s_or_b32 s51, s2, s39
    s_cmp_lg_u32 s51, 0
    s_cbranch_scc1 {N}_p_ne
    """)
    a(f"""
    buffer_load_dword v15, v14, s[24:27], s53 offen sc1
    s_waitcnt vmcnt(0)
    v_add_u32 v15, 2, v15
    v_max_u32 v15, 2, v15
    v_subrev_u32 v15, 1, v15
    s_mov_b64 exec, 1
    buffer_store_dword v15, v14, s[24:27], s53 offen sc1
    s_waitcnt vmcnt(0)
    buffer_store_dword v15, v14, s[60:63], 0 offen sc1
    s_mov_b64 exec, -1
    """)
    a.label(f"{N}_p_ne")
    for j in range(8):
        if j == 4:
            a(f"""
            s_cmp_lg_u32 s39, 0
            s_cbranch_scc1 {N}_p_e2
            s_mov_b32 s69, 0x10000
            """)
            a.label(f"{N}_p_e1")
            a(f"""
            buffer_load_dword v15, v14, s[60:63], 0 offen sc1
            s_waitcnt vmcnt(0)
            v_readfirstlane_b32 s65, v15
            s_sub_u32 s69, s69, 1
            s_cbranch_scc1 {N}_p_e3
            s_cmp_eq_u32 s65, 0
            s_cbranch_scc1 {N}_p_e1
            """)
            a.label(f"{N}_p_e3")
            a("ds_write_b32 v7, v15")
            a.label(f"{N}_p_e2")
        a("s_barrier")
        sl = j % NSLOT
        xread(j, 24)
        for kk in range(4):
            for q in range(2):
                a(f"ds_read_b64_tr_b16 v[{40+4*kk+2*q}:{41+4*kk+2*q}], v{21 + sl // 2} offset:{(sl & 1) * SLOT + kk*1024 + q*256}")
        a("s_waitcnt lgkmcnt(8)")
        for r in range(16):
            a(f"v_lshlrev_b32 v{64+2*(r&3)}, 16, v{24+r}")
            a(f"v_and_b32 v{65+2*(r&3)}, 0xffff0000, v{24+r}")
            a(f"v_add_f32 v8, v8, v{64+2*(r&3)}")
            a(f"v_add_f32 v9, v9, v{65+2*(r&3)}")
            a(f"v_fmac_f32 v10, v{64+2*(r&3)}, v{64+2*(r&3)}")
            a(f"v_fmac_f32 v11, v{65+2*(r&3)}, v{65+2*(r&3)}")
        a("s_waitcnt lgkmcnt(0)")
        for r in range(16): a(f"v_dot2c_f32_bf16 v13, s55, v{40+r}")
    a(f"""
    v_add_f32 v8, v8, v9
    v_add_f32 v10, v10, v11
    v_mov_b32 v9, v8
    v_mov_b32 v11, v10
    v_mov_b32 v15, v13
    s_mov_b32 s56, {f32hex(1.0/512)}
    s_lshl_b32 s51, s39, 7
    v_permlane32_swap_b32 v8, v9
    v_permlane32_swap_b32 v10, v11
    v_permlane32_swap_b32 v13, v15
    v_add_u32 v5, s51, v5
    v_add_f32 v8, v8, v9
    v_add_f32 v10, v10, v11
    v_add_f32 v13, v13, v15
    v_mul_f32 v8, s56, v8
    v_mul_f32 v10, s56, v10
    v_fma_f32 v10, -v8, v8, v10
    v_max_f32 v10, 0, v10
    v_add_f32 v10, {f32hex(1e-5)}, v10
    v_rsq_f32 v10, v10
    ds_write_b32 v5, v13 offset:2048
    v_mul_f32 v8, v8, v10
    v_sub_f32 v8, 0, v8
    ds_write_b32 v12, v10
    ds_write_b32 v12, v8 offset:128
    s_waitcnt lgkmcnt(0)
    s_barrier
    ds_read_b32 v15, v7
    s_waitcnt lgkmcnt(0)
    v_readfirstlane_b32 s65, v15
    s_barrier
    s_branch {N}_p_end
    """)

    a.label(f"{N}_p_ld")
    a(f"""
    v_lshrrev_b32 v11, 2, v1
    s_movk_i32 s52, 3072
    v_mul_lo_u32 v11, v11, s52
    v_and_b32 v12, 3, v1
    v_lshl_add_u32 v11, v12, 4, v11
    s_lshl_b32 s52, s42, 6
    s_mul_i32 s53, s39, {16*3072}
    s_add_u32 s52, s52, s53
    s_lshl_b32 s53, s39, 10
    s_lshl_b32 s54, s39, 12
    s_add_u32 s54, s54, 12288
    v_lshrrev_b32 v13, 3, v1
    v_lshrrev_b32 v14, 4, v1
    v_and_b32 v15, 7, v1
    v_xor_b32 v15, v15, v14
    v_lshlrev_b32 v15, 4, v15
    v_lshl_add_u32 v15, v13, 10, v15
    v_xor_b32 v16, 64, v15
    """)
    def issue(j):
        sl = (j % NSLOT) * SLOT
        for n in range(4):
            a(f"s_add_u32 m0, s54, {sl + n*1024}")
            a(f"s_add_u32 s51, s49, {n*8192 + j*128}")
            a(f"buffer_load_dwordx4 v{15 + (n & 1)}, s[32:35], s51 offen lds")
            if n < 3:
                a(f"s_add_u32 m0, s53, {sl + n*4096}")
                a(f"s_add_u32 s51, s52, {n*1024 + j*64*3072}")
                a(f"buffer_load_dwordx4 v11, s[20:23], s51 offen lds")
    for j in range(LA): issue(j)
    T = 24
    def side_loads():
        a.comment("packed copy of W for layer 2 (rows [32rb,32rb+32), tile f = lw) and the k/v rows of this wave's kv^T block")
        a(f"""
        s_min_u32 s56, s39, 2
        s_lshl_b32 s57, s56, 10
        s_lshl_b32 s58, s42, 6
        s_add_u32 s57, s57, s58
        s_mul_i32 s58, s41, {32*3072}
        s_add_u32 s57, s57, s58
        buffer_load_dwordx4 v[112:115], v11, s[20:23], s57 offen
        s_add_u32 s57, s57, {16*3072}
        buffer_load_dwordx4 v[116:119], v11, s[20:23], s57 offen
        s_mul_i32 s59, s42, {8*12288}
        s_lshr_b32 s58, s41, 1
        s_mul_i32 s58, s58, 12288
        s_add_u32 s59, s59, s58
        s_and_b32 s58, s41, 1
        s_lshl_b32 s58, s58, 11
        s_add_u32 s59, s59, s58
        s_lshl_b32 s56, s56, 12
        s_add_u32 s59, s59, s56
        s_add_u32 s59, s59, {hex(LY.WP)}
        """)
        srd(a, 32, 28, 0x200000)
        srd(a, 20, 30, 0x200000)
        srd(a, 60, 10, 0x1000)
        a(f"""
        s_lshl_b32 s46, s37, 16
        s_lshl_b32 s47, s39, 14
        s_add_u32 s46, s46, s47
        s_lshl_b32 s48, s36, 7
        s_add_u32 s46, s46, s48
        v_lshlrev_b32 v5, 13, v6
        v_lshl_add_u32 v5, v4, 2, v5
        v_add_u32 v5, s46, v5
        v_add_u32 v9, 0x1000, v5
        v_subrev_u32 v7, 0xc00, v5
        s_lshl_b32 s48, s36, 9
        v_lshl_add_u32 v8, v4, 4, s48
        """)
        for r in range(3):
            a(f"buffer_load_dword v{T+r}, v7, s[32:35], 0 offen offset:{r*1024}")
        for r in range(8):
            a(f"buffer_load_dword v{T+3+r}, v{5 if r < 4 else 9}, s[32:35], 0 offen offset:{(r%4)*1024}")
        for r in range(8):
            a(f"buffer_load_dword v{T+11+r}, v{5 if r < 4 else 9}, s[20:23], 0 offen offset:{(r%4)*1024}")
        a(f"buffer_load_dwordx4 v[{T+20}:{T+23}], v8, s[60:63], 0 offen")
    for j in range(8):
        issued = min(8, LA + j)
        extra = 22 if j >= 5 else 0
        a(f"s_waitcnt vmcnt({7 * (issued - j - 1) + extra})")
        a("s_barrier")
        if j + LA < 8: issue(j + LA)
        if j == 4: side_loads()
    a(f"""
    s_min_u32 s56, s39, 2
    s_lshl_b32 s57, s56, 7
    s_add_u32 s57, s57, {SC1 + 2048}
    v_lshlrev_b32 v10, 2, v4
    v_add_u32 v12, s57, v10
    v_mov_b32 v13, {EPL}
    s_barrier
    ds_read_b32 v14, v12
    ds_read_b32 v15, v13
    s_waitcnt lgkmcnt(0)
    v_readfirstlane_b32 s65, v15
    s_barrier
    s_waitcnt vmcnt(0)
    s_cmp_lg_u32 s41, 0
    s_cbranch_scc1 {N}_p_ncs
    s_lshl_b32 s56, s56, 11
    s_lshl_b32 s57, s42, 7
    s_add_u32 s56, s56, s57
    s_add_u32 s56, s56, {hex(LY.CSB)}
    buffer_store_dword v14, v10, s[24:27], s56 offen sc1
    """)
    a.label(f"{N}_p_ncs")
    a(f"""
    buffer_store_dwordx4 v[112:115], v3, s[24:27], s59 offen sc1
    buffer_store_dwordx4 v[116:119], v3, s[24:27], s59 offen offset:1024 sc1
    """)
    KFp, VFp, WPr, RS = 48, 70, 86, 94
    for r in range(11):
        a(f"v_lshlrev_b32 v{KFp+2*r}, 16, v{T+r}")
        a(f"v_and_b32 v{KFp+2*r+1}, 0xffff0000, v{T+r}")
    for r in range(8):
        a(f"v_lshlrev_b32 v{VFp+2*r}, 16, v{T+11+r}")
        a(f"v_and_b32 v{VFp+2*r+1}, 0xffff0000, v{T+11+r}")
    D0 = T + 20
    a(f"""
    v_lshlrev_b32 v{WPr+0}, 16, v{D0}
    v_lshlrev_b32 v{WPr+1}, 16, v{D0+2}
    v_and_b32 v{WPr+2}, 0xffff0000, v{D0}
    v_and_b32 v{WPr+3}, 0xffff0000, v{D0+2}
    v_lshlrev_b32 v{WPr+4}, 16, v{D0+1}
    v_lshlrev_b32 v{WPr+5}, 16, v{D0+3}
    v_and_b32 v{WPr+6}, 0xffff0000, v{D0+1}
    v_and_b32 v{WPr+7}, 0xffff0000, v{D0+3}
    """)
    for t in range(8): a(f"v_pk_mul_f32 {p(RS+2*t)}, {p(KFp+2*t)}, {p(WPr+6)}")
    for jj in (2, 1, 0):
        for t in range(8):
            a(f"v_pk_fma_f32 {p(RS+2*t)}, {p(KFp+2*(t+3-jj))}, {p(WPr+2*jj)}, {p(RS+2*t)}")
    for t in range(8): a(f"v_pk_mul_f32 {p(RS+2*t)}, {p(RS+2*t)}, {p(VFp+2*t)}")
    for q in range(4):
        a(f"v_cvt_pk_bf16_f32 v{T+q}, v{RS+2*(7-2*q)}, v{RS+2*(6-2*q)}")
        a(f"v_cvt_pk_bf16_f32 v{T+4+q}, v{RS+2*(7-2*q)+1}, v{RS+2*(6-2*q)+1}")
    a(f"""
    s_lshl_b32 s46, s36, 18
    s_add_u32 s46, s46, {hex(LY.UT)}
    s_lshl_b32 s48, s37, 5
    s_add_u32 s46, s46, s48
    s_lshr_b32 s48, s39, 1
    s_lshl_b32 s48, s48, 4
    s_add_u32 s46, s46, s48
    s_and_b32 s48, s39, 1
    s_lshl_b32 s48, s48, 11
    s_add_u32 s46, s46, s48
    v_lshlrev_b32 v5, 13, v4
    v_lshl_add_u32 v5, v6, 10, v5
    v_add_u32 v9, 0x1000, v5
    buffer_store_dwordx4 v[{T}:{T+3}], v5, s[24:27], s46 offen sc1
    buffer_store_dwordx4 v[{T+4}:{T+7}], v9, s[24:27], s46 offen sc1
    s_lshl_b32 s46, s36, 9
    s_lshl_b32 s48, s37, 4
    s_add_u32 s46, s46, s48
    s_lshl_b32 s48, s39, 2
    s_add_u32 s46, s46, s48
    s_add_u32 s46, s46, {hex(LY.FU)}
    """)
    publish(a, 46)
    a.label(f"{N}_p_end")

def DIAGFIX():
    import asmlib
    return asmlib.DIAG
```

```python
import struct
from asmlib import *
import layout as LY

def f32hex(x):
    return hex(struct.unpack("<I", struct.pack("<f", x))[0])

NSLOT = 5
ZERO = 1
T1 = 1
CODEPF = 0
LEAN = 0
WT = 0
SLOT = 28672
STAT = NSLOT * SLOT
def lds_bytes(layer1):
    return STAT + 4 * 2048

def emit(a, name, layer1, prefetch=False):
    kernel_begin(a, name)
    done = f"{name}_done"
    a(f"""
    s_cmp_ge_u32 s2, 256
    s_cbranch_scc1 {done}
    s_load_dwordx4 s[4:7], s[0:1], 0
    s_load_dwordx2 s[14:15], s[0:1], 88
    """)
    if layer1 and T1:
        a("""
        s_load_dwordx4 s[8:11], s[0:1], 32
        s_load_dwordx2 s[12:13], s[0:1], 48
        """)
    a(f"""
    v_lshrrev_b32 v2, 6, v0
    v_and_b32 v1, 63, v0
    v_readfirstlane_b32 s40, v2
    s_and_b32 s44, s2, 7
    s_lshr_b32 s45, s2, 3
    """)
    if layer1:
        a("""
        s_and_b32 s41, s44, 3
        s_lshl_b32 s41, s41, 2
        s_and_b32 s46, s45, 3
        s_add_u32 s41, s41, s46
        s_lshr_b32 s42, s44, 2
        s_lshl_b32 s42, s42, 3
        s_lshr_b32 s46, s45, 2
        s_add_u32 s42, s42, s46
        """)
    else:
        a("""
        s_lshl_b32 s41, s44, 1
        s_and_b32 s46, s45, 1
        s_add_u32 s41, s41, s46
        s_lshr_b32 s42, s45, 1
        """)
    a(f"""
    s_and_b32 s39, s40, 3
    s_lshl_b32 s43, s41, 2
    s_add_u32 s43, s43, s39
    v_lshrrev_b32 v3, 5, v1
    v_and_b32 v4, 31, v1
    v_lshlrev_b32 v9, 4, v1
    s_lshl_b32 s49, s43, 15
    s_cmp_ge_u32 s40, 4
    s_cbranch_scc1 {name}_loader
    s_lshl_b32 s50, s40, 11
    s_add_u32 s50, s50, {STAT}
    s_waitcnt lgkmcnt(0)
    """)
    srd(a, 24, 14, LY.WS_USED)
    stamp(a, 0)
    XR = (64, 80)
    ACC = 96
    WFR = 144
    TQ = 24
    TV = 180
    SUM, SQ, CS = 14, 16, 18
    if not layer1:
        a.comment("column sums of W (written by layer 1): Q,K per register, V per lane; row-stat partials of x2")
        a(f"""
        v_lshlrev_b32 v5, 4, v3
        v_lshlrev_b32 v6, 2, v4
        s_lshl_b32 s51, s42, 7
        s_add_u32 s51, s51, {hex(LY.CSB)}
        v_lshlrev_b32 v7, 3, v1
        s_lshl_b32 s52, s43, 12
        s_add_u32 s52, s52, {hex(LY.ST2)}
        """)
        for i2 in range(8):
            a(f"buffer_load_dwordx2 v[{WFR+2*i2}:{WFR+2*i2+1}], v7, s[24:27], s52 offen offset:{512*i2}")
        for f in range(2):
            for g in range(4):
                a(f"buffer_load_dwordx4 v[{TQ+16*f+4*g}:{TQ+16*f+4*g+3}], v5, s[24:27], s51 offen offset:{f*2048 + 32*g}")
        a(f"s_add_u32 s51, s51, 4096")
        a(f"buffer_load_dword v20, v6, s[24:27], s51 offen")
    if layer1:
        a.comment("cold start: touch a distinct share of the lines this XCD will need, so all misses are in flight at once (speed only)")
        srd(a, 16, 4, 0x200000)
        srd(a, 20, 6, 0x180000)
        a(f"""
        s_and_b32 s51, s42, 7
        s_lshl_b32 s51, s51, 7
        s_add_u32 s51, s51, s49
        v_lshlrev_b32 v10, 10, v4
        buffer_load_dword v24, v10, s[16:19], s51 offen
        s_and_b32 s53, s41, 3
        s_lshl_b32 s53, s53, 1
        s_and_b32 s54, s42, 1
        s_add_u32 s53, s53, s54
        s_mul_i32 s53, s53, 3072
        s_lshl_b32 s54, s42, 6
        s_add_u32 s53, s53, s54
        s_min_u32 s54, s40, 2
        s_lshl_b32 s54, s54, 10
        s_add_u32 s53, s53, s54
        s_movk_i32 s54, {8*3072}
        v_mul_lo_u32 v10, v1, s54
        buffer_load_dword v25, v10, s[20:23], s53 offen
        """)
    if layer1 and CODEPF:
        a.comment("pull the instruction bytes of both kernels into this XCD's L2 while waiting for the first tiles (speed only)")
        a(f"""
        s_getpc_b64 s[60:61]
        s_and_b32 s60, s60, 0xffffff00
        s_lshl_b32 s53, s45, 2
        s_add_u32 s53, s53, s40
        s_lshl_b32 s53, s53, 8
        v_lshlrev_b32 v10, 7, v1
        v_add_u32 v10, s53, v10
        s_cmp_ge_u32 s53, all_code_end - {name} - 1024
        s_cbranch_scc1 {name}_ncp
        s_mov_b64 exec, 3
        global_load_dword v26, v10, s[60:61]
        s_mov_b64 exec, -1
        """)
        a.label(f"{name}_ncp")
    if layer1 and LEAN:
        a.comment("workgroup 0: launch epoch = stored word + 1 (never 0 or the fill pattern)")
        a(f"""
        s_mov_b32 s67, 0xfffffffe
        s_or_b32 s51, s2, s40
        s_cmp_lg_u32 s51, 0
        s_cbranch_scc1 {name}_ne
        v_mov_b32 v28, 0
        s_mov_b32 s53, {hex(LY.EP)}
        buffer_load_dword v29, v28, s[24:27], s53 offen sc1
        s_waitcnt vmcnt(0)
        v_add_u32 v29, 2, v29
        v_max_u32 v29, 2, v29
        v_subrev_u32 v29, 1, v29
        s_mov_b64 exec, 1
        buffer_store_dword v29, v28, s[24:27], s53 offen
        s_mov_b64 exec, -1
        """)
        a.label(f"{name}_ne")
    if layer1 and ZERO and not LEAN:
        a.comment("zero the hand-off words of the second launch: 4 KB of stat granules per workgroup, 32 KB of flags")
        a(f"""
        v_mov_b32 v28, 0
        v_mov_b32 v29, 0
        v_mov_b32 v30, 0
        v_mov_b32 v31, 0
        s_lshl_b32 s51, s2, 12
        s_lshl_b32 s53, s40, 10
        s_add_u32 s51, s51, s53
        s_add_u32 s53, s51, {hex(LY.GR)}
        buffer_store_dwordx4 v[28:31], v9, s[24:27], s53 offen
        s_add_u32 s53, s53, {hex(LY.GD)}
        buffer_store_dwordx4 v[28:31], v9, s[24:27], s53 offen
        s_cmp_ge_u32 s2, 8
        s_cbranch_scc1 {name}_nz
        s_add_u32 s53, s51, {hex(LY.FLG)}
        buffer_store_dwordx4 v[28:31], v9, s[24:27], s53 offen
        """)
        a.label(f"{name}_nz")
        a(f"""
        v_mov_b32 v32, -1
        v_mov_b32 v33, -1
        v_mov_b32 v34, -1
        v_mov_b32 v35, -1
        s_lshl_b32 s53, s51, 1
        s_add_u32 s53, s53, {hex(LY.OF)}
        buffer_store_dwordx4 v[32:35], v9, s[24:27], s53 offen
        buffer_store_dwordx4 v[32:35], v9, s[24:27], s53 offen offset:1024
        s_mov_b32 s67, 0xfffffffe
        """)
    a(f"""
    s_mov_b32 s55, 0x3f803f80
    v_lshlrev_b32 v21, 9, v3
    v_bfe_u32 v22, v1, 2, 2
    v_lshl_add_u32 v21, v22, 6, v21
    v_bfe_u32 v22, v1, 4, 1
    v_lshl_add_u32 v21, v22, 5, v21
    v_and_b32 v22, 3, v1
    v_lshl_add_u32 v21, v22, 3, v21
    v_add_u32 v22, {2*SLOT}, v21
    v_add_u32 v23, {4*SLOT}, v21
    s_lshl_b32 s56, s40, 12
    s_add_u32 s56, s56, 12288
    """)
    if layer1:
        a(f"""
        v_bfe_u32 v13, v1, 1, 3
        v_xor_b32 v13, v13, v3
        v_lshlrev_b32 v13, 4, v13
        v_lshl_add_u32 v13, v4, 7, v13
        v_add_u32 v13, s56, v13
        """)
        for kk in range(4):
            a(f"v_xor_b32 v{56+kk}, {kk << 5}, v13")
            a(f"v_add_u32 v{60+kk}, {2*SLOT}, v{56+kk}")
            a(f"v_add_u32 v{5+kk}, {4*SLOT}, v{56+kk}")
        for r in (14, 15, 16, 17, 18, 19, 20):
            a(f"v_mov_b32 v{r}, 0")
    else:
        a(f"""
        v_add_u32 v56, s56, v9
        v_add_u32 v60, {2*SLOT}, v56
        v_add_u32 v5, {4*SLOT}, v56
        """)
    def finish_stats():
        a(f"""
        v_mov_b32 v15, v14
        v_mov_b32 v17, v16
        v_lshl_add_u32 v12, v4, 2, s50
        v_lshl_add_u32 v11, v3, 4, s50
        v_permlane32_swap_b32 v14, v15
        v_permlane32_swap_b32 v16, v17
        s_mov_b32 s56, {f32hex(1.0/512)}
        s_nop 0
        v_add_f32 v14, v14, v15
        v_add_f32 v16, v16, v17
        v_mul_f32 v14, s56, v14
        v_mul_f32 v16, s56, v16
        v_fma_f32 v16, -v14, v14, v16
        v_max_f32 v16, 0, v16
        v_add_f32 v16, {f32hex(1e-5)}, v16
        v_rsq_f32 v16, v16
        s_nop 0
        v_mul_f32 v17, v14, v16
        v_sub_f32 v17, 0, v17
        ds_write_b32 v12, v16 offset:512
        ds_write_b32 v12, v17 offset:640
        s_waitcnt lgkmcnt(0)
        """)
        for g in range(4):
            a(f"ds_read_b128 v[{TV+4*g}:{TV+4*g+3}], v11 offset:{512 + 32*g}")
            a(f"ds_read_b128 v[{TV+16+4*g}:{TV+16+4*g+3}], v11 offset:{640 + 32*g}")
    if not layer1:
        a("s_waitcnt vmcnt(9)")
        for i2 in range(1, 8):
            a(f"v_add_f32 v{WFR}, v{WFR}, v{WFR+2*i2}")
            a(f"v_add_f32 v{WFR+1}, v{WFR+1}, v{WFR+2*i2+1}")
        a(f"v_mov_b32 v14, v{WFR}")
        a(f"v_mov_b32 v16, v{WFR+1}")
        finish_stats()
        a("s_waitcnt lgkmcnt(0)")
    def wread(ks):
        j, kk = ks // 4, ks % 4
        sl = j % NSLOT
        base = 21 + sl // 2
        b = WFR + 12 * (ks % 3)
        for f in range(3):
            for q in range(2):
                off = (sl & 1) * SLOT + f*4096 + kk*1024 + q*256
                a(f"ds_read_b64_tr_b16 v[{b+4*f+2*q}:{b+4*f+2*q+1}], v{base} offset:{off}")
    def xread(j):
        sl = j % NSLOT
        for kk in range(4):
            if layer1:
                base, off = (56, 60, 5)[sl // 2] + kk, (sl & 1) * SLOT
            else:
                base, off = (56, 60, 5)[sl // 2], (sl & 1) * SLOT + kk * 1024
            a(f"ds_read_b128 v[{XR[j&1]+4*kk}:{XR[j&1]+4*kk+3}], v{base} offset:{off}")
    a("s_barrier")
    stamp(a, 1)
    xread(0); wread(0)
    for ks in range(32):
        j, kk = ks // 4, ks % 4
        if kk == 0:
            a("s_waitcnt lgkmcnt(0)")
            wread(ks + 1); wread(ks + 2)
        elif kk == 1:
            a("s_waitcnt lgkmcnt(6)")
            wread(ks + 2)
        elif kk == 2:
            a("s_waitcnt lgkmcnt(6)")
        else:
            a("s_waitcnt lgkmcnt(0)")
            if j < 7:
                a("s_barrier")
                if j == 6: stamp(a, 2)
                xread(j + 1); wread(ks + 1)
        b = WFR + 12 * (ks % 3)
        xr = XR[j & 1] + 4*kk
        x = vr(xr, 4)
        for f in range(3):
            acc = vr(ACC + 16*f, 16)
            c = "0" if ks == 0 else acc
            w = vr(b + 4*f, 4)
            if f < 2: a(f"v_mfma_f32_32x32x16_bf16 {acc}, {w}, {x}, {c}")
            else:     a(f"v_mfma_f32_32x32x16_bf16 {acc}, {x}, {w}, {c}")
        if layer1:
            skip = a.uid(f"{name}_cs")
            a(f"s_cmp_eq_u32 s40, {kk}")
            a(f"s_cbranch_scc0 {skip}")
            for d in range(4):
                for f in range(3):
                    a(f"v_dot2c_f32_bf16 v{CS+f}, s55, v{b+4*f+d}")
            a.label(skip)
            if kk == 2:
                for r in range(16):
                    a(f"v_dot2c_f32_bf16 v{SUM + (r & 1)}, s55, v{XR[j&1]+r}")
                    a(f"v_dot2c_f32_bf16 v{SQ + (r & 1)}, v{XR[j&1]+r}, v{XR[j&1]+r}")
    stamp(a, 3)
    if layer1:
        a(f"""
        s_nop 2
        v_add_f32 v14, v14, v15
        v_add_f32 v16, v16, v17
        v_mov_b32 v57, v18
        v_mov_b32 v58, v19
        v_mov_b32 v59, v20
        v_lshl_add_u32 v12, v4, 2, s50
        s_nop 0
        v_permlane32_swap_b32 v18, v57
        v_permlane32_swap_b32 v19, v58
        v_permlane32_swap_b32 v20, v59
        s_nop 0
        v_add_f32 v18, v18, v57
        v_add_f32 v19, v19, v58
        v_add_f32 v20, v20, v59
        ds_write_b32 v12, v18
        ds_write_b32 v12, v19 offset:128
        ds_write_b32 v12, v20 offset:256
        """)
        finish_stats()
        a(f"""
        s_barrier
        v_lshlrev_b32 v10, 2, v4
        v_add_u32 v13, {STAT}, v10
        """)
        for f in range(3):
            for w in range(4):
                a(f"ds_read_b32 v{64+4*f+w}, v13 offset:{w*2048 + f*128}")
        a("s_waitcnt lgkmcnt(0)")
        for f in range(3):
            a(f"v_add_f32 v{64+4*f}, v{64+4*f}, v{65+4*f}")
            a(f"v_add_f32 v{66+4*f}, v{66+4*f}, v{67+4*f}")
            a(f"v_add_f32 v{CS+f}, v{64+4*f}, v{66+4*f}")
        a(f"""
        ds_write_b32 v12, v18 offset:1024
        ds_write_b32 v12, v19 offset:1152
        """)
        sk = a.uid(f"{name}_cst")
        a(f"""
        s_cmp_lg_u32 s43, 0
        s_cbranch_scc1 {sk}
        s_lshl_b32 s51, s42, 7
        s_add_u32 s51, s51, {hex(LY.CSB)}
        buffer_store_dword v18, v10, s[24:27], s51 offen
        buffer_store_dword v19, v10, s[24:27], s51 offen offset:2048
        s_add_u32 s51, s51, 4096
        buffer_store_dword v20, v10, s[24:27], s51 offen
        """)
        a.label(sk)
        a("s_waitcnt lgkmcnt(0)")
        for g in range(4):
            a(f"ds_read_b128 v[{TQ+4*g}:{TQ+4*g+3}], v11 offset:{1024 + 32*g}")
            a(f"ds_read_b128 v[{TQ+16+4*g}:{TQ+16+4*g+3}], v11 offset:{1152 + 32*g}")
    a(f"""
    s_mov_b32 s56, {f32hex(LY.QSCALE)}
    v_mul_f32 v56, s56, v16
    v_mul_f32 v58, s56, v17
    v_mov_b32 v57, v56
    v_mov_b32 v59, v58
    v_mov_b32 v60, v16
    v_mov_b32 v61, v16
    v_mov_b32 v62, v17
    v_mov_b32 v63, v17
    s_waitcnt vmcnt(0)
    v_mov_b32 v21, v20
    s_lshl_b32 s57, s42, 17
    s_lshl_b32 s58, s43, 10
    s_add_u32 s57, s57, s58
    v_and_b32 v10, 3, v1
    v_bfe_u32 v11, v1, 2, 1
    v_lshl_or_b32 v10, v11, 3, v10
    v_bfe_u32 v11, v1, 3, 1
    v_lshl_or_b32 v10, v11, 2, v10
    v_lshlrev_b32 v10, 4, v10
    v_lshl_or_b32 v10, v3, 8, v10
    v_bfe_u32 v11, v1, 4, 1
    v_lshl_or_b32 v10, v11, 16, v10
    s_waitcnt lgkmcnt(0)
    """)
    def p(b): return f"v[{b}:{b+1}]"
    PK = 64
    for f, (rs, mr) in ((1, (60, 62)), (0, (56, 58))):
        for j in range(8):
            a(f"v_pk_mul_f32 {p(ACC+16*f+2*j)}, {p(ACC+16*f+2*j)}, {p(rs)}")
        for j in range(8):
            a(f"v_pk_fma_f32 {p(ACC+16*f+2*j)}, {p(TQ+16*f+2*j)}, {p(mr)}, {p(ACC+16*f+2*j)}")
        for j in range(8):
            a(f"v_cvt_pk_bf16_f32 v{PK+8*f+j}, v{ACC+16*f+2*j}, v{ACC+16*f+2*j+1}")
        if layer1 and ZERO:
            for j in range(8): a(f"v_min_u32 v{PK+8*f+j}, s67, v{PK+8*f+j}")
        base = LY.QF if f == 0 else LY.KF
        a(f"s_add_u32 s58, s57, {hex(base)}")
        a(f"buffer_store_dwordx4 v[{PK+8*f}:{PK+8*f+3}], v9, s[24:27], s58 offen")
        a(f"s_add_u32 s58, s57, {hex(base + 65536)}")
        a(f"buffer_store_dwordx4 v[{PK+8*f+4}:{PK+8*f+7}], v9, s[24:27], s58 offen")
    for j in range(8):
        a(f"v_pk_mul_f32 {p(ACC+32+2*j)}, {p(ACC+32+2*j)}, {p(TV+2*j)}")
    for j in range(8):
        a(f"v_pk_fma_f32 {p(ACC+32+2*j)}, {p(TV+16+2*j)}, v[20:21], {p(ACC+32+2*j)}")
    for j in range(8):
        a(f"v_cvt_pk_bf16_f32 v{PK+16+j}, v{ACC+32+2*j}, v{ACC+32+2*j+1}")
    if layer1 and ZERO:
        for j in range(8): a(f"v_min_u32 v{PK+16+j}, s67, v{PK+16+j}")
    a(f"""
    s_add_u32 s58, s57, {hex(LY.VF)}
    buffer_store_dwordx4 v[{PK+16}:{PK+19}], v10, s[24:27], s58 offen
    buffer_store_dwordx4 v[{PK+20}:{PK+23}], v10, s[24:27], s58 offen offset:512
    """)
    stamp(a, 4)
    stamp_flush(a, 0 if layer1 else 2, 5, 40, 14)
    a.label(done)
    a("s_endpgm")
    a.label(f"{name}_loader")
    a(f"""
    v_lshrrev_b32 v11, 2, v1
    s_movk_i32 s52, 3072
    v_mul_lo_u32 v11, v11, s52
    v_and_b32 v12, 3, v1
    v_lshl_add_u32 v11, v12, 4, v11
    s_lshl_b32 s52, s42, 6
    s_mul_i32 s53, s39, {16*3072}
    s_add_u32 s52, s52, s53
    s_lshl_b32 s53, s39, 10
    s_lshl_b32 s54, s39, 12
    s_add_u32 s54, s54, 12288
    """)
    if layer1:
        a(f"""
        v_lshrrev_b32 v13, 3, v1
        v_lshrrev_b32 v14, 4, v1
        v_and_b32 v15, 7, v1
        v_xor_b32 v15, v15, v14
        v_lshlrev_b32 v15, 4, v15
        v_lshl_add_u32 v15, v13, 10, v15
        v_xor_b32 v16, 64, v15
        """)
    else:
        a(f"""
        s_add_u32 s49, s49, {hex(LY.X2F)}
        s_mul_i32 s52, s42, {8*12288}
        s_add_u32 s52, s52, s53
        s_add_u32 s52, s52, {hex(LY.WP)}
        """)
    a("s_waitcnt lgkmcnt(0)")
    if layer1: srd(a, 20, 6, 0x180000)
    if layer1: srd(a, 16, 4, 0x200000)
    srd(a, 24, 14, LY.WS_USED)
    def issue(j):
        sl = (j % NSLOT) * SLOT
        for n in range(4):
            a(f"s_add_u32 m0, s54, {sl + n*1024}")
            if layer1:
                a(f"s_add_u32 s51, s49, {n*8192 + j*128}")
                a(f"buffer_load_dwordx4 v{15 + (n & 1)}, s[16:19], s51 offen lds")
            else:
                a(f"s_add_u32 s51, s49, {j*4096 + n*1024}")
                a(f"buffer_load_dwordx4 v9, s[24:27], s51 offen lds")
            if n < 3:
                a(f"s_add_u32 m0, s53, {sl + n*4096}")
                if layer1:
                    a(f"s_add_u32 s51, s52, {n*1024 + j*64*3072}")
                    a(f"buffer_load_dwordx4 v11, s[20:23], s51 offen lds")
                else:
                    a(f"s_add_u32 s51, s52, {n*4096 + j*12288}")
                    a(f"buffer_load_dwordx4 v9, s[24:27], s51 offen lds")
    LA = 3
    for j in range(LA): issue(j)
    nT1 = ((20 if T1 else 0) + (0 if LEAN else 2)) if layer1 else 0
    T = 24
    def t1_loads():
        a.comment("packed copy of W for layer 2: rows [32rb,32rb+32), tile f = lw (lw 3 repeats f=2)")
        a(f"""
        s_min_u32 s56, s39, 2
        s_lshl_b32 s57, s56, 10
        s_lshl_b32 s58, s42, 6
        s_add_u32 s57, s57, s58
        s_mul_i32 s58, s41, {32*3072}
        s_add_u32 s57, s57, s58
        buffer_load_dwordx4 v[112:115], v11, s[20:23], s57 offen
        s_add_u32 s57, s57, {16*3072}
        buffer_load_dwordx4 v[116:119], v11, s[20:23], s57 offen
        s_mul_i32 s59, s42, {8*12288}
        s_lshr_b32 s58, s41, 1
        s_mul_i32 s58, s58, 12288
        s_add_u32 s59, s59, s58
        s_and_b32 s58, s41, 1
        s_lshl_b32 s58, s58, 11
        s_add_u32 s59, s59, s58
        s_lshl_b32 s56, s56, 12
        s_add_u32 s59, s59, s56
        s_add_u32 s59, s59, {hex(LY.WP)}
        """)
    def t1_more():
        srd(a, 28, 8, 0x200000)
        srd(a, 32, 10, 0x200000)
        srd(a, 64, 12, 0x1000)
        a(f"""
        s_lshr_b32 s46, s2, 3
        s_lshl_b32 s46, s46, 16
        s_lshl_b32 s47, s39, 14
        s_add_u32 s46, s46, s47
        s_and_b32 s47, s2, 7
        s_lshl_b32 s48, s47, 7
        s_add_u32 s46, s46, s48
        v_lshlrev_b32 v5, 13, v3
        v_lshl_add_u32 v5, v4, 2, v5
        v_add_u32 v5, s46, v5
        v_add_u32 v6, 0x1000, v5
        v_subrev_u32 v7, 0xc00, v5
        s_lshl_b32 s48, s47, 9
        v_lshl_add_u32 v8, v4, 4, s48
        """)
        for r in range(3):
            a(f"buffer_load_dword v{T+r}, v7, s[28:31], 0 offen offset:{r*1024}")
        for r in range(8):
            a(f"buffer_load_dword v{T+3+r}, v{5 if r < 4 else 6}, s[28:31], 0 offen offset:{(r%4)*1024}")
        for r in range(8):
            a(f"buffer_load_dword v{T+11+r}, v{5 if r < 4 else 6}, s[32:35], 0 offen offset:{(r%4)*1024}")
        a(f"buffer_load_dwordx4 v[{T+20}:{T+23}], v8, s[64:67], 0 offen")
    for j in range(8):
        issued = min(8, LA + j)
        extra = nT1 if j >= 5 else 0
        a(f"s_waitcnt vmcnt({7 * (issued - j - 1) + extra})")
        a("s_barrier")
        if j + LA < 8: issue(j + LA)
        if j == 4 and layer1:
            if not LEAN: t1_loads()
            if T1: t1_more()
    if layer1:
        a("s_barrier")
        a("s_waitcnt vmcnt(0)")
        if not LEAN:
            a("buffer_store_dwordx4 v[112:115], v9, s[24:27], s59 offen")
            a("buffer_store_dwordx4 v[116:119], v9, s[24:27], s59 offen offset:1024")
    if layer1 and T1:
        KFp, VFp, WPr, RS = 48, 70, 86, 94
        for r in range(11):
            a(f"v_lshlrev_b32 v{KFp+2*r}, 16, v{T+r}")
            a(f"v_and_b32 v{KFp+2*r+1}, 0xffff0000, v{T+r}")
        for r in range(8):
            a(f"v_lshlrev_b32 v{VFp+2*r}, 16, v{T+11+r}")
            a(f"v_and_b32 v{VFp+2*r+1}, 0xffff0000, v{T+11+r}")
        D0 = T + 20
        a(f"""
        v_lshlrev_b32 v{WPr+0}, 16, v{D0}
        v_lshlrev_b32 v{WPr+1}, 16, v{D0+2}
        v_and_b32 v{WPr+2}, 0xffff0000, v{D0}
        v_and_b32 v{WPr+3}, 0xffff0000, v{D0+2}
        v_lshlrev_b32 v{WPr+4}, 16, v{D0+1}
        v_lshlrev_b32 v{WPr+5}, 16, v{D0+3}
        v_and_b32 v{WPr+6}, 0xffff0000, v{D0+1}
        v_and_b32 v{WPr+7}, 0xffff0000, v{D0+3}
        """)
        for t in range(8):
            a(f"v_pk_mul_f32 {p(RS+2*t)}, {p(KFp+2*t)}, {p(WPr+6)}")
        for jj in (2, 1, 0):
            for t in range(8):
                a(f"v_pk_fma_f32 {p(RS+2*t)}, {p(KFp+2*(t+3-jj))}, {p(WPr+2*jj)}, {p(RS+2*t)}")
        for t in range(8):
            a(f"v_pk_mul_f32 {p(RS+2*t)}, {p(RS+2*t)}, {p(VFp+2*t)}")
        for q in range(4):
            a(f"v_cvt_pk_bf16_f32 v{T+q}, v{RS+2*(7-2*q)}, v{RS+2*(6-2*q)}")
            a(f"v_cvt_pk_bf16_f32 v{T+4+q}, v{RS+2*(7-2*q)+1}, v{RS+2*(6-2*q)+1}")
        a(f"""
        s_lshl_b32 s46, s47, 18
        s_add_u32 s46, s46, {hex(LY.UT)}
        s_lshr_b32 s48, s2, 3
        s_lshl_b32 s48, s48, 5
        s_add_u32 s46, s46, s48
        s_lshr_b32 s48, s39, 1
        s_lshl_b32 s48, s48, 4
        s_add_u32 s46, s46, s48
        s_and_b32 s48, s39, 1
        s_lshl_b32 s48, s48, 11
        s_add_u32 s46, s46, s48
        v_lshlrev_b32 v5, 13, v4
        v_lshl_add_u32 v5, v3, 10, v5
        v_add_u32 v6, 0x1000, v5
        buffer_store_dwordx4 v[{T}:{T+3}], v5, s[24:27], s46 offen
        buffer_store_dwordx4 v[{T+4}:{T+7}], v6, s[24:27], s46 offen
        """)
    a("s_endpgm")
    return 212
```

```python
import sys
sys.path.insert(0, "gen")
from asmlib import *
import asmlib
import k_qkv3 as k_qkv, k_mega3 as k_mega

HEADER = open("interleave_layers__mha_block__ssm_conv_h3__prompt.s.ref").read().split("; Override launch")[0]

def build(path):
    k_qkv.LEAN = 1
    a = Asm()
    descs = []
    launches = []
    def add(name, vg): descs.append(kernel_desc(name, vg))
    add("qkv1_kernel", k_qkv.emit(a, "qkv1_kernel", True))
    if k_qkv.WT:
        first_loop = next(i for i, l in enumerate(a.out) if "s_barrier" in l)
        for i, l in enumerate(a.out):
            if l.strip().startswith("buffer_store") and "s[92:95]" not in l and (k_qkv.WT == 2 or i < first_loop):
                a.out[i] = l + " sc1"
    vg = k_mega.emit(a)
    for nm, _ in k_mega.entries(): add(nm, vg)
    a.label("all_code_end")
    L = lambda k, g, b, l: launches.append(f"; @launch kernel={k} grid=({g},1,1) block=({b},1,1) lds={l}")
    L("qkv1_kernel", 256, 512, k_qkv.lds_bytes(True))
    for nm, _ in k_mega.entries(): L(nm, 256, 768, k_mega.LDS_BYTES)
    txt = HEADER + "\n".join(launches) + "\n" + '.amdgcn_target "amdgcn-amd-amdhsa--gfx950"\n.text\n' + a.text()
    txt += '.section .rodata,"a"\n' + "".join(".p2align 6\n" + d for d in descs)
    open(path, "w").write(txt)

if __name__ == "__main__":
    out = sys.argv[1] if len(sys.argv) > 1 else "interleave_layers__mha_block__ssm_conv_h3__prompt.s"
    for opt in sys.argv[2:]:
        if opt == "diag": asmlib.DIAG = True
        elif opt == "rtdbg": asmlib.DIAG = True; asmlib.RTDBG = True
        elif "=" in opt:
            k, v = opt.split("="); mod, attr = k.split(".")
            setattr({"mega": k_mega, "qkv": k_qkv}[mod], attr, int(v))
    build(out)
```

```python
import struct
from asmlib import *
import layout as LY

def f32hex(x):
    return hex(struct.unpack("<I", struct.pack("<f", x))[0])
def p(b): return f"v[{b}:{b+1}]"

CS = 4160
CHB = 2 * CS + 6144
FLAG = 131072 + 2 * CHB
XCH = 0
YL = 151552
U = 8
LOCALO = 0
TOUCH = 0
TWO = 1
FAST = 1
GATHER = 0
CUT_QA = 0
CUT_OQ = 0
SLEEP = 4
CSLEEP = 1
NFAIL = 24
DIAGL = 1
THR_A, THR_H, THR_O = 1, 3, 4
WDEPTH = 8
GSLEEP = 2
PLO, PHI = 13, 0
LDS_BYTES = 163840
N = "mega"


def poll(a, soff, tag):
    L = a.uid(f"{N}_pl{tag}")
    a(f"s_mov_b32 s69, 0x10000")
    a.label(L)
    a(f"""
    buffer_load_dword v15, v2, s[24:27], s{soff} offen sc1
    s_waitcnt vmcnt(0)
    v_cmp_ne_u32 vcc, 0, v15
    s_cmp_eq_u64 vcc, -1
    s_cbranch_scc1 {L}_d
    s_sub_u32 s69, s69, 1
    s_cbranch_scc1 {L}_d
    s_sleep {SLEEP}
    s_branch {L}
    """)
    a.label(L + "_d")

def set_flag(a, soff):
    a(f"""
    v_mov_b32 v15, 1
    v_mov_b32 v14, 0
    s_waitcnt vmcnt(0)
    s_mov_b64 exec, 1
    buffer_store_dword v15, v14, s[24:27], s{soff} offen sc1
    s_mov_b64 exec, -1
    """)

def maxchain(a, dst, regs):
    regs = list(regs)
    a(f"v_max3_u32 v{dst}, v{regs[0]}, v{regs[1]}, v{regs[2]}")
    rest = regs[3:]
    while len(rest) >= 2:
        a(f"v_max3_u32 v{dst}, v{dst}, v{rest[0]}, v{rest[1]}")
        rest = rest[2:]
    if rest: a(f"v_max_u32 v{dst}, v{dst}, v{rest[0]}")

def checked(a, loads, regs, first_wait=None, sleep=None, switch=None):
    L = a.uid(f"{N}_ck")
    a("s_mov_b32 s69, 0x8000")
    if first_wait is not None:
        a(f"s_waitcnt vmcnt({first_wait})")
        a(f"s_branch {L}_c")
    a.label(L)
    loads()
    a("s_waitcnt vmcnt(0)")
    a.label(L + "_c")
    maxchain(a, 15, regs)
    a(f"""
    v_cmp_eq_u32 vcc, -1, v15
    s_cmp_eq_u64 vcc, 0
    s_cbranch_scc1 {L}_d
    s_sub_u32 s69, s69, 1
    s_cbranch_scc1 {L}_d
    """)
    switch_copy(a, L, switch)
    a(f"""
    s_sleep {CSLEEP if sleep is None else sleep}
    s_branch {L}
    """)
    a.label(L + "_d")

def switch_copy(a, L, regs):
    if not regs: return
    a(f"""
    s_cmp_lg_u32 s69, {0x8000 - NFAIL}
    s_cbranch_scc1 {L}_ns
    """)
    for r in regs: a(f"v_or_b32 v{r}, {hex(LY.GD)}, v{r}")
    a.label(f"{L}_ns")

def checked_units(a, units, wait=None, sleep=None, switch=None):
    L = a.uid(f"{N}_cu")
    n = len(units)
    a("s_mov_b32 s69, 0x8000")
    a(f"s_mov_b32 s66, {hex((1 << n) - 1)}")
    wait()
    allregs = [r for (_, regs, _) in units for r in regs]
    maxchain(a, 15, allregs)
    a(f"""
    v_cmp_eq_u32 vcc, -1, v15
    s_cmp_eq_u64 vcc, 0
    s_cbranch_scc0 {L}_c
    """)
    for (_, _, ok) in units:
        if ok: ok()
    a(f"s_branch {L}_d")
    a.label(L)
    for i, (ld, regs, ok) in enumerate(units):
        a(f"s_bitcmp1_b32 s66, {i}")
        a(f"s_cbranch_scc0 {L}_l{i}")
        ld()
        a.label(f"{L}_l{i}")
    a("s_waitcnt vmcnt(0)")
    a.label(L + "_c")
    for i, (ld, regs, ok) in enumerate(units):
        a(f"s_bitcmp1_b32 s66, {i}")
        a(f"s_cbranch_scc0 {L}_k{i}")
        maxchain(a, 15, regs)
        a(f"""
        v_cmp_eq_u32 vcc, -1, v15
        s_cmp_eq_u64 vcc, 0
        s_cbranch_scc0 {L}_k{i}
        s_bitset0_b32 s66, {i}
        """)
        if ok: ok()
        a.label(f"{L}_k{i}")
    a(f"""
    s_cmp_eq_u32 s66, 0
    s_cbranch_scc1 {L}_d
    s_sub_u32 s69, s69, 1
    s_cbranch_scc1 {L}_d
    """)
    switch_copy(a, L, switch)
    a(f"""
    s_sleep {CSLEEP if sleep is None else sleep}
    s_branch {L}
    """)
    a.label(L + "_d")

def hint_wait(a, vaddr, soff, nl, sleep=None, switch=None, thr=0):
    L = a.uid(f"{N}_hw")
    a("s_mov_b32 s69, 0x8000")
    a.label(L)
    a(f"""
    s_mov_b64 exec, {hex((1 << nl) - 1)}
    buffer_load_dword v15, v{vaddr}, s[24:27], {soff} offen sc1
    s_waitcnt vmcnt(0)
    v_cmp_eq_u32 vcc, -1, v15
    s_mov_b64 exec, -1
    s_bcnt1_i32_b64 s66, vcc
    s_cmp_le_u32 s66, {thr}
    s_cbranch_scc1 {L}_d
    s_sub_u32 s69, s69, 1
    s_cbranch_scc1 {L}_d
    """)
    switch_copy(a, L, switch)
    a(f"""
    s_sleep {CSLEEP if sleep is None else sleep}
    s_branch {L}
    """)
    a.label(L + "_d")

def sanitize(a, regs):
    for r in regs: a(f"v_min_u32 v{r}, s67, v{r}")

def entries():
    return [("mega_kernel" if TWO else "interleave_layers__mha_block__ssm_conv_h3__prompt_kernel", 0)]

def flag_wait(a, soff, nload=1, wide=False, tag="f"):
    L = a.uid(f"{N}_fw{tag}")
    a("s_mov_b32 s69, 0x10000")
    a.label(L)
    regs = []
    for n in range(nload):
        if wide:
            a(f"buffer_load_dwordx4 v[{16+4*n}:{19+4*n}], v3, s[24:27], s{soff} offen offset:{n*1024} sc1")
            regs += list(range(16 + 4*n, 20 + 4*n))
        else:
            a(f"buffer_load_dword v{16+n}, v2, s[24:27], s{soff} offen offset:{n*256} sc1")
            regs.append(16 + n)
    a("s_waitcnt vmcnt(0)")
    a(f"v_xor_b32 v15, s65, v{regs[0]}")
    for r in regs[1:]:
        a(f"v_xor_b32 v{r}, s65, v{r}")
        a(f"v_or_b32 v15, v15, v{r}")
    a(f"""
    v_cmp_ne_u32 vcc, 0, v15
    s_cmp_eq_u64 vcc, 0
    s_cbranch_scc1 {L}_d
    s_sub_u32 s69, s69, 1
    s_cbranch_scc1 {L}_d
    s_sleep 2
    s_branch {L}
    """)
    a.label(L + "_d")

def publish(a, soff, wait=0):
    a(f"""
    v_mov_b32 v15, s65
    v_mov_b32 v14, 0
    s_waitcnt vmcnt({wait})
    s_mov_b64 exec, 1
    buffer_store_dword v15, v14, s[24:27], s{soff} offen sc1
    s_mov_b64 exec, -1
    """)

def emit(a):
    kernel_begin(a, entries()[0][0])
    a(f"""
    s_cmp_ge_u32 s2, 256
    s_cbranch_scc1 {N}_done
    s_load_dwordx4 s[4:7], s[0:1], 0
    s_load_dwordx2 s[18:19], s[0:1], 16
    s_load_dwordx2 s[8:9], s[0:1], 72
    s_load_dwordx2 s[10:11], s[0:1], 48
    s_load_dwordx2 s[12:13], s[0:1], 64
    s_load_dwordx2 s[14:15], s[0:1], 88
    s_load_dwordx2 s[16:17], s[0:1], 56
    s_load_dwordx4 s[28:31], s[0:1], 32
    v_lshrrev_b32 v2, 6, v0
    v_and_b32 v1, 63, v0
    v_readfirstlane_b32 s40, v2
    v_lshlrev_b32 v3, 4, v1
    v_lshlrev_b32 v2, 2, v1
    s_mov_b32 s3, 0
    s_and_b32 s36, s2, 7
    s_lshr_b32 s37, s2, 3
    s_mov_b32 s67, 0xfffffffe
    s_waitcnt lgkmcnt(0)
    """)
    srd(a, 24, 14, LY.WS_USED)
    stamp(a, 0)
    if TWO:
        a.comment("launch epoch (bumped by the first launch): tags this run's hand-off words")
        a(f"s_mov_b32 s64, {hex(LY.EP)}")
        a(f"s_load_dword s65, s[14:15], s64")
        a("s_mov_b32 s34, s6")
        a("s_mov_b32 s35, s7")
    else:
        qkv1(a)
    a("s_mov_b32 s6, s18")
    a("s_mov_b32 s7, s19")
    a.label(f"{N}_layer")
    attention(a)
    oproj(a)
    qkv(a)
    a(f"""
    s_mov_b32 s3, 1
    s_branch {N}_layer
    """)
    a.label(f"{N}_done")
    a("s_endpgm")
    attention_fallback(a)
    return 168

QA, QB, S, O, P, KB, VB = 4, 8, (16, 32), (48, 64), 80, (88, 92), (96, 104)
def mf(a, d, x, y, c): a(f"v_mfma_f32_32x32x16_bf16 {vr(d,16)}, {vr(x,4)}, {vr(y,4)}, {c}")

def attention(a):
    TS = 32
    if LOCALO:
        a("s_mov_b32 s41, s37")
    else:
        a("""
        s_lshl_b32 s41, s36, 2
        s_and_b32 s46, s37, 3
        s_add_u32 s41, s41, s46
        """)
    a(f"""
    s_mul_i32 s38, s3, {hex(LY.QKVL)}
    s_lshl_b32 s48, s41, 16
    s_add_u32 s48, s48, s38
    """)
    a.label(f"{N}_a_go")
    stamp(a, 1)
    a(f"""
    s_cmp_ge_u32 s40, 8
    s_cbranch_scc1 {N}_help
    {"s_mov_b32 s42, s36" if LOCALO else "s_lshr_b32 s42, s37, 2"}
    s_and_b32 s43, s40, 3
    s_lshr_b32 s47, s40, 2
    s_lshl_b32 s42, s42, 3
    s_lshl_b32 s46, s43, 1
    s_add_u32 s42, s42, s46
    s_lshl_b32 s49, s42, 10
    s_add_u32 s49, s49, s48
    s_lshl_b32 s50, s47, 5
    s_add_u32 s51, s50, s43
    s_lshl_b32 s51, s51, 10
    s_add_u32 s52, s48, s51
    s_add_u32 s53, s52, {hex(LY.KF)}
    s_add_u32 s54, s52, {hex(LY.KF + 4096)}
    s_add_u32 s55, s52, {hex(LY.VF)}
    s_add_u32 s58, s52, {hex(LY.VF + 4096)}
    """)
    fu = [
        (lambda: a(f"buffer_load_dwordx4 v[16:19], v3, s[24:27], s53 offen sc1"), range(16, 20), lambda: a("ds_write_b128 v32, v[16:19]")),
        (lambda: a(f"buffer_load_dwordx4 v[20:23], v3, s[24:27], s55 offen sc1"), range(20, 24), lambda: a("ds_write_b128 v33, v[20:23]")),
        (lambda: a(f"buffer_load_dwordx4 v[{QA}:{QA+3}], v3, s[24:27], s49 offen sc1"), range(QA, QA + 4), None),
        (lambda: a(f"buffer_load_dwordx4 v[{QB}:{QB+3}], v3, s[24:27], s49 offen offset:1024 sc1"), range(QB, QB + 4), None),
        (lambda: a(f"buffer_load_dwordx4 v[24:27], v3, s[24:27], s54 offen sc1"), range(24, 28), lambda: a("ds_write_b128 v32, v[24:27] offset:4096")),
        (lambda: a(f"buffer_load_dwordx4 v[28:31], v3, s[24:27], s58 offen sc1"), range(28, 32), lambda: a("ds_write_b128 v33, v[28:31] offset:4096")),
    ]
    a(f"""
    s_cmp_lg_u32 s3, 0
    s_cbranch_scc1 {N}_a_h1
    s_lshr_b32 s59, s41, 1
    s_lshl_b32 s59, s59, 8
    s_add_u32 s59, s59, {hex(LY.FQ)}
    """)
    if not TWO: flag_wait(a, 59, tag="a")
    a(f"s_branch {N}_a_nh")
    a.label(f"{N}_a_h1")
    a(f"""
    s_add_u32 s59, s49, 1024
    v_writelane_b32 v14, s55, 0
    v_writelane_b32 v14, s58, 1
    v_writelane_b32 v14, s49, 2
    v_writelane_b32 v14, s59, 3
    s_movk_i32 s59, 1020
    """)
    hint_wait(a, 14, "s59", 4, thr=THR_A)
    a.label(f"{N}_a_nh")
    for u in fu: u[0]()
    if TOUCH:
        a.comment("the 8 workgroups of a head each pull a distinct eighth of its K/V into the XCD's L2 (speed only)")
        a(f"""
        s_lshr_b32 s59, s37, 2
        s_lshl_b32 s59, s59, 10
        s_lshl_b32 s60, s47, 21
        s_add_u32 s59, s59, s60
        s_lshl_b32 s60, s43, 14
        s_add_u32 s59, s59, s60
        s_add_u32 s59, s59, s48
        s_add_u32 s59, s59, {hex(LY.KF)}
        v_and_b32 v34, 7, v1
        v_lshlrev_b32 v34, 7, v34
        v_lshrrev_b32 v35, 3, v1
        v_lshl_add_u32 v34, v35, 13, v34
        s_mov_b64 exec, 0xffff
        buffer_load_dword v35, v34, s[24:27], s59 offen sc1
        s_mov_b64 exec, -1
        """)
    for r in range(16):
        a(f"v_mov_b32 v{O[0]+r}, 0")
        a(f"v_mov_b32 v{O[1]+r}, 0")
    a(f"""
    v_and_b32 v14, 27, v1
    v_cmp_eq_u32 vcc, 16, v14
    v_mov_b32 v15, 0x3f803f80
    s_lshl_b32 s59, s50, 10
    v_cndmask_b32 v14, 0, v15, vcc
    """)
    for r in range(16): a(f"v_mov_b32 v{VB[0]+r}, v14")
    for r in range(4): a(f"v_mov_b32 v{P+4+r}, 0")
    a(f"""
    v_add_u32 v12, s59, v3
    v_and_b32 v13, 15, v1
    v_lshlrev_b32 v13, 4, v13
    v_lshrrev_b32 v14, 5, v1
    v_lshl_add_u32 v13, v14, 8, v13
    s_add_u32 s59, s59, 0x10000
    v_add_u32 v13, s59, v13
    s_mov_b32 s56, 0xffff
    s_mov_b32 s57, 0xffff
    v_add_u32 v32, s51, v3
    v_add_u32 v33, 0x10000, v32
    """)
    checked_units(a, fu, wait=lambda: a("s_waitcnt vmcnt(0)"))
    a(f"""
    v_mov_b32 v14, {FLAG + 4}
    v_mov_b32 v112, 1
    s_waitcnt lgkmcnt(0)
    s_barrier
    """)
    stamp(a, 2)
    def kread(buf, t): a(f"ds_read_b128 v[{KB[buf]}:{KB[buf]+3}], v12 offset:{t*1024}")
    def vread(buf, t):
        a("s_mov_b64 exec, s[56:57]")
        a(f"ds_read_b128 v[{VB[buf]}:{VB[buf]+3}], v13 offset:{t*1024}")
        a(f"ds_read_b128 v[{VB[buf]+4}:{VB[buf]+7}], v13 offset:{t*1024+512}")
        a("s_mov_b64 exec, -1")
    kread(0, 0); vread(0, 0)
    a("s_waitcnt lgkmcnt(2)")
    mf(a, S[0], KB[0], QA, "0")
    a(f"""
    s_waitcnt lgkmcnt(0)
    s_mov_b32 s58, {TS // U}
    s_mov_b32 s59, 0
    s_nop 7
    s_nop 1
    """)
    a.label(f"{N}_loop")
    for t in range(U):
        cur, nxt = t & 1, (t + 1) & 1
        for ph in range(2):
            s, o, op, sp = S[ph], O[ph], O[1 - ph], S[1 - ph]
            e = lambda i: a(f"v_exp_f32 v{s+i}, v{s+i}")
            c = lambda j: a(f"v_cvt_pk_bf16_f32 v{P+j}, v{s+2*j}, v{s+2*j+1}")
            vprev = VB[cur] if ph == 1 else VB[nxt]
            if PLO >= 0 and 2 * t + ph in (PLO, PHI):
                sk = a.uid(f"{N}_pr")
                a(f"s_cmp_eq_u32 s47, 0")
                a(f"s_cbranch_scc1 {sk}")
                a(f"s_setprio {1 if 2 * t + ph == PHI else 0}")
                a.label(sk)
            e(0); e(1)
            mf(a, op, vprev + 4, P + 4, vr(op, 16))
            e(2); c(0); e(3); e(4); c(1); e(5)
            if ph == 0:
                mf(a, sp, KB[cur], QB, "0")
                if t == 7:
                    a(f"s_cmp_lg_u32 s59, 0")
                    a(f"s_cbranch_scc1 {N}_kvd")
                    stamp(a, 8)
                    a.label(f"{N}_kvw")
                    a(f"""
                    ds_read_b32 v15, v14
                    s_waitcnt lgkmcnt(0)
                    v_readfirstlane_b32 s59, v15
                    s_cmp_ge_u32 s59, 4
                    s_cbranch_scc0 {N}_kvw
                    """)
                    stamp(a, 12)
                    a.label(f"{N}_kvd")
                kread(nxt, t + 1); vread(nxt, t + 1)
            else:
                a("s_waitcnt lgkmcnt(2)")
                mf(a, sp, KB[nxt], QA, "0")
            e(6); c(2); e(7); e(8); c(3); e(9); e(10)
            mf(a, o, VB[cur], P, vr(o, 16))
            c(4); e(11); e(12); c(5); e(13); e(14); c(6); e(15)
            if ph == 1: a("s_waitcnt lgkmcnt(0)")
            elif t == U - 1: a(f"v_add_u32 v12, {U*1024}, v12")
            else: a("s_nop 0")
            c(7)
            if t == U - 1 and ph == 0: a(f"v_add_u32 v13, {U*1024}, v13")
    a(f"""
    s_cmp_lg_u32 s58, {TS // U - 16 // U + 1}
    s_cbranch_scc1 {N}_npg
    s_mov_b64 exec, 1
    ds_add_u32 v14, v112 offset:4
    s_mov_b64 exec, -1
    """)
    a.label(f"{N}_npg")
    a(f"""
    s_sub_u32 s58, s58, 1
    s_cmp_lg_u32 s58, 0
    s_cbranch_scc1 {N}_loop
    """)
    mf(a, O[1], VB[1] + 4, P + 4, vr(O[1], 16))
    stamp(a, 3)
    a(f"""
    s_setprio 0
    s_mul_i32 s54, s40, 2304
    s_add_u32 s54, s54, 131072
    v_add_u32 v14, s54, v2
    s_xor_b32 s55, s40, 4
    s_mul_i32 s55, s55, 2304
    s_add_u32 s55, s55, 131072
    v_add_u32 v13, s55, v2
    s_add_u32 s42, s42, s47
    s_nop 7
    s_barrier
    s_cmp_eq_u32 s47, 0
    s_cbranch_scc1 {N}_k1
    """)
    for r in range(9): a(f"ds_write_b32 v14, v{O[0]+r} offset:{r*256}")
    for r in range(9): a(f"v_mov_b32 v{O[0]+r}, v{O[1]+r}")
    for r in range(4): a(f"v_mov_b32 v{QA+r}, v{QB+r}")
    a(f"s_branch {N}_jn")
    a.label(f"{N}_k1")
    for r in range(9): a(f"ds_write_b32 v14, v{O[1]+r} offset:{r*256}")
    a.label(f"{N}_jn")
    a("s_waitcnt lgkmcnt(0)")
    a("s_barrier")
    for r in range(9): a(f"ds_read_b32 v{S[0]+r}, v13 offset:{r*256}")
    a("s_waitcnt lgkmcnt(0)")
    Oa = O[0]
    for r in range(9): a(f"v_add_f32 v{Oa+r}, v{Oa+r}, v{S[0]+r}")
    a(f"v_add_f32 v14, abs(v{Oa}), abs(v{Oa+1})")
    for r in range(2, 8): a(f"v_add_f32 v14, v14, abs(v{Oa+r})")
    a(f"""
    v_cmp_le_f32 vcc, {f32hex(2.0**-60)}, v{Oa+8}
    s_mov_b32 s61, {f32hex(2.0**60)}
    v_cmp_ge_f32 s[62:63], s61, v{Oa+8}
    s_and_b64 vcc, vcc, s[62:63]
    s_mov_b32 s61, 0x7f800000
    v_cmp_gt_f32 s[62:63], s61, v14
    s_and_b64 vcc, vcc, s[62:63]
    s_cmp_eq_u64 vcc, -1
    s_cbranch_scc0 {N}_fb
    """)
    a.label(f"{N}_fin")
    a(f"""
    v_rcp_f32 v14, v{Oa+8}
    s_lshl_b32 s54, s42, 15
    s_lshl_b32 s55, s41, 10
    s_add_u32 s54, s54, s55
    s_mul_i32 s55, s3, {hex(LY.OFL)}
    s_add_u32 s54, s54, s55
    s_add_u32 s54, s54, {hex(LY.OF)}
    """)
    for r in range(8): a(f"v_mul_f32 v{Oa+r}, v{Oa+r}, v14")
    for j in range(4): a(f"v_cvt_pk_bf16_f32 v{P+j}, v{Oa+2*j}, v{Oa+2*j+1}")
    sanitize(a, range(P, P + 4))
    if LOCALO:
        a(f"buffer_store_dwordx4 v[{P}:{P+3}], v3, s[24:27], s54 offen")
        a(f"s_add_u32 s54, s54, {hex(LY.GD)}")
    a(f"buffer_store_dwordx4 v[{P}:{P+3}], v3, s[24:27], s54 offen sc1")
    stamp(a, 4)
    a(f"s_branch {N}_op")
    helper(a)

def attention_fallback(a):
    C, Oa = O[1], O[0]
    a.label(f"{N}_fb")
    a(f"""
    s_add_u32 s52, s48, {hex(LY.KF)}
    v_mov_b32 v14, 0xff800000
    s_mov_b32 s59, 64
    """)
    a.label(f"{N}_fbl")
    a(f"""
    buffer_load_dwordx4 v[{KB[0]}:{KB[0]+3}], v3, s[24:27], s52 offen sc1
    s_add_u32 s52, s52, 1024
    s_waitcnt vmcnt(0)
    v_mfma_f32_32x32x16_bf16 {vr(S[0],16)}, {vr(KB[0],4)}, {vr(QA,4)}, 0
    s_nop 15
    """)
    for j in range(8): a(f"v_max3_f32 v14, v14, v{S[0]+2*j}, v{S[0]+2*j+1}")
    a(f"""
    s_sub_u32 s59, s59, 1
    s_cmp_lg_u32 s59, 0
    s_cbranch_scc1 {N}_fbl
    v_mov_b32 v15, v14
    s_nop 1
    v_permlane32_swap_b32 v14, v15
    s_nop 1
    v_max_f32 v14, v14, v15
    v_sub_f32 v14, 0, v14
    """)
    for r in range(16):
        a(f"v_mov_b32 v{C+r}, v14")
        a(f"v_mov_b32 v{Oa+r}, 0")
    a(f"""
    v_and_b32 v13, 15, v1
    v_lshlrev_b32 v13, 4, v13
    v_lshrrev_b32 v14, 5, v1
    v_lshl_add_u32 v13, v14, 8, v13
    s_add_u32 s52, s48, {hex(LY.KF)}
    s_add_u32 s53, s48, {hex(LY.VF)}
    s_mov_b32 s59, 64
    """)
    a.label(f"{N}_fbm")
    a(f"""
    buffer_load_dwordx4 v[{KB[0]}:{KB[0]+3}], v3, s[24:27], s52 offen sc1
    s_mov_b64 exec, s[56:57]
    buffer_load_dwordx4 v[{VB[0]}:{VB[0]+3}], v13, s[24:27], s53 offen sc1
    buffer_load_dwordx4 v[{VB[0]+4}:{VB[0]+7}], v13, s[24:27], s53 offen offset:512 sc1
    s_mov_b64 exec, -1
    s_add_u32 s52, s52, 1024
    s_add_u32 s53, s53, 1024
    s_waitcnt vmcnt(0)
    v_mfma_f32_32x32x16_bf16 {vr(S[0],16)}, {vr(KB[0],4)}, {vr(QA,4)}, {vr(C,16)}
    s_nop 15
    """)
    for i in range(16): a(f"v_exp_f32 v{S[0]+i}, v{S[0]+i}")
    a("s_nop 0")
    for j in range(8): a(f"v_cvt_pk_bf16_f32 v{P+j}, v{S[0]+2*j}, v{S[0]+2*j+1}")
    a("s_nop 1")
    mf(a, Oa, VB[0], P, vr(Oa, 16))
    mf(a, Oa, VB[0] + 4, P + 4, vr(Oa, 16))
    a(f"""
    s_sub_u32 s59, s59, 1
    s_cmp_lg_u32 s59, 0
    s_cbranch_scc1 {N}_fbm
    s_nop 15
    s_branch {N}_fin
    """)

def helper(a):
    a.label(f"{N}_help")
    a(f"""
    s_sub_u32 s39, s40, 8
    s_lshl_b32 s51, s39, 10
    s_add_u32 s52, s48, s51
    v_mov_b32 v5, 0
    v_mov_b32 v8, 0
    v_mov_b32 v9, 0
    v_mov_b32 v10, 0
    v_mov_b32 v11, 0
    v_mov_b32 v4, {FLAG}
    ds_write_b128 v4, v[8:11]
    ds_write_b128 v4, v[8:11] offset:16
    ds_write_b128 v4, v[8:11] offset:32
    s_lshr_b32 s41, s39, 1
    s_and_b32 s42, s39, 1
    s_lshl_b32 s38, s36, 5
    s_add_u32 s38, s38, s37
    s_lshl_b32 s43, s38, 1
    s_add_u32 s43, s43, s41
    s_mul_i32 s45, s41, {CHB}
    s_add_u32 s45, s45, 131072
    s_lshl_b32 s46, s43, 12
    s_lshl_b32 s44, s38, 2
    s_lshl_b32 s48, s42, 11
    v_lshrrev_b32 v6, 5, v1
    v_and_b32 v7, 31, v1
    s_movk_i32 s53, 1536
    v_mul_lo_u32 v12, v6, s53
    v_lshl_add_u32 v12, v7, 4, v12
    s_mul_i32 s49, s42, 3072
    s_add_u32 s49, s49, s45
    s_add_u32 s53, s49, {2*CS}
    v_add_u32 v12, s53, v12
    ds_write_b128 v12, v[8:11]
    s_waitcnt lgkmcnt(0)
    s_barrier
    s_setprio 3
    """)
    a(f"""
    v_add_u32 v41, s51, v3
    v_add_u32 v42, 0x10000, v41
    s_add_u32 s53, s52, {hex(LY.KF)}
    s_add_u32 s54, s52, {hex(LY.KF + 32768)}
    s_add_u32 s55, s52, {hex(LY.VF)}
    s_add_u32 s56, s52, {hex(LY.VF + 32768)}
    """)
    KVS = 64
    def unit(b, i, q):
        n = 2 + 2*b + i
        r = KVS + 32*b + 16*i + 4*q
        sb = (53, 55, 54, 56)[q]
        def ld():
            a(f"s_add_u32 s57, s{sb}, {n*4096}")
            a(f"buffer_load_dwordx4 v[{r}:{r+3}], v3, s[24:27], s57 offen sc1")
        return (ld, range(r, r + 4), lambda: a(f"ds_write_b128 v{41 + (q & 1)}, v[{r}:{r+3}] offset:{n*4096 + (q >> 1)*32768}"))
    batches = [[unit(b, i, q) for i in range(2) for q in range(4)] for b in range(3)]
    a(f"""
    s_cmp_eq_u32 s3, 0
    s_cbranch_scc1 {N}_h_nh
    v_and_b32 v14, 1, v1
    v_lshlrev_b32 v14, 15, v14
    v_lshrrev_b32 v15, 1, v1
    v_lshl_add_u32 v14, v15, 12, v14
    s_add_u32 s57, s55, {8192 + 1020}
    """)
    hint_wait(a, 14, "s57", 12, thr=THR_H)
    a.label(f"{N}_h_nh")
    for bt in batches:
        for u in bt: u[0]()
    a(f"""
    s_cmp_lg_u32 s3, 0
    s_cbranch_scc1 {N}_hkv
    """)
    conv_loads(a)
    a.label(f"{N}_hkv")
    for b in range(3):
        def w(b=b):
            L = a.uid(f"{N}_hw")
            a(f"""
            s_cmp_lg_u32 s3, 0
            s_cbranch_scc1 {L}
            s_waitcnt vmcnt({16 - 8*b + 5})
            s_branch {L}_d
            """)
            a.label(L)
            a(f"s_waitcnt vmcnt({16 - 8*b})")
            a.label(L + "_d")
        checked_units(a, batches[b], wait=w)
    a(f"""
    v_mov_b32 v15, 1
    s_waitcnt lgkmcnt(0)
    s_mov_b64 exec, 1
    ds_add_u32 v4, v15 offset:4
    s_mov_b64 exec, -1
    s_cmp_lg_u32 s3, 0
    s_cbranch_scc1 {N}_hend
    """)
    conv_gathers(a)
    HL, T = 48, 16
    a(f"""
    s_add_u32 s52, s45, s48
    v_add_u32 v13, s52, v3
    s_waitcnt vmcnt({22 if LOCALO else 18})
    """)
    for it in range(2):
        A, B = HL + 8*it, HL + 8*it + 4
        for j in range(4):
            a(f"v_alignbyte_b32 v{44+j}, v{B+j}, v{A+j}, 2")
        o = 64 + it * 1024
        a(f"ds_write_b128 v13, v[44:47] offset:{o}")
        a(f"ds_write_b128 v13, v[{B}:{B+3}] offset:{o + CS}")
    a(f"""
    s_cmp_lg_u32 s42, 0
    s_cbranch_scc1 {N}_hs
    v_lshlrev_b32 v44, 16, v40
    v_cmp_eq_u32 vcc, 3, v1
    s_nop 1
    v_cndmask_b32 v11, v11, v44, vcc
    v_cmp_eq_u32 vcc, 7, v1
    s_nop 1
    v_cndmask_b32 v11, v11, v40, vcc
    v_lshrrev_b32 v12, 2, v1
    s_movk_i32 s52, {CS}
    v_mul_lo_u32 v12, v12, s52
    v_and_b32 v14, 3, v1
    v_lshl_add_u32 v12, v14, 4, v12
    v_add_u32 v12, s45, v12
    s_mov_b64 exec, 0xff
    ds_write_b128 v12, v[8:11]
    s_mov_b64 exec, -1
    """)
    a.label(f"{N}_hs")
    if GATHER:
        KFp, VFp, WPr, RS = 64, 86, 102, 16
        D0 = 36
        a(f"""
        v_lshlrev_b32 v{WPr+0}, 16, v{D0}
        v_lshlrev_b32 v{WPr+1}, 16, v{D0+2}
        v_and_b32 v{WPr+2}, 0xffff0000, v{D0}
        v_and_b32 v{WPr+3}, 0xffff0000, v{D0+2}
        v_lshlrev_b32 v{WPr+4}, 16, v{D0+1}
        v_lshlrev_b32 v{WPr+5}, 16, v{D0+3}
        v_and_b32 v{WPr+6}, 0xffff0000, v{D0+1}
        v_and_b32 v{WPr+7}, 0xffff0000, v{D0+3}
        v_and_b32 v12, 3, v1
        s_movk_i32 s52, 1536
        v_mul_lo_u32 v12, v12, s52
        v_lshrrev_b32 v14, 2, v1
        v_lshl_add_u32 v14, v14, 4, v12
        s_lshl_b32 s52, s39, 8
        s_add_u32 s52, s52, {131072 + 2*CS + 512}
        v_add_u32 v14, s52, v14
        s_waitcnt vmcnt(14)
        """)
        for r in range(11):
            a(f"v_lshlrev_b32 v{KFp+2*r}, 16, v{T+r}")
            a(f"v_and_b32 v{KFp+2*r+1}, 0xffff0000, v{T+r}")
        for r in range(8):
            a(f"v_lshlrev_b32 v{VFp+2*r}, 16, v{T+11+r}")
            a(f"v_and_b32 v{VFp+2*r+1}, 0xffff0000, v{T+11+r}")
        for t in range(8):
            a(f"v_pk_mul_f32 {p(RS+2*t)}, {p(KFp+2*t)}, {p(WPr+6)}")
        for jj in (2, 1, 0):
            for t in range(8):
                a(f"v_pk_fma_f32 {p(RS+2*t)}, {p(KFp+2*(t+3-jj))}, {p(WPr+2*jj)}, {p(RS+2*t)}")
        for t in range(8):
            a(f"v_pk_mul_f32 {p(RS+2*t)}, {p(RS+2*t)}, {p(VFp+2*t)}")
        for q in range(4):
            a(f"v_cvt_pk_bf16_f32 v{32+q}, v{RS+2*(7-2*q)}, v{RS+2*(6-2*q)}")
            a(f"v_cvt_pk_bf16_f32 v{36+q}, v{RS+2*(7-2*q)+1}, v{RS+2*(6-2*q)+1}")
        a(f"""
        ds_write_b128 v14, v[32:35]
        ds_write_b128 v14, v[36:39] offset:{CHB}
        """)
    a(f"""
    v_mov_b32 v5, 1
    s_waitcnt lgkmcnt(0)
    s_mov_b64 exec, 1
    ds_add_u32 v4, v5
    s_mov_b64 exec, -1
    v_and_b32 v12, 1, v1
    s_movk_i32 s52, {CS - 2}
    v_mul_lo_u32 v12, v12, s52
    v_and_b32 v14, 19, v1
    v_lshl_add_u32 v12, v14, 1, v12
    v_bfe_u32 v14, v1, 2, 1
    v_lshl_add_u32 v12, v14, 4, v12
    v_bfe_u32 v14, v1, 3, 1
    v_lshl_add_u32 v12, v14, 3, v12
    v_lshlrev_b32 v14, 4, v6
    v_sub_u32 v12, v12, v14
    s_add_u32 s53, s45, 16
    v_add_u32 v12, s53, v12
    s_movk_i32 s52, 1536
    v_mul_lo_u32 v13, v6, s52
    v_lshl_add_u32 v13, v7, 4, v13
    s_lshl_b32 s59, s42, 9
    s_add_u32 s53, s45, s59
    s_add_u32 s53, s53, {2*CS}
    v_add_u32 v8, s53, v13
    v_subrev_u32 v13, 64, v8
    s_lshl_b32 s55, s42, 2
    s_add_u32 s55, s55, 8
    """)
    ACC = 64
    for r in range(16): a(f"v_mov_b32 v{ACC+r}, 0")
    a.label(f"{N}_cw")
    a(f"""
    ds_read_b32 v5, v4
    s_waitcnt lgkmcnt(0)
    v_readfirstlane_b32 s52, v5
    s_cmp_ge_u32 s52, 4
    s_cbranch_scc1 {N}_cwd
    s_sleep 2
    s_branch {N}_cw
    """)
    a.label(f"{N}_cwd")
    if TWO:
        a(f"""
        buffer_store_dwordx4 v[152:155], v3, s[24:27], s33 offen sc1
        buffer_store_dwordx4 v[156:159], v3, s[24:27], s33 offen offset:1024 sc1
        """)
    a(f"""
    s_lshl_b32 s53, s2, 4
    s_lshl_b32 s54, s39, 2
    s_add_u32 s53, s53, s54
    s_add_u32 s53, s53, {hex(LY.FF)}
    """)
    publish(a, 53)
    a(f"""
    s_lshl_b32 s53, s37, 14
    s_lshl_b32 s54, s39, 12
    s_add_u32 s53, s53, s54
    s_mov_b32 s20, s6
    s_mov_b32 s21, s7
    s_mov_b32 s22, 0x80000
    v_lshlrev_b32 v80, 6, v1
    buffer_load_dword v81, v80, s[20:23], s53 offen
    """)
    BUF = (16, 84)
    ACC2 = 116
    def reads(buf, d0):
        for dd in range(2):
            for kp in range(2):
                b = BUF[buf] + 16 * dd + 8 * kp
                ao = 8 * (2 * (d0 + dd) - kp + 1)
                a(f"ds_read2_b32 v[{b}:{b+1}], v12 offset0:{ao} offset1:{ao+1}")
                a(f"ds_read2_b32 v[{b+2}:{b+3}], v12 offset0:{ao+2} offset1:{ao+3}")
                a(f"ds_read_b128 v[{b+4}:{b+7}], v13 offset:{kp * 3072 + (32 - d0 - dd) * 16 + 64}")
    def mfmas(buf, acc):
        for q in range(4):
            b = BUF[buf] + 8 * q
            mf(a, acc, b, b + 4, vr(acc, 16))
    def cloop(tag, acc):
        reads(0, 0)
        a.label(f"{N}_clp{tag}")
        a("s_waitcnt lgkmcnt(0)")
        reads(1, 2)
        mfmas(0, acc)
        a("s_waitcnt lgkmcnt(0)")
        reads(0, 4)
        mfmas(1, acc)
        a(f"""
        v_add_u32 v12, 256, v12
        v_subrev_u32 v13, 64, v13
        s_sub_u32 s55, s55, 1
        s_cmp_lg_u32 s55, 0
        s_cbranch_scc1 {N}_clp{tag}
        s_waitcnt lgkmcnt(0)
        """)
    for r in range(16): a(f"v_mov_b32 v{ACC2+r}, 0")
    cloop("a", ACC)
    a(f"""
    s_lshl_b32 s52, s41, 12
    s_add_u32 s52, s52, {XCH}
    v_add_u32 v9, s52, v3
    s_lshl_b32 s52, s41, 2
    v_add_u32 v10, s52, v4
    s_cmp_lg_u32 s42, 0
    s_cbranch_scc1 {N}_cj1
    v_add_u32 v12, {16*64}, v12
    v_add_u32 v13, 256, v13
    s_mov_b32 s55, 4
    """)
    cloop("b", ACC2)
    a.label(f"{N}_cpg")
    a(f"""
    ds_read_b32 v5, v4 offset:8
    s_waitcnt lgkmcnt(0)
    v_readfirstlane_b32 s52, v5
    s_cmp_ge_u32 s52, 8
    s_cbranch_scc1 {N}_cpd
    s_sleep 4
    s_branch {N}_cpg
    """)
    a.label(f"{N}_cpd")
    a("s_nop 7")
    for g in range(4): a(f"ds_write_b128 v9, v[{ACC2+4*g}:{ACC2+4*g+3}] offset:{g*1024}")
    a(f"""
    v_mov_b32 v5, 1
    s_waitcnt lgkmcnt(0)
    s_mov_b64 exec, 1
    ds_write_b32 v10, v5 offset:12
    s_mov_b64 exec, -1
    s_branch {N}_cjd
    """)
    a.label(f"{N}_cj1")
    a(f"""
    ds_read_b32 v5, v10 offset:12
    s_waitcnt lgkmcnt(0)
    v_readfirstlane_b32 s52, v5
    s_cmp_lg_u32 s52, 0
    s_cbranch_scc1 {N}_cj2
    s_sleep 1
    s_branch {N}_cj1
    """)
    a.label(f"{N}_cj2")
    for g in range(4): a(f"ds_read_b128 v[{ACC2+4*g}:{ACC2+4*g+3}], v9 offset:{g*1024}")
    a("s_waitcnt lgkmcnt(0)")
    for r in range(16): a(f"v_add_f32 v{ACC+r}, v{ACC+r}, v{ACC2+r}")
    a.label(f"{N}_cjd")
    a(f"""
    ds_read_b128 v[16:19], v8 offset:512
    ds_read_b128 v[20:23], v8 offset:{3072 + 512}
    s_lshl_b32 s60, s47, 16
    s_and_b32 s61, s47, 0xffff0000
    s_cmp_eq_u32 s41, 0
    s_cselect_b32 s60, s60, s61
    v_lshlrev_b32 v12, 4, v7
    v_lshl_add_u32 v12, v6, 10, v12
    s_lshl_b32 s59, s42, 9
    s_add_u32 s58, s59, s46
    s_add_u32 s58, s58, {hex(LY.YT)}
    s_lshl_b32 s59, s42, 11
    s_waitcnt lgkmcnt(0)
    """)
    for kp in range(2):
        for j in range(4):
            a(f"v_lshlrev_b32 v{24+8*kp+7-2*j}, 16, v{16+4*kp+j}")
            a(f"v_and_b32 v{24+8*kp+6-2*j}, 0xffff0000, v{16+4*kp+j}")
    for r in range(16): a(f"v_fmac_f32 v{ACC+r}, s60, v{24+r}")
    for j in range(8): a(f"v_cvt_pk_bf16_f32 v{16+j}, v{ACC+2*j}, v{ACC+2*j+1}")
    a(f"""
    buffer_store_dwordx4 v[16:19], v12, s[24:27], s58 offen sc1
    buffer_store_dwordx4 v[20:23], v12, s[24:27], s58 offen offset:2048 sc1
    s_lshl_b32 s68, s43, 2
    s_add_u32 s68, s68, s59
    s_add_u32 s68, s68, {hex(LY.FY)}
    """)
    stamp(a, 12)
    a(f"""
    s_cmp_lg_u32 s39, 0
    s_cbranch_scc1 {N}_nall
    s_mov_b32 s53, {hex(LY.FU)}
    """)
    if not TWO: flag_wait(a, 53, nload=4, wide=True, tag="x")
    a(f"s_mov_b32 s53, {hex(LY.FF)}")
    flag_wait(a, 53, nload=4, wide=True, tag="y")
    if not TWO:
        a(f"s_mov_b32 s53, {hex(LY.FQ)}")
        flag_wait(a, 53, nload=4, wide=True, tag="z")
    a.label(f"{N}_nall")
    a(f"""
    v_mov_b32 v5, 1
    s_mov_b64 exec, 1
    ds_add_u32 v4, v5
    s_mov_b64 exec, -1
    """)
    a.label(f"{N}_cw2")
    a(f"""
    ds_read_b32 v5, v4
    s_waitcnt lgkmcnt(0)
    v_readfirstlane_b32 s52, v5
    s_cmp_ge_u32 s52, 8
    s_cbranch_scc1 {N}_cw3
    s_sleep 1
    s_branch {N}_cw2
    """)
    a.label(f"{N}_cw3")
    a(f"""
    v_lshlrev_b32 v80, 7, v1
    s_mul_i32 s53, s37, 49152
    s_mul_i32 s54, s39, 12288
    s_add_u32 s53, s53, s54
    s_add_u32 s53, s53, {hex(LY.WP)}
    buffer_load_dword v81, v80, s[24:27], s53 offen
    s_add_u32 s53, s53, 4096
    buffer_load_dword v81, v80, s[24:27], s53 offen
    """)
    a.label(f"{N}_hend")
    wo_preload(a, "b")
    a(f"""
    s_setprio 0
    s_barrier
    s_barrier
    """)

def conv_loads(a):
    a(f"""
    s_load_dword s47, s[12:13], s44
    s_add_u32 s20, s16, s46
    s_addc_u32 s21, s17, 0
    s_movk_i32 s22, 0x1000
    s_mov_b32 s23, 0x00020000
    v_add_u32 v13, s48, v3
    """)
    if GATHER:
        srd(a, 32, 28, 0x200000)
        srd(a, 60, 30, 0x200000)
    HL = 48
    for it in range(2):
        for k in range(2):
            a(f"buffer_load_dwordx4 v[{HL+8*it+4*k}:{HL+8*it+4*k+3}], v13, s[20:23], 0 offen offset:{it*1024 + 4*k}")
    T = 16
    a(f"""
    buffer_load_dword v40, v5, s[20:23], 0 offen
    """)
    if GATHER:
        a(f"""
        s_mov_b32 s20, s10
        s_mov_b32 s21, s11
        s_lshl_b32 s50, s38, 4
        buffer_load_dwordx4 v[36:39], v5, s[20:23], s50 offen
        s_lshl_b32 s50, s39, 19
        s_add_u32 s50, s50, s44
        v_lshlrev_b32 v12, 13, v1
        v_add_u32 v12, s50, v12
        v_add_u32 v13, 0x1000, v12
        v_subrev_u32 v14, 0xc00, v12
        """)
    else:
        pass

def conv_u(a):
    if True:
        a(f"""
        s_lshl_b32 s50, s36, 9
        s_add_u32 s50, s50, {hex(LY.FU)}
        """)
        if not TWO: flag_wait(a, 50, nload=2, tag="u")
        a(f"""
        s_add_u32 s50, s46, s48
        s_add_u32 m0, s49, {2*CS + 512}
        s_add_u32 s57, s50, {hex(LY.UT)}
        buffer_load_dwordx4 v3, s[24:27], s57 offen sc1 lds
        s_add_u32 m0, s49, {2*CS + 512 + 1536}
        s_add_u32 s57, s50, {hex(LY.UT + 1024)}
        buffer_load_dwordx4 v3, s[24:27], s57 offen sc1 lds
        """)

def conv_gathers(a):
    T = 16
    if not GATHER:
        conv_u(a)
        if TWO:
            a.comment("packed copy of wqkv for layer 2: rows [32r,32r+32) of column tile c', tile f = cw (3 repeats 2)")
            a(f"""
            s_mov_b32 s20, s34
            s_mov_b32 s21, s35
            s_mov_b32 s22, 0x180000
            v_lshrrev_b32 v12, 2, v1
            s_movk_i32 s52, 3072
            v_mul_lo_u32 v12, v12, s52
            v_and_b32 v13, 3, v1
            v_lshl_add_u32 v12, v13, 4, v12
            s_lshr_b32 s52, s2, 4
            s_and_b32 s53, s2, 15
            s_min_u32 s56, s39, 2
            s_lshl_b32 s57, s56, 10
            s_lshl_b32 s58, s53, 6
            s_add_u32 s57, s57, s58
            s_mul_i32 s58, s52, {32*3072}
            s_add_u32 s57, s57, s58
            buffer_load_dwordx4 v[152:155], v12, s[20:23], s57 offen
            s_add_u32 s57, s57, {16*3072}
            buffer_load_dwordx4 v[156:159], v12, s[20:23], s57 offen
            s_mul_i32 s55, s53, {8*12288}
            s_lshr_b32 s58, s52, 1
            s_mul_i32 s58, s58, 12288
            s_add_u32 s55, s55, s58
            s_and_b32 s58, s52, 1
            s_lshl_b32 s58, s58, 11
            s_add_u32 s55, s55, s58
            s_lshl_b32 s56, s56, 12
            s_add_u32 s55, s55, s56
            s_add_u32 s33, s55, {hex(LY.WP)}
            """)
        prefill(a)
        return
    for r in range(3):
        a(f"buffer_load_dword v{T+r}, v14, s[32:35], 0 offen offset:{r*1024}")
    for r in range(8):
        a(f"buffer_load_dword v{T+3+r}, v{12 if r < 4 else 13}, s[32:35], 0 offen offset:{(r%4)*1024}")
    for r in range(8):
        a(f"buffer_load_dword v{T+11+r}, v{12 if r < 4 else 13}, s[60:63], 0 offen offset:{(r%4)*1024}")
    prefill(a)

def wo_preload(a, tag):
    a.label(f"{N}_wp{tag}")
    a(f"""
    ds_read_b32 v84, v4 offset:8
    s_waitcnt lgkmcnt(0)
    v_readfirstlane_b32 s52, v84
    s_cmp_ge_u32 s52, 8
    s_cbranch_scc1 {N}_wq{tag}
    s_sleep 8
    s_branch {N}_wp{tag}
    """)
    a.label(f"{N}_wq{tag}")
    a(f"""
    s_mov_b32 s20, s6
    s_mov_b32 s21, s7
    s_mov_b32 s22, 0x80000
    s_mov_b32 s23, 0x00020000
    v_bfe_u32 v84, v1, 2, 3
    v_lshlrev_b32 v84, 10, v84
    v_lshrrev_b32 v85, 5, v1
    v_lshl_add_u32 v84, v85, 6, v84
    v_and_b32 v85, 3, v1
    v_lshl_add_u32 v84, v85, 4, v84
    s_lshr_b32 s52, s37, 2
    s_lshl_b32 s52, s52, 7
    s_lshl_b32 s53, s39, 13
    s_add_u32 s52, s52, s53
    s_lshl_b32 s54, s39, 10
    """)
    for n in range(16):
        a(f"s_add_u32 m0, s54, {(n >> 2)*32768 + (n & 3)*4096}")
        a(f"s_add_u32 s53, s52, {n*32768}")
        a(f"buffer_load_dwordx4 v84, s[20:23], s53 offen lds")

def prefill(a):
    a(f"""
    v_mov_b32 v160, -1
    v_mov_b32 v161, -1
    v_mov_b32 v162, -1
    v_mov_b32 v163, -1
    s_lshl_b32 s58, s36, 2
    s_and_b32 s59, s37, 3
    s_add_u32 s58, s58, s59
    s_lshr_b32 s59, s37, 2
    s_lshl_b32 s50, {"s36" if LOCALO else "s59"}, 18
    s_lshl_b32 s64, s39, 16
    s_add_u32 s50, s50, s64
    s_lshl_b32 s64, {"s37" if LOCALO else "s58"}, 10
    s_add_u32 s50, s50, s64
    """)
    for L in (0, 1):
        for t in range(2):
            a(f"s_add_u32 s64, s50, {hex(LY.OF + L*LY.OFL + t*32768)}")
            a(f"buffer_store_dwordx4 v[160:163], v3, s[24:27], s64 offen sc1")
            if LOCALO:
                a(f"s_add_u32 s64, s64, {hex(LY.GD)}")
                a(f"buffer_store_dwordx4 v[160:163], v3, s[24:27], s64 offen sc1")
    a(f"""
    s_lshl_b32 s50, s58, 1
    s_add_u32 s50, s50, s42
    s_lshl_b32 s64, s50, 15
    s_lshl_b32 s66, s59, 12
    s_add_u32 s64, s64, s66
    s_lshl_b32 s66, s41, 11
    s_add_u32 s64, s64, s66
    s_add_u32 s64, s64, {hex(LY.X2F)}
    buffer_store_dwordx4 v[160:163], v3, s[24:27], s64 offen sc1
    buffer_store_dwordx4 v[160:163], v3, s[24:27], s64 offen offset:1024 sc1
    s_add_u32 s64, s64, {hex(LY.GD)}
    buffer_store_dwordx4 v[160:163], v3, s[24:27], s64 offen sc1
    buffer_store_dwordx4 v[160:163], v3, s[24:27], s64 offen offset:1024 sc1
    s_lshl_b32 s64, s50, 12
    s_lshl_b32 s66, s59, 9
    s_add_u32 s64, s64, s66
    s_lshl_b32 s66, s41, 8
    s_add_u32 s64, s64, s66
    s_add_u32 s64, s64, {hex(LY.ST2)}
    buffer_store_dword v160, v2, s[24:27], s64 offen sc1
    s_add_u32 s64, s64, {hex(LY.GD)}
    buffer_store_dword v160, v2, s[24:27], s64 offen sc1
    s_sub_u32 s64, s64, {hex(LY.GD + LY.ST2)}
    s_lshl_b32 s64, s64, 1
    s_add_u32 s64, s64, {hex(LY.GR)}
    s_mov_b64 exec, 0xffffffff
    buffer_store_dwordx4 v[160:163], v3, s[24:27], s64 offen
    s_add_u32 s64, s64, {hex(LY.GRL)}
    buffer_store_dwordx4 v[160:163], v3, s[24:27], s64 offen
    s_mov_b64 exec, -1
    s_lshl_b32 s50, s36, 1
    s_and_b32 s64, s37, 1
    s_add_u32 s50, s50, s64
    s_lshl_b32 s50, s50, 2
    s_add_u32 s50, s50, s39
    s_lshl_b32 s50, s50, 10
    s_lshr_b32 s64, s37, 1
    s_lshl_b32 s64, s64, 17
    s_add_u32 s50, s50, s64
    """)
    for base in (LY.QF, LY.KF, LY.VF):
        for h in range(2):
            a(f"s_add_u32 s64, s50, {hex(LY.QKVL + base + h*65536)}")
            a(f"buffer_store_dwordx4 v[160:163], v3, s[24:27], s64 offen sc1")

def oproj(a):
    a.comment("================= out-projection + gated layer =================")
    a.label(f"{N}_op")
    a(f"""
    s_lshl_b32 s41, s36, 2
    s_and_b32 s46, s37, 3
    s_add_u32 s41, s41, s46
    s_lshr_b32 s42, s37, 2
    s_cmp_lt_u32 s40, 4
    s_cbranch_scc1 {N}_opc
    s_cmp_lt_u32 s40, 8
    s_cbranch_scc1 {N}_opb
    """)
    a(f"""
    s_cmp_lg_u32 s3, 0
    s_cbranch_scc1 {N}_oph
    """)
    publish(a, 68)
    a.label(f"{N}_oph")
    a(f"""
    s_sub_u32 s53, s40, 8
    s_and_b32 s55, s53, 1
    s_lshl_b32 s55, s55, 15
    s_lshr_b32 s56, s53, 1
    s_lshl_b32 s56, s56, 14
    s_add_u32 s55, s55, s56
    s_lshl_b32 s56, s41, 16
    s_add_u32 s56, s56, s55
    s_mul_i32 s57, s3, {hex(LY.OFL)}
    s_add_u32 s56, s56, s57
    s_add_u32 s56, s56, {hex(LY.OF)}
    s_add_u32 s57, s56, 4096
    s_add_u32 s58, s56, 8192
    s_add_u32 s59, s56, 12288
    s_and_b32 s55, s53, 1
    s_lshl_b32 s55, s55, 16
    s_lshr_b32 s54, s53, 1
    s_lshl_b32 s54, s54, 15
    s_add_u32 s55, s55, s54
    s_add_u32 s55, s55, 16384
    v_add_u32 v6, s55, v3
    """)
    ou = [(lambda n=n: a(f"buffer_load_dwordx4 v[{16+4*n}:{19+4*n}], v7, s[24:27], s{56 + n // 4} offen offset:{(n % 4)*1024} sc1"),
           range(16 + 4*n, 20 + 4*n),
           lambda n=n: a(f"ds_write_b128 v6, v[{16+4*n}:{19+4*n}] offset:{n*1024}")) for n in range(16)]
    a("v_lshlrev_b32 v14, 10, v1")
    a("s_add_u32 s54, s56, 1020")
    stamp(a, 2)
    a("v_mov_b32 v7, v3")
    hint_wait(a, 14, "s54", 16, thr=THR_O, switch=[14, 7] if LOCALO else None)
    stamp(a, 3)
    for u in ou: u[0]()
    stamp(a, 4)
    checked_units(a, ou, wait=lambda: (a("s_waitcnt vmcnt(0)"), stamp(a, 5)), switch=[7] if LOCALO else None)
    if DIAGFIX(): a("s_sub_u32 s76, 0x8000, s69\ns_add_u32 s76, s76, s70")
    a(f"s_branch {N}_opj")
    a.label(f"{N}_opb")
    a(f"""
    s_cmp_lg_u32 s40, 4
    s_cbranch_scc1 {N}_opj
    """)
    a(f"""
    s_cmp_lg_u32 s3, 0
    s_cbranch_scc1 {N}_ygo
    s_lshr_b32 s53, s41, 4
    s_lshl_b32 s53, s53, 11
    s_lshl_b32 s55, s42, 8
    s_add_u32 s53, s53, s55
    s_add_u32 s53, s53, {hex(LY.FY)}
    """)
    flag_wait(a, 53, tag="w")
    a.label(f"{N}_ygo")
    a(f"""
    v_lshrrev_b32 v5, 3, v1
    v_lshlrev_b32 v5, 12, v5
    v_and_b32 v6, 3, v1
    v_lshl_add_u32 v5, v6, 10, v5
    v_bfe_u32 v6, v1, 2, 1
    v_lshl_add_u32 v5, v6, 4, v5
    s_lshl_b32 s55, s42, 18
    s_lshl_b32 s56, s41, 5
    s_add_u32 s55, s55, s56
    """)
    for n in range(8):
        a(f"s_mov_b32 m0, {YL + n*1024}")
        a(f"s_add_u32 s56, s55, {hex(LY.YT + n*32768)}")
        a(f"buffer_load_dwordx4 v5, s[24:27], s56 offen sc1 lds")
    a("s_waitcnt vmcnt(0)")
    a.label(f"{N}_opj")
    if DIAGFIX():
        stamp(a, 13)
        a(f"s_cmp_lg_u32 s3, {DIAGL}")
        a(f"s_cbranch_scc1 {N}_dg1")
        stamp_flush(a, 3, 14, 40, 14)
        a("s_mov_b64 exec, -1\nv_and_b32 v1, 63, v0\nv_lshlrev_b32 v2, 2, v1")
        a.label(f"{N}_dg1")
    a(f"""
    s_waitcnt lgkmcnt(0)
    s_barrier
    """)
    a.label(f"{N}_opw")
    a(f"""
    s_barrier
    s_cmp_lg_u32 s3, 0
    s_cbranch_scc1 {N}_done
    s_branch {N}_qkv
    """)
    a.label(f"{N}_opc")
    RES, YR, ACC, FR, T, RF, G = 16, 24, 32, 48, 80, 88, 104
    a(f"""
    s_and_b32 s46, s40, 1
    s_lshr_b32 s47, s40, 1
    s_lshl_b32 s43, s41, 1
    s_add_u32 s43, s43, s46
    v_and_b32 v7, 31, v1
    v_lshlrev_b32 v8, 4, v7
    v_lshlrev_b32 v7, 10, v7
    v_lshrrev_b32 v6, 5, v1
    v_lshl_add_u32 v7, v6, 4, v7
    s_lshl_b32 s58, s43, 15
    s_lshl_b32 s56, s42, 7
    s_add_u32 s58, s58, s56
    s_lshl_b32 s56, s47, 6
    s_add_u32 s58, s58, s56
    s_lshl_b32 s55, s43, 15
    s_lshl_b32 s56, s42, 12
    s_add_u32 s55, s55, s56
    s_lshl_b32 s56, s47, 11
    s_add_u32 s55, s55, s56
    s_add_u32 s55, s55, {hex(LY.X2F)}
    s_mov_b32 s22, 0x200000
    s_mov_b32 s23, 0x00020000
    s_cmp_lg_u32 s3, 0
    s_cbranch_scc1 {N}_opr1
    s_mov_b32 s20, s4
    s_mov_b32 s21, s5
    buffer_load_dwordx4 v[{RES}:{RES+3}], v7, s[20:23], s58 offen
    buffer_load_dwordx4 v[{RES+4}:{RES+7}], v7, s[20:23], s58 offen offset:32
    s_branch {N}_opr2
    """)
    a.label(f"{N}_opr1")
    a(f"""
    s_mov_b32 s20, s8
    s_mov_b32 s21, s9
    buffer_load_dwordx4 v[{RES}:{RES+3}], v3, s[24:27], s55 offen sc1
    buffer_load_dwordx4 v[{RES+4}:{RES+7}], v3, s[24:27], s55 offen offset:1024 sc1
    """)
    a.label(f"{N}_opr2")
    a(f"""
    v_bfe_u32 v10, v1, 2, 2
    v_lshlrev_b32 v5, 10, v6
    v_lshl_add_u32 v4, v10, 7, v5
    v_lshl_add_u32 v5, v10, 6, v5
    v_bfe_u32 v10, v1, 4, 1
    v_lshl_add_u32 v5, v10, 5, v5
    v_lshl_add_u32 v4, v10, 5, v4
    v_and_b32 v10, 3, v1
    v_lshl_add_u32 v4, v10, 3, v4
    v_and_b32 v10, 1, v1
    v_lshl_add_u32 v5, v10, 4, v5
    v_bfe_u32 v10, v1, 1, 1
    v_lshl_add_u32 v5, v10, 3, v5
    s_lshl_b32 s57, s47, 9
    v_add_u32 v5, s57, v5
    s_lshl_b32 s57, s47, 12
    s_lshl_b32 s56, s46, 6
    s_add_u32 s57, s57, s56
    s_add_u32 s57, s57, {YL}
    v_add_u32 v4, s57, v4
    s_lshl_b32 s57, s46, 16
    s_add_u32 s57, s57, 16384
    v_add_u32 v9, s57, v3
    v_add_u32 v11, 0x10000, v5
    s_mul_i32 s59, s3, {hex(LY.GRL)}
    s_lshl_b32 s60, s43, 13
    s_add_u32 s59, s59, s60
    s_add_u32 s59, s59, {hex(LY.GR)}
    s_lshl_b32 s60, s42, 10
    s_lshl_b32 s61, s47, 9
    s_add_u32 s60, s60, s61
    s_add_u32 s60, s60, s59
    s_add_u32 s61, s59, 4096
    s_mov_b32 s62, 0x3f803f80
    s_barrier
    """)
    stamp(a, 5)
    def rd(ks):
        b = FR + 8 * (ks & 3)
        a(f"ds_read_b128 v[{b}:{b+3}], v9 offset:{(ks >> 4)*32768 + (ks & 15)*1024}")
        wb, wo_ = (5 if ks < 16 else 11), ((ks >> 3) & 1)*32768 + (ks & 7)*2048
        a(f"ds_read_b64_tr_b16 v[{b+4}:{b+5}], v{wb} offset:{wo_}")
        a(f"ds_read_b64_tr_b16 v[{b+6}:{b+7}], v{wb} offset:{wo_ + 256}")
    for i in range(4): rd(i)
    for ks in range(32):
        a(f"s_waitcnt lgkmcnt({3*min(3, 31 - ks)})")
        b = FR + 8 * (ks & 3)
        mf(a, ACC, b + 4, b, "0" if ks == 0 else vr(ACC, 16))
        if ks + 4 < 32: rd(ks + 4)
    for q in range(4):
        a(f"ds_read_b64_tr_b16 v[{YR+2*q}:{YR+2*q+1}], v4 offset:{(q >> 1)*2048 + (q & 1)*512}")
    a("s_barrier")
    a("s_waitcnt vmcnt(0)")
    for j in range(8):
        a(f"v_lshlrev_b32 v{RF+2*j}, 16, v{RES+j}")
        a(f"v_and_b32 v{RF+2*j+1}, 0xffff0000, v{RES+j}")
    a(f"""
    v_mov_b32 v12, 0
    v_mov_b32 v14, 0
    """)
    stamp(a, 6)
    for j in range(8): a(f"v_cvt_pk_bf16_f32 v{T+j}, v{ACC+2*j}, v{ACC+2*j+1}")
    for j in range(8):
        a(f"v_lshlrev_b32 v{ACC+2*j}, 16, v{T+j}")
        a(f"v_and_b32 v{ACC+2*j+1}, 0xffff0000, v{T+j}")
    for j in range(8): a(f"v_pk_add_f32 {p(ACC+2*j)}, {p(ACC+2*j)}, {p(RF+2*j)}")
    for j in range(8): a(f"v_cvt_pk_bf16_f32 v{T+j}, v{ACC+2*j}, v{ACC+2*j+1}")
    for j in range(8):
        a(f"v_dot2c_f32_bf16 v12, s62, v{T+j}")
        a(f"v_dot2c_f32_bf16 v14, v{T+j}, v{T+j}")
    a(f"""
    s_nop 2
    v_mov_b32 v13, v12
    v_mov_b32 v15, v14
    s_nop 1
    v_permlane32_swap_b32 v12, v13
    v_permlane32_swap_b32 v14, v15
    s_nop 1
    v_add_f32 v12, v12, v13
    v_add_f32 v14, v14, v15
    v_mov_b32 v13, s65
    v_mov_b32 v15, s65
    s_mov_b64 exec, 0xffffffff
    buffer_store_dwordx4 v[12:15], v8, s[24:27], s60 offen
    s_add_u32 s66, s60, {hex(LY.GD)}
    buffer_store_dwordx4 v[12:15], v8, s[24:27], s66 offen sc1
    s_mov_b64 exec, -1
    s_mov_b32 s69, 0x8000
    v_mov_b32 v6, v3
    """)
    for j in range(8):
        a(f"v_lshlrev_b32 v{ACC+2*j}, 16, v{T+j}")
        a(f"v_and_b32 v{ACC+2*j+1}, 0xffff0000, v{T+j}")
    a("s_waitcnt lgkmcnt(0)")
    for j in range(8):
        a(f"v_lshlrev_b32 v{RF+2*j}, 16, v{YR+j}")
        a(f"v_and_b32 v{RF+2*j+1}, 0xffff0000, v{YR+j}")
    a.label(f"{N}_gp")
    for i in range(8):
        a(f"buffer_load_dwordx4 v[{G+4*i}:{G+4*i+3}], v6, s[24:27], s{59 if i < 4 else 61} offen offset:{(i%4)*1024} sc1")
    a("s_waitcnt vmcnt(0)")
    tags = [G + 4*i + k for i in range(8) for k in (1, 3)]
    a(f"v_min3_u32 v10, v{tags[0]}, v{tags[1]}, v{tags[2]}")
    a(f"v_max3_u32 v11, v{tags[0]}, v{tags[1]}, v{tags[2]}")
    for q in range(3, 15, 2):
        a(f"v_min3_u32 v10, v10, v{tags[q]}, v{tags[q+1]}")
        a(f"v_max3_u32 v11, v11, v{tags[q]}, v{tags[q+1]}")
    a(f"""
    v_min_u32 v10, v10, v{tags[15]}
    v_max_u32 v11, v11, v{tags[15]}
    v_xor_b32 v10, s65, v10
    v_xor_b32 v11, s65, v11
    v_or_b32 v10, v10, v11
    v_cmp_eq_u32 vcc, 0, v10
    s_sub_u32 s69, s69, 1
    s_cbranch_scc1 {N}_gpo
    s_cmp_eq_u64 vcc, -1
    s_cbranch_scc1 {N}_gpo
    """)
    switch_copy(a, f"{N}_gp", [6])
    a(f"""
    s_sleep {GSLEEP}
    s_branch {N}_gp
    """)
    a.label(f"{N}_gpo")
    stamp(a, 7)
    for i in range(1, 8):
        a(f"v_add_f32 v{G}, v{G}, v{G+4*i}")
        a(f"v_add_f32 v{G+2}, v{G+2}, v{G+4*i+2}")
    a(f"""
    v_mov_b32 v{G+1}, v{G}
    v_mov_b32 v{G+3}, v{G+2}
    s_mov_b32 s56, {f32hex(1.0/512)}
    s_nop 0
    v_permlane32_swap_b32 v{G}, v{G+1}
    v_permlane32_swap_b32 v{G+2}, v{G+3}
    s_nop 1
    v_add_f32 v10, v{G}, v{G+1}
    v_add_f32 v11, v{G+2}, v{G+3}
    v_mul_f32 v10, s56, v10
    v_mul_f32 v11, s56, v11
    v_fma_f32 v11, -v10, v10, v11
    v_max_f32 v11, 0, v11
    v_add_f32 v11, {f32hex(1e-5)}, v11
    v_rsq_f32 v12, v11
    s_nop 0
    v_mul_f32 v14, v10, v12
    v_sub_f32 v14, 0, v14
    v_mov_b32 v13, v12
    v_mov_b32 v15, v14
    """)
    for j in range(8): a(f"v_pk_fma_f32 {p(FR+2*j)}, {p(ACC+2*j)}, v[12:13], v[14:15]")
    for j in range(8): a(f"v_pk_fma_f32 {p(FR+2*j)}, {p(FR+2*j)}, {p(RF+2*j)}, {p(ACC+2*j)}")
    for j in range(8): a(f"v_cvt_pk_bf16_f32 v{T+j}, v{FR+2*j}, v{FR+2*j+1}")
    a(f"""
    s_cmp_eq_u32 s3, 0
    s_cbranch_scc1 {N}_ops0
    buffer_store_dwordx4 v[{T}:{T+3}], v7, s[20:23], s58 offen
    buffer_store_dwordx4 v[{T+4}:{T+7}], v7, s[20:23], s58 offen offset:32
    """)
    stamp(a, 13)
    stamp_flush(a, 1, 14, 40, 14)
    a("s_endpgm")
    a.label(f"{N}_ops0")
    SX = "" if FAST else "sc1"
    sanitize(a, range(T, T + 8))
    a(f"""
    buffer_store_dwordx4 v[{T}:{T+3}], v3, s[24:27], s55 offen {SX}
    buffer_store_dwordx4 v[{T+4}:{T+7}], v3, s[24:27], s55 offen offset:1024 {SX}
    s_add_u32 s55, s55, {hex(LY.GD)}
    v_mov_b32 v10, 0
    v_mov_b32 v11, 0
    """)
    for j in range(8):
        a(f"v_dot2c_f32_bf16 v10, s62, v{T+j}")
        a(f"v_dot2c_f32_bf16 v11, v{T+j}, v{T+j}")
    a(f"""
    v_lshrrev_b32 v8, 1, v8
    s_sub_u32 s60, s60, {hex(LY.GR)}
    s_lshr_b32 s61, s60, 1
    s_add_u32 s61, s61, {hex(LY.ST2)}
    v_mov_b32 v12, v10
    v_mov_b32 v13, v11
    s_lshr_b32 s60, s60, 7
    s_add_u32 s60, s60, {hex(LY.FX)}
    v_permlane32_swap_b32 v10, v12
    v_permlane32_swap_b32 v11, v13
    s_nop 0
    v_add_f32 v10, v10, v12
    v_add_f32 v11, v11, v13
    v_min_u32 v10, s67, v10
    v_min_u32 v11, s67, v11
    s_mov_b64 exec, 0xffffffff
    buffer_store_dwordx2 v[10:11], v8, s[24:27], s61 offen
    s_add_u32 s61, s61, {hex(LY.GD)}
    buffer_store_dwordx2 v[10:11], v8, s[24:27], s61 offen sc1
    s_mov_b64 exec, -1
    buffer_store_dwordx4 v[{T}:{T+3}], v3, s[24:27], s55 offen sc1
    buffer_store_dwordx4 v[{T+4}:{T+7}], v3, s[24:27], s55 offen offset:1024 sc1
    """)
    stamp(a, 8)

def qkv(a):
    a.comment("================= layer-2 QKV projection =================")
    a.label(f"{N}_qkv")
    SC = 98304
    a(f"""
    s_lshl_b32 s41, s36, 1
    s_and_b32 s46, s37, 1
    s_add_u32 s41, s41, s46
    s_lshr_b32 s42, s37, 1
    s_and_b32 s39, s40, 3
    s_lshl_b32 s43, s41, 2
    s_add_u32 s43, s43, s39
    s_cmp_lt_u32 s40, 4
    s_cbranch_scc1 {N}_qc
    s_cmp_lt_u32 s40, 8
    s_cbranch_scc1 {N}_qb
    s_lshl_b32 s53, s39, 10
    s_mul_i32 s52, s42, 98304
    s_add_u32 s52, s52, s53
    s_add_u32 s52, s52, {hex(LY.WP)}
    """)
    for m in range(24):
        a(f"s_add_u32 m0, s53, {m*4096}")
        a(f"s_add_u32 s51, s52, {m*4096}")
        a(f"buffer_load_dwordx4 v3, s[24:27], s51 offen sc1 lds")
        if m >= WDEPTH - 1: a(f"s_waitcnt vmcnt({WDEPTH - 1})")
    a(f"""
    s_waitcnt vmcnt(0)
    s_barrier
    s_branch {N}_qw
    """)
    a.label(f"{N}_qb")
    a(f"""
    v_lshlrev_b32 v7, 3, v1
    s_lshl_b32 s52, s43, 12
    s_add_u32 s52, s52, {hex(LY.ST2)}
    s_min_u32 s53, s39, 2
    s_lshl_b32 s51, s53, 11
    s_lshl_b32 s54, s42, 7
    s_add_u32 s51, s51, s54
    s_add_u32 s51, s51, {hex(LY.CSB)}
    v_and_b32 v4, 31, v1
    v_lshlrev_b32 v4, 2, v4
    buffer_load_dword v32, v4, s[24:27], s51 offen sc1
    s_lshl_b32 s53, s53, 7
    s_add_u32 s53, s53, {SC + 2048}
    v_add_u32 v5, s53, v4
    s_lshl_b32 s53, s39, 9
    s_add_u32 s53, s53, {SC}
    v_add_u32 v4, s53, v4
    """)
    a("s_mov_b32 s69, 0x8000")
    a.label(f"{N}_stp")
    for i2 in range(8):
        a(f"buffer_load_dwordx2 v[{16+2*i2}:{17+2*i2}], v7, s[24:27], s52 offen offset:{512*i2} sc1")
    a("s_waitcnt vmcnt(0)")
    maxchain(a, 15, range(16, 32))
    a(f"""
    v_cmp_eq_u32 vcc, -1, v15
    s_cmp_eq_u64 vcc, 0
    s_cbranch_scc1 {N}_std
    s_sub_u32 s69, s69, 1
    s_cbranch_scc1 {N}_std
    """)
    switch_copy(a, f"{N}_stp", [7])
    a(f"""
    s_sleep 1
    s_branch {N}_stp
    """)
    a.label(f"{N}_std")
    a(f"""
    s_lshl_b32 s58, s39, 2
    s_add_u32 s58, s58, {FLAG + 32}
    v_mov_b32 v6, s58
    v_or_b32 v8, 1, v7
    s_mov_b64 exec, 1
    ds_write_b32 v6, v8
    s_mov_b64 exec, -1
    """)
    for i2 in range(1, 8):
        a(f"v_add_f32 v16, v16, v{16+2*i2}")
        a(f"v_add_f32 v17, v17, v{17+2*i2}")
    a(f"""
    v_mov_b32 v18, v16
    v_mov_b32 v19, v17
    s_mov_b32 s56, {f32hex(1.0/512)}
    s_nop 0
    v_permlane32_swap_b32 v16, v18
    v_permlane32_swap_b32 v17, v19
    s_nop 0
    v_add_f32 v16, v16, v18
    v_add_f32 v17, v17, v19
    v_mul_f32 v16, s56, v16
    v_mul_f32 v17, s56, v17
    v_fma_f32 v17, -v16, v16, v17
    v_max_f32 v17, 0, v17
    v_add_f32 v17, {f32hex(1e-5)}, v17
    v_rsq_f32 v17, v17
    s_nop 0
    v_mul_f32 v16, v16, v17
    v_sub_f32 v16, 0, v16
    ds_write_b32 v4, v17
    ds_write_b32 v4, v16 offset:128
    ds_write_b32 v5, v32
    s_waitcnt lgkmcnt(0)
    s_barrier
    """)
    a.label(f"{N}_qw")
    a("s_barrier")
    a.label(f"{N}_qw2")
    a(f"""
    s_barrier
    s_branch {N}_qend
    """)
    a.label(f"{N}_qc")
    XR, ACC, WFR, TQ, TV, PK = 20, 84, 132, 20, 52, 132
    a(f"""
    s_lshl_b32 s49, s43, 15
    s_add_u32 s49, s49, {hex(LY.X2F)}
    """)
    for g in range(8): a(f"s_add_u32 s{58+g if g < 6 else 46+g}, s49, {g*4096}")
    def xl(ks):
        g = ks // 4
        r = XR + 4 * (ks & 15)
        a(f"buffer_load_dwordx4 v[{r}:{r+3}], v16, s[24:27], s{58+g if g < 6 else 46+g} offen offset:{(ks % 4)*1024} sc1")
    xu = [(lambda i=i: (xl(2*i), xl(2*i + 1)), range(XR + 8*i, XR + 8*i + 8), None) for i in range(8)]
    a(f"""
    s_lshl_b32 s50, s40, 2
    s_add_u32 s50, s50, {FLAG + 32}
    v_mov_b32 v14, s50
    """)
    a.label(f"{N}_xw")
    a(f"""
    ds_read_b32 v16, v14
    s_waitcnt lgkmcnt(0)
    v_readfirstlane_b32 s50, v16
    s_cmp_lg_u32 s50, 0
    s_cbranch_scc0 {N}_xw
    s_and_b32 s50, s50, {hex(LY.GD)}
    v_or_b32 v16, s50, v3
    """)
    stamp(a, 1)
    for u in xu: u[0]()
    stamp(a, 2)
    a(f"""
    v_lshrrev_b32 v6, 5, v1
    v_and_b32 v4, 31, v1
    v_lshlrev_b32 v18, 9, v6
    v_bfe_u32 v19, v1, 2, 2
    v_lshl_add_u32 v18, v19, 6, v18
    v_bfe_u32 v19, v1, 4, 1
    v_lshl_add_u32 v18, v19, 5, v18
    v_and_b32 v19, 3, v1
    v_lshl_add_u32 v18, v19, 3, v18
    v_add_u32 v19, 49152, v18
    s_lshl_b32 s50, s40, 9
    s_add_u32 s50, s50, {SC}
    v_lshl_add_u32 v12, v4, 2, s50
    v_lshl_add_u32 v11, v6, 4, s50
    v_lshlrev_b32 v13, 4, v6
    v_add_u32 v13, {SC}, v13
    v_lshlrev_b32 v5, 2, v4
    v_add_u32 v5, {SC}, v5
    s_lshl_b32 s57, s42, 17
    s_lshl_b32 s51, s43, 10
    s_add_u32 s57, s57, s51
    s_add_u32 s57, s57, {hex(LY.QKVL)}
    v_and_b32 v10, 3, v1
    v_bfe_u32 v9, v1, 2, 1
    v_lshl_or_b32 v10, v9, 3, v10
    v_bfe_u32 v9, v1, 3, 1
    v_lshl_or_b32 v10, v9, 2, v10
    v_lshlrev_b32 v10, 4, v10
    v_lshl_or_b32 v10, v6, 8, v10
    v_bfe_u32 v9, v1, 4, 1
    v_lshl_or_b32 v10, v9, 16, v10
    s_barrier
    """)
    def wread(ks, fs=(0, 1, 2)):
        j, kk = ks // 4, ks % 4
        b = WFR + 12 * (ks % 3)
        for f in fs:
            for q in range(2):
                off = (j & 3) * 12288 + f*4096 + kk*1024 + q*256
                a(f"ds_read_b64_tr_b16 v[{b+4*f+2*q}:{b+4*f+2*q+1}], v{18 + (j >> 2)} offset:{off}")
    stamp(a, 3)
    wread(0); wread(1)
    for ks in range(32):
        def gcheck(k0, w):
            checked(a, lambda: [xl(k2) for k2 in range(k0, k0 + 4)], range(XR + 4*(k0 & 15), XR + 4*(k0 & 15) + 16),
                    first_wait=w, switch=[16])
        if ks == 0:
            gcheck(0, 12)
            stamp(a, 9)
        a(f"s_waitcnt lgkmcnt({6 if ks < 31 else 0})")
        if ks == 30:
            a("s_barrier")
        b = WFR + 12 * (ks % 3)
        x = vr(XR + 4*(ks & 15), 4)
        for f in range(3):
            acc = vr(ACC + 16*f, 16)
            c = "0" if ks == 0 else acc
            w = vr(b + 4*f, 4)
            if f < 2: a(f"v_mfma_f32_32x32x16_bf16 {acc}, {w}, {x}, {c}")
            else:     a(f"v_mfma_f32_32x32x16_bf16 {acc}, {x}, {w}, {c}")
            if ks + 2 < 32: wread(ks + 2, (f,))
        if ks % 4 == 3 and ks < 31: gcheck(ks + 1, min(11, 27 - ks))
        if ks < 16: xl(ks + 16)
        if ks == 30:
            a("ds_read_b32 v16, v12")
            a("ds_read_b32 v17, v12 offset:128")
            a("ds_read_b32 v14, v5 offset:2304")
            for g in range(4):
                a(f"ds_read_b128 v[{TQ+4*g}:{TQ+4*g+3}], v13 offset:{2048 + 32*g}")
    stamp(a, 10)
    for g in range(4):
        a(f"ds_read_b128 v[{TQ+16+4*g}:{TQ+16+4*g+3}], v13 offset:{2176 + 32*g}")
        a(f"ds_read_b128 v[{TV+4*g}:{TV+4*g+3}], v11 offset:{32*g}")
        a(f"ds_read_b128 v[{TV+16+4*g}:{TV+16+4*g+3}], v11 offset:{128 + 32*g}")
    a(f"""
    s_mov_b32 s56, {f32hex(LY.QSCALE)}
    v_mul_f32 v6, s56, v16
    v_mul_f32 v8, s56, v17
    v_mov_b32 v7, v6
    v_mov_b32 v9, v8
    v_mov_b32 v18, v17
    v_mov_b32 v19, v17
    v_mov_b32 v17, v16
    v_mov_b32 v15, v14
    """)
    def qk(f, rs, mr):
        for j in range(8): a(f"v_pk_mul_f32 {p(ACC+16*f+2*j)}, {p(ACC+16*f+2*j)}, {p(rs)}")
        for j in range(8): a(f"v_pk_fma_f32 {p(ACC+16*f+2*j)}, {p(TQ+16*f+2*j)}, {p(mr)}, {p(ACC+16*f+2*j)}")
        for j in range(8): a(f"v_cvt_pk_bf16_f32 v{PK+8*f+j}, v{ACC+16*f+2*j}, v{ACC+16*f+2*j+1}")
        sanitize(a, range(PK + 8*f, PK + 8*f + 8))
        base = LY.QF if f == 0 else LY.KF
        a(f"s_add_u32 s58, s57, {hex(base)}")
        a(f"buffer_store_dwordx4 v[{PK+8*f}:{PK+8*f+3}], v3, s[24:27], s58 offen sc1")
        a(f"s_add_u32 s58, s57, {hex(base + 65536)}")
        a(f"buffer_store_dwordx4 v[{PK+8*f+4}:{PK+8*f+7}], v3, s[24:27], s58 offen sc1")
    a("s_waitcnt lgkmcnt(0)")
    a("s_barrier")
    qk(1, 16, 18)
    for j in range(8): a(f"v_pk_mul_f32 {p(ACC+32+2*j)}, {p(ACC+32+2*j)}, {p(TV+2*j)}")
    for j in range(8): a(f"v_pk_fma_f32 {p(ACC+32+2*j)}, {p(TV+16+2*j)}, v[14:15], {p(ACC+32+2*j)}")
    for j in range(8): a(f"v_cvt_pk_bf16_f32 v{PK+16+j}, v{ACC+32+2*j}, v{ACC+32+2*j+1}")
    sanitize(a, range(PK + 16, PK + 24))
    a(f"""
    s_add_u32 s58, s57, {hex(LY.VF)}
    buffer_store_dwordx4 v[{PK+16}:{PK+19}], v10, s[24:27], s58 offen sc1
    buffer_store_dwordx4 v[{PK+20}:{PK+23}], v10, s[24:27], s58 offen offset:512 sc1
    """)
    qk(0, 6, 8)
    stamp(a, 11)
    stamp_flush(a, 2, 12, 40, 14)
    if DIAGFIX(): a("s_mov_b64 exec, -1\nv_and_b32 v1, 63, v0\nv_lshlrev_b32 v2, 2, v1")
    a.label(f"{N}_qend")


NSLOT, SLOT, LA = 5, 28672, 3
SC1 = NSLOT * SLOT
EPL = FLAG + 48

def qkv1(a):
    a.comment("================= layer-1 QKV projection =================")
    a(f"""
    s_and_b32 s41, s36, 3
    s_lshl_b32 s41, s41, 2
    s_and_b32 s46, s37, 3
    s_add_u32 s41, s41, s46
    s_lshr_b32 s42, s36, 2
    s_lshl_b32 s42, s42, 3
    s_lshr_b32 s46, s37, 2
    s_add_u32 s42, s42, s46
    s_and_b32 s39, s40, 3
    s_lshl_b32 s43, s41, 2
    s_add_u32 s43, s43, s39
    s_lshl_b32 s49, s43, 15
    v_lshrrev_b32 v6, 5, v1
    v_and_b32 v4, 31, v1
    """)
    srd(a, 32, 4, 0x200000)
    srd(a, 20, 6, 0x180000)
    a(f"""
    s_cmp_ge_u32 s40, 4
    s_cbranch_scc1 {N}_p_nc
    """)
    a(f"""
    s_and_b32 s51, s42, 7
    s_lshl_b32 s51, s51, 7
    s_add_u32 s51, s51, s49
    v_lshlrev_b32 v10, 10, v4
    buffer_load_dword v160, v10, s[32:35], s51 offen
    s_and_b32 s53, s41, 3
    s_lshl_b32 s53, s53, 1
    s_and_b32 s54, s42, 1
    s_add_u32 s53, s53, s54
    s_mul_i32 s53, s53, 3072
    s_lshl_b32 s54, s42, 6
    s_add_u32 s53, s53, s54
    s_min_u32 s54, s40, 2
    s_lshl_b32 s54, s54, 10
    s_add_u32 s53, s53, s54
    s_movk_i32 s54, {8*3072}
    v_mul_lo_u32 v10, v1, s54
    buffer_load_dword v161, v10, s[20:23], s53 offen
    """)
    a.label(f"{N}_p_nc")
    a(f"""
    s_cmp_lt_u32 s40, 4
    s_cbranch_scc1 {N}_p_ad
    s_cmp_lt_u32 s40, 8
    s_cbranch_scc1 {N}_p_ld
    """)
    a.label(f"{N}_p_ad")
    a(f"""
    v_lshlrev_b32 v21, 9, v6
    v_bfe_u32 v22, v1, 2, 2
    v_lshl_add_u32 v21, v22, 6, v21
    v_bfe_u32 v22, v1, 4, 1
    v_lshl_add_u32 v21, v22, 5, v21
    v_and_b32 v22, 3, v1
    v_lshl_add_u32 v21, v22, 3, v21
    v_add_u32 v22, {2*SLOT}, v21
    v_add_u32 v23, {4*SLOT}, v21
    s_lshl_b32 s56, s39, 12
    s_add_u32 s56, s56, 12288
    v_bfe_u32 v13, v1, 1, 3
    v_xor_b32 v13, v13, v6
    v_lshlrev_b32 v13, 4, v13
    v_lshl_add_u32 v13, v4, 7, v13
    v_add_u32 v13, s56, v13
    """)
    for kk in range(4):
        a(f"v_xor_b32 v{56+kk}, {kk << 5}, v13")
        a(f"v_add_u32 v{60+kk}, {2*SLOT}, v{56+kk}")
        a(f"v_add_u32 v{16+kk}, {4*SLOT}, v{56+kk}")
    a(f"""
    s_lshl_b32 s50, s39, 9
    s_add_u32 s50, s50, {SC1}
    v_lshl_add_u32 v12, v4, 2, s50
    v_lshlrev_b32 v5, 2, v4
    v_add_u32 v5, {SC1}, v5
    v_mov_b32 v7, {EPL}
    s_cmp_ge_u32 s40, 8
    s_cbranch_scc1 {N}_p_st
    """)
    XR, ACC, WFR, TQ, TV, PK = (24, 40), 64, 112, 24, 112, 144
    def xread(j, dst):
        sl = j % NSLOT
        for kk in range(4):
            a(f"ds_read_b128 v[{dst+4*kk}:{dst+4*kk+3}], v{(56, 60, 16)[sl // 2] + kk} offset:{(sl & 1) * SLOT}")
    def wread(ks, fs=(0, 1, 2)):
        j, kk = ks // 4, ks % 4
        sl = j % NSLOT
        b = WFR + 12 * (ks % 3)
        for f in fs:
            for q in range(2):
                a(f"ds_read_b64_tr_b16 v[{b+4*f+2*q}:{b+4*f+2*q+1}], v{21 + sl // 2} offset:{(sl & 1) * SLOT + f*4096 + kk*1024 + q*256}")
    a(f"""
    v_lshl_add_u32 v11, v6, 4, s50
    v_lshlrev_b32 v13, 4, v6
    v_add_u32 v13, {SC1}, v13
    s_lshl_b32 s57, s42, 17
    s_lshl_b32 s58, s43, 10
    s_add_u32 s57, s57, s58
    v_and_b32 v10, 3, v1
    v_bfe_u32 v9, v1, 2, 1
    v_lshl_or_b32 v10, v9, 3, v10
    v_bfe_u32 v9, v1, 3, 1
    v_lshl_or_b32 v10, v9, 2, v10
    v_lshlrev_b32 v10, 4, v10
    v_lshl_or_b32 v10, v6, 8, v10
    v_bfe_u32 v9, v1, 4, 1
    v_lshl_or_b32 v10, v9, 16, v10
    s_lshl_b32 s59, s42, 8
    s_lshl_b32 s60, s43, 2
    s_add_u32 s59, s59, s60
    s_add_u32 s59, s59, {hex(LY.FQ)}
    s_barrier
    """)
    stamp(a, 9)
    xread(0, XR[0]); wread(0)
    for ks in range(32):
        j, kk = ks // 4, ks % 4
        later = []
        if kk == 0:
            a("s_waitcnt lgkmcnt(0)")
            wread(ks + 1)
            later = [ks + 2]
        elif kk == 1:
            a("s_waitcnt lgkmcnt(6)")
            later = [ks + 2]
        elif kk == 2:
            a("s_waitcnt lgkmcnt(6)")
        else:
            a("s_waitcnt lgkmcnt(0)")
            if j < 7:
                a("s_barrier")
                xread(j + 1, XR[(j + 1) & 1])
                later = [ks + 1]
        b = WFR + 12 * (ks % 3)
        x = vr(XR[j & 1] + 4*kk, 4)
        for f in range(3):
            acc = vr(ACC + 16*f, 16)
            c = "0" if ks == 0 else acc
            w = vr(b + 4*f, 4)
            if f < 2: a(f"v_mfma_f32_32x32x16_bf16 {acc}, {w}, {x}, {c}")
            else:     a(f"v_mfma_f32_32x32x16_bf16 {acc}, {x}, {w}, {c}")
            for k2 in later: wread(k2, (f,))
    stamp(a, 10)
    a(f"""
    s_waitcnt vmcnt(0)
    s_barrier
    ds_read_b32 v16, v12
    ds_read_b32 v17, v12 offset:128
    ds_read_b32 v14, v5 offset:2304
    ds_read_b32 v15, v7
    """)
    for g in range(4):
        a(f"ds_read_b128 v[{TQ+16+4*g}:{TQ+16+4*g+3}], v13 offset:{2176 + 32*g}")
    for g in range(4):
        a(f"ds_read_b128 v[{TV+4*g}:{TV+4*g+3}], v11 offset:{32*g}")
    a("s_waitcnt lgkmcnt(8)")
    for g in range(4):
        a(f"ds_read_b128 v[{TV+16+4*g}:{TV+16+4*g+3}], v11 offset:{128 + 32*g}")
    a(f"""
    v_readfirstlane_b32 s65, v15
    s_mov_b32 s56, {f32hex(LY.QSCALE)}
    v_mul_f32 v6, s56, v16
    v_mul_f32 v8, s56, v17
    s_waitcnt lgkmcnt(8)
    """)
    for g in range(4):
        a(f"ds_read_b128 v[{TQ+4*g}:{TQ+4*g+3}], v13 offset:{2048 + 32*g}")
    a(f"""
    v_mov_b32 v7, v6
    v_mov_b32 v9, v8
    v_mov_b32 v18, v17
    v_mov_b32 v19, v17
    v_mov_b32 v17, v16
    v_mov_b32 v15, v14
    """)
    def qk(f, rs, mr):
        for j in range(8): a(f"v_pk_mul_f32 {p(ACC+16*f+2*j)}, {p(ACC+16*f+2*j)}, {p(rs)}")
        for j in range(8): a(f"v_pk_fma_f32 {p(ACC+16*f+2*j)}, {p(TQ+16*f+2*j)}, {p(mr)}, {p(ACC+16*f+2*j)}")
        for j in range(8): a(f"v_cvt_pk_bf16_f32 v{PK+8*f+j}, v{ACC+16*f+2*j}, v{ACC+16*f+2*j+1}")
        sanitize(a, range(PK + 8*f, PK + 8*f + 8))
        base = LY.QF if f == 0 else LY.KF
        a(f"s_add_u32 s58, s57, {hex(base)}")
        a(f"buffer_store_dwordx4 v[{PK+8*f}:{PK+8*f+3}], v3, s[24:27], s58 offen sc1")
        a(f"s_add_u32 s58, s57, {hex(base + 65536)}")
        a(f"buffer_store_dwordx4 v[{PK+8*f+4}:{PK+8*f+7}], v3, s[24:27], s58 offen sc1")
    qk(1, 16, 18)
    a("s_waitcnt lgkmcnt(0)")
    a("s_barrier")
    for j in range(8): a(f"v_pk_mul_f32 {p(ACC+32+2*j)}, {p(ACC+32+2*j)}, {p(TV+2*j)}")
    for j in range(8): a(f"v_pk_fma_f32 {p(ACC+32+2*j)}, {p(TV+16+2*j)}, v[14:15], {p(ACC+32+2*j)}")
    for j in range(8): a(f"v_cvt_pk_bf16_f32 v{PK+16+j}, v{ACC+32+2*j}, v{ACC+32+2*j+1}")
    sanitize(a, range(PK + 16, PK + 24))
    a(f"""
    s_add_u32 s58, s57, {hex(LY.VF)}
    buffer_store_dwordx4 v[{PK+16}:{PK+19}], v10, s[24:27], s58 offen sc1
    buffer_store_dwordx4 v[{PK+20}:{PK+23}], v10, s[24:27], s58 offen offset:512 sc1
    """)
    qk(0, 6, 8)
    publish(a, 59)
    stamp(a, 11)
    stamp_flush(a, 0, 12, 40, 14)
    if DIAGFIX(): a("s_mov_b64 exec, -1\nv_and_b32 v1, 63, v0\nv_lshlrev_b32 v2, 2, v1")
    a(f"s_branch {N}_p_end")

    a.label(f"{N}_p_st")
    a(f"""
    s_load_dwordx2 s[60:61], s[0:1], 80
    s_mov_b32 s55, 0x3f803f80
    s_min_u32 s51, s39, 2
    s_lshl_b32 s51, s51, 12
    v_add_u32 v21, s51, v21
    v_add_u32 v22, s51, v22
    v_add_u32 v23, s51, v23
    v_mov_b32 v8, 0
    v_mov_b32 v9, 0
    v_mov_b32 v10, 0
    v_mov_b32 v11, 0
    v_mov_b32 v13, 0
    v_mov_b32 v14, 0
    s_mov_b32 s62, 256
    s_mov_b32 s63, 0x00020000
    s_mov_b32 s53, {hex(LY.EP)}
    s_waitcnt lgkmcnt(0)
    s_or_b32 s51, s2, s39
    s_cmp_lg_u32 s51, 0
    s_cbranch_scc1 {N}_p_ne
    """)
    a(f"""
    buffer_load_dword v15, v14, s[24:27], s53 offen sc1
    s_waitcnt vmcnt(0)
    v_add_u32 v15, 2, v15
    v_max_u32 v15, 2, v15
    v_subrev_u32 v15, 1, v15
    s_mov_b64 exec, 1
    buffer_store_dword v15, v14, s[24:27], s53 offen sc1
    s_waitcnt vmcnt(0)
    buffer_store_dword v15, v14, s[60:63], 0 offen sc1
    s_mov_b64 exec, -1
    """)
    a.label(f"{N}_p_ne")
    for j in range(8):
        if j == 4:
            a(f"""
            s_cmp_lg_u32 s39, 0
            s_cbranch_scc1 {N}_p_e2
            s_mov_b32 s69, 0x10000
            """)
            a.label(f"{N}_p_e1")
            a(f"""
            buffer_load_dword v15, v14, s[60:63], 0 offen sc1
            s_waitcnt vmcnt(0)
            v_readfirstlane_b32 s65, v15
            s_sub_u32 s69, s69, 1
            s_cbranch_scc1 {N}_p_e3
            s_cmp_eq_u32 s65, 0
            s_cbranch_scc1 {N}_p_e1
            """)
            a.label(f"{N}_p_e3")
            a("ds_write_b32 v7, v15")
            a.label(f"{N}_p_e2")
        a("s_barrier")
        sl = j % NSLOT
        xread(j, 24)
        for kk in range(4):
            for q in range(2):
                a(f"ds_read_b64_tr_b16 v[{40+4*kk+2*q}:{41+4*kk+2*q}], v{21 + sl // 2} offset:{(sl & 1) * SLOT + kk*1024 + q*256}")
        a("s_waitcnt lgkmcnt(8)")
        for r in range(16):
            a(f"v_lshlrev_b32 v{64+2*(r&3)}, 16, v{24+r}")
            a(f"v_and_b32 v{65+2*(r&3)}, 0xffff0000, v{24+r}")
            a(f"v_add_f32 v8, v8, v{64+2*(r&3)}")
            a(f"v_add_f32 v9, v9, v{65+2*(r&3)}")
            a(f"v_fmac_f32 v10, v{64+2*(r&3)}, v{64+2*(r&3)}")
            a(f"v_fmac_f32 v11, v{65+2*(r&3)}, v{65+2*(r&3)}")
        a("s_waitcnt lgkmcnt(0)")
        for r in range(16): a(f"v_dot2c_f32_bf16 v13, s55, v{40+r}")
    a(f"""
    v_add_f32 v8, v8, v9
    v_add_f32 v10, v10, v11
    v_mov_b32 v9, v8
    v_mov_b32 v11, v10
    v_mov_b32 v15, v13
    s_mov_b32 s56, {f32hex(1.0/512)}
    s_lshl_b32 s51, s39, 7
    v_permlane32_swap_b32 v8, v9
    v_permlane32_swap_b32 v10, v11
    v_permlane32_swap_b32 v13, v15
    v_add_u32 v5, s51, v5
    v_add_f32 v8, v8, v9
    v_add_f32 v10, v10, v11
    v_add_f32 v13, v13, v15
    v_mul_f32 v8, s56, v8
    v_mul_f32 v10, s56, v10
    v_fma_f32 v10, -v8, v8, v10
    v_max_f32 v10, 0, v10
    v_add_f32 v10, {f32hex(1e-5)}, v10
    v_rsq_f32 v10, v10
    ds_write_b32 v5, v13 offset:2048
    v_mul_f32 v8, v8, v10
    v_sub_f32 v8, 0, v8
    ds_write_b32 v12, v10
    ds_write_b32 v12, v8 offset:128
    s_waitcnt lgkmcnt(0)
    s_barrier
    ds_read_b32 v15, v7
    s_waitcnt lgkmcnt(0)
    v_readfirstlane_b32 s65, v15
    s_barrier
    s_branch {N}_p_end
    """)

    a.label(f"{N}_p_ld")
    a(f"""
    v_lshrrev_b32 v11, 2, v1
    s_movk_i32 s52, 3072
    v_mul_lo_u32 v11, v11, s52
    v_and_b32 v12, 3, v1
    v_lshl_add_u32 v11, v12, 4, v11
    s_lshl_b32 s52, s42, 6
    s_mul_i32 s53, s39, {16*3072}
    s_add_u32 s52, s52, s53
    s_lshl_b32 s53, s39, 10
    s_lshl_b32 s54, s39, 12
    s_add_u32 s54, s54, 12288
    v_lshrrev_b32 v13, 3, v1
    v_lshrrev_b32 v14, 4, v1
    v_and_b32 v15, 7, v1
    v_xor_b32 v15, v15, v14
    v_lshlrev_b32 v15, 4, v15
    v_lshl_add_u32 v15, v13, 10, v15
    v_xor_b32 v16, 64, v15
    """)
    def issue(j):
        sl = (j % NSLOT) * SLOT
        for n in range(4):
            a(f"s_add_u32 m0, s54, {sl + n*1024}")
            a(f"s_add_u32 s51, s49, {n*8192 + j*128}")
            a(f"buffer_load_dwordx4 v{15 + (n & 1)}, s[32:35], s51 offen lds")
            if n < 3:
                a(f"s_add_u32 m0, s53, {sl + n*4096}")
                a(f"s_add_u32 s51, s52, {n*1024 + j*64*3072}")
                a(f"buffer_load_dwordx4 v11, s[20:23], s51 offen lds")
    for j in range(LA): issue(j)
    T = 24
    def side_loads():
        a.comment("packed copy of W for layer 2 (rows [32rb,32rb+32), tile f = lw) and the k/v rows of this wave's kv^T block")
        a(f"""
        s_min_u32 s56, s39, 2
        s_lshl_b32 s57, s56, 10
        s_lshl_b32 s58, s42, 6
        s_add_u32 s57, s57, s58
        s_mul_i32 s58, s41, {32*3072}
        s_add_u32 s57, s57, s58
        buffer_load_dwordx4 v[112:115], v11, s[20:23], s57 offen
        s_add_u32 s57, s57, {16*3072}
        buffer_load_dwordx4 v[116:119], v11, s[20:23], s57 offen
        s_mul_i32 s59, s42, {8*12288}
        s_lshr_b32 s58, s41, 1
        s_mul_i32 s58, s58, 12288
        s_add_u32 s59, s59, s58
        s_and_b32 s58, s41, 1
        s_lshl_b32 s58, s58, 11
        s_add_u32 s59, s59, s58
        s_lshl_b32 s56, s56, 12
        s_add_u32 s59, s59, s56
        s_add_u32 s59, s59, {hex(LY.WP)}
        """)
        srd(a, 32, 28, 0x200000)
        srd(a, 20, 30, 0x200000)
        srd(a, 60, 10, 0x1000)
        a(f"""
        s_lshl_b32 s46, s37, 16
        s_lshl_b32 s47, s39, 14
        s_add_u32 s46, s46, s47
        s_lshl_b32 s48, s36, 7
        s_add_u32 s46, s46, s48
        v_lshlrev_b32 v5, 13, v6
        v_lshl_add_u32 v5, v4, 2, v5
        v_add_u32 v5, s46, v5
        v_add_u32 v9, 0x1000, v5
        v_subrev_u32 v7, 0xc00, v5
        s_lshl_b32 s48, s36, 9
        v_lshl_add_u32 v8, v4, 4, s48
        """)
        for r in range(3):
            a(f"buffer_load_dword v{T+r}, v7, s[32:35], 0 offen offset:{r*1024}")
        for r in range(8):
            a(f"buffer_load_dword v{T+3+r}, v{5 if r < 4 else 9}, s[32:35], 0 offen offset:{(r%4)*1024}")
        for r in range(8):
            a(f"buffer_load_dword v{T+11+r}, v{5 if r < 4 else 9}, s[20:23], 0 offen offset:{(r%4)*1024}")
        a(f"buffer_load_dwordx4 v[{T+20}:{T+23}], v8, s[60:63], 0 offen")
    for j in range(8):
        issued = min(8, LA + j)
        extra = 22 if j >= 5 else 0
        a(f"s_waitcnt vmcnt({7 * (issued - j - 1) + extra})")
        a("s_barrier")
        if j + LA < 8: issue(j + LA)
        if j == 4: side_loads()
    a(f"""
    s_min_u32 s56, s39, 2
    s_lshl_b32 s57, s56, 7
    s_add_u32 s57, s57, {SC1 + 2048}
    v_lshlrev_b32 v10, 2, v4
    v_add_u32 v12, s57, v10
    v_mov_b32 v13, {EPL}
    s_barrier
    ds_read_b32 v14, v12
    ds_read_b32 v15, v13
    s_waitcnt lgkmcnt(0)
    v_readfirstlane_b32 s65, v15
    s_barrier
    s_waitcnt vmcnt(0)
    s_cmp_lg_u32 s41, 0
    s_cbranch_scc1 {N}_p_ncs
    s_lshl_b32 s56, s56, 11
    s_lshl_b32 s57, s42, 7
    s_add_u32 s56, s56, s57
    s_add_u32 s56, s56, {hex(LY.CSB)}
    buffer_store_dword v14, v10, s[24:27], s56 offen sc1
    """)
    a.label(f"{N}_p_ncs")
    a(f"""
    buffer_store_dwordx4 v[112:115], v3, s[24:27], s59 offen sc1
    buffer_store_dwordx4 v[116:119], v3, s[24:27], s59 offen offset:1024 sc1
    """)
    KFp, VFp, WPr, RS = 48, 70, 86, 94
    for r in range(11):
        a(f"v_lshlrev_b32 v{KFp+2*r}, 16, v{T+r}")
        a(f"v_and_b32 v{KFp+2*r+1}, 0xffff0000, v{T+r}")
    for r in range(8):
        a(f"v_lshlrev_b32 v{VFp+2*r}, 16, v{T+11+r}")
        a(f"v_and_b32 v{VFp+2*r+1}, 0xffff0000, v{T+11+r}")
    D0 = T + 20
    a(f"""
    v_lshlrev_b32 v{WPr+0}, 16, v{D0}
    v_lshlrev_b32 v{WPr+1}, 16, v{D0+2}
    v_and_b32 v{WPr+2}, 0xffff0000, v{D0}
    v_and_b32 v{WPr+3}, 0xffff0000, v{D0+2}
    v_lshlrev_b32 v{WPr+4}, 16, v{D0+1}
    v_lshlrev_b32 v{WPr+5}, 16, v{D0+3}
    v_and_b32 v{WPr+6}, 0xffff0000, v{D0+1}
    v_and_b32 v{WPr+7}, 0xffff0000, v{D0+3}
    """)
    for t in range(8): a(f"v_pk_mul_f32 {p(RS+2*t)}, {p(KFp+2*t)}, {p(WPr+6)}")
    for jj in (2, 1, 0):
        for t in range(8):
            a(f"v_pk_fma_f32 {p(RS+2*t)}, {p(KFp+2*(t+3-jj))}, {p(WPr+2*jj)}, {p(RS+2*t)}")
    for t in range(8): a(f"v_pk_mul_f32 {p(RS+2*t)}, {p(RS+2*t)}, {p(VFp+2*t)}")
    for q in range(4):
        a(f"v_cvt_pk_bf16_f32 v{T+q}, v{RS+2*(7-2*q)}, v{RS+2*(6-2*q)}")
        a(f"v_cvt_pk_bf16_f32 v{T+4+q}, v{RS+2*(7-2*q)+1}, v{RS+2*(6-2*q)+1}")
    a(f"""
    s_lshl_b32 s46, s36, 18
    s_add_u32 s46, s46, {hex(LY.UT)}
    s_lshl_b32 s48, s37, 5
    s_add_u32 s46, s46, s48
    s_lshr_b32 s48, s39, 1
    s_lshl_b32 s48, s48, 4
    s_add_u32 s46, s46, s48
    s_and_b32 s48, s39, 1
    s_lshl_b32 s48, s48, 11
    s_add_u32 s46, s46, s48
    v_lshlrev_b32 v5, 13, v4
    v_lshl_add_u32 v5, v6, 10, v5
    v_add_u32 v9, 0x1000, v5
    buffer_store_dwordx4 v[{T}:{T+3}], v5, s[24:27], s46 offen sc1
    buffer_store_dwordx4 v[{T+4}:{T+7}], v9, s[24:27], s46 offen sc1
    s_lshl_b32 s46, s36, 9
    s_lshl_b32 s48, s37, 4
    s_add_u32 s46, s46, s48
    s_lshl_b32 s48, s39, 2
    s_add_u32 s46, s46, s48
    s_add_u32 s46, s46, {hex(LY.FU)}
    """)
    publish(a, 46)
    a.label(f"{N}_p_end")

def DIAGFIX():
    import asmlib
    return asmlib.DIAG
```

```python
import struct
from asmlib import *
import layout as LY

def f32hex(x):
    return hex(struct.unpack("<I", struct.pack("<f", x))[0])

NSLOT = 5
ZERO = 1
T1 = 1
TSKIP = 0
TNT = 0
NOSTAT = 0
ILV = 0
CODEPF = 0
LEAN = 0
WT = 0
SLOT = 28672
STAT = NSLOT * SLOT
def lds_bytes(layer1):
    return STAT + 4 * 2048

def emit(a, name, layer1, prefetch=False):
    TFL = ("", "nt", "sc1")[TNT]
    kernel_begin(a, name)
    done = f"{name}_done"
    a(f"""
    s_cmp_ge_u32 s2, 256
    s_cbranch_scc1 {done}
    s_load_dwordx4 s[4:7], s[0:1], 0
    s_load_dwordx2 s[14:15], s[0:1], 88
    """)
    if layer1 and T1:
        a("""
        s_load_dwordx4 s[8:11], s[0:1], 32
        s_load_dwordx2 s[12:13], s[0:1], 48
        """)
    a(f"""
    v_lshrrev_b32 v2, 6, v0
    v_and_b32 v1, 63, v0
    v_readfirstlane_b32 s40, v2
    s_and_b32 s44, s2, 7
    s_lshr_b32 s45, s2, 3
    """)
    if layer1:
        a("""
        s_and_b32 s41, s44, 3
        s_lshl_b32 s41, s41, 2
        s_and_b32 s46, s45, 3
        s_add_u32 s41, s41, s46
        s_lshr_b32 s42, s44, 2
        s_lshl_b32 s42, s42, 3
        s_lshr_b32 s46, s45, 2
        s_add_u32 s42, s42, s46
        """)
    else:
        a("""
        s_lshl_b32 s41, s44, 1
        s_and_b32 s46, s45, 1
        s_add_u32 s41, s41, s46
        s_lshr_b32 s42, s45, 1
        """)
    a(f"""
    s_and_b32 s39, s40, 3
    s_lshl_b32 s43, s41, 2
    s_add_u32 s43, s43, s39
    v_lshrrev_b32 v3, 5, v1
    v_and_b32 v4, 31, v1
    v_lshlrev_b32 v9, 4, v1
    s_lshl_b32 s49, s43, 15
    s_cmp_ge_u32 s40, 4
    s_cbranch_scc1 {name}_loader
    s_lshl_b32 s50, s40, 11
    s_add_u32 s50, s50, {STAT}
    s_waitcnt lgkmcnt(0)
    """)
    srd(a, 24, 14, LY.WS_USED)
    stamp(a, 0)
    XR = (64, 80)
    ACC = 96
    WFR = 144
    TQ = 24
    TV = 180
    SUM, SQ, CS = 14, 16, 18
    if not layer1:
        a.comment("column sums of W (written by layer 1): Q,K per register, V per lane; row-stat partials of x2")
        a(f"""
        v_lshlrev_b32 v5, 4, v3
        v_lshlrev_b32 v6, 2, v4
        s_lshl_b32 s51, s42, 7
        s_add_u32 s51, s51, {hex(LY.CSB)}
        v_lshlrev_b32 v7, 3, v1
        s_lshl_b32 s52, s43, 12
        s_add_u32 s52, s52, {hex(LY.ST2)}
        """)
        for i2 in range(8):
            a(f"buffer_load_dwordx2 v[{WFR+2*i2}:{WFR+2*i2+1}], v7, s[24:27], s52 offen offset:{512*i2}")
        for f in range(2):
            for g in range(4):
                a(f"buffer_load_dwordx4 v[{TQ+16*f+4*g}:{TQ+16*f+4*g+3}], v5, s[24:27], s51 offen offset:{f*2048 + 32*g}")
        a(f"s_add_u32 s51, s51, 4096")
        a(f"buffer_load_dword v20, v6, s[24:27], s51 offen")
    if layer1:
        a.comment("cold start: touch a distinct share of the lines this XCD will need, so all misses are in flight at once (speed only)")
        srd(a, 16, 4, 0x200000)
        srd(a, 20, 6, 0x180000)
        a(f"""
        s_and_b32 s51, s42, 7
        s_cmp_lt_u32 s51, {TSKIP}
        s_cbranch_scc1 {name}_nx
        s_lshl_b32 s51, s51, 7
        s_add_u32 s51, s51, s49
        v_lshlrev_b32 v10, 10, v4
        s_mov_b64 exec, 0xffffffff
        buffer_load_dword v24, v10, s[16:19], s51 offen {TFL}
        s_mov_b64 exec, -1
        """)
        a.label(f"{name}_nx")
        a(f"""
        s_and_b32 s53, s41, 3
        s_lshl_b32 s53, s53, 1
        s_and_b32 s54, s42, 1
        s_add_u32 s53, s53, s54
        s_mul_i32 s53, s53, 3072
        s_lshl_b32 s54, s42, 6
        s_add_u32 s53, s53, s54
        s_add_u32 s53, s53, {64*TSKIP*3072}
        s_lshl_b32 s54, s40, 10
        s_add_u32 s53, s53, s54
        s_movk_i32 s54, {8*3072}
        v_mul_lo_u32 v10, v1, s54
        s_cmp_eq_u32 s40, 3
        s_cbranch_scc1 {name}_nw
        buffer_load_dword v25, v10, s[20:23], s53 offen {TFL}
        """)
        a.label(f"{name}_nw")
    if layer1 and CODEPF:
        a.comment("pull the instruction bytes of both kernels into this XCD's L2 while waiting for the first tiles (speed only)")
        a(f"""
        s_getpc_b64 s[60:61]
        s_and_b32 s60, s60, 0xffffff00
        s_lshl_b32 s53, s45, 2
        s_add_u32 s53, s53, s40
        s_lshl_b32 s53, s53, 8
        v_lshlrev_b32 v10, 7, v1
        v_add_u32 v10, s53, v10
        s_cmp_ge_u32 s53, all_code_end - {name} - 1024
        s_cbranch_scc1 {name}_ncp
        s_mov_b64 exec, 3
        global_load_dword v26, v10, s[60:61]
        s_mov_b64 exec, -1
        """)
        a.label(f"{name}_ncp")
    if layer1 and LEAN: a("s_mov_b32 s67, 0xfffffffe")
    if layer1 and ZERO and not LEAN:
        a.comment("zero the hand-off words of the second launch: 4 KB of stat granules per workgroup, 32 KB of flags")
        a(f"""
        v_mov_b32 v28, 0
        v_mov_b32 v29, 0
        v_mov_b32 v30, 0
        v_mov_b32 v31, 0
        s_lshl_b32 s51, s2, 12
        s_lshl_b32 s53, s40, 10
        s_add_u32 s51, s51, s53
        s_add_u32 s53, s51, {hex(LY.GR)}
        buffer_store_dwordx4 v[28:31], v9, s[24:27], s53 offen
        s_add_u32 s53, s53, {hex(LY.GD)}
        buffer_store_dwordx4 v[28:31], v9, s[24:27], s53 offen
        s_cmp_ge_u32 s2, 8
        s_cbranch_scc1 {name}_nz
        s_add_u32 s53, s51, {hex(LY.FLG)}
        buffer_store_dwordx4 v[28:31], v9, s[24:27], s53 offen
        """)
        a.label(f"{name}_nz")
        a(f"""
        v_mov_b32 v32, -1
        v_mov_b32 v33, -1
        v_mov_b32 v34, -1
        v_mov_b32 v35, -1
        s_lshl_b32 s53, s51, 1
        s_add_u32 s53, s53, {hex(LY.OF)}
        buffer_store_dwordx4 v[32:35], v9, s[24:27], s53 offen
        buffer_store_dwordx4 v[32:35], v9, s[24:27], s53 offen offset:1024
        s_mov_b32 s67, 0xfffffffe
        """)
    a(f"""
    s_mov_b32 s55, 0x3f803f80
    v_lshlrev_b32 v21, 9, v3
    v_bfe_u32 v22, v1, 2, 2
    v_lshl_add_u32 v21, v22, 6, v21
    v_bfe_u32 v22, v1, 4, 1
    v_lshl_add_u32 v21, v22, 5, v21
    v_and_b32 v22, 3, v1
    v_lshl_add_u32 v21, v22, 3, v21
    v_add_u32 v22, {2*SLOT}, v21
    v_add_u32 v23, {4*SLOT}, v21
    s_lshl_b32 s56, s40, 12
    s_add_u32 s56, s56, 12288
    """)
    if layer1:
        a(f"""
        v_bfe_u32 v13, v1, 1, 3
        v_xor_b32 v13, v13, v3
        v_lshlrev_b32 v13, 4, v13
        v_lshl_add_u32 v13, v4, 7, v13
        v_add_u32 v13, s56, v13
        """)
        for kk in range(4):
            a(f"v_xor_b32 v{56+kk}, {kk << 5}, v13")
            a(f"v_add_u32 v{60+kk}, {2*SLOT}, v{56+kk}")
            a(f"v_add_u32 v{5+kk}, {4*SLOT}, v{56+kk}")
        for r in (14, 15, 16, 17, 18, 19, 20):
            a(f"v_mov_b32 v{r}, 0")
    else:
        a(f"""
        v_add_u32 v56, s56, v9
        v_add_u32 v60, {2*SLOT}, v56
        v_add_u32 v5, {4*SLOT}, v56
        """)
    def finish_stats():
        a(f"""
        v_mov_b32 v15, v14
        v_mov_b32 v17, v16
        v_lshl_add_u32 v12, v4, 2, s50
        v_lshl_add_u32 v11, v3, 4, s50
        v_permlane32_swap_b32 v14, v15
        v_permlane32_swap_b32 v16, v17
        s_mov_b32 s56, {f32hex(1.0/512)}
        s_nop 0
        v_add_f32 v14, v14, v15
        v_add_f32 v16, v16, v17
        v_mul_f32 v14, s56, v14
        v_mul_f32 v16, s56, v16
        v_fma_f32 v16, -v14, v14, v16
        v_max_f32 v16, 0, v16
        v_add_f32 v16, {f32hex(1e-5)}, v16
        v_rsq_f32 v16, v16
        s_nop 0
        v_mul_f32 v17, v14, v16
        v_sub_f32 v17, 0, v17
        ds_write_b32 v12, v16 offset:512
        ds_write_b32 v12, v17 offset:640
        s_waitcnt lgkmcnt(0)
        """)
        for g in range(4):
            a(f"ds_read_b128 v[{TV+4*g}:{TV+4*g+3}], v11 offset:{512 + 32*g}")
            a(f"ds_read_b128 v[{TV+16+4*g}:{TV+16+4*g+3}], v11 offset:{640 + 32*g}")
    if not layer1:
        a("s_waitcnt vmcnt(9)")
        for i2 in range(1, 8):
            a(f"v_add_f32 v{WFR}, v{WFR}, v{WFR+2*i2}")
            a(f"v_add_f32 v{WFR+1}, v{WFR+1}, v{WFR+2*i2+1}")
        a(f"v_mov_b32 v14, v{WFR}")
        a(f"v_mov_b32 v16, v{WFR+1}")
        finish_stats()
        a("s_waitcnt lgkmcnt(0)")
    def wread(ks):
        j, kk = ks // 4, ks % 4
        sl = j % NSLOT
        base = 21 + sl // 2
        b = WFR + 12 * (ks % 3)
        for f in range(3):
            for q in range(2):
                off = (sl & 1) * SLOT + f*4096 + kk*1024 + q*256
                a(f"ds_read_b64_tr_b16 v[{b+4*f+2*q}:{b+4*f+2*q+1}], v{base} offset:{off}")
    def xread(j):
        sl = j % NSLOT
        for kk in range(4):
            if layer1:
                base, off = (56, 60, 5)[sl // 2] + kk, (sl & 1) * SLOT
            else:
                base, off = (56, 60, 5)[sl // 2], (sl & 1) * SLOT + kk * 1024
            a(f"ds_read_b128 v[{XR[j&1]+4*kk}:{XR[j&1]+4*kk+3}], v{base} offset:{off}")
    a("s_barrier")
    stamp(a, 1)
    xread(0); wread(0)
    for ks in range(32):
        j, kk = ks // 4, ks % 4
        if kk == 0:
            a("s_waitcnt lgkmcnt(0)")
            wread(ks + 1); wread(ks + 2)
        elif kk == 1:
            a("s_waitcnt lgkmcnt(6)")
            wread(ks + 2)
        elif kk == 2:
            a("s_waitcnt lgkmcnt(6)")
        else:
            a("s_waitcnt lgkmcnt(0)")
            if j < 7:
                a("s_barrier")
                if j == 6: stamp(a, 2)
                xread(j + 1); wread(ks + 1)
        b = WFR + 12 * (ks % 3)
        xr = XR[j & 1] + 4*kk
        x = vr(xr, 4)
        for f in range(3):
            acc = vr(ACC + 16*f, 16)
            c = "0" if ks == 0 else acc
            w = vr(b + 4*f, 4)
            if f < 2: a(f"v_mfma_f32_32x32x16_bf16 {acc}, {w}, {x}, {c}")
            else:     a(f"v_mfma_f32_32x32x16_bf16 {acc}, {x}, {w}, {c}")
        if layer1 and not NOSTAT:
            skip = a.uid(f"{name}_cs")
            a(f"s_cmp_eq_u32 s40, {kk}")
            a(f"s_cbranch_scc0 {skip}")
            for d in range(4):
                for f in range(3):
                    a(f"v_dot2c_f32_bf16 v{CS+f}, s55, v{b+4*f+d}")
            a.label(skip)
            if kk == 2:
                for r in range(16):
                    a(f"v_dot2c_f32_bf16 v{SUM + (r & 1)}, s55, v{XR[j&1]+r}")
                    a(f"v_dot2c_f32_bf16 v{SQ + (r & 1)}, v{XR[j&1]+r}, v{XR[j&1]+r}")
    stamp(a, 3)
    if layer1:
        a(f"""
        s_nop 2
        v_add_f32 v14, v14, v15
        v_add_f32 v16, v16, v17
        v_mov_b32 v57, v18
        v_mov_b32 v58, v19
        v_mov_b32 v59, v20
        v_lshl_add_u32 v12, v4, 2, s50
        s_nop 0
        v_permlane32_swap_b32 v18, v57
        v_permlane32_swap_b32 v19, v58
        v_permlane32_swap_b32 v20, v59
        s_nop 0
        v_add_f32 v18, v18, v57
        v_add_f32 v19, v19, v58
        v_add_f32 v20, v20, v59
        ds_write_b32 v12, v18
        ds_write_b32 v12, v19 offset:128
        ds_write_b32 v12, v20 offset:256
        """)
        finish_stats()
        a(f"""
        s_barrier
        v_lshlrev_b32 v10, 2, v4
        v_add_u32 v13, {STAT}, v10
        """)
        for f in range(3):
            for w in range(4):
                a(f"ds_read_b32 v{64+4*f+w}, v13 offset:{w*2048 + f*128}")
        a("s_waitcnt lgkmcnt(0)")
        for f in range(3):
            a(f"v_add_f32 v{64+4*f}, v{64+4*f}, v{65+4*f}")
            a(f"v_add_f32 v{66+4*f}, v{66+4*f}, v{67+4*f}")
            a(f"v_add_f32 v{CS+f}, v{64+4*f}, v{66+4*f}")
        a(f"""
        ds_write_b32 v12, v18 offset:1024
        ds_write_b32 v12, v19 offset:1152
        """)
        sk = a.uid(f"{name}_cst")
        a(f"""
        s_cmp_lg_u32 s43, 0
        s_cbranch_scc1 {sk}
        s_lshl_b32 s51, s42, 7
        s_add_u32 s51, s51, {hex(LY.CSB)}
        buffer_store_dword v18, v10, s[24:27], s51 offen
        buffer_store_dword v19, v10, s[24:27], s51 offen offset:2048
        s_add_u32 s51, s51, 4096
        buffer_store_dword v20, v10, s[24:27], s51 offen
        """)
        a.label(sk)
        a("s_waitcnt lgkmcnt(0)")
        for g in range(4):
            a(f"ds_read_b128 v[{TQ+4*g}:{TQ+4*g+3}], v11 offset:{1024 + 32*g}")
            a(f"ds_read_b128 v[{TQ+16+4*g}:{TQ+16+4*g+3}], v11 offset:{1152 + 32*g}")
    a(f"""
    s_mov_b32 s56, {f32hex(LY.QSCALE)}
    v_mul_f32 v56, s56, v16
    v_mul_f32 v58, s56, v17
    v_mov_b32 v57, v56
    v_mov_b32 v59, v58
    v_mov_b32 v60, v16
    v_mov_b32 v61, v16
    v_mov_b32 v62, v17
    v_mov_b32 v63, v17
    s_waitcnt vmcnt(0)
    v_mov_b32 v21, v20
    s_lshl_b32 s57, s42, 17
    s_lshl_b32 s58, s43, 10
    s_add_u32 s57, s57, s58
    v_and_b32 v10, 3, v1
    v_bfe_u32 v11, v1, 2, 1
    v_lshl_or_b32 v10, v11, 3, v10
    v_bfe_u32 v11, v1, 3, 1
    v_lshl_or_b32 v10, v11, 2, v10
    v_lshlrev_b32 v10, 4, v10
    v_lshl_or_b32 v10, v3, 8, v10
    v_bfe_u32 v11, v1, 4, 1
    v_lshl_or_b32 v10, v11, 16, v10
    s_waitcnt lgkmcnt(0)
    """)
    def p(b): return f"v[{b}:{b+1}]"
    PK = 64
    for f, (rs, mr) in ((1, (60, 62)), (0, (56, 58))):
        for j in range(8):
            a(f"v_pk_mul_f32 {p(ACC+16*f+2*j)}, {p(ACC+16*f+2*j)}, {p(rs)}")
        for j in range(8):
            a(f"v_pk_fma_f32 {p(ACC+16*f+2*j)}, {p(TQ+16*f+2*j)}, {p(mr)}, {p(ACC+16*f+2*j)}")
        for j in range(8):
            a(f"v_cvt_pk_bf16_f32 v{PK+8*f+j}, v{ACC+16*f+2*j}, v{ACC+16*f+2*j+1}")
        if layer1 and ZERO:
            for j in range(8): a(f"v_min_u32 v{PK+8*f+j}, s67, v{PK+8*f+j}")
        base = LY.QF if f == 0 else LY.KF
        a(f"s_add_u32 s58, s57, {hex(base)}")
        a(f"buffer_store_dwordx4 v[{PK+8*f}:{PK+8*f+3}], v9, s[24:27], s58 offen")
        a(f"s_add_u32 s58, s57, {hex(base + 65536)}")
        a(f"buffer_store_dwordx4 v[{PK+8*f+4}:{PK+8*f+7}], v9, s[24:27], s58 offen")
    for j in range(8):
        a(f"v_pk_mul_f32 {p(ACC+32+2*j)}, {p(ACC+32+2*j)}, {p(TV+2*j)}")
    for j in range(8):
        a(f"v_pk_fma_f32 {p(ACC+32+2*j)}, {p(TV+16+2*j)}, v[20:21], {p(ACC+32+2*j)}")
    for j in range(8):
        a(f"v_cvt_pk_bf16_f32 v{PK+16+j}, v{ACC+32+2*j}, v{ACC+32+2*j+1}")
    if layer1 and ZERO:
        for j in range(8): a(f"v_min_u32 v{PK+16+j}, s67, v{PK+16+j}")
    a(f"""
    s_add_u32 s58, s57, {hex(LY.VF)}
    buffer_store_dwordx4 v[{PK+16}:{PK+19}], v10, s[24:27], s58 offen
    buffer_store_dwordx4 v[{PK+20}:{PK+23}], v10, s[24:27], s58 offen offset:512
    """)
    stamp(a, 4)
    stamp_flush(a, 0 if layer1 else 2, 5, 40, 14)
    a.label(done)
    a("s_endpgm")
    a.label(f"{name}_loader")
    a(f"""
    v_lshrrev_b32 v11, 2, v1
    s_movk_i32 s52, 3072
    v_mul_lo_u32 v11, v11, s52
    v_and_b32 v12, 3, v1
    v_lshl_add_u32 v11, v12, 4, v11
    s_lshl_b32 s52, s42, 6
    s_mul_i32 s53, s39, {16*3072}
    s_add_u32 s52, s52, s53
    s_lshl_b32 s53, s39, 10
    s_lshl_b32 s54, s39, 12
    s_add_u32 s54, s54, 12288
    """)
    if layer1:
        a(f"""
        v_lshrrev_b32 v13, 3, v1
        v_lshrrev_b32 v14, 4, v1
        v_and_b32 v15, 7, v1
        v_xor_b32 v15, v15, v14
        v_lshlrev_b32 v15, 4, v15
        v_lshl_add_u32 v15, v13, 10, v15
        v_xor_b32 v16, 64, v15
        """)
    else:
        a(f"""
        s_add_u32 s49, s49, {hex(LY.X2F)}
        s_mul_i32 s52, s42, {8*12288}
        s_add_u32 s52, s52, s53
        s_add_u32 s52, s52, {hex(LY.WP)}
        """)
    a("s_waitcnt lgkmcnt(0)")
    if layer1: srd(a, 20, 6, 0x180000)
    if layer1: srd(a, 16, 4, 0x200000)
    srd(a, 24, 14, LY.WS_USED)
    def issue(j):
        sl = (j % NSLOT) * SLOT
        for n in range(4):
            a(f"s_add_u32 m0, s54, {sl + n*1024}")
            if layer1:
                a(f"s_add_u32 s51, s49, {n*8192 + j*128}")
                a(f"buffer_load_dwordx4 v{15 + (n & 1)}, s[16:19], s51 offen lds")
            else:
                a(f"s_add_u32 s51, s49, {j*4096 + n*1024}")
                a(f"buffer_load_dwordx4 v9, s[24:27], s51 offen lds")
            if n < 3:
                a(f"s_add_u32 m0, s53, {sl + n*4096}")
                if layer1:
                    a(f"s_add_u32 s51, s52, {n*1024 + j*64*3072}")
                    a(f"buffer_load_dwordx4 v11, s[20:23], s51 offen lds")
                else:
                    a(f"s_add_u32 s51, s52, {n*4096 + j*12288}")
                    a(f"buffer_load_dwordx4 v9, s[24:27], s51 offen lds")
    LA = 3
    for j in range(LA): issue(j)
    nT1 = ((20 if T1 else 0) + (0 if LEAN else 2)) if layer1 else 0
    T = 24
    def t1_loads():
        a.comment("packed copy of W for layer 2: rows [32rb,32rb+32), tile f = lw (lw 3 repeats f=2)")
        a(f"""
        s_min_u32 s56, s39, 2
        s_lshl_b32 s57, s56, 10
        s_lshl_b32 s58, s42, 6
        s_add_u32 s57, s57, s58
        s_mul_i32 s58, s41, {32*3072}
        s_add_u32 s57, s57, s58
        buffer_load_dwordx4 v[112:115], v11, s[20:23], s57 offen
        s_add_u32 s57, s57, {16*3072}
        buffer_load_dwordx4 v[116:119], v11, s[20:23], s57 offen
        s_mul_i32 s59, s42, {8*12288}
        s_lshr_b32 s58, s41, 1
        s_mul_i32 s58, s58, 12288
        s_add_u32 s59, s59, s58
        s_and_b32 s58, s41, 1
        s_lshl_b32 s58, s58, 11
        s_add_u32 s59, s59, s58
        s_lshl_b32 s56, s56, 12
        s_add_u32 s59, s59, s56
        s_add_u32 s59, s59, {hex(LY.WP)}
        """)
    def t1_more():
        srd(a, 28, 8, 0x200000)
        srd(a, 32, 10, 0x200000)
        srd(a, 64, 12, 0x1000)
        a(f"""
        s_lshr_b32 s46, s2, 3
        s_lshl_b32 s46, s46, 16
        s_lshl_b32 s47, s39, 14
        s_add_u32 s46, s46, s47
        s_and_b32 s47, s2, 7
        s_lshl_b32 s48, s47, 7
        s_add_u32 s46, s46, s48
        v_lshlrev_b32 v5, 13, v3
        v_lshl_add_u32 v5, v4, 2, v5
        v_add_u32 v5, s46, v5
        v_add_u32 v6, 0x1000, v5
        v_subrev_u32 v7, 0xc00, v5
        s_lshl_b32 s48, s47, 9
        v_lshl_add_u32 v8, v4, 4, s48
        """)
        for r in range(3):
            a(f"buffer_load_dword v{T+r}, v7, s[28:31], 0 offen offset:{r*1024}")
        for r in range(8):
            a(f"buffer_load_dword v{T+3+r}, v{5 if r < 4 else 6}, s[28:31], 0 offen offset:{(r%4)*1024}")
        for r in range(8):
            a(f"buffer_load_dword v{T+11+r}, v{5 if r < 4 else 6}, s[32:35], 0 offen offset:{(r%4)*1024}")
        a(f"buffer_load_dwordx4 v[{T+20}:{T+23}], v8, s[64:67], 0 offen")
    for j in range(8):
        issued = min(8, LA + j)
        extra = nT1 if j >= 5 else 0
        a(f"s_waitcnt vmcnt({7 * (issued - j - 1) + extra})")
        a("s_barrier")
        if j + LA < 8: issue(j + LA)
        if j == 4 and layer1:
            if not LEAN: t1_loads()
            if T1: t1_more()
    if layer1:
        a("s_barrier")
        a("s_waitcnt vmcnt(0)")
        if not LEAN:
            a("buffer_store_dwordx4 v[112:115], v9, s[24:27], s59 offen")
            a("buffer_store_dwordx4 v[116:119], v9, s[24:27], s59 offen offset:1024")
    if layer1 and T1:
        KFp, VFp, WPr, RS = 48, 70, 86, 94
        for r in range(11):
            a(f"v_lshlrev_b32 v{KFp+2*r}, 16, v{T+r}")
            a(f"v_and_b32 v{KFp+2*r+1}, 0xffff0000, v{T+r}")
        for r in range(8):
            a(f"v_lshlrev_b32 v{VFp+2*r}, 16, v{T+11+r}")
            a(f"v_and_b32 v{VFp+2*r+1}, 0xffff0000, v{T+11+r}")
        D0 = T + 20
        a(f"""
        v_lshlrev_b32 v{WPr+0}, 16, v{D0}
        v_lshlrev_b32 v{WPr+1}, 16, v{D0+2}
        v_and_b32 v{WPr+2}, 0xffff0000, v{D0}
        v_and_b32 v{WPr+3}, 0xffff0000, v{D0+2}
        v_lshlrev_b32 v{WPr+4}, 16, v{D0+1}
        v_lshlrev_b32 v{WPr+5}, 16, v{D0+3}
        v_and_b32 v{WPr+6}, 0xffff0000, v{D0+1}
        v_and_b32 v{WPr+7}, 0xffff0000, v{D0+3}
        """)
        for t in range(8):
            a(f"v_pk_mul_f32 {p(RS+2*t)}, {p(KFp+2*t)}, {p(WPr+6)}")
        for jj in (2, 1, 0):
            for t in range(8):
                a(f"v_pk_fma_f32 {p(RS+2*t)}, {p(KFp+2*(t+3-jj))}, {p(WPr+2*jj)}, {p(RS+2*t)}")
        for t in range(8):
            a(f"v_pk_mul_f32 {p(RS+2*t)}, {p(RS+2*t)}, {p(VFp+2*t)}")
        for q in range(4):
            a(f"v_cvt_pk_bf16_f32 v{T+q}, v{RS+2*(7-2*q)}, v{RS+2*(6-2*q)}")
            a(f"v_cvt_pk_bf16_f32 v{T+4+q}, v{RS+2*(7-2*q)+1}, v{RS+2*(6-2*q)+1}")
        a(f"""
        s_lshl_b32 s46, s47, 18
        s_add_u32 s46, s46, {hex(LY.UT)}
        s_lshr_b32 s48, s2, 3
        s_lshl_b32 s48, s48, 5
        s_add_u32 s46, s46, s48
        s_lshr_b32 s48, s39, 1
        s_lshl_b32 s48, s48, 4
        s_add_u32 s46, s46, s48
        s_and_b32 s48, s39, 1
        s_lshl_b32 s48, s48, 11
        s_add_u32 s46, s46, s48
        v_lshlrev_b32 v5, 13, v4
        v_lshl_add_u32 v5, v3, 10, v5
        v_add_u32 v6, 0x1000, v5
        buffer_store_dwordx4 v[{T}:{T+3}], v5, s[24:27], s46 offen
        buffer_store_dwordx4 v[{T+4}:{T+7}], v6, s[24:27], s46 offen
        """)
    if layer1 and LEAN:
        a.comment("workgroup 0: launch epoch = stored word + 1 (never 0 or the fill pattern)")
        a(f"""
        s_xor_b32 s51, s40, 7
        s_or_b32 s51, s51, s2
        s_cmp_lg_u32 s51, 0
        s_cbranch_scc1 {name}_ne
        v_mov_b32 v20, 0
        s_mov_b32 s53, {hex(LY.EP)}
        buffer_load_dword v21, v20, s[24:27], s53 offen sc1
        s_waitcnt vmcnt(0)
        v_add_u32 v21, 2, v21
        v_max_u32 v21, 2, v21
        v_subrev_u32 v21, 1, v21
        s_mov_b64 exec, 1
        buffer_store_dword v21, v20, s[24:27], s53 offen
        s_mov_b64 exec, -1
        """)
        a.label(f"{name}_ne")
    a("s_endpgm")
    return 212
```

```python
class Asm:
    def __init__(self):
        self.out = []
        self._uid = 0
    def __call__(self, s):
        for line in s.strip("\n").split("\n"):
            self.out.append("    " + line.strip())
    def label(self, name):
        self.out.append(name + ":")
    def comment(self, s):
        self.out.append("    ; " + s)
    def raw(self, s):
        self.out.append(s)
    def uid(self, base):
        self._uid += 1
        return f"{base}_{self._uid}"
    def text(self):
        return "\n".join(self.out) + "\n"

def vr(base, n=1):
    return f"v{base}" if n == 1 else f"v[{base}:{base+n-1}]"
def sr(base, n=1):
    return f"s{base}" if n == 1 else f"s[{base}:{base+n-1}]"

def kernel_begin(a, name):
    a.raw(f".globl {name}")
    a.raw(".p2align 8")
    a.raw(f".type {name},@function")
    a.raw(f"{name}:")

def kernel_desc(name, vgpr, sgpr=96):
    acc = (vgpr + 3) // 4 * 4
    return f""".amdhsa_kernel {name}
  .amdhsa_next_free_vgpr {vgpr}
  .amdhsa_next_free_sgpr {sgpr}
  .amdhsa_accum_offset {acc}
  .amdhsa_group_segment_fixed_size 0
  .amdhsa_kernarg_size 96
  .amdhsa_user_sgpr_count 2
  .amdhsa_user_sgpr_kernarg_segment_ptr 1
  .amdhsa_system_sgpr_workgroup_id_x 1
.end_amdhsa_kernel
"""

def srd(a, d, base, size, off=0):
    if off:
        a(f"s_add_u32 s{d}, s{base}, {hex(off)}")
        a(f"s_addc_u32 s{d+1}, s{base+1}, 0")
    else:
        a(f"s_mov_b32 s{d}, s{base}")
        a(f"s_mov_b32 s{d+1}, s{base+1}")
    a(f"s_mov_b32 s{d+2}, {hex(size)}")
    a(f"s_mov_b32 s{d+3}, 0x00020000")


DIAG = False
RTDBG = False
DIAG_OFF = 0x3000000
def stamp(a, i):
    if not DIAG: return
    if RTDBG:
        a("s_memrealtime s[86:87]")
        a("s_waitcnt lgkmcnt(0)")
        a(f"s_mov_b32 s{70+i}, s86")
        return
    a(f"s_memtime s[86:87]")
    if i == 0:
        a(f"s_memrealtime s[88:89]")
    a("s_waitcnt lgkmcnt(0)")
    a(f"s_mov_b32 s{70+i}, s86")
    if i == 0:
        a("s_mov_b32 s84, s88")
def stamp_flush(a, slot, n, wave_sgpr, ws_lo):
    if not DIAG: return
    if RTDBG:
        lst = {0: ((0, 0), (4, 1)), 2: tuple((i, 2 + k) for k, i in enumerate((0, 10, 3, 4, 5, 7, 8, 9, 11))), 1: ((2, 11), (3, 12), (5, 13), (7, 14), (13, 15))}.get(slot)
        if lst is None: return
        L = a.uid("rtd")
        a(f"""
        s_or_b32 s90, s2, s{wave_sgpr}
        s_cmp_lg_u32 s90, 0
        s_cbranch_scc1 {L}
        s_load_dwordx2 s[92:93], s[0:1], 80
        s_waitcnt lgkmcnt(0)
        s_add_u32 s92, s92, {512 if slot == 0 else 0}
        s_addc_u32 s93, s93, 0
        s_mov_b32 s94, 256
        s_mov_b32 s95, 0x00020000
        v_mov_b32 v1, 0
        s_mov_b64 exec, 1
        """)
        for i, k in lst:
            a(f"v_mov_b32 v2, s{70+i}")
            a(f"buffer_store_dword v2, v1, s[92:95], 0 offen offset:{4*k}")
        a.label(L)
        return
    a(f"""
    s_memrealtime s[88:89]
    s_waitcnt lgkmcnt(0)
    s_mov_b32 s85, s88
    s_add_u32 s92, s{ws_lo}, {hex(DIAG_OFF + slot * 0x40000)}
    s_addc_u32 s93, s{ws_lo+1}, 0
    s_mov_b32 s94, 0x40000
    s_mov_b32 s95, 0x00020000
    s_lshl_b32 s90, s2, 10
    s_lshl_b32 s91, s{wave_sgpr}, 6
    s_add_u32 s90, s90, s91
    v_mov_b32 v1, s90
    s_mov_b64 exec, 1
    """)
    for i in list(range(n)) + [14, 15]:
        a(f"v_mov_b32 v2, s{70+i}")
        a(f"buffer_store_dword v2, v1, s[92:95], 0 offen offset:{4*i}")


def ln_stats(a, m, q, rs, mr, t, sreg="s56"):
    import struct
    f = lambda x: hex(struct.unpack("<I", struct.pack("<f", x))[0])
    a(f"""
    s_mov_b32 {sreg}, {f(1.0/512)}
    v_mul_f32 v{m}, {sreg}, v{m}
    v_mul_f32 v{q}, {sreg}, v{q}
    v_fma_f32 v{q}, -v{m}, v{m}, v{q}
    v_max_f32 v{q}, 0, v{q}
    v_cvt_pk_bf16_f32 v{t}, v{m}, v{q}
    v_lshlrev_b32 v{m}, 16, v{t}
    v_and_b32 v{q}, 0xffff0000, v{t}
    v_add_f32 v{q}, {f(1e-5)}, v{q}
    v_cvt_pk_bf16_f32 v{t}, v{q}, v{q}
    v_and_b32 v{q}, 0xffff0000, v{t}
    v_sqrt_f32 v{q}, v{q}
    s_nop 0
    v_cvt_pk_bf16_f32 v{t}, v{q}, v{q}
    v_and_b32 v{q}, 0xffff0000, v{t}
    v_rcp_f32 v{rs}, v{q}
    s_nop 0
    v_mul_f32 v{mr}, v{m}, v{rs}
    v_sub_f32 v{mr}, 0, v{mr}
    """)
```

```python
import struct
from asmlib import *
import layout as LY

def f32hex(x):
    return hex(struct.unpack("<I", struct.pack("<f", x))[0])
def p(b): return f"v[{b}:{b+1}]"

CS = 4160
CHB = 2 * CS + 6144
FLAG = 131072 + 2 * CHB
XCH = 0
YL = 151552
U = 8
LOCALO = 0
TOUCH = 0
TWO = 1
FAST = 1
GATHER = 0
CUT_QA = 0
CUT_OQ = 0
SLEEP = 4
CSLEEP = 1
NFAIL = 24
DIAGL = 1
THR_A, THR_H, THR_O = 1, 3, 4
WDEPTH = 8
GSLEEP = 2
PLO, PHI = 13, 0
LDS_BYTES = 163840
N = "mega"


def poll(a, soff, tag):
    L = a.uid(f"{N}_pl{tag}")
    a(f"s_mov_b32 s69, 0x10000")
    a.label(L)
    a(f"""
    buffer_load_dword v15, v2, s[24:27], s{soff} offen sc1
    s_waitcnt vmcnt(0)
    v_cmp_ne_u32 vcc, 0, v15
    s_cmp_eq_u64 vcc, -1
    s_cbranch_scc1 {L}_d
    s_sub_u32 s69, s69, 1
    s_cbranch_scc1 {L}_d
    s_sleep {SLEEP}
    s_branch {L}
    """)
    a.label(L + "_d")

def set_flag(a, soff):
    a(f"""
    v_mov_b32 v15, 1
    v_mov_b32 v14, 0
    s_waitcnt vmcnt(0)
    s_mov_b64 exec, 1
    buffer_store_dword v15, v14, s[24:27], s{soff} offen sc1
    s_mov_b64 exec, -1
    """)

def maxchain(a, dst, regs):
    regs = list(regs)
    a(f"v_max3_u32 v{dst}, v{regs[0]}, v{regs[1]}, v{regs[2]}")
    rest = regs[3:]
    while len(rest) >= 2:
        a(f"v_max3_u32 v{dst}, v{dst}, v{rest[0]}, v{rest[1]}")
        rest = rest[2:]
    if rest: a(f"v_max_u32 v{dst}, v{dst}, v{rest[0]}")

def checked(a, loads, regs, first_wait=None, sleep=None, switch=None):
    L = a.uid(f"{N}_ck")
    a("s_mov_b32 s69, 0x8000")
    if first_wait is not None:
        a(f"s_waitcnt vmcnt({first_wait})")
        a(f"s_branch {L}_c")
    a.label(L)
    loads()
    a("s_waitcnt vmcnt(0)")
    a.label(L + "_c")
    maxchain(a, 15, regs)
    a(f"""
    v_cmp_eq_u32 vcc, -1, v15
    s_cmp_eq_u64 vcc, 0
    s_cbranch_scc1 {L}_d
    s_sub_u32 s69, s69, 1
    s_cbranch_scc1 {L}_d
    """)
    switch_copy(a, L, switch)
    a(f"""
    s_sleep {CSLEEP if sleep is None else sleep}
    s_branch {L}
    """)
    a.label(L + "_d")

def switch_copy(a, L, regs):
    if not regs: return
    a(f"""
    s_cmp_lg_u32 s69, {0x8000 - NFAIL}
    s_cbranch_scc1 {L}_ns
    """)
    for r in regs: a(f"v_or_b32 v{r}, {hex(LY.GD)}, v{r}")
    a.label(f"{L}_ns")

def checked_units(a, units, wait=None, sleep=None, switch=None):
    L = a.uid(f"{N}_cu")
    n = len(units)
    a("s_mov_b32 s69, 0x8000")
    a(f"s_mov_b32 s66, {hex((1 << n) - 1)}")
    wait()
    allregs = [r for (_, regs, _) in units for r in regs]
    maxchain(a, 15, allregs)
    a(f"""
    v_cmp_eq_u32 vcc, -1, v15
    s_cmp_eq_u64 vcc, 0
    s_cbranch_scc0 {L}_c
    """)
    for (_, _, ok) in units:
        if ok: ok()
    a(f"s_branch {L}_d")
    a.label(L)
    for i, (ld, regs, ok) in enumerate(units):
        a(f"s_bitcmp1_b32 s66, {i}")
        a(f"s_cbranch_scc0 {L}_l{i}")
        ld()
        a.label(f"{L}_l{i}")
    a("s_waitcnt vmcnt(0)")
    a.label(L + "_c")
    for i, (ld, regs, ok) in enumerate(units):
        a(f"s_bitcmp1_b32 s66, {i}")
        a(f"s_cbranch_scc0 {L}_k{i}")
        maxchain(a, 15, regs)
        a(f"""
        v_cmp_eq_u32 vcc, -1, v15
        s_cmp_eq_u64 vcc, 0
        s_cbranch_scc0 {L}_k{i}
        s_bitset0_b32 s66, {i}
        """)
        if ok: ok()
        a.label(f"{L}_k{i}")
    a(f"""
    s_cmp_eq_u32 s66, 0
    s_cbranch_scc1 {L}_d
    s_sub_u32 s69, s69, 1
    s_cbranch_scc1 {L}_d
    """)
    switch_copy(a, L, switch)
    a(f"""
    s_sleep {CSLEEP if sleep is None else sleep}
    s_branch {L}
    """)
    a.label(L + "_d")

def hint_wait(a, vaddr, soff, nl, sleep=None, switch=None, thr=0):
    L = a.uid(f"{N}_hw")
    a("s_mov_b32 s69, 0x8000")
    a.label(L)
    a(f"""
    s_mov_b64 exec, {hex((1 << nl) - 1)}
    buffer_load_dword v15, v{vaddr}, s[24:27], {soff} offen sc1
    s_waitcnt vmcnt(0)
    v_cmp_eq_u32 vcc, -1, v15
    s_mov_b64 exec, -1
    s_bcnt1_i32_b64 s66, vcc
    s_cmp_le_u32 s66, {thr}
    s_cbranch_scc1 {L}_d
    s_sub_u32 s69, s69, 1
    s_cbranch_scc1 {L}_d
    """)
    switch_copy(a, L, switch)
    a(f"""
    s_sleep {CSLEEP if sleep is None else sleep}
    s_branch {L}
    """)
    a.label(L + "_d")

def sanitize(a, regs):
    for r in regs: a(f"v_min_u32 v{r}, s67, v{r}")

def entries():
    return [("mega_kernel" if TWO else "interleave_layers__mha_block__ssm_conv_h3__prompt_kernel", 0)]

def flag_wait(a, soff, nload=1, wide=False, tag="f"):
    L = a.uid(f"{N}_fw{tag}")
    a("s_mov_b32 s69, 0x10000")
    a.label(L)
    regs = []
    for n in range(nload):
        if wide:
            a(f"buffer_load_dwordx4 v[{16+4*n}:{19+4*n}], v3, s[24:27], s{soff} offen offset:{n*1024} sc1")
            regs += list(range(16 + 4*n, 20 + 4*n))
        else:
            a(f"buffer_load_dword v{16+n}, v2, s[24:27], s{soff} offen offset:{n*256} sc1")
            regs.append(16 + n)
    a("s_waitcnt vmcnt(0)")
    a(f"v_xor_b32 v15, s65, v{regs[0]}")
    for r in regs[1:]:
        a(f"v_xor_b32 v{r}, s65, v{r}")
        a(f"v_or_b32 v15, v15, v{r}")
    a(f"""
    v_cmp_ne_u32 vcc, 0, v15
    s_cmp_eq_u64 vcc, 0
    s_cbranch_scc1 {L}_d
    s_sub_u32 s69, s69, 1
    s_cbranch_scc1 {L}_d
    s_sleep 2
    s_branch {L}
    """)
    a.label(L + "_d")

def publish(a, soff, wait=0):
    a(f"""
    v_mov_b32 v15, s65
    v_mov_b32 v14, 0
    s_waitcnt vmcnt({wait})
    s_mov_b64 exec, 1
    buffer_store_dword v15, v14, s[24:27], s{soff} offen sc1
    s_mov_b64 exec, -1
    """)

def emit(a):
    kernel_begin(a, entries()[0][0])
    a(f"""
    s_cmp_ge_u32 s2, 256
    s_cbranch_scc1 {N}_done
    s_load_dwordx4 s[4:7], s[0:1], 0
    s_load_dwordx2 s[18:19], s[0:1], 16
    s_load_dwordx2 s[8:9], s[0:1], 72
    s_load_dwordx2 s[10:11], s[0:1], 48
    s_load_dwordx2 s[12:13], s[0:1], 64
    s_load_dwordx2 s[14:15], s[0:1], 88
    s_load_dwordx2 s[16:17], s[0:1], 56
    s_load_dwordx4 s[28:31], s[0:1], 32
    v_lshrrev_b32 v2, 6, v0
    v_and_b32 v1, 63, v0
    v_readfirstlane_b32 s40, v2
    v_lshlrev_b32 v3, 4, v1
    v_lshlrev_b32 v2, 2, v1
    s_mov_b32 s3, 0
    s_and_b32 s36, s2, 7
    s_lshr_b32 s37, s2, 3
    s_mov_b32 s67, 0xfffffffe
    s_waitcnt lgkmcnt(0)
    """)
    srd(a, 24, 14, LY.WS_USED)
    stamp(a, 0)
    if TWO:
        a.comment("launch epoch (bumped by the first launch): tags this run's hand-off words")
        a(f"s_mov_b32 s64, {hex(LY.EP)}")
        a(f"s_load_dword s65, s[14:15], s64")
        a("s_mov_b32 s34, s6")
        a("s_mov_b32 s35, s7")
    else:
        qkv1(a)
    a("s_mov_b32 s6, s18")
    a("s_mov_b32 s7, s19")
    a.label(f"{N}_layer")
    attention(a)
    oproj(a)
    qkv(a)
    a(f"""
    s_mov_b32 s3, 1
    s_branch {N}_layer
    """)
    a.label(f"{N}_done")
    a("s_endpgm")
    attention_fallback(a)
    return 168

QA, QB, S, O, P, KB, VB = 4, 8, (16, 32), (48, 64), 80, (88, 92), (96, 104)
def mf(a, d, x, y, c): a(f"v_mfma_f32_32x32x16_bf16 {vr(d,16)}, {vr(x,4)}, {vr(y,4)}, {c}")

def attention(a):
    TS = 32
    if LOCALO:
        a("s_mov_b32 s41, s37")
    else:
        a("""
        s_lshl_b32 s41, s36, 2
        s_and_b32 s46, s37, 3
        s_add_u32 s41, s41, s46
        """)
    a(f"""
    s_mul_i32 s38, s3, {hex(LY.QKVL)}
    s_lshl_b32 s48, s41, 16
    s_add_u32 s48, s48, s38
    """)
    a.label(f"{N}_a_go")
    stamp(a, 1)
    a(f"""
    s_cmp_ge_u32 s40, 8
    s_cbranch_scc1 {N}_help
    {"s_mov_b32 s42, s36" if LOCALO else "s_lshr_b32 s42, s37, 2"}
    s_and_b32 s43, s40, 3
    s_lshr_b32 s47, s40, 2
    s_lshl_b32 s42, s42, 3
    s_lshl_b32 s46, s43, 1
    s_add_u32 s42, s42, s46
    s_lshl_b32 s49, s42, 10
    s_add_u32 s49, s49, s48
    s_lshl_b32 s50, s47, 5
    s_add_u32 s51, s50, s43
    s_lshl_b32 s51, s51, 10
    s_add_u32 s52, s48, s51
    s_add_u32 s53, s52, {hex(LY.KF)}
    s_add_u32 s54, s52, {hex(LY.KF + 4096)}
    s_add_u32 s55, s52, {hex(LY.VF)}
    s_add_u32 s58, s52, {hex(LY.VF + 4096)}
    """)
    fu = [
        (lambda: a(f"buffer_load_dwordx4 v[16:19], v3, s[24:27], s53 offen sc1"), range(16, 20), lambda: a("ds_write_b128 v32, v[16:19]")),
        (lambda: a(f"buffer_load_dwordx4 v[20:23], v3, s[24:27], s55 offen sc1"), range(20, 24), lambda: a("ds_write_b128 v33, v[20:23]")),
        (lambda: a(f"buffer_load_dwordx4 v[{QA}:{QA+3}], v3, s[24:27], s49 offen sc1"), range(QA, QA + 4), None),
        (lambda: a(f"buffer_load_dwordx4 v[{QB}:{QB+3}], v3, s[24:27], s49 offen offset:1024 sc1"), range(QB, QB + 4), None),
        (lambda: a(f"buffer_load_dwordx4 v[24:27], v3, s[24:27], s54 offen sc1"), range(24, 28), lambda: a("ds_write_b128 v32, v[24:27] offset:4096")),
        (lambda: a(f"buffer_load_dwordx4 v[28:31], v3, s[24:27], s58 offen sc1"), range(28, 32), lambda: a("ds_write_b128 v33, v[28:31] offset:4096")),
    ]
    a(f"""
    s_cmp_lg_u32 s3, 0
    s_cbranch_scc1 {N}_a_h1
    s_lshr_b32 s59, s41, 1
    s_lshl_b32 s59, s59, 8
    s_add_u32 s59, s59, {hex(LY.FQ)}
    """)
    if not TWO: flag_wait(a, 59, tag="a")
    a(f"s_branch {N}_a_nh")
    a.label(f"{N}_a_h1")
    a(f"""
    s_add_u32 s59, s49, 1024
    v_writelane_b32 v14, s55, 0
    v_writelane_b32 v14, s58, 1
    v_writelane_b32 v14, s49, 2
    v_writelane_b32 v14, s59, 3
    s_movk_i32 s59, 1020
    """)
    hint_wait(a, 14, "s59", 4, thr=THR_A)
    a.label(f"{N}_a_nh")
    for u in fu: u[0]()
    if TOUCH:
        a.comment("the 8 workgroups of a head each pull a distinct eighth of its K/V into the XCD's L2 (speed only)")
        a(f"""
        s_lshr_b32 s59, s37, 2
        s_lshl_b32 s59, s59, 10
        s_lshl_b32 s60, s47, 21
        s_add_u32 s59, s59, s60
        s_lshl_b32 s60, s43, 14
        s_add_u32 s59, s59, s60
        s_add_u32 s59, s59, s48
        s_add_u32 s59, s59, {hex(LY.KF)}
        v_and_b32 v34, 7, v1
        v_lshlrev_b32 v34, 7, v34
        v_lshrrev_b32 v35, 3, v1
        v_lshl_add_u32 v34, v35, 13, v34
        s_mov_b64 exec, 0xffff
        buffer_load_dword v35, v34, s[24:27], s59 offen sc1
        s_mov_b64 exec, -1
        """)
    for r in range(16):
        a(f"v_mov_b32 v{O[0]+r}, 0")
        a(f"v_mov_b32 v{O[1]+r}, 0")
    a(f"""
    v_and_b32 v14, 27, v1
    v_cmp_eq_u32 vcc, 16, v14
    v_mov_b32 v15, 0x3f803f80
    s_lshl_b32 s59, s50, 10
    v_cndmask_b32 v14, 0, v15, vcc
    """)
    for r in range(16): a(f"v_mov_b32 v{VB[0]+r}, v14")
    for r in range(4): a(f"v_mov_b32 v{P+4+r}, 0")
    a(f"""
    v_add_u32 v12, s59, v3
    v_and_b32 v13, 15, v1
    v_lshlrev_b32 v13, 4, v13
    v_lshrrev_b32 v14, 5, v1
    v_lshl_add_u32 v13, v14, 8, v13
    s_add_u32 s59, s59, 0x10000
    v_add_u32 v13, s59, v13
    s_mov_b32 s56, 0xffff
    s_mov_b32 s57, 0xffff
    v_add_u32 v32, s51, v3
    v_add_u32 v33, 0x10000, v32
    """)
    checked_units(a, fu, wait=lambda: a("s_waitcnt vmcnt(0)"))
    a(f"""
    v_mov_b32 v14, {FLAG + 4}
    v_mov_b32 v112, 1
    s_waitcnt lgkmcnt(0)
    s_barrier
    """)
    stamp(a, 2)
    def kread(buf, t): a(f"ds_read_b128 v[{KB[buf]}:{KB[buf]+3}], v12 offset:{t*1024}")
    def vread(buf, t):
        a("s_mov_b64 exec, s[56:57]")
        a(f"ds_read_b128 v[{VB[buf]}:{VB[buf]+3}], v13 offset:{t*1024}")
        a(f"ds_read_b128 v[{VB[buf]+4}:{VB[buf]+7}], v13 offset:{t*1024+512}")
        a("s_mov_b64 exec, -1")
    kread(0, 0); vread(0, 0)
    a("s_waitcnt lgkmcnt(2)")
    mf(a, S[0], KB[0], QA, "0")
    a(f"""
    s_waitcnt lgkmcnt(0)
    s_mov_b32 s58, {TS // U}
    s_mov_b32 s59, 0
    s_nop 7
    s_nop 1
    """)
    a.label(f"{N}_loop")
    for t in range(U):
        cur, nxt = t & 1, (t + 1) & 1
        for ph in range(2):
            s, o, op, sp = S[ph], O[ph], O[1 - ph], S[1 - ph]
            e = lambda i: a(f"v_exp_f32 v{s+i}, v{s+i}")
            c = lambda j: a(f"v_cvt_pk_bf16_f32 v{P+j}, v{s+2*j}, v{s+2*j+1}")
            vprev = VB[cur] if ph == 1 else VB[nxt]
            if PLO >= 0 and 2 * t + ph in (PLO, PHI):
                sk = a.uid(f"{N}_pr")
                a(f"s_cmp_eq_u32 s47, 0")
                a(f"s_cbranch_scc1 {sk}")
                a(f"s_setprio {1 if 2 * t + ph == PHI else 0}")
                a.label(sk)
            e(0); e(1)
            mf(a, op, vprev + 4, P + 4, vr(op, 16))
            e(2); c(0); e(3); e(4); c(1); e(5)
            if ph == 0:
                mf(a, sp, KB[cur], QB, "0")
                if t == 7:
                    a(f"s_cmp_lg_u32 s59, 0")
                    a(f"s_cbranch_scc1 {N}_kvd")
                    stamp(a, 8)
                    a.label(f"{N}_kvw")
                    a(f"""
                    ds_read_b32 v15, v14
                    s_waitcnt lgkmcnt(0)
                    v_readfirstlane_b32 s59, v15
                    s_cmp_ge_u32 s59, 4
                    s_cbranch_scc0 {N}_kvw
                    """)
                    stamp(a, 12)
                    a.label(f"{N}_kvd")
                kread(nxt, t + 1); vread(nxt, t + 1)
            else:
                a("s_waitcnt lgkmcnt(2)")
                mf(a, sp, KB[nxt], QA, "0")
            e(6); c(2); e(7); e(8); c(3); e(9); e(10)
            mf(a, o, VB[cur], P, vr(o, 16))
            c(4); e(11); e(12); c(5); e(13); e(14); c(6); e(15)
            if ph == 1: a("s_waitcnt lgkmcnt(0)")
            elif t == U - 1: a(f"v_add_u32 v12, {U*1024}, v12")
            else: a("s_nop 0")
            c(7)
            if t == U - 1 and ph == 0: a(f"v_add_u32 v13, {U*1024}, v13")
    a(f"""
    s_cmp_lg_u32 s58, {TS // U - 16 // U + 1}
    s_cbranch_scc1 {N}_npg
    s_mov_b64 exec, 1
    ds_add_u32 v14, v112 offset:4
    s_mov_b64 exec, -1
    """)
    a.label(f"{N}_npg")
    a(f"""
    s_sub_u32 s58, s58, 1
    s_cmp_lg_u32 s58, 0
    s_cbranch_scc1 {N}_loop
    """)
    mf(a, O[1], VB[1] + 4, P + 4, vr(O[1], 16))
    stamp(a, 3)
    a(f"""
    s_setprio 0
    s_mul_i32 s54, s40, 2304
    s_add_u32 s54, s54, 131072
    v_add_u32 v14, s54, v2
    s_xor_b32 s55, s40, 4
    s_mul_i32 s55, s55, 2304
    s_add_u32 s55, s55, 131072
    v_add_u32 v13, s55, v2
    s_add_u32 s42, s42, s47
    s_nop 7
    s_barrier
    s_cmp_eq_u32 s47, 0
    s_cbranch_scc1 {N}_k1
    """)
    for r in range(9): a(f"ds_write_b32 v14, v{O[0]+r} offset:{r*256}")
    for r in range(9): a(f"v_mov_b32 v{O[0]+r}, v{O[1]+r}")
    for r in range(4): a(f"v_mov_b32 v{QA+r}, v{QB+r}")
    a(f"s_branch {N}_jn")
    a.label(f"{N}_k1")
    for r in range(9): a(f"ds_write_b32 v14, v{O[1]+r} offset:{r*256}")
    a.label(f"{N}_jn")
    a("s_waitcnt lgkmcnt(0)")
    a("s_barrier")
    for r in range(9): a(f"ds_read_b32 v{S[0]+r}, v13 offset:{r*256}")
    a("s_waitcnt lgkmcnt(0)")
    Oa = O[0]
    for r in range(9): a(f"v_add_f32 v{Oa+r}, v{Oa+r}, v{S[0]+r}")
    a(f"v_add_f32 v14, abs(v{Oa}), abs(v{Oa+1})")
    for r in range(2, 8): a(f"v_add_f32 v14, v14, abs(v{Oa+r})")
    a(f"""
    v_cmp_le_f32 vcc, {f32hex(2.0**-60)}, v{Oa+8}
    s_mov_b32 s61, {f32hex(2.0**60)}
    v_cmp_ge_f32 s[62:63], s61, v{Oa+8}
    s_and_b64 vcc, vcc, s[62:63]
    s_mov_b32 s61, 0x7f800000
    v_cmp_gt_f32 s[62:63], s61, v14
    s_and_b64 vcc, vcc, s[62:63]
    s_cmp_eq_u64 vcc, -1
    s_cbranch_scc0 {N}_fb
    """)
    a.label(f"{N}_fin")
    a(f"""
    v_rcp_f32 v14, v{Oa+8}
    s_lshl_b32 s54, s42, 15
    s_lshl_b32 s55, s41, 10
    s_add_u32 s54, s54, s55
    s_mul_i32 s55, s3, {hex(LY.OFL)}
    s_add_u32 s54, s54, s55
    s_add_u32 s54, s54, {hex(LY.OF)}
    """)
    for r in range(8): a(f"v_mul_f32 v{Oa+r}, v{Oa+r}, v14")
    for j in range(4): a(f"v_cvt_pk_bf16_f32 v{P+j}, v{Oa+2*j}, v{Oa+2*j+1}")
    sanitize(a, range(P, P + 4))
    if LOCALO:
        a(f"buffer_store_dwordx4 v[{P}:{P+3}], v3, s[24:27], s54 offen")
        a(f"s_add_u32 s54, s54, {hex(LY.GD)}")
    a(f"buffer_store_dwordx4 v[{P}:{P+3}], v3, s[24:27], s54 offen sc1")
    stamp(a, 4)
    a(f"s_branch {N}_op")
    helper(a)

def attention_fallback(a):
    C, Oa = O[1], O[0]
    a.label(f"{N}_fb")
    a(f"""
    s_add_u32 s52, s48, {hex(LY.KF)}
    v_mov_b32 v14, 0xff800000
    s_mov_b32 s59, 64
    """)
    a.label(f"{N}_fbl")
    a(f"""
    buffer_load_dwordx4 v[{KB[0]}:{KB[0]+3}], v3, s[24:27], s52 offen sc1
    s_add_u32 s52, s52, 1024
    s_waitcnt vmcnt(0)
    v_mfma_f32_32x32x16_bf16 {vr(S[0],16)}, {vr(KB[0],4)}, {vr(QA,4)}, 0
    s_nop 15
    """)
    for j in range(8): a(f"v_max3_f32 v14, v14, v{S[0]+2*j}, v{S[0]+2*j+1}")
    a(f"""
    s_sub_u32 s59, s59, 1
    s_cmp_lg_u32 s59, 0
    s_cbranch_scc1 {N}_fbl
    v_mov_b32 v15, v14
    s_nop 1
    v_permlane32_swap_b32 v14, v15
    s_nop 1
    v_max_f32 v14, v14, v15
    v_sub_f32 v14, 0, v14
    """)
    for r in range(16):
        a(f"v_mov_b32 v{C+r}, v14")
        a(f"v_mov_b32 v{Oa+r}, 0")
    a(f"""
    v_and_b32 v13, 15, v1
    v_lshlrev_b32 v13, 4, v13
    v_lshrrev_b32 v14, 5, v1
    v_lshl_add_u32 v13, v14, 8, v13
    s_add_u32 s52, s48, {hex(LY.KF)}
    s_add_u32 s53, s48, {hex(LY.VF)}
    s_mov_b32 s59, 64
    """)
    a.label(f"{N}_fbm")
    a(f"""
    buffer_load_dwordx4 v[{KB[0]}:{KB[0]+3}], v3, s[24:27], s52 offen sc1
    s_mov_b64 exec, s[56:57]
    buffer_load_dwordx4 v[{VB[0]}:{VB[0]+3}], v13, s[24:27], s53 offen sc1
    buffer_load_dwordx4 v[{VB[0]+4}:{VB[0]+7}], v13, s[24:27], s53 offen offset:512 sc1
    s_mov_b64 exec, -1
    s_add_u32 s52, s52, 1024
    s_add_u32 s53, s53, 1024
    s_waitcnt vmcnt(0)
    v_mfma_f32_32x32x16_bf16 {vr(S[0],16)}, {vr(KB[0],4)}, {vr(QA,4)}, {vr(C,16)}
    s_nop 15
    """)
    for i in range(16): a(f"v_exp_f32 v{S[0]+i}, v{S[0]+i}")
    a("s_nop 0")
    for j in range(8): a(f"v_cvt_pk_bf16_f32 v{P+j}, v{S[0]+2*j}, v{S[0]+2*j+1}")
    a("s_nop 1")
    mf(a, Oa, VB[0], P, vr(Oa, 16))
    mf(a, Oa, VB[0] + 4, P + 4, vr(Oa, 16))
    a(f"""
    s_sub_u32 s59, s59, 1
    s_cmp_lg_u32 s59, 0
    s_cbranch_scc1 {N}_fbm
    s_nop 15
    s_branch {N}_fin
    """)

def helper(a):
    a.label(f"{N}_help")
    a(f"""
    s_sub_u32 s39, s40, 8
    s_lshl_b32 s51, s39, 10
    s_add_u32 s52, s48, s51
    v_mov_b32 v5, 0
    v_mov_b32 v8, 0
    v_mov_b32 v9, 0
    v_mov_b32 v10, 0
    v_mov_b32 v11, 0
    v_mov_b32 v4, {FLAG}
    ds_write_b128 v4, v[8:11]
    ds_write_b128 v4, v[8:11] offset:16
    ds_write_b128 v4, v[8:11] offset:32
    s_lshr_b32 s41, s39, 1
    s_and_b32 s42, s39, 1
    s_lshl_b32 s38, s36, 5
    s_add_u32 s38, s38, s37
    s_lshl_b32 s43, s38, 1
    s_add_u32 s43, s43, s41
    s_mul_i32 s45, s41, {CHB}
    s_add_u32 s45, s45, 131072
    s_lshl_b32 s46, s43, 12
    s_lshl_b32 s44, s38, 2
    s_lshl_b32 s48, s42, 11
    v_lshrrev_b32 v6, 5, v1
    v_and_b32 v7, 31, v1
    s_movk_i32 s53, 1536
    v_mul_lo_u32 v12, v6, s53
    v_lshl_add_u32 v12, v7, 4, v12
    s_mul_i32 s49, s42, 3072
    s_add_u32 s49, s49, s45
    s_add_u32 s53, s49, {2*CS}
    v_add_u32 v12, s53, v12
    ds_write_b128 v12, v[8:11]
    s_waitcnt lgkmcnt(0)
    s_barrier
    s_setprio 3
    """)
    a(f"""
    v_add_u32 v41, s51, v3
    v_add_u32 v42, 0x10000, v41
    s_add_u32 s53, s52, {hex(LY.KF)}
    s_add_u32 s54, s52, {hex(LY.KF + 32768)}
    s_add_u32 s55, s52, {hex(LY.VF)}
    s_add_u32 s56, s52, {hex(LY.VF + 32768)}
    """)
    KVS = 64
    def unit(b, i, q):
        n = 2 + 2*b + i
        r = KVS + 32*b + 16*i + 4*q
        sb = (53, 55, 54, 56)[q]
        def ld():
            a(f"s_add_u32 s57, s{sb}, {n*4096}")
            a(f"buffer_load_dwordx4 v[{r}:{r+3}], v3, s[24:27], s57 offen sc1")
        return (ld, range(r, r + 4), lambda: a(f"ds_write_b128 v{41 + (q & 1)}, v[{r}:{r+3}] offset:{n*4096 + (q >> 1)*32768}"))
    batches = [[unit(b, i, q) for i in range(2) for q in range(4)] for b in range(3)]
    a(f"""
    s_cmp_eq_u32 s3, 0
    s_cbranch_scc1 {N}_h_nh
    v_and_b32 v14, 1, v1
    v_lshlrev_b32 v14, 15, v14
    v_lshrrev_b32 v15, 1, v1
    v_lshl_add_u32 v14, v15, 12, v14
    s_add_u32 s57, s55, {8192 + 1020}
    """)
    hint_wait(a, 14, "s57", 12, thr=THR_H)
    a.label(f"{N}_h_nh")
    for bt in batches:
        for u in bt: u[0]()
    a(f"""
    s_cmp_lg_u32 s3, 0
    s_cbranch_scc1 {N}_hkv
    """)
    conv_loads(a)
    a.label(f"{N}_hkv")
    for b in range(3):
        def w(b=b):
            L = a.uid(f"{N}_hw")
            a(f"""
            s_cmp_lg_u32 s3, 0
            s_cbranch_scc1 {L}
            s_waitcnt vmcnt({16 - 8*b + 5})
            s_branch {L}_d
            """)
            a.label(L)
            a(f"s_waitcnt vmcnt({16 - 8*b})")
            a.label(L + "_d")
        checked_units(a, batches[b], wait=w)
    a(f"""
    v_mov_b32 v15, 1
    s_waitcnt lgkmcnt(0)
    s_mov_b64 exec, 1
    ds_add_u32 v4, v15 offset:4
    s_mov_b64 exec, -1
    s_cmp_lg_u32 s3, 0
    s_cbranch_scc1 {N}_hend
    """)
    conv_gathers(a)
    HL, T = 48, 16
    a(f"""
    s_add_u32 s52, s45, s48
    v_add_u32 v13, s52, v3
    s_waitcnt vmcnt({22 if LOCALO else 18})
    """)
    for it in range(2):
        A, B = HL + 8*it, HL + 8*it + 4
        for j in range(4):
            a(f"v_alignbyte_b32 v{44+j}, v{B+j}, v{A+j}, 2")
        o = 64 + it * 1024
        a(f"ds_write_b128 v13, v[44:47] offset:{o}")
        a(f"ds_write_b128 v13, v[{B}:{B+3}] offset:{o + CS}")
    a(f"""
    s_cmp_lg_u32 s42, 0
    s_cbranch_scc1 {N}_hs
    v_lshlrev_b32 v44, 16, v40
    v_cmp_eq_u32 vcc, 3, v1
    s_nop 1
    v_cndmask_b32 v11, v11, v44, vcc
    v_cmp_eq_u32 vcc, 7, v1
    s_nop 1
    v_cndmask_b32 v11, v11, v40, vcc
    v_lshrrev_b32 v12, 2, v1
    s_movk_i32 s52, {CS}
    v_mul_lo_u32 v12, v12, s52
    v_and_b32 v14, 3, v1
    v_lshl_add_u32 v12, v14, 4, v12
    v_add_u32 v12, s45, v12
    s_mov_b64 exec, 0xff
    ds_write_b128 v12, v[8:11]
    s_mov_b64 exec, -1
    """)
    a.label(f"{N}_hs")
    if GATHER:
        KFp, VFp, WPr, RS = 64, 86, 102, 16
        D0 = 36
        a(f"""
        v_lshlrev_b32 v{WPr+0}, 16, v{D0}
        v_lshlrev_b32 v{WPr+1}, 16, v{D0+2}
        v_and_b32 v{WPr+2}, 0xffff0000, v{D0}
        v_and_b32 v{WPr+3}, 0xffff0000, v{D0+2}
        v_lshlrev_b32 v{WPr+4}, 16, v{D0+1}
        v_lshlrev_b32 v{WPr+5}, 16, v{D0+3}
        v_and_b32 v{WPr+6}, 0xffff0000, v{D0+1}
        v_and_b32 v{WPr+7}, 0xffff0000, v{D0+3}
        v_and_b32 v12, 3, v1
        s_movk_i32 s52, 1536
        v_mul_lo_u32 v12, v12, s52
        v_lshrrev_b32 v14, 2, v1
        v_lshl_add_u32 v14, v14, 4, v12
        s_lshl_b32 s52, s39, 8
        s_add_u32 s52, s52, {131072 + 2*CS + 512}
        v_add_u32 v14, s52, v14
        s_waitcnt vmcnt(14)
        """)
        for r in range(11):
            a(f"v_lshlrev_b32 v{KFp+2*r}, 16, v{T+r}")
            a(f"v_and_b32 v{KFp+2*r+1}, 0xffff0000, v{T+r}")
        for r in range(8):
            a(f"v_lshlrev_b32 v{VFp+2*r}, 16, v{T+11+r}")
            a(f"v_and_b32 v{VFp+2*r+1}, 0xffff0000, v{T+11+r}")
        for t in range(8):
            a(f"v_pk_mul_f32 {p(RS+2*t)}, {p(KFp+2*t)}, {p(WPr+6)}")
        for jj in (2, 1, 0):
            for t in range(8):
                a(f"v_pk_fma_f32 {p(RS+2*t)}, {p(KFp+2*(t+3-jj))}, {p(WPr+2*jj)}, {p(RS+2*t)}")
        for t in range(8):
            a(f"v_pk_mul_f32 {p(RS+2*t)}, {p(RS+2*t)}, {p(VFp+2*t)}")
        for q in range(4):
            a(f"v_cvt_pk_bf16_f32 v{32+q}, v{RS+2*(7-2*q)}, v{RS+2*(6-2*q)}")
            a(f"v_cvt_pk_bf16_f32 v{36+q}, v{RS+2*(7-2*q)+1}, v{RS+2*(6-2*q)+1}")
        a(f"""
        ds_write_b128 v14, v[32:35]
        ds_write_b128 v14, v[36:39] offset:{CHB}
        """)
    a(f"""
    v_mov_b32 v5, 1
    s_waitcnt lgkmcnt(0)
    s_mov_b64 exec, 1
    ds_add_u32 v4, v5
    s_mov_b64 exec, -1
    v_and_b32 v12, 1, v1
    s_movk_i32 s52, {CS - 2}
    v_mul_lo_u32 v12, v12, s52
    v_and_b32 v14, 19, v1
    v_lshl_add_u32 v12, v14, 1, v12
    v_bfe_u32 v14, v1, 2, 1
    v_lshl_add_u32 v12, v14, 4, v12
    v_bfe_u32 v14, v1, 3, 1
    v_lshl_add_u32 v12, v14, 3, v12
    v_lshlrev_b32 v14, 4, v6
    v_sub_u32 v12, v12, v14
    s_add_u32 s53, s45, 16
    v_add_u32 v12, s53, v12
    s_movk_i32 s52, 1536
    v_mul_lo_u32 v13, v6, s52
    v_lshl_add_u32 v13, v7, 4, v13
    s_lshl_b32 s59, s42, 9
    s_add_u32 s53, s45, s59
    s_add_u32 s53, s53, {2*CS}
    v_add_u32 v8, s53, v13
    v_subrev_u32 v13, 64, v8
    s_lshl_b32 s55, s42, 2
    s_add_u32 s55, s55, 8
    """)
    ACC = 64
    for r in range(16): a(f"v_mov_b32 v{ACC+r}, 0")
    a.label(f"{N}_cw")
    a(f"""
    ds_read_b32 v5, v4
    s_waitcnt lgkmcnt(0)
    v_readfirstlane_b32 s52, v5
    s_cmp_ge_u32 s52, 4
    s_cbranch_scc1 {N}_cwd
    s_sleep 2
    s_branch {N}_cw
    """)
    a.label(f"{N}_cwd")
    if TWO:
        a(f"""
        buffer_store_dwordx4 v[152:155], v3, s[24:27], s33 offen sc1
        buffer_store_dwordx4 v[156:159], v3, s[24:27], s33 offen offset:1024 sc1
        """)
    a(f"""
    s_lshl_b32 s53, s2, 4
    s_lshl_b32 s54, s39, 2
    s_add_u32 s53, s53, s54
    s_add_u32 s53, s53, {hex(LY.FF)}
    """)
    publish(a, 53)
    a(f"""
    s_lshl_b32 s53, s37, 14
    s_lshl_b32 s54, s39, 12
    s_add_u32 s53, s53, s54
    s_mov_b32 s20, s6
    s_mov_b32 s21, s7
    s_mov_b32 s22, 0x80000
    v_lshlrev_b32 v80, 6, v1
    buffer_load_dword v81, v80, s[20:23], s53 offen
    """)
    BUF = (16, 84)
    ACC2 = 116
    def reads(buf, d0):
        for dd in range(2):
            for kp in range(2):
                b = BUF[buf] + 16 * dd + 8 * kp
                ao = 8 * (2 * (d0 + dd) - kp + 1)
                a(f"ds_read2_b32 v[{b}:{b+1}], v12 offset0:{ao} offset1:{ao+1}")
                a(f"ds_read2_b32 v[{b+2}:{b+3}], v12 offset0:{ao+2} offset1:{ao+3}")
                a(f"ds_read_b128 v[{b+4}:{b+7}], v13 offset:{kp * 3072 + (32 - d0 - dd) * 16 + 64}")
    def mfmas(buf, acc):
        for q in range(4):
            b = BUF[buf] + 8 * q
            mf(a, acc, b, b + 4, vr(acc, 16))
    def cloop(tag, acc):
        reads(0, 0)
        a.label(f"{N}_clp{tag}")
        a("s_waitcnt lgkmcnt(0)")
        reads(1, 2)
        mfmas(0, acc)
        a("s_waitcnt lgkmcnt(0)")
        reads(0, 4)
        mfmas(1, acc)
        a(f"""
        v_add_u32 v12, 256, v12
        v_subrev_u32 v13, 64, v13
        s_sub_u32 s55, s55, 1
        s_cmp_lg_u32 s55, 0
        s_cbranch_scc1 {N}_clp{tag}
        s_waitcnt lgkmcnt(0)
        """)
    for r in range(16): a(f"v_mov_b32 v{ACC2+r}, 0")
    cloop("a", ACC)
    a(f"""
    s_lshl_b32 s52, s41, 12
    s_add_u32 s52, s52, {XCH}
    v_add_u32 v9, s52, v3
    s_lshl_b32 s52, s41, 2
    v_add_u32 v10, s52, v4
    s_cmp_lg_u32 s42, 0
    s_cbranch_scc1 {N}_cj1
    v_add_u32 v12, {16*64}, v12
    v_add_u32 v13, 256, v13
    s_mov_b32 s55, 4
    """)
    cloop("b", ACC2)
    a.label(f"{N}_cpg")
    a(f"""
    ds_read_b32 v5, v4 offset:8
    s_waitcnt lgkmcnt(0)
    v_readfirstlane_b32 s52, v5
    s_cmp_ge_u32 s52, 8
    s_cbranch_scc1 {N}_cpd
    s_sleep 4
    s_branch {N}_cpg
    """)
    a.label(f"{N}_cpd")
    a("s_nop 7")
    for g in range(4): a(f"ds_write_b128 v9, v[{ACC2+4*g}:{ACC2+4*g+3}] offset:{g*1024}")
    a(f"""
    v_mov_b32 v5, 1
    s_waitcnt lgkmcnt(0)
    s_mov_b64 exec, 1
    ds_write_b32 v10, v5 offset:12
    s_mov_b64 exec, -1
    s_branch {N}_cjd
    """)
    a.label(f"{N}_cj1")
    a(f"""
    ds_read_b32 v5, v10 offset:12
    s_waitcnt lgkmcnt(0)
    v_readfirstlane_b32 s52, v5
    s_cmp_lg_u32 s52, 0
    s_cbranch_scc1 {N}_cj2
    s_sleep 1
    s_branch {N}_cj1
    """)
    a.label(f"{N}_cj2")
    for g in range(4): a(f"ds_read_b128 v[{ACC2+4*g}:{ACC2+4*g+3}], v9 offset:{g*1024}")
    a("s_waitcnt lgkmcnt(0)")
    for r in range(16): a(f"v_add_f32 v{ACC+r}, v{ACC+r}, v{ACC2+r}")
    a.label(f"{N}_cjd")
    a(f"""
    ds_read_b128 v[16:19], v8 offset:512
    ds_read_b128 v[20:23], v8 offset:{3072 + 512}
    s_lshl_b32 s60, s47, 16
    s_and_b32 s61, s47, 0xffff0000
    s_cmp_eq_u32 s41, 0
    s_cselect_b32 s60, s60, s61
    v_lshlrev_b32 v12, 4, v7
    v_lshl_add_u32 v12, v6, 10, v12
    s_lshl_b32 s59, s42, 9
    s_add_u32 s58, s59, s46
    s_add_u32 s58, s58, {hex(LY.YT)}
    s_lshl_b32 s59, s42, 11
    s_waitcnt lgkmcnt(0)
    """)
    for kp in range(2):
        for j in range(4):
            a(f"v_lshlrev_b32 v{24+8*kp+7-2*j}, 16, v{16+4*kp+j}")
            a(f"v_and_b32 v{24+8*kp+6-2*j}, 0xffff0000, v{16+4*kp+j}")
    for r in range(16): a(f"v_mul_f32 v{24+r}, s60, v{24+r}")
    for j in range(8):
        a(f"v_cvt_pk_bf16_f32 v{16+j}, v{ACC+2*j}, v{ACC+2*j+1}")
        a(f"v_cvt_pk_bf16_f32 v{40+j}, v{24+2*j}, v{24+2*j+1}")
    for j in range(8):
        a(f"v_lshlrev_b32 v{ACC+2*j}, 16, v{16+j}")
        a(f"v_and_b32 v{ACC+2*j+1}, 0xffff0000, v{16+j}")
        a(f"v_lshlrev_b32 v{24+2*j}, 16, v{40+j}")
        a(f"v_and_b32 v{24+2*j+1}, 0xffff0000, v{40+j}")
    for r in range(16): a(f"v_add_f32 v{ACC+r}, v{ACC+r}, v{24+r}")
    for j in range(8): a(f"v_cvt_pk_bf16_f32 v{16+j}, v{ACC+2*j}, v{ACC+2*j+1}")
    a(f"""
    buffer_store_dwordx4 v[16:19], v12, s[24:27], s58 offen sc1
    buffer_store_dwordx4 v[20:23], v12, s[24:27], s58 offen offset:2048 sc1
    s_lshl_b32 s68, s43, 2
    s_add_u32 s68, s68, s59
    s_add_u32 s68, s68, {hex(LY.FY)}
    """)
    stamp(a, 12)
    a(f"""
    s_cmp_lg_u32 s39, 0
    s_cbranch_scc1 {N}_nall
    s_mov_b32 s53, {hex(LY.FU)}
    """)
    if not TWO: flag_wait(a, 53, nload=4, wide=True, tag="x")
    a(f"s_mov_b32 s53, {hex(LY.FF)}")
    flag_wait(a, 53, nload=4, wide=True, tag="y")
    if not TWO:
        a(f"s_mov_b32 s53, {hex(LY.FQ)}")
        flag_wait(a, 53, nload=4, wide=True, tag="z")
    a.label(f"{N}_nall")
    a(f"""
    v_mov_b32 v5, 1
    s_mov_b64 exec, 1
    ds_add_u32 v4, v5
    s_mov_b64 exec, -1
    """)
    a.label(f"{N}_cw2")
    a(f"""
    ds_read_b32 v5, v4
    s_waitcnt lgkmcnt(0)
    v_readfirstlane_b32 s52, v5
    s_cmp_ge_u32 s52, 8
    s_cbranch_scc1 {N}_cw3
    s_sleep 1
    s_branch {N}_cw2
    """)
    a.label(f"{N}_cw3")
    a(f"""
    v_lshlrev_b32 v80, 7, v1
    s_mul_i32 s53, s37, 49152
    s_mul_i32 s54, s39, 12288
    s_add_u32 s53, s53, s54
    s_add_u32 s53, s53, {hex(LY.WP)}
    buffer_load_dword v81, v80, s[24:27], s53 offen
    s_add_u32 s53, s53, 4096
    buffer_load_dword v81, v80, s[24:27], s53 offen
    """)
    a.label(f"{N}_hend")
    wo_preload(a, "b")
    a(f"""
    s_setprio 0
    s_barrier
    s_barrier
    """)

def conv_loads(a):
    a(f"""
    s_load_dword s47, s[12:13], s44
    s_add_u32 s20, s16, s46
    s_addc_u32 s21, s17, 0
    s_movk_i32 s22, 0x1000
    s_mov_b32 s23, 0x00020000
    v_add_u32 v13, s48, v3
    """)
    if GATHER:
        srd(a, 32, 28, 0x200000)
        srd(a, 60, 30, 0x200000)
    HL = 48
    for it in range(2):
        for k in range(2):
            a(f"buffer_load_dwordx4 v[{HL+8*it+4*k}:{HL+8*it+4*k+3}], v13, s[20:23], 0 offen offset:{it*1024 + 4*k}")
    T = 16
    a(f"""
    buffer_load_dword v40, v5, s[20:23], 0 offen
    """)
    if GATHER:
        a(f"""
        s_mov_b32 s20, s10
        s_mov_b32 s21, s11
        s_lshl_b32 s50, s38, 4
        buffer_load_dwordx4 v[36:39], v5, s[20:23], s50 offen
        s_lshl_b32 s50, s39, 19
        s_add_u32 s50, s50, s44
        v_lshlrev_b32 v12, 13, v1
        v_add_u32 v12, s50, v12
        v_add_u32 v13, 0x1000, v12
        v_subrev_u32 v14, 0xc00, v12
        """)
    else:
        pass

def conv_u(a):
    if True:
        a(f"""
        s_lshl_b32 s50, s36, 9
        s_add_u32 s50, s50, {hex(LY.FU)}
        """)
        if not TWO: flag_wait(a, 50, nload=2, tag="u")
        a(f"""
        s_add_u32 s50, s46, s48
        s_add_u32 m0, s49, {2*CS + 512}
        s_add_u32 s57, s50, {hex(LY.UT)}
        buffer_load_dwordx4 v3, s[24:27], s57 offen sc1 lds
        s_add_u32 m0, s49, {2*CS + 512 + 1536}
        s_add_u32 s57, s50, {hex(LY.UT + 1024)}
        buffer_load_dwordx4 v3, s[24:27], s57 offen sc1 lds
        """)

def conv_gathers(a):
    T = 16
    if not GATHER:
        conv_u(a)
        if TWO:
            a.comment("packed copy of wqkv for layer 2: rows [32r,32r+32) of column tile c', tile f = cw (3 repeats 2)")
            a(f"""
            s_mov_b32 s20, s34
            s_mov_b32 s21, s35
            s_mov_b32 s22, 0x180000
            v_lshrrev_b32 v12, 2, v1
            s_movk_i32 s52, 3072
            v_mul_lo_u32 v12, v12, s52
            v_and_b32 v13, 3, v1
            v_lshl_add_u32 v12, v13, 4, v12
            s_lshr_b32 s52, s2, 4
            s_and_b32 s53, s2, 15
            s_min_u32 s56, s39, 2
            s_lshl_b32 s57, s56, 10
            s_lshl_b32 s58, s53, 6
            s_add_u32 s57, s57, s58
            s_mul_i32 s58, s52, {32*3072}
            s_add_u32 s57, s57, s58
            buffer_load_dwordx4 v[152:155], v12, s[20:23], s57 offen
            s_add_u32 s57, s57, {16*3072}
            buffer_load_dwordx4 v[156:159], v12, s[20:23], s57 offen
            s_mul_i32 s55, s53, {8*12288}
            s_lshr_b32 s58, s52, 1
            s_mul_i32 s58, s58, 12288
            s_add_u32 s55, s55, s58
            s_and_b32 s58, s52, 1
            s_lshl_b32 s58, s58, 11
            s_add_u32 s55, s55, s58
            s_lshl_b32 s56, s56, 12
            s_add_u32 s55, s55, s56
            s_add_u32 s33, s55, {hex(LY.WP)}
            """)
        prefill(a)
        return
    for r in range(3):
        a(f"buffer_load_dword v{T+r}, v14, s[32:35], 0 offen offset:{r*1024}")
    for r in range(8):
        a(f"buffer_load_dword v{T+3+r}, v{12 if r < 4 else 13}, s[32:35], 0 offen offset:{(r%4)*1024}")
    for r in range(8):
        a(f"buffer_load_dword v{T+11+r}, v{12 if r < 4 else 13}, s[60:63], 0 offen offset:{(r%4)*1024}")
    prefill(a)

def wo_preload(a, tag):
    a.label(f"{N}_wp{tag}")
    a(f"""
    ds_read_b32 v84, v4 offset:8
    s_waitcnt lgkmcnt(0)
    v_readfirstlane_b32 s52, v84
    s_cmp_ge_u32 s52, 8
    s_cbranch_scc1 {N}_wq{tag}
    s_sleep 8
    s_branch {N}_wp{tag}
    """)
    a.label(f"{N}_wq{tag}")
    a(f"""
    s_mov_b32 s20, s6
    s_mov_b32 s21, s7
    s_mov_b32 s22, 0x80000
    s_mov_b32 s23, 0x00020000
    v_bfe_u32 v84, v1, 2, 3
    v_lshlrev_b32 v84, 10, v84
    v_lshrrev_b32 v85, 5, v1
    v_lshl_add_u32 v84, v85, 6, v84
    v_and_b32 v85, 3, v1
    v_lshl_add_u32 v84, v85, 4, v84
    s_lshr_b32 s52, s37, 2
    s_lshl_b32 s52, s52, 7
    s_lshl_b32 s53, s39, 13
    s_add_u32 s52, s52, s53
    s_lshl_b32 s54, s39, 10
    """)
    for n in range(16):
        a(f"s_add_u32 m0, s54, {(n >> 2)*32768 + (n & 3)*4096}")
        a(f"s_add_u32 s53, s52, {n*32768}")
        a(f"buffer_load_dwordx4 v84, s[20:23], s53 offen lds")

def prefill(a):
    a(f"""
    v_mov_b32 v160, -1
    v_mov_b32 v161, -1
    v_mov_b32 v162, -1
    v_mov_b32 v163, -1
    s_lshl_b32 s58, s36, 2
    s_and_b32 s59, s37, 3
    s_add_u32 s58, s58, s59
    s_lshr_b32 s59, s37, 2
    s_lshl_b32 s50, {"s36" if LOCALO else "s59"}, 18
    s_lshl_b32 s64, s39, 16
    s_add_u32 s50, s50, s64
    s_lshl_b32 s64, {"s37" if LOCALO else "s58"}, 10
    s_add_u32 s50, s50, s64
    """)
    for L in (0, 1):
        for t in range(2):
            a(f"s_add_u32 s64, s50, {hex(LY.OF + L*LY.OFL + t*32768)}")
            a(f"buffer_store_dwordx4 v[160:163], v3, s[24:27], s64 offen sc1")
            if LOCALO:
                a(f"s_add_u32 s64, s64, {hex(LY.GD)}")
                a(f"buffer_store_dwordx4 v[160:163], v3, s[24:27], s64 offen sc1")
    a(f"""
    s_lshl_b32 s50, s58, 1
    s_add_u32 s50, s50, s42
    s_lshl_b32 s64, s50, 15
    s_lshl_b32 s66, s59, 12
    s_add_u32 s64, s64, s66
    s_lshl_b32 s66, s41, 11
    s_add_u32 s64, s64, s66
    s_add_u32 s64, s64, {hex(LY.X2F)}
    buffer_store_dwordx4 v[160:163], v3, s[24:27], s64 offen sc1
    buffer_store_dwordx4 v[160:163], v3, s[24:27], s64 offen offset:1024 sc1
    s_add_u32 s64, s64, {hex(LY.GD)}
    buffer_store_dwordx4 v[160:163], v3, s[24:27], s64 offen sc1
    buffer_store_dwordx4 v[160:163], v3, s[24:27], s64 offen offset:1024 sc1
    s_lshl_b32 s64, s50, 12
    s_lshl_b32 s66, s59, 9
    s_add_u32 s64, s64, s66
    s_lshl_b32 s66, s41, 8
    s_add_u32 s64, s64, s66
    s_add_u32 s64, s64, {hex(LY.ST2)}
    buffer_store_dword v160, v2, s[24:27], s64 offen sc1
    s_add_u32 s64, s64, {hex(LY.GD)}
    buffer_store_dword v160, v2, s[24:27], s64 offen sc1
    s_sub_u32 s64, s64, {hex(LY.GD + LY.ST2)}
    s_lshl_b32 s64, s64, 1
    s_add_u32 s64, s64, {hex(LY.GR)}
    s_mov_b64 exec, 0xffffffff
    buffer_store_dwordx4 v[160:163], v3, s[24:27], s64 offen
    s_add_u32 s64, s64, {hex(LY.GRL)}
    buffer_store_dwordx4 v[160:163], v3, s[24:27], s64 offen
    s_mov_b64 exec, -1
    s_lshl_b32 s50, s36, 1
    s_and_b32 s64, s37, 1
    s_add_u32 s50, s50, s64
    s_lshl_b32 s50, s50, 2
    s_add_u32 s50, s50, s39
    s_lshl_b32 s50, s50, 10
    s_lshr_b32 s64, s37, 1
    s_lshl_b32 s64, s64, 17
    s_add_u32 s50, s50, s64
    """)
    for base in (LY.QF, LY.KF, LY.VF):
        for h in range(2):
            a(f"s_add_u32 s64, s50, {hex(LY.QKVL + base + h*65536)}")
            a(f"buffer_store_dwordx4 v[160:163], v3, s[24:27], s64 offen sc1")

def oproj(a):
    a.comment("================= out-projection + gated layer =================")
    a.label(f"{N}_op")
    a(f"""
    s_lshl_b32 s41, s36, 2
    s_and_b32 s46, s37, 3
    s_add_u32 s41, s41, s46
    s_lshr_b32 s42, s37, 2
    s_cmp_lt_u32 s40, 4
    s_cbranch_scc1 {N}_opc
    s_cmp_lt_u32 s40, 8
    s_cbranch_scc1 {N}_opb
    """)
    a(f"""
    s_cmp_lg_u32 s3, 0
    s_cbranch_scc1 {N}_oph
    """)
    publish(a, 68)
    a.label(f"{N}_oph")
    a(f"""
    s_sub_u32 s53, s40, 8
    s_and_b32 s55, s53, 1
    s_lshl_b32 s55, s55, 15
    s_lshr_b32 s56, s53, 1
    s_lshl_b32 s56, s56, 14
    s_add_u32 s55, s55, s56
    s_lshl_b32 s56, s41, 16
    s_add_u32 s56, s56, s55
    s_mul_i32 s57, s3, {hex(LY.OFL)}
    s_add_u32 s56, s56, s57
    s_add_u32 s56, s56, {hex(LY.OF)}
    s_add_u32 s57, s56, 4096
    s_add_u32 s58, s56, 8192
    s_add_u32 s59, s56, 12288
    s_and_b32 s55, s53, 1
    s_lshl_b32 s55, s55, 16
    s_lshr_b32 s54, s53, 1
    s_lshl_b32 s54, s54, 15
    s_add_u32 s55, s55, s54
    s_add_u32 s55, s55, 16384
    v_add_u32 v6, s55, v3
    """)
    ou = [(lambda n=n: a(f"buffer_load_dwordx4 v[{16+4*n}:{19+4*n}], v7, s[24:27], s{56 + n // 4} offen offset:{(n % 4)*1024} sc1"),
           range(16 + 4*n, 20 + 4*n),
           lambda n=n: a(f"ds_write_b128 v6, v[{16+4*n}:{19+4*n}] offset:{n*1024}")) for n in range(16)]
    a("v_lshlrev_b32 v14, 10, v1")
    a("s_add_u32 s54, s56, 1020")
    stamp(a, 2)
    a("v_mov_b32 v7, v3")
    hint_wait(a, 14, "s54", 16, thr=THR_O, switch=[14, 7] if LOCALO else None)
    stamp(a, 3)
    for u in ou: u[0]()
    stamp(a, 4)
    checked_units(a, ou, wait=lambda: (a("s_waitcnt vmcnt(0)"), stamp(a, 5)), switch=[7] if LOCALO else None)
    if DIAGFIX(): a("s_sub_u32 s76, 0x8000, s69\ns_add_u32 s76, s76, s70")
    a(f"s_branch {N}_opj")
    a.label(f"{N}_opb")
    a(f"""
    s_cmp_lg_u32 s40, 4
    s_cbranch_scc1 {N}_opj
    """)
    a(f"""
    s_cmp_lg_u32 s3, 0
    s_cbranch_scc1 {N}_ygo
    s_lshr_b32 s53, s41, 4
    s_lshl_b32 s53, s53, 11
    s_lshl_b32 s55, s42, 8
    s_add_u32 s53, s53, s55
    s_add_u32 s53, s53, {hex(LY.FY)}
    """)
    flag_wait(a, 53, tag="w")
    a.label(f"{N}_ygo")
    a(f"""
    v_lshrrev_b32 v5, 3, v1
    v_lshlrev_b32 v5, 12, v5
    v_and_b32 v6, 3, v1
    v_lshl_add_u32 v5, v6, 10, v5
    v_bfe_u32 v6, v1, 2, 1
    v_lshl_add_u32 v5, v6, 4, v5
    s_lshl_b32 s55, s42, 18
    s_lshl_b32 s56, s41, 5
    s_add_u32 s55, s55, s56
    """)
    for n in range(8):
        a(f"s_mov_b32 m0, {YL + n*1024}")
        a(f"s_add_u32 s56, s55, {hex(LY.YT + n*32768)}")
        a(f"buffer_load_dwordx4 v5, s[24:27], s56 offen sc1 lds")
    a("s_waitcnt vmcnt(0)")
    a.label(f"{N}_opj")
    if DIAGFIX():
        stamp(a, 13)
        a(f"s_cmp_lg_u32 s3, {DIAGL}")
        a(f"s_cbranch_scc1 {N}_dg1")
        stamp_flush(a, 3, 14, 40, 14)
        a("s_mov_b64 exec, -1\nv_and_b32 v1, 63, v0\nv_lshlrev_b32 v2, 2, v1")
        a.label(f"{N}_dg1")
    a(f"""
    s_waitcnt lgkmcnt(0)
    s_barrier
    """)
    a.label(f"{N}_opw")
    a(f"""
    s_barrier
    s_cmp_lg_u32 s3, 0
    s_cbranch_scc1 {N}_done
    s_branch {N}_qkv
    """)
    a.label(f"{N}_opc")
    RES, YR, ACC, FR, T, RF, G = 16, 24, 32, 48, 80, 88, 104
    a(f"""
    s_and_b32 s46, s40, 1
    s_lshr_b32 s47, s40, 1
    s_lshl_b32 s43, s41, 1
    s_add_u32 s43, s43, s46
    v_and_b32 v7, 31, v1
    v_lshlrev_b32 v8, 4, v7
    v_lshlrev_b32 v7, 10, v7
    v_lshrrev_b32 v6, 5, v1
    v_lshl_add_u32 v7, v6, 4, v7
    s_lshl_b32 s58, s43, 15
    s_lshl_b32 s56, s42, 7
    s_add_u32 s58, s58, s56
    s_lshl_b32 s56, s47, 6
    s_add_u32 s58, s58, s56
    s_lshl_b32 s55, s43, 15
    s_lshl_b32 s56, s42, 12
    s_add_u32 s55, s55, s56
    s_lshl_b32 s56, s47, 11
    s_add_u32 s55, s55, s56
    s_add_u32 s55, s55, {hex(LY.X2F)}
    s_mov_b32 s22, 0x200000
    s_mov_b32 s23, 0x00020000
    s_cmp_lg_u32 s3, 0
    s_cbranch_scc1 {N}_opr1
    s_mov_b32 s20, s4
    s_mov_b32 s21, s5
    buffer_load_dwordx4 v[{RES}:{RES+3}], v7, s[20:23], s58 offen
    buffer_load_dwordx4 v[{RES+4}:{RES+7}], v7, s[20:23], s58 offen offset:32
    s_branch {N}_opr2
    """)
    a.label(f"{N}_opr1")
    a(f"""
    s_mov_b32 s20, s8
    s_mov_b32 s21, s9
    buffer_load_dwordx4 v[{RES}:{RES+3}], v3, s[24:27], s55 offen sc1
    buffer_load_dwordx4 v[{RES+4}:{RES+7}], v3, s[24:27], s55 offen offset:1024 sc1
    """)
    a.label(f"{N}_opr2")
    a(f"""
    v_bfe_u32 v10, v1, 2, 2
    v_lshlrev_b32 v5, 10, v6
    v_lshl_add_u32 v4, v10, 7, v5
    v_lshl_add_u32 v5, v10, 6, v5
    v_bfe_u32 v10, v1, 4, 1
    v_lshl_add_u32 v5, v10, 5, v5
    v_lshl_add_u32 v4, v10, 5, v4
    v_and_b32 v10, 3, v1
    v_lshl_add_u32 v4, v10, 3, v4
    v_and_b32 v10, 1, v1
    v_lshl_add_u32 v5, v10, 4, v5
    v_bfe_u32 v10, v1, 1, 1
    v_lshl_add_u32 v5, v10, 3, v5
    s_lshl_b32 s57, s47, 9
    v_add_u32 v5, s57, v5
    s_lshl_b32 s57, s47, 12
    s_lshl_b32 s56, s46, 6
    s_add_u32 s57, s57, s56
    s_add_u32 s57, s57, {YL}
    v_add_u32 v4, s57, v4
    s_lshl_b32 s57, s46, 16
    s_add_u32 s57, s57, 16384
    v_add_u32 v9, s57, v3
    v_add_u32 v11, 0x10000, v5
    s_mul_i32 s59, s3, {hex(LY.GRL)}
    s_lshl_b32 s60, s43, 13
    s_add_u32 s59, s59, s60
    s_add_u32 s59, s59, {hex(LY.GR)}
    s_lshl_b32 s60, s42, 10
    s_lshl_b32 s61, s47, 9
    s_add_u32 s60, s60, s61
    s_add_u32 s60, s60, s59
    s_add_u32 s61, s59, 4096
    s_mov_b32 s62, 0x3f803f80
    s_barrier
    """)
    stamp(a, 5)
    def rd(ks):
        b = FR + 8 * (ks & 3)
        a(f"ds_read_b128 v[{b}:{b+3}], v9 offset:{(ks >> 4)*32768 + (ks & 15)*1024}")
        wb, wo_ = (5 if ks < 16 else 11), ((ks >> 3) & 1)*32768 + (ks & 7)*2048
        a(f"ds_read_b64_tr_b16 v[{b+4}:{b+5}], v{wb} offset:{wo_}")
        a(f"ds_read_b64_tr_b16 v[{b+6}:{b+7}], v{wb} offset:{wo_ + 256}")
    for i in range(4): rd(i)
    for ks in range(32):
        a(f"s_waitcnt lgkmcnt({3*min(3, 31 - ks)})")
        b = FR + 8 * (ks & 3)
        mf(a, ACC, b + 4, b, "0" if ks == 0 else vr(ACC, 16))
        if ks + 4 < 32: rd(ks + 4)
    for q in range(4):
        a(f"ds_read_b64_tr_b16 v[{YR+2*q}:{YR+2*q+1}], v4 offset:{(q >> 1)*2048 + (q & 1)*512}")
    a("s_barrier")
    a("s_waitcnt vmcnt(0)")
    for j in range(8):
        a(f"v_lshlrev_b32 v{RF+2*j}, 16, v{RES+j}")
        a(f"v_and_b32 v{RF+2*j+1}, 0xffff0000, v{RES+j}")
    a(f"""
    v_mov_b32 v12, 0
    v_mov_b32 v14, 0
    """)
    stamp(a, 6)
    for j in range(8): a(f"v_cvt_pk_bf16_f32 v{T+j}, v{ACC+2*j}, v{ACC+2*j+1}")
    for j in range(8):
        a(f"v_lshlrev_b32 v{ACC+2*j}, 16, v{T+j}")
        a(f"v_and_b32 v{ACC+2*j+1}, 0xffff0000, v{T+j}")
    for j in range(8): a(f"v_pk_add_f32 {p(ACC+2*j)}, {p(ACC+2*j)}, {p(RF+2*j)}")
    for j in range(8): a(f"v_cvt_pk_bf16_f32 v{T+j}, v{ACC+2*j}, v{ACC+2*j+1}")
    for j in range(8):
        a(f"v_dot2c_f32_bf16 v12, s62, v{T+j}")
        a(f"v_dot2c_f32_bf16 v14, v{T+j}, v{T+j}")
    a(f"""
    s_nop 2
    v_mov_b32 v13, v12
    v_mov_b32 v15, v14
    s_nop 1
    v_permlane32_swap_b32 v12, v13
    v_permlane32_swap_b32 v14, v15
    s_nop 1
    v_add_f32 v12, v12, v13
    v_add_f32 v14, v14, v15
    v_mov_b32 v13, s65
    v_mov_b32 v15, s65
    s_mov_b64 exec, 0xffffffff
    buffer_store_dwordx4 v[12:15], v8, s[24:27], s60 offen
    s_add_u32 s66, s60, {hex(LY.GD)}
    buffer_store_dwordx4 v[12:15], v8, s[24:27], s66 offen sc1
    s_mov_b64 exec, -1
    s_mov_b32 s69, 0x8000
    v_mov_b32 v6, v3
    """)
    for j in range(8):
        a(f"v_lshlrev_b32 v{ACC+2*j}, 16, v{T+j}")
        a(f"v_and_b32 v{ACC+2*j+1}, 0xffff0000, v{T+j}")
    a("s_waitcnt lgkmcnt(0)")
    for j in range(8):
        a(f"v_lshlrev_b32 v{RF+2*j}, 16, v{YR+j}")
        a(f"v_and_b32 v{RF+2*j+1}, 0xffff0000, v{YR+j}")
    a.label(f"{N}_gp")
    for i in range(8):
        a(f"buffer_load_dwordx4 v[{G+4*i}:{G+4*i+3}], v6, s[24:27], s{59 if i < 4 else 61} offen offset:{(i%4)*1024} sc1")
    a("s_waitcnt vmcnt(0)")
    tags = [G + 4*i + k for i in range(8) for k in (1, 3)]
    a(f"v_min3_u32 v10, v{tags[0]}, v{tags[1]}, v{tags[2]}")
    a(f"v_max3_u32 v11, v{tags[0]}, v{tags[1]}, v{tags[2]}")
    for q in range(3, 15, 2):
        a(f"v_min3_u32 v10, v10, v{tags[q]}, v{tags[q+1]}")
        a(f"v_max3_u32 v11, v11, v{tags[q]}, v{tags[q+1]}")
    a(f"""
    v_min_u32 v10, v10, v{tags[15]}
    v_max_u32 v11, v11, v{tags[15]}
    v_xor_b32 v10, s65, v10
    v_xor_b32 v11, s65, v11
    v_or_b32 v10, v10, v11
    v_cmp_eq_u32 vcc, 0, v10
    s_sub_u32 s69, s69, 1
    s_cbranch_scc1 {N}_gpo
    s_cmp_eq_u64 vcc, -1
    s_cbranch_scc1 {N}_gpo
    """)
    switch_copy(a, f"{N}_gp", [6])
    a(f"""
    s_sleep {GSLEEP}
    s_branch {N}_gp
    """)
    a.label(f"{N}_gpo")
    stamp(a, 7)
    for i in range(1, 8):
        a(f"v_add_f32 v{G}, v{G}, v{G+4*i}")
        a(f"v_add_f32 v{G+2}, v{G+2}, v{G+4*i+2}")
    a(f"""
    v_mov_b32 v{G+1}, v{G}
    v_mov_b32 v{G+3}, v{G+2}
    s_mov_b32 s56, {f32hex(1.0/512)}
    s_nop 0
    v_permlane32_swap_b32 v{G}, v{G+1}
    v_permlane32_swap_b32 v{G+2}, v{G+3}
    s_nop 1
    v_add_f32 v10, v{G}, v{G+1}
    v_add_f32 v11, v{G+2}, v{G+3}
    """)
    ln_stats(a, 10, 11, 12, 14, 13)
    a(f"""
    v_mov_b32 v13, v12
    v_mov_b32 v15, v14
    """)
    for j in range(8): a(f"v_pk_fma_f32 {p(FR+2*j)}, {p(ACC+2*j)}, v[12:13], v[14:15]")
    for j in range(8): a(f"v_pk_fma_f32 {p(FR+2*j)}, {p(FR+2*j)}, {p(RF+2*j)}, {p(ACC+2*j)}")
    for j in range(8): a(f"v_cvt_pk_bf16_f32 v{T+j}, v{FR+2*j}, v{FR+2*j+1}")
    a(f"""
    s_cmp_eq_u32 s3, 0
    s_cbranch_scc1 {N}_ops0
    buffer_store_dwordx4 v[{T}:{T+3}], v7, s[20:23], s58 offen
    buffer_store_dwordx4 v[{T+4}:{T+7}], v7, s[20:23], s58 offen offset:32
    """)
    stamp(a, 13)
    stamp_flush(a, 1, 14, 40, 14)
    a("s_endpgm")
    a.label(f"{N}_ops0")
    SX = "" if FAST else "sc1"
    sanitize(a, range(T, T + 8))
    a(f"""
    buffer_store_dwordx4 v[{T}:{T+3}], v3, s[24:27], s55 offen {SX}
    buffer_store_dwordx4 v[{T+4}:{T+7}], v3, s[24:27], s55 offen offset:1024 {SX}
    s_add_u32 s55, s55, {hex(LY.GD)}
    v_mov_b32 v10, 0
    v_mov_b32 v11, 0
    """)
    for j in range(8):
        a(f"v_dot2c_f32_bf16 v10, s62, v{T+j}")
        a(f"v_dot2c_f32_bf16 v11, v{T+j}, v{T+j}")
    a(f"""
    v_lshrrev_b32 v8, 1, v8
    s_sub_u32 s60, s60, {hex(LY.GR)}
    s_lshr_b32 s61, s60, 1
    s_add_u32 s61, s61, {hex(LY.ST2)}
    v_mov_b32 v12, v10
    v_mov_b32 v13, v11
    s_lshr_b32 s60, s60, 7
    s_add_u32 s60, s60, {hex(LY.FX)}
    v_permlane32_swap_b32 v10, v12
    v_permlane32_swap_b32 v11, v13
    s_nop 0
    v_add_f32 v10, v10, v12
    v_add_f32 v11, v11, v13
    v_min_u32 v10, s67, v10
    v_min_u32 v11, s67, v11
    s_mov_b64 exec, 0xffffffff
    buffer_store_dwordx2 v[10:11], v8, s[24:27], s61 offen
    s_add_u32 s61, s61, {hex(LY.GD)}
    buffer_store_dwordx2 v[10:11], v8, s[24:27], s61 offen sc1
    s_mov_b64 exec, -1
    buffer_store_dwordx4 v[{T}:{T+3}], v3, s[24:27], s55 offen sc1
    buffer_store_dwordx4 v[{T+4}:{T+7}], v3, s[24:27], s55 offen offset:1024 sc1
    """)
    stamp(a, 8)

def qkv(a):
    a.comment("================= layer-2 QKV projection =================")
    a.label(f"{N}_qkv")
    SC = 98304
    a(f"""
    s_lshl_b32 s41, s36, 1
    s_and_b32 s46, s37, 1
    s_add_u32 s41, s41, s46
    s_lshr_b32 s42, s37, 1
    s_and_b32 s39, s40, 3
    s_lshl_b32 s43, s41, 2
    s_add_u32 s43, s43, s39
    s_cmp_lt_u32 s40, 4
    s_cbranch_scc1 {N}_qc
    s_cmp_lt_u32 s40, 8
    s_cbranch_scc1 {N}_qb
    s_lshl_b32 s53, s39, 10
    s_mul_i32 s52, s42, 98304
    s_add_u32 s52, s52, s53
    s_add_u32 s52, s52, {hex(LY.WP)}
    """)
    for m in range(24):
        a(f"s_add_u32 m0, s53, {m*4096}")
        a(f"s_add_u32 s51, s52, {m*4096}")
        a(f"buffer_load_dwordx4 v3, s[24:27], s51 offen sc1 lds")
        if m >= WDEPTH - 1: a(f"s_waitcnt vmcnt({WDEPTH - 1})")
    a(f"""
    s_waitcnt vmcnt(0)
    s_barrier
    s_branch {N}_qw
    """)
    a.label(f"{N}_qb")
    a(f"""
    v_lshlrev_b32 v7, 3, v1
    s_lshl_b32 s52, s43, 12
    s_add_u32 s52, s52, {hex(LY.ST2)}
    s_min_u32 s53, s39, 2
    s_lshl_b32 s51, s53, 11
    s_lshl_b32 s54, s42, 7
    s_add_u32 s51, s51, s54
    s_add_u32 s51, s51, {hex(LY.CSB)}
    v_and_b32 v4, 31, v1
    v_lshlrev_b32 v4, 2, v4
    buffer_load_dword v32, v4, s[24:27], s51 offen sc1
    s_lshl_b32 s53, s53, 7
    s_add_u32 s53, s53, {SC + 2048}
    v_add_u32 v5, s53, v4
    s_lshl_b32 s53, s39, 9
    s_add_u32 s53, s53, {SC}
    v_add_u32 v4, s53, v4
    """)
    a("s_mov_b32 s69, 0x8000")
    a.label(f"{N}_stp")
    for i2 in range(8):
        a(f"buffer_load_dwordx2 v[{16+2*i2}:{17+2*i2}], v7, s[24:27], s52 offen offset:{512*i2} sc1")
    a("s_waitcnt vmcnt(0)")
    maxchain(a, 15, range(16, 32))
    a(f"""
    v_cmp_eq_u32 vcc, -1, v15
    s_cmp_eq_u64 vcc, 0
    s_cbranch_scc1 {N}_std
    s_sub_u32 s69, s69, 1
    s_cbranch_scc1 {N}_std
    """)
    switch_copy(a, f"{N}_stp", [7])
    a(f"""
    s_sleep 1
    s_branch {N}_stp
    """)
    a.label(f"{N}_std")
    a(f"""
    s_lshl_b32 s58, s39, 2
    s_add_u32 s58, s58, {FLAG + 32}
    v_mov_b32 v6, s58
    v_or_b32 v8, 1, v7
    s_mov_b64 exec, 1
    ds_write_b32 v6, v8
    s_mov_b64 exec, -1
    """)
    for i2 in range(1, 8):
        a(f"v_add_f32 v16, v16, v{16+2*i2}")
        a(f"v_add_f32 v17, v17, v{17+2*i2}")
    a(f"""
    v_mov_b32 v18, v16
    v_mov_b32 v19, v17
    s_mov_b32 s56, {f32hex(1.0/512)}
    s_nop 0
    v_permlane32_swap_b32 v16, v18
    v_permlane32_swap_b32 v17, v19
    s_nop 0
    v_add_f32 v16, v16, v18
    v_add_f32 v17, v17, v19
    """)
    ln_stats(a, 16, 17, 17, 16, 18)
    a(f"""
    ds_write_b32 v4, v17
    ds_write_b32 v4, v16 offset:128
    ds_write_b32 v5, v32
    s_waitcnt lgkmcnt(0)
    s_barrier
    """)
    a.label(f"{N}_qw")
    a("s_barrier")
    a.label(f"{N}_qw2")
    a(f"""
    s_barrier
    s_branch {N}_qend
    """)
    a.label(f"{N}_qc")
    XR, ACC, WFR, TQ, TV, PK = 20, 84, 132, 20, 52, 132
    a(f"""
    s_lshl_b32 s49, s43, 15
    s_add_u32 s49, s49, {hex(LY.X2F)}
    """)
    for g in range(8): a(f"s_add_u32 s{58+g if g < 6 else 46+g}, s49, {g*4096}")
    def xl(ks):
        g = ks // 4
        r = XR + 4 * (ks & 15)
        a(f"buffer_load_dwordx4 v[{r}:{r+3}], v16, s[24:27], s{58+g if g < 6 else 46+g} offen offset:{(ks % 4)*1024} sc1")
    xu = [(lambda i=i: (xl(2*i), xl(2*i + 1)), range(XR + 8*i, XR + 8*i + 8), None) for i in range(8)]
    a(f"""
    s_lshl_b32 s50, s40, 2
    s_add_u32 s50, s50, {FLAG + 32}
    v_mov_b32 v14, s50
    """)
    a.label(f"{N}_xw")
    a(f"""
    ds_read_b32 v16, v14
    s_waitcnt lgkmcnt(0)
    v_readfirstlane_b32 s50, v16
    s_cmp_lg_u32 s50, 0
    s_cbranch_scc0 {N}_xw
    s_and_b32 s50, s50, {hex(LY.GD)}
    v_or_b32 v16, s50, v3
    """)
    stamp(a, 1)
    for u in xu: u[0]()
    stamp(a, 2)
    a(f"""
    v_lshrrev_b32 v6, 5, v1
    v_and_b32 v4, 31, v1
    v_lshlrev_b32 v18, 9, v6
    v_bfe_u32 v19, v1, 2, 2
    v_lshl_add_u32 v18, v19, 6, v18
    v_bfe_u32 v19, v1, 4, 1
    v_lshl_add_u32 v18, v19, 5, v18
    v_and_b32 v19, 3, v1
    v_lshl_add_u32 v18, v19, 3, v18
    v_add_u32 v19, 49152, v18
    s_lshl_b32 s50, s40, 9
    s_add_u32 s50, s50, {SC}
    v_lshl_add_u32 v12, v4, 2, s50
    v_lshl_add_u32 v11, v6, 4, s50
    v_lshlrev_b32 v13, 4, v6
    v_add_u32 v13, {SC}, v13
    v_lshlrev_b32 v5, 2, v4
    v_add_u32 v5, {SC}, v5
    s_lshl_b32 s57, s42, 17
    s_lshl_b32 s51, s43, 10
    s_add_u32 s57, s57, s51
    s_add_u32 s57, s57, {hex(LY.QKVL)}
    v_and_b32 v10, 3, v1
    v_bfe_u32 v9, v1, 2, 1
    v_lshl_or_b32 v10, v9, 3, v10
    v_bfe_u32 v9, v1, 3, 1
    v_lshl_or_b32 v10, v9, 2, v10
    v_lshlrev_b32 v10, 4, v10
    v_lshl_or_b32 v10, v6, 8, v10
    v_bfe_u32 v9, v1, 4, 1
    v_lshl_or_b32 v10, v9, 16, v10
    s_barrier
    """)
    def wread(ks, fs=(0, 1, 2)):
        j, kk = ks // 4, ks % 4
        b = WFR + 12 * (ks % 3)
        for f in fs:
            for q in range(2):
                off = (j & 3) * 12288 + f*4096 + kk*1024 + q*256
                a(f"ds_read_b64_tr_b16 v[{b+4*f+2*q}:{b+4*f+2*q+1}], v{18 + (j >> 2)} offset:{off}")
    stamp(a, 3)
    wread(0); wread(1)
    for ks in range(32):
        def gcheck(k0, w):
            checked(a, lambda: [xl(k2) for k2 in range(k0, k0 + 4)], range(XR + 4*(k0 & 15), XR + 4*(k0 & 15) + 16),
                    first_wait=w, switch=[16])
        if ks == 0:
            gcheck(0, 12)
            stamp(a, 9)
        a(f"s_waitcnt lgkmcnt({6 if ks < 31 else 0})")
        if ks == 30:
            a("s_barrier")
        b = WFR + 12 * (ks % 3)
        x = vr(XR + 4*(ks & 15), 4)
        for f in range(3):
            acc = vr(ACC + 16*f, 16)
            c = "0" if ks == 0 else acc
            w = vr(b + 4*f, 4)
            if f < 2: a(f"v_mfma_f32_32x32x16_bf16 {acc}, {w}, {x}, {c}")
            else:     a(f"v_mfma_f32_32x32x16_bf16 {acc}, {x}, {w}, {c}")
            if ks + 2 < 32: wread(ks + 2, (f,))
        if ks % 4 == 3 and ks < 31: gcheck(ks + 1, min(11, 27 - ks))
        if ks < 16: xl(ks + 16)
        if ks == 30:
            a("ds_read_b32 v16, v12")
            a("ds_read_b32 v17, v12 offset:128")
            a("ds_read_b32 v14, v5 offset:2304")
            for g in range(4):
                a(f"ds_read_b128 v[{TQ+4*g}:{TQ+4*g+3}], v13 offset:{2048 + 32*g}")
    stamp(a, 10)
    for g in range(4):
        a(f"ds_read_b128 v[{TQ+16+4*g}:{TQ+16+4*g+3}], v13 offset:{2176 + 32*g}")
        a(f"ds_read_b128 v[{TV+4*g}:{TV+4*g+3}], v11 offset:{32*g}")
        a(f"ds_read_b128 v[{TV+16+4*g}:{TV+16+4*g+3}], v11 offset:{128 + 32*g}")
    a(f"""
    s_mov_b32 s56, {f32hex(LY.QSCALE)}
    v_mul_f32 v6, s56, v16
    v_mul_f32 v8, s56, v17
    v_mov_b32 v7, v6
    v_mov_b32 v9, v8
    v_mov_b32 v18, v17
    v_mov_b32 v19, v17
    v_mov_b32 v17, v16
    v_mov_b32 v15, v14
    """)
    def qk(f, rs, mr):
        for j in range(8): a(f"v_pk_mul_f32 {p(ACC+16*f+2*j)}, {p(ACC+16*f+2*j)}, {p(rs)}")
        for j in range(8): a(f"v_pk_fma_f32 {p(ACC+16*f+2*j)}, {p(TQ+16*f+2*j)}, {p(mr)}, {p(ACC+16*f+2*j)}")
        for j in range(8): a(f"v_cvt_pk_bf16_f32 v{PK+8*f+j}, v{ACC+16*f+2*j}, v{ACC+16*f+2*j+1}")
        sanitize(a, range(PK + 8*f, PK + 8*f + 8))
        base = LY.QF if f == 0 else LY.KF
        a(f"s_add_u32 s58, s57, {hex(base)}")
        a(f"buffer_store_dwordx4 v[{PK+8*f}:{PK+8*f+3}], v3, s[24:27], s58 offen sc1")
        a(f"s_add_u32 s58, s57, {hex(base + 65536)}")
        a(f"buffer_store_dwordx4 v[{PK+8*f+4}:{PK+8*f+7}], v3, s[24:27], s58 offen sc1")
    a("s_waitcnt lgkmcnt(0)")
    a("s_barrier")
    qk(1, 16, 18)
    for j in range(8): a(f"v_pk_mul_f32 {p(ACC+32+2*j)}, {p(ACC+32+2*j)}, {p(TV+2*j)}")
    for j in range(8): a(f"v_pk_fma_f32 {p(ACC+32+2*j)}, {p(TV+16+2*j)}, v[14:15], {p(ACC+32+2*j)}")
    for j in range(8): a(f"v_cvt_pk_bf16_f32 v{PK+16+j}, v{ACC+32+2*j}, v{ACC+32+2*j+1}")
    sanitize(a, range(PK + 16, PK + 24))
    a(f"""
    s_add_u32 s58, s57, {hex(LY.VF)}
    buffer_store_dwordx4 v[{PK+16}:{PK+19}], v10, s[24:27], s58 offen sc1
    buffer_store_dwordx4 v[{PK+20}:{PK+23}], v10, s[24:27], s58 offen offset:512 sc1
    """)
    qk(0, 6, 8)
    stamp(a, 11)
    stamp_flush(a, 2, 12, 40, 14)
    if DIAGFIX(): a("s_mov_b64 exec, -1\nv_and_b32 v1, 63, v0\nv_lshlrev_b32 v2, 2, v1")
    a.label(f"{N}_qend")


NSLOT, SLOT, LA = 5, 28672, 3
SC1 = NSLOT * SLOT
EPL = FLAG + 48

def qkv1(a):
    a.comment("================= layer-1 QKV projection =================")
    a(f"""
    s_and_b32 s41, s36, 3
    s_lshl_b32 s41, s41, 2
    s_and_b32 s46, s37, 3
    s_add_u32 s41, s41, s46
    s_lshr_b32 s42, s36, 2
    s_lshl_b32 s42, s42, 3
    s_lshr_b32 s46, s37, 2
    s_add_u32 s42, s42, s46
    s_and_b32 s39, s40, 3
    s_lshl_b32 s43, s41, 2
    s_add_u32 s43, s43, s39
    s_lshl_b32 s49, s43, 15
    v_lshrrev_b32 v6, 5, v1
    v_and_b32 v4, 31, v1
    """)
    srd(a, 32, 4, 0x200000)
    srd(a, 20, 6, 0x180000)
    a(f"""
    s_cmp_ge_u32 s40, 4
    s_cbranch_scc1 {N}_p_nc
    """)
    a(f"""
    s_and_b32 s51, s42, 7
    s_lshl_b32 s51, s51, 7
    s_add_u32 s51, s51, s49
    v_lshlrev_b32 v10, 10, v4
    buffer_load_dword v160, v10, s[32:35], s51 offen
    s_and_b32 s53, s41, 3
    s_lshl_b32 s53, s53, 1
    s_and_b32 s54, s42, 1
    s_add_u32 s53, s53, s54
    s_mul_i32 s53, s53, 3072
    s_lshl_b32 s54, s42, 6
    s_add_u32 s53, s53, s54
    s_min_u32 s54, s40, 2
    s_lshl_b32 s54, s54, 10
    s_add_u32 s53, s53, s54
    s_movk_i32 s54, {8*3072}
    v_mul_lo_u32 v10, v1, s54
    buffer_load_dword v161, v10, s[20:23], s53 offen
    """)
    a.label(f"{N}_p_nc")
    a(f"""
    s_cmp_lt_u32 s40, 4
    s_cbranch_scc1 {N}_p_ad
    s_cmp_lt_u32 s40, 8
    s_cbranch_scc1 {N}_p_ld
    """)
    a.label(f"{N}_p_ad")
    a(f"""
    v_lshlrev_b32 v21, 9, v6
    v_bfe_u32 v22, v1, 2, 2
    v_lshl_add_u32 v21, v22, 6, v21
    v_bfe_u32 v22, v1, 4, 1
    v_lshl_add_u32 v21, v22, 5, v21
    v_and_b32 v22, 3, v1
    v_lshl_add_u32 v21, v22, 3, v21
    v_add_u32 v22, {2*SLOT}, v21
    v_add_u32 v23, {4*SLOT}, v21
    s_lshl_b32 s56, s39, 12
    s_add_u32 s56, s56, 12288
    v_bfe_u32 v13, v1, 1, 3
    v_xor_b32 v13, v13, v6
    v_lshlrev_b32 v13, 4, v13
    v_lshl_add_u32 v13, v4, 7, v13
    v_add_u32 v13, s56, v13
    """)
    for kk in range(4):
        a(f"v_xor_b32 v{56+kk}, {kk << 5}, v13")
        a(f"v_add_u32 v{60+kk}, {2*SLOT}, v{56+kk}")
        a(f"v_add_u32 v{16+kk}, {4*SLOT}, v{56+kk}")
    a(f"""
    s_lshl_b32 s50, s39, 9
    s_add_u32 s50, s50, {SC1}
    v_lshl_add_u32 v12, v4, 2, s50
    v_lshlrev_b32 v5, 2, v4
    v_add_u32 v5, {SC1}, v5
    v_mov_b32 v7, {EPL}
    s_cmp_ge_u32 s40, 8
    s_cbranch_scc1 {N}_p_st
    """)
    XR, ACC, WFR, TQ, TV, PK = (24, 40), 64, 112, 24, 112, 144
    def xread(j, dst):
        sl = j % NSLOT
        for kk in range(4):
            a(f"ds_read_b128 v[{dst+4*kk}:{dst+4*kk+3}], v{(56, 60, 16)[sl // 2] + kk} offset:{(sl & 1) * SLOT}")
    def wread(ks, fs=(0, 1, 2)):
        j, kk = ks // 4, ks % 4
        sl = j % NSLOT
        b = WFR + 12 * (ks % 3)
        for f in fs:
            for q in range(2):
                a(f"ds_read_b64_tr_b16 v[{b+4*f+2*q}:{b+4*f+2*q+1}], v{21 + sl // 2} offset:{(sl & 1) * SLOT + f*4096 + kk*1024 + q*256}")
    a(f"""
    v_lshl_add_u32 v11, v6, 4, s50
    v_lshlrev_b32 v13, 4, v6
    v_add_u32 v13, {SC1}, v13
    s_lshl_b32 s57, s42, 17
    s_lshl_b32 s58, s43, 10
    s_add_u32 s57, s57, s58
    v_and_b32 v10, 3, v1
    v_bfe_u32 v9, v1, 2, 1
    v_lshl_or_b32 v10, v9, 3, v10
    v_bfe_u32 v9, v1, 3, 1
    v_lshl_or_b32 v10, v9, 2, v10
    v_lshlrev_b32 v10, 4, v10
    v_lshl_or_b32 v10, v6, 8, v10
    v_bfe_u32 v9, v1, 4, 1
    v_lshl_or_b32 v10, v9, 16, v10
    s_lshl_b32 s59, s42, 8
    s_lshl_b32 s60, s43, 2
    s_add_u32 s59, s59, s60
    s_add_u32 s59, s59, {hex(LY.FQ)}
    s_barrier
    """)
    stamp(a, 9)
    xread(0, XR[0]); wread(0)
    for ks in range(32):
        j, kk = ks // 4, ks % 4
        later = []
        if kk == 0:
            a("s_waitcnt lgkmcnt(0)")
            wread(ks + 1)
            later = [ks + 2]
        elif kk == 1:
            a("s_waitcnt lgkmcnt(6)")
            later = [ks + 2]
        elif kk == 2:
            a("s_waitcnt lgkmcnt(6)")
        else:
            a("s_waitcnt lgkmcnt(0)")
            if j < 7:
                a("s_barrier")
                xread(j + 1, XR[(j + 1) & 1])
                later = [ks + 1]
        b = WFR + 12 * (ks % 3)
        x = vr(XR[j & 1] + 4*kk, 4)
        for f in range(3):
            acc = vr(ACC + 16*f, 16)
            c = "0" if ks == 0 else acc
            w = vr(b + 4*f, 4)
            if f < 2: a(f"v_mfma_f32_32x32x16_bf16 {acc}, {w}, {x}, {c}")
            else:     a(f"v_mfma_f32_32x32x16_bf16 {acc}, {x}, {w}, {c}")
            for k2 in later: wread(k2, (f,))
    stamp(a, 10)
    a(f"""
    s_waitcnt vmcnt(0)
    s_barrier
    ds_read_b32 v16, v12
    ds_read_b32 v17, v12 offset:128
    ds_read_b32 v14, v5 offset:2304
    ds_read_b32 v15, v7
    """)
    for g in range(4):
        a(f"ds_read_b128 v[{TQ+16+4*g}:{TQ+16+4*g+3}], v13 offset:{2176 + 32*g}")
    for g in range(4):
        a(f"ds_read_b128 v[{TV+4*g}:{TV+4*g+3}], v11 offset:{32*g}")
    a("s_waitcnt lgkmcnt(8)")
    for g in range(4):
        a(f"ds_read_b128 v[{TV+16+4*g}:{TV+16+4*g+3}], v11 offset:{128 + 32*g}")
    a(f"""
    v_readfirstlane_b32 s65, v15
    s_mov_b32 s56, {f32hex(LY.QSCALE)}
    v_mul_f32 v6, s56, v16
    v_mul_f32 v8, s56, v17
    s_waitcnt lgkmcnt(8)
    """)
    for g in range(4):
        a(f"ds_read_b128 v[{TQ+4*g}:{TQ+4*g+3}], v13 offset:{2048 + 32*g}")
    a(f"""
    v_mov_b32 v7, v6
    v_mov_b32 v9, v8
    v_mov_b32 v18, v17
    v_mov_b32 v19, v17
    v_mov_b32 v17, v16
    v_mov_b32 v15, v14
    """)
    def qk(f, rs, mr):
        for j in range(8): a(f"v_pk_mul_f32 {p(ACC+16*f+2*j)}, {p(ACC+16*f+2*j)}, {p(rs)}")
        for j in range(8): a(f"v_pk_fma_f32 {p(ACC+16*f+2*j)}, {p(TQ+16*f+2*j)}, {p(mr)}, {p(ACC+16*f+2*j)}")
        for j in range(8): a(f"v_cvt_pk_bf16_f32 v{PK+8*f+j}, v{ACC+16*f+2*j}, v{ACC+16*f+2*j+1}")
        sanitize(a, range(PK + 8*f, PK + 8*f + 8))
        base = LY.QF if f == 0 else LY.KF
        a(f"s_add_u32 s58, s57, {hex(base)}")
        a(f"buffer_store_dwordx4 v[{PK+8*f}:{PK+8*f+3}], v3, s[24:27], s58 offen sc1")
        a(f"s_add_u32 s58, s57, {hex(base + 65536)}")
        a(f"buffer_store_dwordx4 v[{PK+8*f+4}:{PK+8*f+7}], v3, s[24:27], s58 offen sc1")
    qk(1, 16, 18)
    a("s_waitcnt lgkmcnt(0)")
    a("s_barrier")
    for j in range(8): a(f"v_pk_mul_f32 {p(ACC+32+2*j)}, {p(ACC+32+2*j)}, {p(TV+2*j)}")
    for j in range(8): a(f"v_pk_fma_f32 {p(ACC+32+2*j)}, {p(TV+16+2*j)}, v[14:15], {p(ACC+32+2*j)}")
    for j in range(8): a(f"v_cvt_pk_bf16_f32 v{PK+16+j}, v{ACC+32+2*j}, v{ACC+32+2*j+1}")
    sanitize(a, range(PK + 16, PK + 24))
    a(f"""
    s_add_u32 s58, s57, {hex(LY.VF)}
    buffer_store_dwordx4 v[{PK+16}:{PK+19}], v10, s[24:27], s58 offen sc1
    buffer_store_dwordx4 v[{PK+20}:{PK+23}], v10, s[24:27], s58 offen offset:512 sc1
    """)
    qk(0, 6, 8)
    publish(a, 59)
    stamp(a, 11)
    stamp_flush(a, 0, 12, 40, 14)
    if DIAGFIX(): a("s_mov_b64 exec, -1\nv_and_b32 v1, 63, v0\nv_lshlrev_b32 v2, 2, v1")
    a(f"s_branch {N}_p_end")

    a.label(f"{N}_p_st")
    a(f"""
    s_load_dwordx2 s[60:61], s[0:1], 80
    s_mov_b32 s55, 0x3f803f80
    s_min_u32 s51, s39, 2
    s_lshl_b32 s51, s51, 12
    v_add_u32 v21, s51, v21
    v_add_u32 v22, s51, v22
    v_add_u32 v23, s51, v23
    v_mov_b32 v8, 0
    v_mov_b32 v9, 0
    v_mov_b32 v10, 0
    v_mov_b32 v11, 0
    v_mov_b32 v13, 0
    v_mov_b32 v14, 0
    s_mov_b32 s62, 256
    s_mov_b32 s63, 0x00020000
    s_mov_b32 s53, {hex(LY.EP)}
    s_waitcnt lgkmcnt(0)
    s_or_b32 s51, s2, s39
    s_cmp_lg_u32 s51, 0
    s_cbranch_scc1 {N}_p_ne
    """)
    a(f"""
    buffer_load_dword v15, v14, s[24:27], s53 offen sc1
    s_waitcnt vmcnt(0)
    v_add_u32 v15, 2, v15
    v_max_u32 v15, 2, v15
    v_subrev_u32 v15, 1, v15
    s_mov_b64 exec, 1
    buffer_store_dword v15, v14, s[24:27], s53 offen sc1
    s_waitcnt vmcnt(0)
    buffer_store_dword v15, v14, s[60:63], 0 offen sc1
    s_mov_b64 exec, -1
    """)
    a.label(f"{N}_p_ne")
    for j in range(8):
        if j == 4:
            a(f"""
            s_cmp_lg_u32 s39, 0
            s_cbranch_scc1 {N}_p_e2
            s_mov_b32 s69, 0x10000
            """)
            a.label(f"{N}_p_e1")
            a(f"""
            buffer_load_dword v15, v14, s[60:63], 0 offen sc1
            s_waitcnt vmcnt(0)
            v_readfirstlane_b32 s65, v15
            s_sub_u32 s69, s69, 1
            s_cbranch_scc1 {N}_p_e3
            s_cmp_eq_u32 s65, 0
            s_cbranch_scc1 {N}_p_e1
            """)
            a.label(f"{N}_p_e3")
            a("ds_write_b32 v7, v15")
            a.label(f"{N}_p_e2")
        a("s_barrier")
        sl = j % NSLOT
        xread(j, 24)
        for kk in range(4):
            for q in range(2):
                a(f"ds_read_b64_tr_b16 v[{40+4*kk+2*q}:{41+4*kk+2*q}], v{21 + sl // 2} offset:{(sl & 1) * SLOT + kk*1024 + q*256}")
        a("s_waitcnt lgkmcnt(8)")
        for r in range(16):
            a(f"v_lshlrev_b32 v{64+2*(r&3)}, 16, v{24+r}")
            a(f"v_and_b32 v{65+2*(r&3)}, 0xffff0000, v{24+r}")
            a(f"v_add_f32 v8, v8, v{64+2*(r&3)}")
            a(f"v_add_f32 v9, v9, v{65+2*(r&3)}")
            a(f"v_fmac_f32 v10, v{64+2*(r&3)}, v{64+2*(r&3)}")
            a(f"v_fmac_f32 v11, v{65+2*(r&3)}, v{65+2*(r&3)}")
        a("s_waitcnt lgkmcnt(0)")
        for r in range(16): a(f"v_dot2c_f32_bf16 v13, s55, v{40+r}")
    a(f"""
    v_add_f32 v8, v8, v9
    v_add_f32 v10, v10, v11
    v_mov_b32 v9, v8
    v_mov_b32 v11, v10
    v_mov_b32 v15, v13
    s_mov_b32 s56, {f32hex(1.0/512)}
    s_lshl_b32 s51, s39, 7
    v_permlane32_swap_b32 v8, v9
    v_permlane32_swap_b32 v10, v11
    v_permlane32_swap_b32 v13, v15
    v_add_u32 v5, s51, v5
    v_add_f32 v8, v8, v9
    v_add_f32 v10, v10, v11
    v_add_f32 v13, v13, v15
    v_mul_f32 v8, s56, v8
    v_mul_f32 v10, s56, v10
    v_fma_f32 v10, -v8, v8, v10
    v_max_f32 v10, 0, v10
    v_add_f32 v10, {f32hex(1e-5)}, v10
    v_rsq_f32 v10, v10
    ds_write_b32 v5, v13 offset:2048
    v_mul_f32 v8, v8, v10
    v_sub_f32 v8, 0, v8
    ds_write_b32 v12, v10
    ds_write_b32 v12, v8 offset:128
    s_waitcnt lgkmcnt(0)
    s_barrier
    ds_read_b32 v15, v7
    s_waitcnt lgkmcnt(0)
    v_readfirstlane_b32 s65, v15
    s_barrier
    s_branch {N}_p_end
    """)

    a.label(f"{N}_p_ld")
    a(f"""
    v_lshrrev_b32 v11, 2, v1
    s_movk_i32 s52, 3072
    v_mul_lo_u32 v11, v11, s52
    v_and_b32 v12, 3, v1
    v_lshl_add_u32 v11, v12, 4, v11
    s_lshl_b32 s52, s42, 6
    s_mul_i32 s53, s39, {16*3072}
    s_add_u32 s52, s52, s53
    s_lshl_b32 s53, s39, 10
    s_lshl_b32 s54, s39, 12
    s_add_u32 s54, s54, 12288
    v_lshrrev_b32 v13, 3, v1
    v_lshrrev_b32 v14, 4, v1
    v_and_b32 v15, 7, v1
    v_xor_b32 v15, v15, v14
    v_lshlrev_b32 v15, 4, v15
    v_lshl_add_u32 v15, v13, 10, v15
    v_xor_b32 v16, 64, v15
    """)
    def issue(j):
        sl = (j % NSLOT) * SLOT
        for n in range(4):
            a(f"s_add_u32 m0, s54, {sl + n*1024}")
            a(f"s_add_u32 s51, s49, {n*8192 + j*128}")
            a(f"buffer_load_dwordx4 v{15 + (n & 1)}, s[32:35], s51 offen lds")
            if n < 3:
                a(f"s_add_u32 m0, s53, {sl + n*4096}")
                a(f"s_add_u32 s51, s52, {n*1024 + j*64*3072}")
                a(f"buffer_load_dwordx4 v11, s[20:23], s51 offen lds")
    for j in range(LA): issue(j)
    T = 24
    def side_loads():
        a.comment("packed copy of W for layer 2 (rows [32rb,32rb+32), tile f = lw) and the k/v rows of this wave's kv^T block")
        a(f"""
        s_min_u32 s56, s39, 2
        s_lshl_b32 s57, s56, 10
        s_lshl_b32 s58, s42, 6
        s_add_u32 s57, s57, s58
        s_mul_i32 s58, s41, {32*3072}
        s_add_u32 s57, s57, s58
        buffer_load_dwordx4 v[112:115], v11, s[20:23], s57 offen
        s_add_u32 s57, s57, {16*3072}
        buffer_load_dwordx4 v[116:119], v11, s[20:23], s57 offen
        s_mul_i32 s59, s42, {8*12288}
        s_lshr_b32 s58, s41, 1
        s_mul_i32 s58, s58, 12288
        s_add_u32 s59, s59, s58
        s_and_b32 s58, s41, 1
        s_lshl_b32 s58, s58, 11
        s_add_u32 s59, s59, s58
        s_lshl_b32 s56, s56, 12
        s_add_u32 s59, s59, s56
        s_add_u32 s59, s59, {hex(LY.WP)}
        """)
        srd(a, 32, 28, 0x200000)
        srd(a, 20, 30, 0x200000)
        srd(a, 60, 10, 0x1000)
        a(f"""
        s_lshl_b32 s46, s37, 16
        s_lshl_b32 s47, s39, 14
        s_add_u32 s46, s46, s47
        s_lshl_b32 s48, s36, 7
        s_add_u32 s46, s46, s48
        v_lshlrev_b32 v5, 13, v6
        v_lshl_add_u32 v5, v4, 2, v5
        v_add_u32 v5, s46, v5
        v_add_u32 v9, 0x1000, v5
        v_subrev_u32 v7, 0xc00, v5
        s_lshl_b32 s48, s36, 9
        v_lshl_add_u32 v8, v4, 4, s48
        """)
        for r in range(3):
            a(f"buffer_load_dword v{T+r}, v7, s[32:35], 0 offen offset:{r*1024}")
        for r in range(8):
            a(f"buffer_load_dword v{T+3+r}, v{5 if r < 4 else 9}, s[32:35], 0 offen offset:{(r%4)*1024}")
        for r in range(8):
            a(f"buffer_load_dword v{T+11+r}, v{5 if r < 4 else 9}, s[20:23], 0 offen offset:{(r%4)*1024}")
        a(f"buffer_load_dwordx4 v[{T+20}:{T+23}], v8, s[60:63], 0 offen")
    for j in range(8):
        issued = min(8, LA + j)
        extra = 22 if j >= 5 else 0
        a(f"s_waitcnt vmcnt({7 * (issued - j - 1) + extra})")
        a("s_barrier")
        if j + LA < 8: issue(j + LA)
        if j == 4: side_loads()
    a(f"""
    s_min_u32 s56, s39, 2
    s_lshl_b32 s57, s56, 7
    s_add_u32 s57, s57, {SC1 + 2048}
    v_lshlrev_b32 v10, 2, v4
    v_add_u32 v12, s57, v10
    v_mov_b32 v13, {EPL}
    s_barrier
    ds_read_b32 v14, v12
    ds_read_b32 v15, v13
    s_waitcnt lgkmcnt(0)
    v_readfirstlane_b32 s65, v15
    s_barrier
    s_waitcnt vmcnt(0)
    s_cmp_lg_u32 s41, 0
    s_cbranch_scc1 {N}_p_ncs
    s_lshl_b32 s56, s56, 11
    s_lshl_b32 s57, s42, 7
    s_add_u32 s56, s56, s57
    s_add_u32 s56, s56, {hex(LY.CSB)}
    buffer_store_dword v14, v10, s[24:27], s56 offen sc1
    """)
    a.label(f"{N}_p_ncs")
    a(f"""
    buffer_store_dwordx4 v[112:115], v3, s[24:27], s59 offen sc1
    buffer_store_dwordx4 v[116:119], v3, s[24:27], s59 offen offset:1024 sc1
    """)
    KFp, VFp, WPr, RS = 48, 70, 86, 94
    for r in range(11):
        a(f"v_lshlrev_b32 v{KFp+2*r}, 16, v{T+r}")
        a(f"v_and_b32 v{KFp+2*r+1}, 0xffff0000, v{T+r}")
    for r in range(8):
        a(f"v_lshlrev_b32 v{VFp+2*r}, 16, v{T+11+r}")
        a(f"v_and_b32 v{VFp+2*r+1}, 0xffff0000, v{T+11+r}")
    D0 = T + 20
    a(f"""
    v_lshlrev_b32 v{WPr+0}, 16, v{D0}
    v_lshlrev_b32 v{WPr+1}, 16, v{D0+2}
    v_and_b32 v{WPr+2}, 0xffff0000, v{D0}
    v_and_b32 v{WPr+3}, 0xffff0000, v{D0+2}
    v_lshlrev_b32 v{WPr+4}, 16, v{D0+1}
    v_lshlrev_b32 v{WPr+5}, 16, v{D0+3}
    v_and_b32 v{WPr+6}, 0xffff0000, v{D0+1}
    v_and_b32 v{WPr+7}, 0xffff0000, v{D0+3}
    """)
    for t in range(8): a(f"v_pk_mul_f32 {p(RS+2*t)}, {p(KFp+2*t)}, {p(WPr+6)}")
    for jj in (2, 1, 0):
        for t in range(8):
            a(f"v_pk_fma_f32 {p(RS+2*t)}, {p(KFp+2*(t+3-jj))}, {p(WPr+2*jj)}, {p(RS+2*t)}")
    for t in range(8): a(f"v_pk_mul_f32 {p(RS+2*t)}, {p(RS+2*t)}, {p(VFp+2*t)}")
    for q in range(4):
        a(f"v_cvt_pk_bf16_f32 v{T+q}, v{RS+2*(7-2*q)}, v{RS+2*(6-2*q)}")
        a(f"v_cvt_pk_bf16_f32 v{T+4+q}, v{RS+2*(7-2*q)+1}, v{RS+2*(6-2*q)+1}")
    a(f"""
    s_lshl_b32 s46, s36, 18
    s_add_u32 s46, s46, {hex(LY.UT)}
    s_lshl_b32 s48, s37, 5
    s_add_u32 s46, s46, s48
    s_lshr_b32 s48, s39, 1
    s_lshl_b32 s48, s48, 4
    s_add_u32 s46, s46, s48
    s_and_b32 s48, s39, 1
    s_lshl_b32 s48, s48, 11
    s_add_u32 s46, s46, s48
    v_lshlrev_b32 v5, 13, v4
    v_lshl_add_u32 v5, v6, 10, v5
    v_add_u32 v9, 0x1000, v5
    buffer_store_dwordx4 v[{T}:{T+3}], v5, s[24:27], s46 offen sc1
    buffer_store_dwordx4 v[{T+4}:{T+7}], v9, s[24:27], s46 offen sc1
    s_lshl_b32 s46, s36, 9
    s_lshl_b32 s48, s37, 4
    s_add_u32 s46, s46, s48
    s_lshl_b32 s48, s39, 2
    s_add_u32 s46, s46, s48
    s_add_u32 s46, s46, {hex(LY.FU)}
    """)
    publish(a, 46)
    a.label(f"{N}_p_end")

def DIAGFIX():
    import asmlib
    return asmlib.DIAG
```

```python
import struct
from asmlib import *
import layout as LY

def f32hex(x):
    return hex(struct.unpack("<I", struct.pack("<f", x))[0])

NSLOT = 5
ZERO = 1
T1 = 1
T1J = 2
TSKIP = 0
TNT = 0
NOSTAT = 0
ILV = 0
CODEPF = 0
LEAN = 0
WT = 0
SLOT = 28672
STAT = NSLOT * SLOT
def lds_bytes(layer1):
    return STAT + 4 * 2048

def emit(a, name, layer1, prefetch=False):
    TFL = ("", "nt", "sc1")[TNT]
    kernel_begin(a, name)
    done = f"{name}_done"
    a(f"""
    s_cmp_ge_u32 s2, 256
    s_cbranch_scc1 {done}
    s_load_dwordx4 s[4:7], s[0:1], 0
    s_load_dwordx2 s[14:15], s[0:1], 88
    """)
    if layer1 and T1:
        a("""
        s_load_dwordx4 s[8:11], s[0:1], 32
        s_load_dwordx2 s[12:13], s[0:1], 48
        """)
    a(f"""
    v_lshrrev_b32 v2, 6, v0
    v_and_b32 v1, 63, v0
    v_readfirstlane_b32 s40, v2
    s_and_b32 s44, s2, 7
    s_lshr_b32 s45, s2, 3
    """)
    if layer1:
        a("""
        s_and_b32 s41, s44, 3
        s_lshl_b32 s41, s41, 2
        s_and_b32 s46, s45, 3
        s_add_u32 s41, s41, s46
        s_lshr_b32 s42, s44, 2
        s_lshl_b32 s42, s42, 3
        s_lshr_b32 s46, s45, 2
        s_add_u32 s42, s42, s46
        """)
    else:
        a("""
        s_lshl_b32 s41, s44, 1
        s_and_b32 s46, s45, 1
        s_add_u32 s41, s41, s46
        s_lshr_b32 s42, s45, 1
        """)
    a(f"""
    s_and_b32 s39, s40, 3
    s_lshl_b32 s43, s41, 2
    s_add_u32 s43, s43, s39
    v_lshrrev_b32 v3, 5, v1
    v_and_b32 v4, 31, v1
    v_lshlrev_b32 v9, 4, v1
    s_lshl_b32 s49, s43, 15
    s_cmp_ge_u32 s40, 4
    s_cbranch_scc1 {name}_loader
    s_lshl_b32 s50, s40, 11
    s_add_u32 s50, s50, {STAT}
    s_waitcnt lgkmcnt(0)
    """)
    srd(a, 24, 14, LY.WS_USED)
    stamp(a, 0)
    XR = (64, 80)
    ACC = 96
    WFR = 144
    TQ = 24
    TV = 180
    SUM, SQ, CS = 14, 16, 18
    if not layer1:
        a.comment("column sums of W (written by layer 1): Q,K per register, V per lane; row-stat partials of x2")
        a(f"""
        v_lshlrev_b32 v5, 4, v3
        v_lshlrev_b32 v6, 2, v4
        s_lshl_b32 s51, s42, 7
        s_add_u32 s51, s51, {hex(LY.CSB)}
        v_lshlrev_b32 v7, 3, v1
        s_lshl_b32 s52, s43, 12
        s_add_u32 s52, s52, {hex(LY.ST2)}
        """)
        for i2 in range(8):
            a(f"buffer_load_dwordx2 v[{WFR+2*i2}:{WFR+2*i2+1}], v7, s[24:27], s52 offen offset:{512*i2}")
        for f in range(2):
            for g in range(4):
                a(f"buffer_load_dwordx4 v[{TQ+16*f+4*g}:{TQ+16*f+4*g+3}], v5, s[24:27], s51 offen offset:{f*2048 + 32*g}")
        a(f"s_add_u32 s51, s51, 4096")
        a(f"buffer_load_dword v20, v6, s[24:27], s51 offen")
    if layer1:
        a.comment("cold start: touch a distinct share of the lines this XCD will need, so all misses are in flight at once (speed only)")
        srd(a, 16, 4, 0x200000)
        srd(a, 20, 6, 0x180000)
        a(f"""
        s_and_b32 s51, s42, 7
        s_cmp_lt_u32 s51, {TSKIP}
        s_cbranch_scc1 {name}_nx
        s_lshl_b32 s51, s51, 7
        s_add_u32 s51, s51, s49
        v_lshlrev_b32 v10, 10, v4
        s_mov_b64 exec, 0xffffffff
        buffer_load_dword v24, v10, s[16:19], s51 offen {TFL}
        s_mov_b64 exec, -1
        """)
        a.label(f"{name}_nx")
        a(f"""
        s_and_b32 s53, s41, 3
        s_lshl_b32 s53, s53, 1
        s_and_b32 s54, s42, 1
        s_add_u32 s53, s53, s54
        s_mul_i32 s53, s53, 3072
        s_lshl_b32 s54, s42, 6
        s_add_u32 s53, s53, s54
        s_add_u32 s53, s53, {64*TSKIP*3072}
        s_lshl_b32 s54, s40, 10
        s_add_u32 s53, s53, s54
        s_movk_i32 s54, {8*3072}
        v_mul_lo_u32 v10, v1, s54
        s_cmp_eq_u32 s40, 3
        s_cbranch_scc1 {name}_nw
        buffer_load_dword v25, v10, s[20:23], s53 offen {TFL}
        """)
        a.label(f"{name}_nw")
    if layer1 and CODEPF:
        a.comment("pull the instruction bytes of both kernels into this XCD's L2 while waiting for the first tiles (speed only)")
        a(f"""
        s_getpc_b64 s[60:61]
        s_and_b32 s60, s60, 0xffffff00
        s_lshl_b32 s53, s45, 2
        s_add_u32 s53, s53, s40
        s_lshl_b32 s53, s53, 8
        v_lshlrev_b32 v10, 7, v1
        v_add_u32 v10, s53, v10
        s_cmp_ge_u32 s53, all_code_end - {name} - 1024
        s_cbranch_scc1 {name}_ncp
        s_mov_b64 exec, 3
        global_load_dword v26, v10, s[60:61]
        s_mov_b64 exec, -1
        """)
        a.label(f"{name}_ncp")
    if layer1 and LEAN: a("s_mov_b32 s67, 0xfffffffe")
    if layer1 and ZERO and not LEAN:
        a.comment("zero the hand-off words of the second launch: 4 KB of stat granules per workgroup, 32 KB of flags")
        a(f"""
        v_mov_b32 v28, 0
        v_mov_b32 v29, 0
        v_mov_b32 v30, 0
        v_mov_b32 v31, 0
        s_lshl_b32 s51, s2, 12
        s_lshl_b32 s53, s40, 10
        s_add_u32 s51, s51, s53
        s_add_u32 s53, s51, {hex(LY.GR)}
        buffer_store_dwordx4 v[28:31], v9, s[24:27], s53 offen
        s_add_u32 s53, s53, {hex(LY.GD)}
        buffer_store_dwordx4 v[28:31], v9, s[24:27], s53 offen
        s_cmp_ge_u32 s2, 8
        s_cbranch_scc1 {name}_nz
        s_add_u32 s53, s51, {hex(LY.FLG)}
        buffer_store_dwordx4 v[28:31], v9, s[24:27], s53 offen
        """)
        a.label(f"{name}_nz")
        a(f"""
        v_mov_b32 v32, -1
        v_mov_b32 v33, -1
        v_mov_b32 v34, -1
        v_mov_b32 v35, -1
        s_lshl_b32 s53, s51, 1
        s_add_u32 s53, s53, {hex(LY.OF)}
        buffer_store_dwordx4 v[32:35], v9, s[24:27], s53 offen
        buffer_store_dwordx4 v[32:35], v9, s[24:27], s53 offen offset:1024
        s_mov_b32 s67, 0xfffffffe
        """)
    a(f"""
    s_mov_b32 s55, 0x3f803f80
    v_lshlrev_b32 v21, 9, v3
    v_bfe_u32 v22, v1, 2, 2
    v_lshl_add_u32 v21, v22, 6, v21
    v_bfe_u32 v22, v1, 4, 1
    v_lshl_add_u32 v21, v22, 5, v21
    v_and_b32 v22, 3, v1
    v_lshl_add_u32 v21, v22, 3, v21
    v_add_u32 v22, {2*SLOT}, v21
    v_add_u32 v23, {4*SLOT}, v21
    s_lshl_b32 s56, s40, 12
    s_add_u32 s56, s56, 12288
    """)
    if layer1:
        a(f"""
        v_bfe_u32 v13, v1, 1, 3
        v_xor_b32 v13, v13, v3
        v_lshlrev_b32 v13, 4, v13
        v_lshl_add_u32 v13, v4, 7, v13
        v_add_u32 v13, s56, v13
        """)
        for kk in range(4):
            a(f"v_xor_b32 v{56+kk}, {kk << 5}, v13")
            a(f"v_add_u32 v{60+kk}, {2*SLOT}, v{56+kk}")
            a(f"v_add_u32 v{5+kk}, {4*SLOT}, v{56+kk}")
        for r in (14, 15, 16, 17, 18, 19, 20):
            a(f"v_mov_b32 v{r}, 0")
    else:
        a(f"""
        v_add_u32 v56, s56, v9
        v_add_u32 v60, {2*SLOT}, v56
        v_add_u32 v5, {4*SLOT}, v56
        """)
    def finish_stats():
        a(f"""
        v_mov_b32 v15, v14
        v_mov_b32 v17, v16
        v_lshl_add_u32 v12, v4, 2, s50
        v_lshl_add_u32 v11, v3, 4, s50
        v_permlane32_swap_b32 v14, v15
        v_permlane32_swap_b32 v16, v17
        s_mov_b32 s56, {f32hex(1.0/512)}
        s_nop 0
        v_add_f32 v14, v14, v15
        v_add_f32 v16, v16, v17
        """)
        ln_stats(a, 14, 16, 16, 17, 15)
        a(f"""
        ds_write_b32 v12, v16 offset:512
        ds_write_b32 v12, v17 offset:640
        s_waitcnt lgkmcnt(0)
        """)
        for g in range(4):
            a(f"ds_read_b128 v[{TV+4*g}:{TV+4*g+3}], v11 offset:{512 + 32*g}")
            a(f"ds_read_b128 v[{TV+16+4*g}:{TV+16+4*g+3}], v11 offset:{640 + 32*g}")
    if not layer1:
        a("s_waitcnt vmcnt(9)")
        for i2 in range(1, 8):
            a(f"v_add_f32 v{WFR}, v{WFR}, v{WFR+2*i2}")
            a(f"v_add_f32 v{WFR+1}, v{WFR+1}, v{WFR+2*i2+1}")
        a(f"v_mov_b32 v14, v{WFR}")
        a(f"v_mov_b32 v16, v{WFR+1}")
        finish_stats()
        a("s_waitcnt lgkmcnt(0)")
    def wread(ks):
        j, kk = ks // 4, ks % 4
        sl = j % NSLOT
        base = 21 + sl // 2
        b = WFR + 12 * (ks % 3)
        for f in range(3):
            for q in range(2):
                off = (sl & 1) * SLOT + f*4096 + kk*1024 + q*256
                a(f"ds_read_b64_tr_b16 v[{b+4*f+2*q}:{b+4*f+2*q+1}], v{base} offset:{off}")
    def xread(j):
        sl = j % NSLOT
        for kk in range(4):
            if layer1:
                base, off = (56, 60, 5)[sl // 2] + kk, (sl & 1) * SLOT
            else:
                base, off = (56, 60, 5)[sl // 2], (sl & 1) * SLOT + kk * 1024
            a(f"ds_read_b128 v[{XR[j&1]+4*kk}:{XR[j&1]+4*kk+3}], v{base} offset:{off}")
    a("s_barrier")
    stamp(a, 1)
    xread(0); wread(0)
    for ks in range(32):
        j, kk = ks // 4, ks % 4
        if kk == 0:
            a("s_waitcnt lgkmcnt(0)")
            wread(ks + 1); wread(ks + 2)
        elif kk == 1:
            a("s_waitcnt lgkmcnt(6)")
            wread(ks + 2)
        elif kk == 2:
            a("s_waitcnt lgkmcnt(6)")
        else:
            a("s_waitcnt lgkmcnt(0)")
            if j < 7:
                a("s_barrier")
                if j == 6: stamp(a, 2)
                xread(j + 1); wread(ks + 1)
        b = WFR + 12 * (ks % 3)
        xr = XR[j & 1] + 4*kk
        x = vr(xr, 4)
        for f in range(3):
            acc = vr(ACC + 16*f, 16)
            c = "0" if ks == 0 else acc
            w = vr(b + 4*f, 4)
            if f < 2: a(f"v_mfma_f32_32x32x16_bf16 {acc}, {w}, {x}, {c}")
            else:     a(f"v_mfma_f32_32x32x16_bf16 {acc}, {x}, {w}, {c}")
        if layer1 and not NOSTAT:
            skip = a.uid(f"{name}_cs")
            a(f"s_cmp_eq_u32 s40, {kk}")
            a(f"s_cbranch_scc0 {skip}")
            for d in range(4):
                for f in range(3):
                    a(f"v_dot2c_f32_bf16 v{CS+f}, s55, v{b+4*f+d}")
            a.label(skip)
            if kk == 2:
                for r in range(16):
                    a(f"v_dot2c_f32_bf16 v{SUM + (r & 1)}, s55, v{XR[j&1]+r}")
                    a(f"v_dot2c_f32_bf16 v{SQ + (r & 1)}, v{XR[j&1]+r}, v{XR[j&1]+r}")
    stamp(a, 3)
    if layer1:
        a(f"""
        s_nop 2
        v_add_f32 v14, v14, v15
        v_add_f32 v16, v16, v17
        v_mov_b32 v57, v18
        v_mov_b32 v58, v19
        v_mov_b32 v59, v20
        v_lshl_add_u32 v12, v4, 2, s50
        s_nop 0
        v_permlane32_swap_b32 v18, v57
        v_permlane32_swap_b32 v19, v58
        v_permlane32_swap_b32 v20, v59
        s_nop 0
        v_add_f32 v18, v18, v57
        v_add_f32 v19, v19, v58
        v_add_f32 v20, v20, v59
        ds_write_b32 v12, v18
        ds_write_b32 v12, v19 offset:128
        ds_write_b32 v12, v20 offset:256
        """)
        finish_stats()
        a(f"""
        s_barrier
        v_lshlrev_b32 v10, 2, v4
        v_add_u32 v13, {STAT}, v10
        """)
        for f in range(3):
            for w in range(4):
                a(f"ds_read_b32 v{64+4*f+w}, v13 offset:{w*2048 + f*128}")
        a("s_waitcnt lgkmcnt(0)")
        for f in range(3):
            a(f"v_add_f32 v{64+4*f}, v{64+4*f}, v{65+4*f}")
            a(f"v_add_f32 v{66+4*f}, v{66+4*f}, v{67+4*f}")
            a(f"v_add_f32 v{CS+f}, v{64+4*f}, v{66+4*f}")
        a(f"""
        ds_write_b32 v12, v18 offset:1024
        ds_write_b32 v12, v19 offset:1152
        """)
        sk = a.uid(f"{name}_cst")
        a(f"""
        s_cmp_lg_u32 s43, 0
        s_cbranch_scc1 {sk}
        s_lshl_b32 s51, s42, 7
        s_add_u32 s51, s51, {hex(LY.CSB)}
        buffer_store_dword v18, v10, s[24:27], s51 offen
        buffer_store_dword v19, v10, s[24:27], s51 offen offset:2048
        s_add_u32 s51, s51, 4096
        buffer_store_dword v20, v10, s[24:27], s51 offen
        """)
        a.label(sk)
        a("s_waitcnt lgkmcnt(0)")
        for g in range(4):
            a(f"ds_read_b128 v[{TQ+4*g}:{TQ+4*g+3}], v11 offset:{1024 + 32*g}")
            a(f"ds_read_b128 v[{TQ+16+4*g}:{TQ+16+4*g+3}], v11 offset:{1152 + 32*g}")
    a(f"""
    s_mov_b32 s56, {f32hex(LY.QSCALE)}
    v_mul_f32 v56, s56, v16
    v_mul_f32 v58, s56, v17
    v_mov_b32 v57, v56
    v_mov_b32 v59, v58
    v_mov_b32 v60, v16
    v_mov_b32 v61, v16
    v_mov_b32 v62, v17
    v_mov_b32 v63, v17
    s_waitcnt vmcnt(0)
    v_mov_b32 v21, v20
    s_lshl_b32 s57, s42, 17
    s_lshl_b32 s58, s43, 10
    s_add_u32 s57, s57, s58
    v_and_b32 v10, 3, v1
    v_bfe_u32 v11, v1, 2, 1
    v_lshl_or_b32 v10, v11, 3, v10
    v_bfe_u32 v11, v1, 3, 1
    v_lshl_or_b32 v10, v11, 2, v10
    v_lshlrev_b32 v10, 4, v10
    v_lshl_or_b32 v10, v3, 8, v10
    v_bfe_u32 v11, v1, 4, 1
    v_lshl_or_b32 v10, v11, 16, v10
    s_waitcnt lgkmcnt(0)
    """)
    def p(b): return f"v[{b}:{b+1}]"
    PK = 64
    for f, (rs, mr) in ((1, (60, 62)), (0, (56, 58))):
        for j in range(8):
            a(f"v_pk_mul_f32 {p(ACC+16*f+2*j)}, {p(ACC+16*f+2*j)}, {p(rs)}")
        for j in range(8):
            a(f"v_pk_fma_f32 {p(ACC+16*f+2*j)}, {p(TQ+16*f+2*j)}, {p(mr)}, {p(ACC+16*f+2*j)}")
        for j in range(8):
            a(f"v_cvt_pk_bf16_f32 v{PK+8*f+j}, v{ACC+16*f+2*j}, v{ACC+16*f+2*j+1}")
        if layer1 and ZERO:
            for j in range(8): a(f"v_min_u32 v{PK+8*f+j}, s67, v{PK+8*f+j}")
        base = LY.QF if f == 0 else LY.KF
        a(f"s_add_u32 s58, s57, {hex(base)}")
        a(f"buffer_store_dwordx4 v[{PK+8*f}:{PK+8*f+3}], v9, s[24:27], s58 offen")
        a(f"s_add_u32 s58, s57, {hex(base + 65536)}")
        a(f"buffer_store_dwordx4 v[{PK+8*f+4}:{PK+8*f+7}], v9, s[24:27], s58 offen")
    for j in range(8):
        a(f"v_pk_mul_f32 {p(ACC+32+2*j)}, {p(ACC+32+2*j)}, {p(TV+2*j)}")
    for j in range(8):
        a(f"v_pk_fma_f32 {p(ACC+32+2*j)}, {p(TV+16+2*j)}, v[20:21], {p(ACC+32+2*j)}")
    for j in range(8):
        a(f"v_cvt_pk_bf16_f32 v{PK+16+j}, v{ACC+32+2*j}, v{ACC+32+2*j+1}")
    if layer1 and ZERO:
        for j in range(8): a(f"v_min_u32 v{PK+16+j}, s67, v{PK+16+j}")
    a(f"""
    s_add_u32 s58, s57, {hex(LY.VF)}
    buffer_store_dwordx4 v[{PK+16}:{PK+19}], v10, s[24:27], s58 offen
    buffer_store_dwordx4 v[{PK+20}:{PK+23}], v10, s[24:27], s58 offen offset:512
    """)
    stamp(a, 4)
    stamp_flush(a, 0 if layer1 else 2, 5, 40, 14)
    a.label(done)
    a("s_endpgm")
    a.label(f"{name}_loader")
    a(f"""
    v_lshrrev_b32 v11, 2, v1
    s_movk_i32 s52, 3072
    v_mul_lo_u32 v11, v11, s52
    v_and_b32 v12, 3, v1
    v_lshl_add_u32 v11, v12, 4, v11
    s_lshl_b32 s52, s42, 6
    s_mul_i32 s53, s39, {16*3072}
    s_add_u32 s52, s52, s53
    s_lshl_b32 s53, s39, 10
    s_lshl_b32 s54, s39, 12
    s_add_u32 s54, s54, 12288
    """)
    if layer1:
        a(f"""
        v_lshrrev_b32 v13, 3, v1
        v_lshrrev_b32 v14, 4, v1
        v_and_b32 v15, 7, v1
        v_xor_b32 v15, v15, v14
        v_lshlrev_b32 v15, 4, v15
        v_lshl_add_u32 v15, v13, 10, v15
        v_xor_b32 v16, 64, v15
        """)
    else:
        a(f"""
        s_add_u32 s49, s49, {hex(LY.X2F)}
        s_mul_i32 s52, s42, {8*12288}
        s_add_u32 s52, s52, s53
        s_add_u32 s52, s52, {hex(LY.WP)}
        """)
    a("s_waitcnt lgkmcnt(0)")
    if layer1: srd(a, 20, 6, 0x180000)
    if layer1: srd(a, 16, 4, 0x200000)
    srd(a, 24, 14, LY.WS_USED)
    def issue(j):
        sl = (j % NSLOT) * SLOT
        for n in range(4):
            a(f"s_add_u32 m0, s54, {sl + n*1024}")
            if layer1:
                a(f"s_add_u32 s51, s49, {n*8192 + j*128}")
                a(f"buffer_load_dwordx4 v{15 + (n & 1)}, s[16:19], s51 offen lds")
            else:
                a(f"s_add_u32 s51, s49, {j*4096 + n*1024}")
                a(f"buffer_load_dwordx4 v9, s[24:27], s51 offen lds")
            if n < 3:
                a(f"s_add_u32 m0, s53, {sl + n*4096}")
                if layer1:
                    a(f"s_add_u32 s51, s52, {n*1024 + j*64*3072}")
                    a(f"buffer_load_dwordx4 v11, s[20:23], s51 offen lds")
                else:
                    a(f"s_add_u32 s51, s52, {n*4096 + j*12288}")
                    a(f"buffer_load_dwordx4 v9, s[24:27], s51 offen lds")
    LA = 3
    for j in range(LA): issue(j)
    nT1 = ((20 if T1 else 0) + (0 if LEAN else 2)) if layer1 else 0
    T = 24
    def t1_loads():
        a.comment("packed copy of W for layer 2: rows [32rb,32rb+32), tile f = lw (lw 3 repeats f=2)")
        a(f"""
        s_min_u32 s56, s39, 2
        s_lshl_b32 s57, s56, 10
        s_lshl_b32 s58, s42, 6
        s_add_u32 s57, s57, s58
        s_mul_i32 s58, s41, {32*3072}
        s_add_u32 s57, s57, s58
        buffer_load_dwordx4 v[112:115], v11, s[20:23], s57 offen
        s_add_u32 s57, s57, {16*3072}
        buffer_load_dwordx4 v[116:119], v11, s[20:23], s57 offen
        s_mul_i32 s59, s42, {8*12288}
        s_lshr_b32 s58, s41, 1
        s_mul_i32 s58, s58, 12288
        s_add_u32 s59, s59, s58
        s_and_b32 s58, s41, 1
        s_lshl_b32 s58, s58, 11
        s_add_u32 s59, s59, s58
        s_lshl_b32 s56, s56, 12
        s_add_u32 s59, s59, s56
        s_add_u32 s59, s59, {hex(LY.WP)}
        """)
    def t1_more():
        srd(a, 28, 8, 0x200000)
        srd(a, 32, 10, 0x200000)
        srd(a, 64, 12, 0x1000)
        a(f"""
        s_lshr_b32 s46, s2, 3
        s_lshl_b32 s46, s46, 16
        s_lshl_b32 s47, s39, 14
        s_add_u32 s46, s46, s47
        s_and_b32 s47, s2, 7
        s_lshl_b32 s48, s47, 7
        s_add_u32 s46, s46, s48
        v_lshlrev_b32 v5, 13, v3
        v_lshl_add_u32 v5, v4, 2, v5
        v_add_u32 v5, s46, v5
        v_add_u32 v6, 0x1000, v5
        v_subrev_u32 v7, 0xc00, v5
        s_lshl_b32 s48, s47, 9
        v_lshl_add_u32 v8, v4, 4, s48
        """)
        for r in range(3):
            a(f"buffer_load_dword v{T+r}, v7, s[28:31], 0 offen offset:{r*1024}")
        for r in range(8):
            a(f"buffer_load_dword v{T+3+r}, v{5 if r < 4 else 6}, s[28:31], 0 offen offset:{(r%4)*1024}")
        for r in range(8):
            a(f"buffer_load_dword v{T+11+r}, v{5 if r < 4 else 6}, s[32:35], 0 offen offset:{(r%4)*1024}")
        a(f"buffer_load_dwordx4 v[{T+20}:{T+23}], v8, s[64:67], 0 offen")
    KFp, VFp, WPr, RS, PR = 48, 70, 86, 94, 110
    def rnd(r):
        a(f"v_cvt_pk_bf16_f32 v{PR+2}, v{r}, v{r+1}")
        a(f"v_lshlrev_b32 v{r}, 16, v{PR+2}")
        a(f"v_and_b32 v{r+1}, 0xffff0000, v{PR+2}")
    def t1_half(h):
        if h == 0:
            for r in range(11):
                a(f"v_lshlrev_b32 v{KFp+2*r}, 16, v{T+r}")
                a(f"v_and_b32 v{KFp+2*r+1}, 0xffff0000, v{T+r}")
            D0 = T + 20
            a(f"""
            v_lshlrev_b32 v{WPr+0}, 16, v{D0}
            v_lshlrev_b32 v{WPr+1}, 16, v{D0+2}
            v_and_b32 v{WPr+2}, 0xffff0000, v{D0}
            v_and_b32 v{WPr+3}, 0xffff0000, v{D0+2}
            v_lshlrev_b32 v{WPr+4}, 16, v{D0+1}
            v_lshlrev_b32 v{WPr+5}, 16, v{D0+3}
            v_and_b32 v{WPr+6}, 0xffff0000, v{D0+1}
            v_and_b32 v{WPr+7}, 0xffff0000, v{D0+3}
            """)
        for t in (range(0, 3) if h == 0 else range(3, 8) if h == 1 else ()):
            for c2 in range(2): a(f"v_mul_f32 v{RS+2*t+c2}, v{KFp+2*t+c2}, v{WPr+6+c2}")
            rnd(RS + 2*t)
            for jj in (2, 1, 0):
                for c2 in range(2): a(f"v_mul_f32 v{PR+c2}, v{KFp+2*(t+3-jj)+c2}, v{WPr+2*jj+c2}")
                rnd(PR)
                for c2 in range(2): a(f"v_add_f32 v{RS+2*t+c2}, v{RS+2*t+c2}, v{PR+c2}")
                rnd(RS + 2*t)
        if h == 2:
            for r in range(8):
                a(f"v_lshlrev_b32 v{VFp+2*r}, 16, v{T+11+r}")
                a(f"v_and_b32 v{VFp+2*r+1}, 0xffff0000, v{T+11+r}")
            for t in range(8):
                a(f"v_pk_mul_f32 {p(RS+2*t)}, {p(RS+2*t)}, {p(VFp+2*t)}")
    TJ = T1J
    for j in range(8):
        issued = min(8, LA + j)
        extra = nT1 if TJ < j <= min(7, TJ + LA) else 0
        if TJ + LA >= 7 and j > TJ: extra = nT1
        a(f"s_waitcnt vmcnt({7 * (issued - j - 1) + extra})")
        a("s_barrier")
        if j + LA < 8: issue(j + LA)
        if j == TJ and layer1:
            if not LEAN: t1_loads()
            if T1: t1_more()
        if layer1 and T1 and j == 6 and TJ + LA < 6: t1_half(0)
    if layer1:
        a("s_waitcnt vmcnt(0)")
        if T1:
            if not TJ + LA < 6: t1_half(0)
            t1_half(1)
        a("s_barrier")
        if T1: t1_half(2)
        if not LEAN:
            a("buffer_store_dwordx4 v[112:115], v9, s[24:27], s59 offen")
            a("buffer_store_dwordx4 v[116:119], v9, s[24:27], s59 offen offset:1024")
    if layer1 and T1:
        for q in range(4):
            a(f"v_cvt_pk_bf16_f32 v{T+q}, v{RS+2*(7-2*q)}, v{RS+2*(6-2*q)}")
            a(f"v_cvt_pk_bf16_f32 v{T+4+q}, v{RS+2*(7-2*q)+1}, v{RS+2*(6-2*q)+1}")
        a(f"""
        s_lshl_b32 s46, s47, 18
        s_add_u32 s46, s46, {hex(LY.UT)}
        s_lshr_b32 s48, s2, 3
        s_lshl_b32 s48, s48, 5
        s_add_u32 s46, s46, s48
        s_lshr_b32 s48, s39, 1
        s_lshl_b32 s48, s48, 4
        s_add_u32 s46, s46, s48
        s_and_b32 s48, s39, 1
        s_lshl_b32 s48, s48, 11
        s_add_u32 s46, s46, s48
        v_lshlrev_b32 v5, 13, v4
        v_lshl_add_u32 v5, v3, 10, v5
        v_add_u32 v6, 0x1000, v5
        buffer_store_dwordx4 v[{T}:{T+3}], v5, s[24:27], s46 offen
        buffer_store_dwordx4 v[{T+4}:{T+7}], v6, s[24:27], s46 offen
        """)
    if layer1 and LEAN:
        a.comment("workgroup 0: launch epoch = stored word + 1 (never 0 or the fill pattern)")
        a(f"""
        s_xor_b32 s51, s40, 7
        s_or_b32 s51, s51, s2
        s_cmp_lg_u32 s51, 0
        s_cbranch_scc1 {name}_ne
        v_mov_b32 v20, 0
        s_mov_b32 s53, {hex(LY.EP)}
        buffer_load_dword v21, v20, s[24:27], s53 offen sc1
        s_waitcnt vmcnt(0)
        v_add_u32 v21, 2, v21
        v_max_u32 v21, 2, v21
        v_subrev_u32 v21, 1, v21
        s_mov_b64 exec, 1
        buffer_store_dword v21, v20, s[24:27], s53 offen
        s_mov_b64 exec, -1
        """)
        a.label(f"{name}_ne")
    a("s_endpgm")
    return 212
```

```python
import struct
from asmlib import *
import layout as LY

def f32hex(x):
    return hex(struct.unpack("<I", struct.pack("<f", x))[0])
def p(b): return f"v[{b}:{b+1}]"

CS = 4160
CHB = 2 * CS + 6144
FLAG = 131072 + 2 * CHB
XCH = 0
YL = 151552
U = 8
CPRIO = 3
LOCALO = 0
TOUCH = 0
TWO = 1
FAST = 1
GATHER = 0
CUT_QA = 0
CUT_OQ = 0
SLEEP = 4
CSLEEP = 1
NFAIL = 24
DIAGL = 1
THR_A, THR_H, THR_O = 1, 3, 4
WDEPTH = 8
GSLEEP = 2
PLO, PHI = 13, 0
LDS_BYTES = 163840
N = "mega"


def poll(a, soff, tag):
    L = a.uid(f"{N}_pl{tag}")
    a(f"s_mov_b32 s69, 0x10000")
    a.label(L)
    a(f"""
    buffer_load_dword v15, v2, s[24:27], s{soff} offen sc1
    s_waitcnt vmcnt(0)
    v_cmp_ne_u32 vcc, 0, v15
    s_cmp_eq_u64 vcc, -1
    s_cbranch_scc1 {L}_d
    s_sub_u32 s69, s69, 1
    s_cbranch_scc1 {L}_d
    s_sleep {SLEEP}
    s_branch {L}
    """)
    a.label(L + "_d")

def set_flag(a, soff):
    a(f"""
    v_mov_b32 v15, 1
    v_mov_b32 v14, 0
    s_waitcnt vmcnt(0)
    s_mov_b64 exec, 1
    buffer_store_dword v15, v14, s[24:27], s{soff} offen sc1
    s_mov_b64 exec, -1
    """)

def maxchain(a, dst, regs):
    regs = list(regs)
    a(f"v_max3_u32 v{dst}, v{regs[0]}, v{regs[1]}, v{regs[2]}")
    rest = regs[3:]
    while len(rest) >= 2:
        a(f"v_max3_u32 v{dst}, v{dst}, v{rest[0]}, v{rest[1]}")
        rest = rest[2:]
    if rest: a(f"v_max_u32 v{dst}, v{dst}, v{rest[0]}")

def checked(a, loads, regs, first_wait=None, sleep=None, switch=None):
    L = a.uid(f"{N}_ck")
    a("s_mov_b32 s69, 0x8000")
    if first_wait is not None:
        a(f"s_waitcnt vmcnt({first_wait})")
        a(f"s_branch {L}_c")
    a.label(L)
    loads()
    a("s_waitcnt vmcnt(0)")
    a.label(L + "_c")
    maxchain(a, 15, regs)
    a(f"""
    v_cmp_eq_u32 vcc, -1, v15
    s_cmp_eq_u64 vcc, 0
    s_cbranch_scc1 {L}_d
    s_sub_u32 s69, s69, 1
    s_cbranch_scc1 {L}_d
    """)
    switch_copy(a, L, switch)
    a(f"""
    s_sleep {CSLEEP if sleep is None else sleep}
    s_branch {L}
    """)
    a.label(L + "_d")

def switch_copy(a, L, regs):
    if not regs: return
    a(f"""
    s_cmp_lg_u32 s69, {0x8000 - NFAIL}
    s_cbranch_scc1 {L}_ns
    """)
    for r in regs: a(f"v_or_b32 v{r}, {hex(LY.GD)}, v{r}")
    a.label(f"{L}_ns")

def checked_units(a, units, wait=None, sleep=None, switch=None):
    L = a.uid(f"{N}_cu")
    n = len(units)
    a("s_mov_b32 s69, 0x8000")
    a(f"s_mov_b32 s66, {hex((1 << n) - 1)}")
    wait()
    allregs = [r for (_, regs, _) in units for r in regs]
    maxchain(a, 15, allregs)
    a(f"""
    v_cmp_eq_u32 vcc, -1, v15
    s_cmp_eq_u64 vcc, 0
    s_cbranch_scc0 {L}_c
    """)
    for (_, _, ok) in units:
        if ok: ok()
    a(f"s_branch {L}_d")
    a.label(L)
    for i, (ld, regs, ok) in enumerate(units):
        a(f"s_bitcmp1_b32 s66, {i}")
        a(f"s_cbranch_scc0 {L}_l{i}")
        ld()
        a.label(f"{L}_l{i}")
    a("s_waitcnt vmcnt(0)")
    a.label(L + "_c")
    for i, (ld, regs, ok) in enumerate(units):
        a(f"s_bitcmp1_b32 s66, {i}")
        a(f"s_cbranch_scc0 {L}_k{i}")
        maxchain(a, 15, regs)
        a(f"""
        v_cmp_eq_u32 vcc, -1, v15
        s_cmp_eq_u64 vcc, 0
        s_cbranch_scc0 {L}_k{i}
        s_bitset0_b32 s66, {i}
        """)
        if ok: ok()
        a.label(f"{L}_k{i}")
    a(f"""
    s_cmp_eq_u32 s66, 0
    s_cbranch_scc1 {L}_d
    s_sub_u32 s69, s69, 1
    s_cbranch_scc1 {L}_d
    """)
    switch_copy(a, L, switch)
    a(f"""
    s_sleep {CSLEEP if sleep is None else sleep}
    s_branch {L}
    """)
    a.label(L + "_d")

def hint_wait(a, vaddr, soff, nl, sleep=None, switch=None, thr=0):
    L = a.uid(f"{N}_hw")
    a("s_mov_b32 s69, 0x8000")
    a.label(L)
    a(f"""
    s_mov_b64 exec, {hex((1 << nl) - 1)}
    buffer_load_dword v15, v{vaddr}, s[24:27], {soff} offen sc1
    s_waitcnt vmcnt(0)
    v_cmp_eq_u32 vcc, -1, v15
    s_mov_b64 exec, -1
    s_bcnt1_i32_b64 s66, vcc
    s_cmp_le_u32 s66, {thr}
    s_cbranch_scc1 {L}_d
    s_sub_u32 s69, s69, 1
    s_cbranch_scc1 {L}_d
    """)
    switch_copy(a, L, switch)
    a(f"""
    s_sleep {CSLEEP if sleep is None else sleep}
    s_branch {L}
    """)
    a.label(L + "_d")

def sanitize(a, regs):
    for r in regs: a(f"v_min_u32 v{r}, s67, v{r}")

def entries():
    return [("mega_kernel" if TWO else "interleave_layers__mha_block__ssm_conv_h3__prompt_kernel", 0)]

def flag_wait(a, soff, nload=1, wide=False, tag="f"):
    L = a.uid(f"{N}_fw{tag}")
    a("s_mov_b32 s69, 0x10000")
    a.label(L)
    regs = []
    for n in range(nload):
        if wide:
            a(f"buffer_load_dwordx4 v[{16+4*n}:{19+4*n}], v3, s[24:27], s{soff} offen offset:{n*1024} sc1")
            regs += list(range(16 + 4*n, 20 + 4*n))
        else:
            a(f"buffer_load_dword v{16+n}, v2, s[24:27], s{soff} offen offset:{n*256} sc1")
            regs.append(16 + n)
    a("s_waitcnt vmcnt(0)")
    a(f"v_xor_b32 v15, s65, v{regs[0]}")
    for r in regs[1:]:
        a(f"v_xor_b32 v{r}, s65, v{r}")
        a(f"v_or_b32 v15, v15, v{r}")
    a(f"""
    v_cmp_ne_u32 vcc, 0, v15
    s_cmp_eq_u64 vcc, 0
    s_cbranch_scc1 {L}_d
    s_sub_u32 s69, s69, 1
    s_cbranch_scc1 {L}_d
    s_sleep 2
    s_branch {L}
    """)
    a.label(L + "_d")

def publish(a, soff, wait=0):
    a(f"""
    v_mov_b32 v15, s65
    v_mov_b32 v14, 0
    s_waitcnt vmcnt({wait})
    s_mov_b64 exec, 1
    buffer_store_dword v15, v14, s[24:27], s{soff} offen sc1
    s_mov_b64 exec, -1
    """)

def emit(a):
    kernel_begin(a, entries()[0][0])
    a(f"""
    s_cmp_ge_u32 s2, 256
    s_cbranch_scc1 {N}_done
    s_load_dwordx4 s[4:7], s[0:1], 0
    s_load_dwordx2 s[18:19], s[0:1], 16
    s_load_dwordx2 s[8:9], s[0:1], 72
    s_load_dwordx2 s[10:11], s[0:1], 48
    s_load_dwordx2 s[12:13], s[0:1], 64
    s_load_dwordx2 s[14:15], s[0:1], 88
    s_load_dwordx2 s[16:17], s[0:1], 56
    s_load_dwordx4 s[28:31], s[0:1], 32
    v_lshrrev_b32 v2, 6, v0
    v_and_b32 v1, 63, v0
    v_readfirstlane_b32 s40, v2
    v_lshlrev_b32 v3, 4, v1
    v_lshlrev_b32 v2, 2, v1
    s_mov_b32 s3, 0
    s_and_b32 s36, s2, 7
    s_lshr_b32 s37, s2, 3
    s_mov_b32 s67, 0xfffffffe
    s_waitcnt lgkmcnt(0)
    """)
    srd(a, 24, 14, LY.WS_USED)
    stamp(a, 0)
    if TWO:
        a.comment("launch epoch (bumped by the first launch): tags this run's hand-off words")
        a(f"s_mov_b32 s64, {hex(LY.EP)}")
        a(f"s_load_dword s65, s[14:15], s64")
        a("s_mov_b32 s34, s6")
        a("s_mov_b32 s35, s7")
    else:
        qkv1(a)
    a("s_mov_b32 s6, s18")
    a("s_mov_b32 s7, s19")
    a.label(f"{N}_layer")
    attention(a)
    oproj(a)
    qkv(a)
    a(f"""
    s_mov_b32 s3, 1
    s_branch {N}_layer
    """)
    a.label(f"{N}_done")
    a("s_endpgm")
    attention_fallback(a)
    return 168

QA, QB, S, O, P, KB, VB = 4, 8, (16, 32), (48, 64), 80, (88, 92), (96, 104)
def mf(a, d, x, y, c): a(f"v_mfma_f32_32x32x16_bf16 {vr(d,16)}, {vr(x,4)}, {vr(y,4)}, {c}")

def attention(a):
    TS = 32
    if LOCALO:
        a("s_mov_b32 s41, s37")
    else:
        a("""
        s_lshl_b32 s41, s36, 2
        s_and_b32 s46, s37, 3
        s_add_u32 s41, s41, s46
        """)
    a(f"""
    s_mul_i32 s38, s3, {hex(LY.QKVL)}
    s_lshl_b32 s48, s41, 16
    s_add_u32 s48, s48, s38
    """)
    a.label(f"{N}_a_go")
    stamp(a, 1)
    a(f"""
    s_cmp_ge_u32 s40, 8
    s_cbranch_scc1 {N}_help
    {"s_mov_b32 s42, s36" if LOCALO else "s_lshr_b32 s42, s37, 2"}
    s_and_b32 s43, s40, 3
    s_lshr_b32 s47, s40, 2
    s_lshl_b32 s42, s42, 3
    s_lshl_b32 s46, s43, 1
    s_add_u32 s42, s42, s46
    s_lshl_b32 s49, s42, 10
    s_add_u32 s49, s49, s48
    s_lshl_b32 s50, s47, 5
    s_add_u32 s51, s50, s43
    s_lshl_b32 s51, s51, 10
    s_add_u32 s52, s48, s51
    s_add_u32 s53, s52, {hex(LY.KF)}
    s_add_u32 s54, s52, {hex(LY.KF + 4096)}
    s_add_u32 s55, s52, {hex(LY.VF)}
    s_add_u32 s58, s52, {hex(LY.VF + 4096)}
    """)
    fu = [
        (lambda: a(f"buffer_load_dwordx4 v[16:19], v3, s[24:27], s53 offen sc1"), range(16, 20), lambda: a("ds_write_b128 v32, v[16:19]")),
        (lambda: a(f"buffer_load_dwordx4 v[20:23], v3, s[24:27], s55 offen sc1"), range(20, 24), lambda: a("ds_write_b128 v33, v[20:23]")),
        (lambda: a(f"buffer_load_dwordx4 v[{QA}:{QA+3}], v3, s[24:27], s49 offen sc1"), range(QA, QA + 4), None),
        (lambda: a(f"buffer_load_dwordx4 v[{QB}:{QB+3}], v3, s[24:27], s49 offen offset:1024 sc1"), range(QB, QB + 4), None),
        (lambda: a(f"buffer_load_dwordx4 v[24:27], v3, s[24:27], s54 offen sc1"), range(24, 28), lambda: a("ds_write_b128 v32, v[24:27] offset:4096")),
        (lambda: a(f"buffer_load_dwordx4 v[28:31], v3, s[24:27], s58 offen sc1"), range(28, 32), lambda: a("ds_write_b128 v33, v[28:31] offset:4096")),
    ]
    a(f"""
    s_cmp_lg_u32 s3, 0
    s_cbranch_scc1 {N}_a_h1
    s_lshr_b32 s59, s41, 1
    s_lshl_b32 s59, s59, 8
    s_add_u32 s59, s59, {hex(LY.FQ)}
    """)
    if not TWO: flag_wait(a, 59, tag="a")
    a(f"s_branch {N}_a_nh")
    a.label(f"{N}_a_h1")
    a(f"""
    s_add_u32 s59, s49, 1024
    v_writelane_b32 v14, s55, 0
    v_writelane_b32 v14, s58, 1
    v_writelane_b32 v14, s49, 2
    v_writelane_b32 v14, s59, 3
    s_movk_i32 s59, 1020
    """)
    hint_wait(a, 14, "s59", 4, thr=THR_A)
    a.label(f"{N}_a_nh")
    for u in fu: u[0]()
    if TOUCH:
        a.comment("the 8 workgroups of a head each pull a distinct eighth of its K/V into the XCD's L2 (speed only)")
        a(f"""
        s_lshr_b32 s59, s37, 2
        s_lshl_b32 s59, s59, 10
        s_lshl_b32 s60, s47, 21
        s_add_u32 s59, s59, s60
        s_lshl_b32 s60, s43, 14
        s_add_u32 s59, s59, s60
        s_add_u32 s59, s59, s48
        s_add_u32 s59, s59, {hex(LY.KF)}
        v_and_b32 v34, 7, v1
        v_lshlrev_b32 v34, 7, v34
        v_lshrrev_b32 v35, 3, v1
        v_lshl_add_u32 v34, v35, 13, v34
        s_mov_b64 exec, 0xffff
        buffer_load_dword v35, v34, s[24:27], s59 offen sc1
        s_mov_b64 exec, -1
        """)
    for r in range(16):
        a(f"v_mov_b32 v{O[0]+r}, 0")
        a(f"v_mov_b32 v{O[1]+r}, 0")
    a(f"""
    v_and_b32 v14, 27, v1
    v_cmp_eq_u32 vcc, 16, v14
    v_mov_b32 v15, 0x3f803f80
    s_lshl_b32 s59, s50, 10
    v_cndmask_b32 v14, 0, v15, vcc
    """)
    for r in range(16): a(f"v_mov_b32 v{VB[0]+r}, v14")
    for r in range(4): a(f"v_mov_b32 v{P+4+r}, 0")
    a(f"""
    v_add_u32 v12, s59, v3
    v_and_b32 v13, 15, v1
    v_lshlrev_b32 v13, 4, v13
    v_lshrrev_b32 v14, 5, v1
    v_lshl_add_u32 v13, v14, 8, v13
    s_add_u32 s59, s59, 0x10000
    v_add_u32 v13, s59, v13
    s_mov_b32 s56, 0xffff
    s_mov_b32 s57, 0xffff
    v_add_u32 v32, s51, v3
    v_add_u32 v33, 0x10000, v32
    """)
    checked_units(a, fu, wait=lambda: a("s_waitcnt vmcnt(0)"))
    a(f"""
    v_mov_b32 v14, {FLAG + 4}
    v_mov_b32 v112, 1
    s_waitcnt lgkmcnt(0)
    s_barrier
    """)
    stamp(a, 2)
    def kread(buf, t): a(f"ds_read_b128 v[{KB[buf]}:{KB[buf]+3}], v12 offset:{t*1024}")
    def vread(buf, t):
        a("s_mov_b64 exec, s[56:57]")
        a(f"ds_read_b128 v[{VB[buf]}:{VB[buf]+3}], v13 offset:{t*1024}")
        a(f"ds_read_b128 v[{VB[buf]+4}:{VB[buf]+7}], v13 offset:{t*1024+512}")
        a("s_mov_b64 exec, -1")
    kread(0, 0); vread(0, 0)
    a("s_waitcnt lgkmcnt(2)")
    mf(a, S[0], KB[0], QA, "0")
    a(f"""
    s_waitcnt lgkmcnt(0)
    s_mov_b32 s58, {TS // U}
    s_mov_b32 s59, 0
    s_nop 7
    s_nop 1
    """)
    a.label(f"{N}_loop")
    for t in range(U):
        cur, nxt = t & 1, (t + 1) & 1
        for ph in range(2):
            s, o, op, sp = S[ph], O[ph], O[1 - ph], S[1 - ph]
            e = lambda i: a(f"v_exp_f32 v{s+i}, v{s+i}")
            c = lambda j: a(f"v_cvt_pk_bf16_f32 v{P+j}, v{s+2*j}, v{s+2*j+1}")
            vprev = VB[cur] if ph == 1 else VB[nxt]
            if PLO >= 0 and 2 * t + ph in (PLO, PHI):
                sk = a.uid(f"{N}_pr")
                a(f"s_cmp_eq_u32 s47, 0")
                a(f"s_cbranch_scc1 {sk}")
                a(f"s_setprio {1 if 2 * t + ph == PHI else 0}")
                a.label(sk)
            e(0); e(1)
            mf(a, op, vprev + 4, P + 4, vr(op, 16))
            e(2); c(0); e(3); e(4); c(1); e(5)
            if ph == 0:
                mf(a, sp, KB[cur], QB, "0")
                if t == 7:
                    a(f"s_cmp_lg_u32 s59, 0")
                    a(f"s_cbranch_scc1 {N}_kvd")
                    stamp(a, 8)
                    a.label(f"{N}_kvw")
                    a(f"""
                    ds_read_b32 v15, v14
                    s_waitcnt lgkmcnt(0)
                    v_readfirstlane_b32 s59, v15
                    s_cmp_ge_u32 s59, 4
                    s_cbranch_scc0 {N}_kvw
                    """)
                    stamp(a, 12)
                    a.label(f"{N}_kvd")
                kread(nxt, t + 1); vread(nxt, t + 1)
            else:
                a("s_waitcnt lgkmcnt(2)")
                mf(a, sp, KB[nxt], QA, "0")
            e(6); c(2); e(7); e(8); c(3); e(9); e(10)
            mf(a, o, VB[cur], P, vr(o, 16))
            c(4); e(11); e(12); c(5); e(13); e(14); c(6); e(15)
            if ph == 1: a("s_waitcnt lgkmcnt(0)")
            elif t == U - 1: a(f"v_add_u32 v12, {U*1024}, v12")
            else: a("s_nop 0")
            c(7)
            if t == U - 1 and ph == 0: a(f"v_add_u32 v13, {U*1024}, v13")
    a(f"""
    s_cmp_lg_u32 s58, {TS // U - 16 // U + 1}
    s_cbranch_scc1 {N}_npg
    s_mov_b64 exec, 1
    ds_add_u32 v14, v112 offset:4
    s_mov_b64 exec, -1
    """)
    a.label(f"{N}_npg")
    a(f"""
    s_sub_u32 s58, s58, 1
    s_cmp_lg_u32 s58, 0
    s_cbranch_scc1 {N}_loop
    """)
    mf(a, O[1], VB[1] + 4, P + 4, vr(O[1], 16))
    stamp(a, 3)
    a(f"""
    s_setprio 0
    s_mul_i32 s54, s40, 2304
    s_add_u32 s54, s54, 131072
    v_add_u32 v14, s54, v2
    s_xor_b32 s55, s40, 4
    s_mul_i32 s55, s55, 2304
    s_add_u32 s55, s55, 131072
    v_add_u32 v13, s55, v2
    s_add_u32 s42, s42, s47
    s_nop 7
    s_barrier
    s_cmp_eq_u32 s47, 0
    s_cbranch_scc1 {N}_k1
    """)
    for r in range(9): a(f"ds_write_b32 v14, v{O[0]+r} offset:{r*256}")
    for r in range(9): a(f"v_mov_b32 v{O[0]+r}, v{O[1]+r}")
    for r in range(4): a(f"v_mov_b32 v{QA+r}, v{QB+r}")
    a(f"s_branch {N}_jn")
    a.label(f"{N}_k1")
    for r in range(9): a(f"ds_write_b32 v14, v{O[1]+r} offset:{r*256}")
    a.label(f"{N}_jn")
    a("s_waitcnt lgkmcnt(0)")
    a("s_barrier")
    for r in range(9): a(f"ds_read_b32 v{S[0]+r}, v13 offset:{r*256}")
    a("s_waitcnt lgkmcnt(0)")
    Oa = O[0]
    for r in range(9): a(f"v_add_f32 v{Oa+r}, v{Oa+r}, v{S[0]+r}")
    a(f"v_add_f32 v14, abs(v{Oa}), abs(v{Oa+1})")
    for r in range(2, 8): a(f"v_add_f32 v14, v14, abs(v{Oa+r})")
    a(f"""
    v_cmp_le_f32 vcc, {f32hex(2.0**-60)}, v{Oa+8}
    s_mov_b32 s61, {f32hex(2.0**60)}
    v_cmp_ge_f32 s[62:63], s61, v{Oa+8}
    s_and_b64 vcc, vcc, s[62:63]
    s_mov_b32 s61, 0x7f800000
    v_cmp_gt_f32 s[62:63], s61, v14
    s_and_b64 vcc, vcc, s[62:63]
    s_cmp_eq_u64 vcc, -1
    s_cbranch_scc0 {N}_fb
    """)
    a.label(f"{N}_fin")
    a(f"""
    v_rcp_f32 v14, v{Oa+8}
    s_lshl_b32 s54, s42, 15
    s_lshl_b32 s55, s41, 10
    s_add_u32 s54, s54, s55
    s_mul_i32 s55, s3, {hex(LY.OFL)}
    s_add_u32 s54, s54, s55
    s_add_u32 s54, s54, {hex(LY.OF)}
    """)
    for r in range(8): a(f"v_mul_f32 v{Oa+r}, v{Oa+r}, v14")
    for j in range(4): a(f"v_cvt_pk_bf16_f32 v{P+j}, v{Oa+2*j}, v{Oa+2*j+1}")
    sanitize(a, range(P, P + 4))
    if LOCALO:
        a(f"buffer_store_dwordx4 v[{P}:{P+3}], v3, s[24:27], s54 offen")
        a(f"s_add_u32 s54, s54, {hex(LY.GD)}")
    a(f"buffer_store_dwordx4 v[{P}:{P+3}], v3, s[24:27], s54 offen sc1")
    stamp(a, 4)
    a(f"s_branch {N}_op")
    helper(a)

def attention_fallback(a):
    C, Oa = O[1], O[0]
    a.label(f"{N}_fb")
    a(f"""
    s_add_u32 s52, s48, {hex(LY.KF)}
    v_mov_b32 v14, 0xff800000
    s_mov_b32 s59, 64
    """)
    a.label(f"{N}_fbl")
    a(f"""
    buffer_load_dwordx4 v[{KB[0]}:{KB[0]+3}], v3, s[24:27], s52 offen sc1
    s_add_u32 s52, s52, 1024
    s_waitcnt vmcnt(0)
    v_mfma_f32_32x32x16_bf16 {vr(S[0],16)}, {vr(KB[0],4)}, {vr(QA,4)}, 0
    s_nop 15
    """)
    for j in range(8): a(f"v_max3_f32 v14, v14, v{S[0]+2*j}, v{S[0]+2*j+1}")
    a(f"""
    s_sub_u32 s59, s59, 1
    s_cmp_lg_u32 s59, 0
    s_cbranch_scc1 {N}_fbl
    v_mov_b32 v15, v14
    s_nop 1
    v_permlane32_swap_b32 v14, v15
    s_nop 1
    v_max_f32 v14, v14, v15
    v_sub_f32 v14, 0, v14
    """)
    for r in range(16):
        a(f"v_mov_b32 v{C+r}, v14")
        a(f"v_mov_b32 v{Oa+r}, 0")
    a(f"""
    v_and_b32 v13, 15, v1
    v_lshlrev_b32 v13, 4, v13
    v_lshrrev_b32 v14, 5, v1
    v_lshl_add_u32 v13, v14, 8, v13
    s_add_u32 s52, s48, {hex(LY.KF)}
    s_add_u32 s53, s48, {hex(LY.VF)}
    s_mov_b32 s59, 64
    """)
    a.label(f"{N}_fbm")
    a(f"""
    buffer_load_dwordx4 v[{KB[0]}:{KB[0]+3}], v3, s[24:27], s52 offen sc1
    s_mov_b64 exec, s[56:57]
    buffer_load_dwordx4 v[{VB[0]}:{VB[0]+3}], v13, s[24:27], s53 offen sc1
    buffer_load_dwordx4 v[{VB[0]+4}:{VB[0]+7}], v13, s[24:27], s53 offen offset:512 sc1
    s_mov_b64 exec, -1
    s_add_u32 s52, s52, 1024
    s_add_u32 s53, s53, 1024
    s_waitcnt vmcnt(0)
    v_mfma_f32_32x32x16_bf16 {vr(S[0],16)}, {vr(KB[0],4)}, {vr(QA,4)}, {vr(C,16)}
    s_nop 15
    """)
    for i in range(16): a(f"v_exp_f32 v{S[0]+i}, v{S[0]+i}")
    a("s_nop 0")
    for j in range(8): a(f"v_cvt_pk_bf16_f32 v{P+j}, v{S[0]+2*j}, v{S[0]+2*j+1}")
    a("s_nop 1")
    mf(a, Oa, VB[0], P, vr(Oa, 16))
    mf(a, Oa, VB[0] + 4, P + 4, vr(Oa, 16))
    a(f"""
    s_sub_u32 s59, s59, 1
    s_cmp_lg_u32 s59, 0
    s_cbranch_scc1 {N}_fbm
    s_nop 15
    s_branch {N}_fin
    """)

def helper(a):
    a.label(f"{N}_help")
    a(f"""
    s_sub_u32 s39, s40, 8
    s_lshl_b32 s51, s39, 10
    s_add_u32 s52, s48, s51
    v_mov_b32 v5, 0
    v_mov_b32 v8, 0
    v_mov_b32 v9, 0
    v_mov_b32 v10, 0
    v_mov_b32 v11, 0
    v_mov_b32 v4, {FLAG}
    ds_write_b128 v4, v[8:11]
    ds_write_b128 v4, v[8:11] offset:16
    ds_write_b128 v4, v[8:11] offset:32
    s_lshr_b32 s41, s39, 1
    s_and_b32 s42, s39, 1
    s_lshl_b32 s38, s36, 5
    s_add_u32 s38, s38, s37
    s_lshl_b32 s43, s38, 1
    s_add_u32 s43, s43, s41
    s_mul_i32 s45, s41, {CHB}
    s_add_u32 s45, s45, 131072
    s_lshl_b32 s46, s43, 12
    s_lshl_b32 s44, s38, 2
    s_lshl_b32 s48, s42, 11
    v_lshrrev_b32 v6, 5, v1
    v_and_b32 v7, 31, v1
    s_movk_i32 s53, 1536
    v_mul_lo_u32 v12, v6, s53
    v_lshl_add_u32 v12, v7, 4, v12
    s_mul_i32 s49, s42, 3072
    s_add_u32 s49, s49, s45
    s_add_u32 s53, s49, {2*CS}
    v_add_u32 v12, s53, v12
    ds_write_b128 v12, v[8:11]
    s_waitcnt lgkmcnt(0)
    s_barrier
    s_setprio 3
    """)
    a(f"""
    v_add_u32 v41, s51, v3
    v_add_u32 v42, 0x10000, v41
    s_add_u32 s53, s52, {hex(LY.KF)}
    s_add_u32 s54, s52, {hex(LY.KF + 32768)}
    s_add_u32 s55, s52, {hex(LY.VF)}
    s_add_u32 s56, s52, {hex(LY.VF + 32768)}
    """)
    KVS = 64
    def unit(b, i, q):
        n = 2 + 2*b + i
        r = KVS + 32*b + 16*i + 4*q
        sb = (53, 55, 54, 56)[q]
        def ld():
            a(f"s_add_u32 s57, s{sb}, {n*4096}")
            a(f"buffer_load_dwordx4 v[{r}:{r+3}], v3, s[24:27], s57 offen sc1")
        return (ld, range(r, r + 4), lambda: a(f"ds_write_b128 v{41 + (q & 1)}, v[{r}:{r+3}] offset:{n*4096 + (q >> 1)*32768}"))
    batches = [[unit(b, i, q) for i in range(2) for q in range(4)] for b in range(3)]
    a(f"""
    s_cmp_eq_u32 s3, 0
    s_cbranch_scc1 {N}_h_nh
    v_and_b32 v14, 1, v1
    v_lshlrev_b32 v14, 15, v14
    v_lshrrev_b32 v15, 1, v1
    v_lshl_add_u32 v14, v15, 12, v14
    s_add_u32 s57, s55, {8192 + 1020}
    """)
    hint_wait(a, 14, "s57", 12, thr=THR_H)
    a.label(f"{N}_h_nh")
    for bt in batches:
        for u in bt: u[0]()
    a(f"""
    s_cmp_lg_u32 s3, 0
    s_cbranch_scc1 {N}_hkv
    """)
    conv_loads(a)
    a.label(f"{N}_hkv")
    for b in range(3):
        def w(b=b):
            L = a.uid(f"{N}_hw")
            a(f"""
            s_cmp_lg_u32 s3, 0
            s_cbranch_scc1 {L}
            s_waitcnt vmcnt({16 - 8*b + 5})
            s_branch {L}_d
            """)
            a.label(L)
            a(f"s_waitcnt vmcnt({16 - 8*b})")
            a.label(L + "_d")
        checked_units(a, batches[b], wait=w)
    a(f"""
    v_mov_b32 v15, 1
    s_waitcnt lgkmcnt(0)
    s_mov_b64 exec, 1
    ds_add_u32 v4, v15 offset:4
    s_mov_b64 exec, -1
    s_cmp_lg_u32 s3, 0
    s_cbranch_scc1 {N}_hend
    """)
    conv_gathers(a)
    HL, T = 48, 16
    a(f"""
    s_add_u32 s52, s45, s48
    v_add_u32 v13, s52, v3
    s_waitcnt vmcnt({22 if LOCALO else 18})
    """)
    for it in range(2):
        A, B = HL + 8*it, HL + 8*it + 4
        for j in range(4):
            a(f"v_alignbyte_b32 v{44+j}, v{B+j}, v{A+j}, 2")
        o = 64 + it * 1024
        a(f"ds_write_b128 v13, v[44:47] offset:{o}")
        a(f"ds_write_b128 v13, v[{B}:{B+3}] offset:{o + CS}")
    a(f"""
    s_cmp_lg_u32 s42, 0
    s_cbranch_scc1 {N}_hs
    v_lshlrev_b32 v44, 16, v40
    v_cmp_eq_u32 vcc, 3, v1
    s_nop 1
    v_cndmask_b32 v11, v11, v44, vcc
    v_cmp_eq_u32 vcc, 7, v1
    s_nop 1
    v_cndmask_b32 v11, v11, v40, vcc
    v_lshrrev_b32 v12, 2, v1
    s_movk_i32 s52, {CS}
    v_mul_lo_u32 v12, v12, s52
    v_and_b32 v14, 3, v1
    v_lshl_add_u32 v12, v14, 4, v12
    v_add_u32 v12, s45, v12
    s_mov_b64 exec, 0xff
    ds_write_b128 v12, v[8:11]
    s_mov_b64 exec, -1
    """)
    a.label(f"{N}_hs")
    if GATHER:
        KFp, VFp, WPr, RS = 64, 86, 102, 16
        D0 = 36
        a(f"""
        v_lshlrev_b32 v{WPr+0}, 16, v{D0}
        v_lshlrev_b32 v{WPr+1}, 16, v{D0+2}
        v_and_b32 v{WPr+2}, 0xffff0000, v{D0}
        v_and_b32 v{WPr+3}, 0xffff0000, v{D0+2}
        v_lshlrev_b32 v{WPr+4}, 16, v{D0+1}
        v_lshlrev_b32 v{WPr+5}, 16, v{D0+3}
        v_and_b32 v{WPr+6}, 0xffff0000, v{D0+1}
        v_and_b32 v{WPr+7}, 0xffff0000, v{D0+3}
        v_and_b32 v12, 3, v1
        s_movk_i32 s52, 1536
        v_mul_lo_u32 v12, v12, s52
        v_lshrrev_b32 v14, 2, v1
        v_lshl_add_u32 v14, v14, 4, v12
        s_lshl_b32 s52, s39, 8
        s_add_u32 s52, s52, {131072 + 2*CS + 512}
        v_add_u32 v14, s52, v14
        s_waitcnt vmcnt(14)
        """)
        for r in range(11):
            a(f"v_lshlrev_b32 v{KFp+2*r}, 16, v{T+r}")
            a(f"v_and_b32 v{KFp+2*r+1}, 0xffff0000, v{T+r}")
        for r in range(8):
            a(f"v_lshlrev_b32 v{VFp+2*r}, 16, v{T+11+r}")
            a(f"v_and_b32 v{VFp+2*r+1}, 0xffff0000, v{T+11+r}")
        for t in range(8):
            a(f"v_pk_mul_f32 {p(RS+2*t)}, {p(KFp+2*t)}, {p(WPr+6)}")
        for jj in (2, 1, 0):
            for t in range(8):
                a(f"v_pk_fma_f32 {p(RS+2*t)}, {p(KFp+2*(t+3-jj))}, {p(WPr+2*jj)}, {p(RS+2*t)}")
        for t in range(8):
            a(f"v_pk_mul_f32 {p(RS+2*t)}, {p(RS+2*t)}, {p(VFp+2*t)}")
        for q in range(4):
            a(f"v_cvt_pk_bf16_f32 v{32+q}, v{RS+2*(7-2*q)}, v{RS+2*(6-2*q)}")
            a(f"v_cvt_pk_bf16_f32 v{36+q}, v{RS+2*(7-2*q)+1}, v{RS+2*(6-2*q)+1}")
        a(f"""
        ds_write_b128 v14, v[32:35]
        ds_write_b128 v14, v[36:39] offset:{CHB}
        """)
    a(f"""
    v_mov_b32 v5, 1
    s_waitcnt lgkmcnt(0)
    s_mov_b64 exec, 1
    ds_add_u32 v4, v5
    s_mov_b64 exec, -1
    v_and_b32 v12, 1, v1
    s_movk_i32 s52, {CS - 2}
    v_mul_lo_u32 v12, v12, s52
    v_and_b32 v14, 19, v1
    v_lshl_add_u32 v12, v14, 1, v12
    v_bfe_u32 v14, v1, 2, 1
    v_lshl_add_u32 v12, v14, 4, v12
    v_bfe_u32 v14, v1, 3, 1
    v_lshl_add_u32 v12, v14, 3, v12
    v_lshlrev_b32 v14, 4, v6
    v_sub_u32 v12, v12, v14
    s_add_u32 s53, s45, 16
    v_add_u32 v12, s53, v12
    s_movk_i32 s52, 1536
    v_mul_lo_u32 v13, v6, s52
    v_lshl_add_u32 v13, v7, 4, v13
    s_lshl_b32 s59, s42, 9
    s_add_u32 s53, s45, s59
    s_add_u32 s53, s53, {2*CS}
    v_add_u32 v8, s53, v13
    v_subrev_u32 v13, 64, v8
    s_lshl_b32 s55, s42, 2
    s_add_u32 s55, s55, 8
    """)
    ACC = 64
    for r in range(16): a(f"v_mov_b32 v{ACC+r}, 0")
    a.label(f"{N}_cw")
    a(f"""
    ds_read_b32 v5, v4
    s_waitcnt lgkmcnt(0)
    v_readfirstlane_b32 s52, v5
    s_cmp_ge_u32 s52, 4
    s_cbranch_scc1 {N}_cwd
    s_sleep 2
    s_branch {N}_cw
    """)
    a.label(f"{N}_cwd")
    if TWO:
        a(f"""
        buffer_store_dwordx4 v[152:155], v3, s[24:27], s33 offen sc1
        buffer_store_dwordx4 v[156:159], v3, s[24:27], s33 offen offset:1024 sc1
        """)
    a(f"""
    s_lshl_b32 s53, s2, 4
    s_lshl_b32 s54, s39, 2
    s_add_u32 s53, s53, s54
    s_add_u32 s53, s53, {hex(LY.FF)}
    """)
    publish(a, 53)
    a(f"""
    s_lshl_b32 s53, s37, 14
    s_lshl_b32 s54, s39, 12
    s_add_u32 s53, s53, s54
    s_mov_b32 s20, s6
    s_mov_b32 s21, s7
    s_mov_b32 s22, 0x80000
    v_lshlrev_b32 v80, 6, v1
    buffer_load_dword v81, v80, s[20:23], s53 offen
    """)
    BUF = (16, 84)
    ACC2 = 116
    def reads(buf, d0, only=None):
        for dd in range(2):
            for kp in range(2):
                if only is not None and only != 2 * dd + kp: continue
                b = BUF[buf] + 16 * dd + 8 * kp
                ao = 8 * (2 * (d0 + dd) - kp + 1)
                a(f"ds_read2_b32 v[{b}:{b+1}], v12 offset0:{ao} offset1:{ao+1}")
                a(f"ds_read2_b32 v[{b+2}:{b+3}], v12 offset0:{ao+2} offset1:{ao+3}")
                a(f"ds_read_b128 v[{b+4}:{b+7}], v13 offset:{kp * 3072 + (32 - d0 - dd) * 16 + 64}")
    def half(buf, acc, d_next):
        a("s_waitcnt lgkmcnt(0)")
        for q in range(4):
            b = BUF[buf] + 8 * q
            mf(a, acc, b, b + 4, vr(acc, 16))
            reads(1 - buf, d_next, only=q)
    def cloop(tag, acc):
        reads(0, 0)
        a.label(f"{N}_clp{tag}")
        half(0, acc, 2)
        half(1, acc, 4)
        a(f"""
        v_add_u32 v12, 256, v12
        v_subrev_u32 v13, 64, v13
        s_sub_u32 s55, s55, 1
        s_cmp_lg_u32 s55, 0
        s_cbranch_scc1 {N}_clp{tag}
        s_waitcnt lgkmcnt(0)
        """)
    for r in range(16): a(f"v_mov_b32 v{ACC2+r}, 0")
    a(f"s_setprio {CPRIO}")
    cloop("a", ACC)
    a(f"""
    s_lshl_b32 s52, s41, 12
    s_add_u32 s52, s52, {XCH}
    v_add_u32 v9, s52, v3
    s_lshl_b32 s52, s41, 2
    v_add_u32 v10, s52, v4
    s_cmp_lg_u32 s42, 0
    s_cbranch_scc1 {N}_cj1
    v_add_u32 v12, {16*64}, v12
    v_add_u32 v13, 256, v13
    s_mov_b32 s55, 4
    """)
    cloop("b", ACC2)
    a.label(f"{N}_cpg")
    a(f"""
    ds_read_b32 v5, v4 offset:8
    s_waitcnt lgkmcnt(0)
    v_readfirstlane_b32 s52, v5
    s_cmp_ge_u32 s52, 8
    s_cbranch_scc1 {N}_cpd
    s_sleep 4
    s_branch {N}_cpg
    """)
    a.label(f"{N}_cpd")
    a("s_nop 7")
    for g in range(4): a(f"ds_write_b128 v9, v[{ACC2+4*g}:{ACC2+4*g+3}] offset:{g*1024}")
    a(f"""
    v_mov_b32 v5, 1
    s_waitcnt lgkmcnt(0)
    s_mov_b64 exec, 1
    ds_write_b32 v10, v5 offset:12
    s_mov_b64 exec, -1
    s_branch {N}_cjd
    """)
    a.label(f"{N}_cj1")
    a(f"""
    ds_read_b32 v5, v10 offset:12
    s_waitcnt lgkmcnt(0)
    v_readfirstlane_b32 s52, v5
    s_cmp_lg_u32 s52, 0
    s_cbranch_scc1 {N}_cj2
    s_sleep 1
    s_branch {N}_cj1
    """)
    a.label(f"{N}_cj2")
    for g in range(4): a(f"ds_read_b128 v[{ACC2+4*g}:{ACC2+4*g+3}], v9 offset:{g*1024}")
    a("s_waitcnt lgkmcnt(0)")
    for r in range(16): a(f"v_add_f32 v{ACC+r}, v{ACC+r}, v{ACC2+r}")
    a.label(f"{N}_cjd")
    a(f"""
    ds_read_b128 v[16:19], v8 offset:512
    ds_read_b128 v[20:23], v8 offset:{3072 + 512}
    s_lshl_b32 s60, s47, 16
    s_and_b32 s61, s47, 0xffff0000
    s_cmp_eq_u32 s41, 0
    s_cselect_b32 s60, s60, s61
    v_lshlrev_b32 v12, 4, v7
    v_lshl_add_u32 v12, v6, 10, v12
    s_lshl_b32 s59, s42, 9
    s_add_u32 s58, s59, s46
    s_add_u32 s58, s58, {hex(LY.YT)}
    s_lshl_b32 s59, s42, 11
    s_waitcnt lgkmcnt(0)
    """)
    for kp in range(2):
        for j in range(4):
            a(f"v_lshlrev_b32 v{24+8*kp+7-2*j}, 16, v{16+4*kp+j}")
            a(f"v_and_b32 v{24+8*kp+6-2*j}, 0xffff0000, v{16+4*kp+j}")
    for r in range(16): a(f"v_mul_f32 v{24+r}, s60, v{24+r}")
    for j in range(8):
        a(f"v_cvt_pk_bf16_f32 v{16+j}, v{ACC+2*j}, v{ACC+2*j+1}")
        a(f"v_cvt_pk_bf16_f32 v{40+j}, v{24+2*j}, v{24+2*j+1}")
    for j in range(8):
        a(f"v_lshlrev_b32 v{ACC+2*j}, 16, v{16+j}")
        a(f"v_and_b32 v{ACC+2*j+1}, 0xffff0000, v{16+j}")
        a(f"v_lshlrev_b32 v{24+2*j}, 16, v{40+j}")
        a(f"v_and_b32 v{24+2*j+1}, 0xffff0000, v{40+j}")
    for r in range(16): a(f"v_add_f32 v{ACC+r}, v{ACC+r}, v{24+r}")
    for j in range(8): a(f"v_cvt_pk_bf16_f32 v{16+j}, v{ACC+2*j}, v{ACC+2*j+1}")
    a(f"""
    buffer_store_dwordx4 v[16:19], v12, s[24:27], s58 offen sc1
    buffer_store_dwordx4 v[20:23], v12, s[24:27], s58 offen offset:2048 sc1
    s_lshl_b32 s68, s43, 2
    s_add_u32 s68, s68, s59
    s_add_u32 s68, s68, {hex(LY.FY)}
    """)
    publish(a, 68)
    a(f"""
    s_cmp_lg_u32 s39, 0
    s_cbranch_scc1 {N}_nall
    s_mov_b32 s53, {hex(LY.FU)}
    """)
    if not TWO: flag_wait(a, 53, nload=4, wide=True, tag="x")
    a(f"s_mov_b32 s53, {hex(LY.FF)}")
    flag_wait(a, 53, nload=4, wide=True, tag="y")
    if not TWO:
        a(f"s_mov_b32 s53, {hex(LY.FQ)}")
        flag_wait(a, 53, nload=4, wide=True, tag="z")
    a.label(f"{N}_nall")
    a(f"""
    v_mov_b32 v5, 1
    s_mov_b64 exec, 1
    ds_add_u32 v4, v5
    s_mov_b64 exec, -1
    """)
    a.label(f"{N}_cw2")
    a(f"""
    ds_read_b32 v5, v4
    s_waitcnt lgkmcnt(0)
    v_readfirstlane_b32 s52, v5
    s_cmp_ge_u32 s52, 8
    s_cbranch_scc1 {N}_cw3
    s_sleep 1
    s_branch {N}_cw2
    """)
    a.label(f"{N}_cw3")
    a(f"""
    v_lshlrev_b32 v80, 7, v1
    s_mul_i32 s53, s37, 49152
    s_mul_i32 s54, s39, 12288
    s_add_u32 s53, s53, s54
    s_add_u32 s53, s53, {hex(LY.WP)}
    buffer_load_dword v81, v80, s[24:27], s53 offen
    s_add_u32 s53, s53, 4096
    buffer_load_dword v81, v80, s[24:27], s53 offen
    """)
    a.label(f"{N}_hend")
    wo_preload(a, "b")
    a(f"""
    s_setprio 0
    s_barrier
    s_barrier
    """)

def conv_loads(a):
    a(f"""
    s_load_dword s47, s[12:13], s44
    s_add_u32 s20, s16, s46
    s_addc_u32 s21, s17, 0
    s_movk_i32 s22, 0x1000
    s_mov_b32 s23, 0x00020000
    v_add_u32 v13, s48, v3
    """)
    if GATHER:
        srd(a, 32, 28, 0x200000)
        srd(a, 60, 30, 0x200000)
    HL = 48
    for it in range(2):
        for k in range(2):
            a(f"buffer_load_dwordx4 v[{HL+8*it+4*k}:{HL+8*it+4*k+3}], v13, s[20:23], 0 offen offset:{it*1024 + 4*k}")
    T = 16
    a(f"""
    buffer_load_dword v40, v5, s[20:23], 0 offen
    """)
    if GATHER:
        a(f"""
        s_mov_b32 s20, s10
        s_mov_b32 s21, s11
        s_lshl_b32 s50, s38, 4
        buffer_load_dwordx4 v[36:39], v5, s[20:23], s50 offen
        s_lshl_b32 s50, s39, 19
        s_add_u32 s50, s50, s44
        v_lshlrev_b32 v12, 13, v1
        v_add_u32 v12, s50, v12
        v_add_u32 v13, 0x1000, v12
        v_subrev_u32 v14, 0xc00, v12
        """)
    else:
        pass

def conv_u(a):
    if True:
        a(f"""
        s_lshl_b32 s50, s36, 9
        s_add_u32 s50, s50, {hex(LY.FU)}
        """)
        if not TWO: flag_wait(a, 50, nload=2, tag="u")
        a(f"""
        s_add_u32 s50, s46, s48
        s_add_u32 m0, s49, {2*CS + 512}
        s_add_u32 s57, s50, {hex(LY.UT)}
        buffer_load_dwordx4 v3, s[24:27], s57 offen sc1 lds
        s_add_u32 m0, s49, {2*CS + 512 + 1536}
        s_add_u32 s57, s50, {hex(LY.UT + 1024)}
        buffer_load_dwordx4 v3, s[24:27], s57 offen sc1 lds
        """)

def conv_gathers(a):
    T = 16
    if not GATHER:
        conv_u(a)
        if TWO:
            a.comment("packed copy of wqkv for layer 2: rows [32r,32r+32) of column tile c', tile f = cw (3 repeats 2)")
            a(f"""
            s_mov_b32 s20, s34
            s_mov_b32 s21, s35
            s_mov_b32 s22, 0x180000
            v_lshrrev_b32 v12, 2, v1
            s_movk_i32 s52, 3072
            v_mul_lo_u32 v12, v12, s52
            v_and_b32 v13, 3, v1
            v_lshl_add_u32 v12, v13, 4, v12
            s_lshr_b32 s52, s2, 4
            s_and_b32 s53, s2, 15
            s_min_u32 s56, s39, 2
            s_lshl_b32 s57, s56, 10
            s_lshl_b32 s58, s53, 6
            s_add_u32 s57, s57, s58
            s_mul_i32 s58, s52, {32*3072}
            s_add_u32 s57, s57, s58
            buffer_load_dwordx4 v[152:155], v12, s[20:23], s57 offen
            s_add_u32 s57, s57, {16*3072}
            buffer_load_dwordx4 v[156:159], v12, s[20:23], s57 offen
            s_mul_i32 s55, s53, {8*12288}
            s_lshr_b32 s58, s52, 1
            s_mul_i32 s58, s58, 12288
            s_add_u32 s55, s55, s58
            s_and_b32 s58, s52, 1
            s_lshl_b32 s58, s58, 11
            s_add_u32 s55, s55, s58
            s_lshl_b32 s56, s56, 12
            s_add_u32 s55, s55, s56
            s_add_u32 s33, s55, {hex(LY.WP)}
            """)
        prefill(a)
        return
    for r in range(3):
        a(f"buffer_load_dword v{T+r}, v14, s[32:35], 0 offen offset:{r*1024}")
    for r in range(8):
        a(f"buffer_load_dword v{T+3+r}, v{12 if r < 4 else 13}, s[32:35], 0 offen offset:{(r%4)*1024}")
    for r in range(8):
        a(f"buffer_load_dword v{T+11+r}, v{12 if r < 4 else 13}, s[60:63], 0 offen offset:{(r%4)*1024}")
    prefill(a)

def wo_preload(a, tag):
    a.label(f"{N}_wp{tag}")
    a(f"""
    ds_read_b32 v84, v4 offset:8
    s_waitcnt lgkmcnt(0)
    v_readfirstlane_b32 s52, v84
    s_cmp_ge_u32 s52, 8
    s_cbranch_scc1 {N}_wq{tag}
    s_sleep 8
    s_branch {N}_wp{tag}
    """)
    a.label(f"{N}_wq{tag}")
    a(f"""
    s_mov_b32 s20, s6
    s_mov_b32 s21, s7
    s_mov_b32 s22, 0x80000
    s_mov_b32 s23, 0x00020000
    v_bfe_u32 v84, v1, 2, 3
    v_lshlrev_b32 v84, 10, v84
    v_lshrrev_b32 v85, 5, v1
    v_lshl_add_u32 v84, v85, 6, v84
    v_and_b32 v85, 3, v1
    v_lshl_add_u32 v84, v85, 4, v84
    s_lshr_b32 s52, s37, 2
    s_lshl_b32 s52, s52, 7
    s_lshl_b32 s53, s39, 13
    s_add_u32 s52, s52, s53
    s_lshl_b32 s54, s39, 10
    """)
    for n in range(16):
        a(f"s_add_u32 m0, s54, {(n >> 2)*32768 + (n & 3)*4096}")
        a(f"s_add_u32 s53, s52, {n*32768}")
        a(f"buffer_load_dwordx4 v84, s[20:23], s53 offen lds")

def prefill(a):
    a(f"""
    v_mov_b32 v160, -1
    v_mov_b32 v161, -1
    v_mov_b32 v162, -1
    v_mov_b32 v163, -1
    s_lshl_b32 s58, s36, 2
    s_and_b32 s59, s37, 3
    s_add_u32 s58, s58, s59
    s_lshr_b32 s59, s37, 2
    s_lshl_b32 s50, {"s36" if LOCALO else "s59"}, 18
    s_lshl_b32 s64, s39, 16
    s_add_u32 s50, s50, s64
    s_lshl_b32 s64, {"s37" if LOCALO else "s58"}, 10
    s_add_u32 s50, s50, s64
    """)
    for L in (0, 1):
        for t in range(2):
            a(f"s_add_u32 s64, s50, {hex(LY.OF + L*LY.OFL + t*32768)}")
            a(f"buffer_store_dwordx4 v[160:163], v3, s[24:27], s64 offen sc1")
            if LOCALO:
                a(f"s_add_u32 s64, s64, {hex(LY.GD)}")
                a(f"buffer_store_dwordx4 v[160:163], v3, s[24:27], s64 offen sc1")
    a(f"""
    s_lshl_b32 s50, s58, 1
    s_add_u32 s50, s50, s42
    s_lshl_b32 s64, s50, 15
    s_lshl_b32 s66, s59, 12
    s_add_u32 s64, s64, s66
    s_lshl_b32 s66, s41, 11
    s_add_u32 s64, s64, s66
    s_add_u32 s64, s64, {hex(LY.X2F)}
    buffer_store_dwordx4 v[160:163], v3, s[24:27], s64 offen sc1
    buffer_store_dwordx4 v[160:163], v3, s[24:27], s64 offen offset:1024 sc1
    s_add_u32 s64, s64, {hex(LY.GD)}
    buffer_store_dwordx4 v[160:163], v3, s[24:27], s64 offen sc1
    buffer_store_dwordx4 v[160:163], v3, s[24:27], s64 offen offset:1024 sc1
    s_lshl_b32 s64, s50, 12
    s_lshl_b32 s66, s59, 9
    s_add_u32 s64, s64, s66
    s_lshl_b32 s66, s41, 8
    s_add_u32 s64, s64, s66
    s_add_u32 s64, s64, {hex(LY.ST2)}
    buffer_store_dword v160, v2, s[24:27], s64 offen sc1
    s_add_u32 s64, s64, {hex(LY.GD)}
    buffer_store_dword v160, v2, s[24:27], s64 offen sc1
    s_sub_u32 s64, s64, {hex(LY.GD + LY.ST2)}
    s_lshl_b32 s64, s64, 1
    s_add_u32 s64, s64, {hex(LY.GR)}
    s_mov_b64 exec, 0xffffffff
    buffer_store_dwordx4 v[160:163], v3, s[24:27], s64 offen
    s_add_u32 s64, s64, {hex(LY.GRL)}
    buffer_store_dwordx4 v[160:163], v3, s[24:27], s64 offen
    s_mov_b64 exec, -1
    s_lshl_b32 s50, s36, 1
    s_and_b32 s64, s37, 1
    s_add_u32 s50, s50, s64
    s_lshl_b32 s50, s50, 2
    s_add_u32 s50, s50, s39
    s_lshl_b32 s50, s50, 10
    s_lshr_b32 s64, s37, 1
    s_lshl_b32 s64, s64, 17
    s_add_u32 s50, s50, s64
    """)
    for base in (LY.QF, LY.KF, LY.VF):
        for h in range(2):
            a(f"s_add_u32 s64, s50, {hex(LY.QKVL + base + h*65536)}")
            a(f"buffer_store_dwordx4 v[160:163], v3, s[24:27], s64 offen sc1")

def oproj(a):
    a.comment("================= out-projection + gated layer =================")
    a.label(f"{N}_op")
    a(f"""
    s_lshl_b32 s41, s36, 2
    s_and_b32 s46, s37, 3
    s_add_u32 s41, s41, s46
    s_lshr_b32 s42, s37, 2
    s_cmp_lt_u32 s40, 4
    s_cbranch_scc1 {N}_opc
    s_cmp_lt_u32 s40, 8
    s_cbranch_scc1 {N}_opb
    """)
    a.label(f"{N}_oph")
    a(f"""
    s_sub_u32 s53, s40, 8
    s_and_b32 s55, s53, 1
    s_lshl_b32 s55, s55, 15
    s_lshr_b32 s56, s53, 1
    s_lshl_b32 s56, s56, 14
    s_add_u32 s55, s55, s56
    s_lshl_b32 s56, s41, 16
    s_add_u32 s56, s56, s55
    s_mul_i32 s57, s3, {hex(LY.OFL)}
    s_add_u32 s56, s56, s57
    s_add_u32 s56, s56, {hex(LY.OF)}
    s_add_u32 s57, s56, 4096
    s_add_u32 s58, s56, 8192
    s_add_u32 s59, s56, 12288
    s_and_b32 s55, s53, 1
    s_lshl_b32 s55, s55, 16
    s_lshr_b32 s54, s53, 1
    s_lshl_b32 s54, s54, 15
    s_add_u32 s55, s55, s54
    s_add_u32 s55, s55, 16384
    v_add_u32 v6, s55, v3
    """)
    ou = [(lambda n=n: a(f"buffer_load_dwordx4 v[{16+4*n}:{19+4*n}], v7, s[24:27], s{56 + n // 4} offen offset:{(n % 4)*1024} sc1"),
           range(16 + 4*n, 20 + 4*n),
           lambda n=n: a(f"ds_write_b128 v6, v[{16+4*n}:{19+4*n}] offset:{n*1024}")) for n in range(16)]
    a("v_lshlrev_b32 v14, 10, v1")
    a("s_add_u32 s54, s56, 1020")
    stamp(a, 2)
    a("v_mov_b32 v7, v3")
    hint_wait(a, 14, "s54", 16, thr=THR_O, switch=[14, 7] if LOCALO else None)
    stamp(a, 3)
    for u in ou: u[0]()
    stamp(a, 4)
    checked_units(a, ou, wait=lambda: (a("s_waitcnt vmcnt(0)"), stamp(a, 5)), switch=[7] if LOCALO else None)
    if DIAGFIX(): a("s_sub_u32 s76, 0x8000, s69\ns_add_u32 s76, s76, s70")
    a(f"s_branch {N}_opj")
    a.label(f"{N}_opb")
    a(f"""
    s_cmp_lg_u32 s40, 4
    s_cbranch_scc1 {N}_opj
    """)
    a(f"""
    s_cmp_lg_u32 s3, 0
    s_cbranch_scc1 {N}_ygo
    s_lshr_b32 s53, s41, 4
    s_lshl_b32 s53, s53, 11
    s_lshl_b32 s55, s42, 8
    s_add_u32 s53, s53, s55
    s_add_u32 s53, s53, {hex(LY.FY)}
    """)
    flag_wait(a, 53, tag="w")
    a.label(f"{N}_ygo")
    a(f"""
    v_lshrrev_b32 v5, 3, v1
    v_lshlrev_b32 v5, 12, v5
    v_and_b32 v6, 3, v1
    v_lshl_add_u32 v5, v6, 10, v5
    v_bfe_u32 v6, v1, 2, 1
    v_lshl_add_u32 v5, v6, 4, v5
    s_lshl_b32 s55, s42, 18
    s_lshl_b32 s56, s41, 5
    s_add_u32 s55, s55, s56
    """)
    for n in range(8):
        a(f"s_mov_b32 m0, {YL + n*1024}")
        a(f"s_add_u32 s56, s55, {hex(LY.YT + n*32768)}")
        a(f"buffer_load_dwordx4 v5, s[24:27], s56 offen sc1 lds")
    a("s_waitcnt vmcnt(0)")
    a.label(f"{N}_opj")
    if DIAGFIX():
        stamp(a, 13)
        a(f"s_cmp_lg_u32 s3, {DIAGL}")
        a(f"s_cbranch_scc1 {N}_dg1")
        stamp_flush(a, 3, 14, 40, 14)
        a("s_mov_b64 exec, -1\nv_and_b32 v1, 63, v0\nv_lshlrev_b32 v2, 2, v1")
        a.label(f"{N}_dg1")
    a(f"""
    s_waitcnt lgkmcnt(0)
    s_barrier
    """)
    a.label(f"{N}_opw")
    a(f"""
    s_barrier
    s_cmp_lg_u32 s3, 0
    s_cbranch_scc1 {N}_done
    s_branch {N}_qkv
    """)
    a.label(f"{N}_opc")
    RES, YR, ACC, FR, T, RF, G = 16, 24, 32, 48, 80, 88, 104
    a(f"""
    s_and_b32 s46, s40, 1
    s_lshr_b32 s47, s40, 1
    s_lshl_b32 s43, s41, 1
    s_add_u32 s43, s43, s46
    v_and_b32 v7, 31, v1
    v_lshlrev_b32 v8, 4, v7
    v_lshlrev_b32 v7, 10, v7
    v_lshrrev_b32 v6, 5, v1
    v_lshl_add_u32 v7, v6, 4, v7
    s_lshl_b32 s58, s43, 15
    s_lshl_b32 s56, s42, 7
    s_add_u32 s58, s58, s56
    s_lshl_b32 s56, s47, 6
    s_add_u32 s58, s58, s56
    s_lshl_b32 s55, s43, 15
    s_lshl_b32 s56, s42, 12
    s_add_u32 s55, s55, s56
    s_lshl_b32 s56, s47, 11
    s_add_u32 s55, s55, s56
    s_add_u32 s55, s55, {hex(LY.X2F)}
    s_mov_b32 s22, 0x200000
    s_mov_b32 s23, 0x00020000
    s_cmp_lg_u32 s3, 0
    s_cbranch_scc1 {N}_opr1
    s_mov_b32 s20, s4
    s_mov_b32 s21, s5
    buffer_load_dwordx4 v[{RES}:{RES+3}], v7, s[20:23], s58 offen
    buffer_load_dwordx4 v[{RES+4}:{RES+7}], v7, s[20:23], s58 offen offset:32
    s_branch {N}_opr2
    """)
    a.label(f"{N}_opr1")
    a(f"""
    s_mov_b32 s20, s8
    s_mov_b32 s21, s9
    buffer_load_dwordx4 v[{RES}:{RES+3}], v3, s[24:27], s55 offen sc1
    buffer_load_dwordx4 v[{RES+4}:{RES+7}], v3, s[24:27], s55 offen offset:1024 sc1
    """)
    a.label(f"{N}_opr2")
    a(f"""
    v_bfe_u32 v10, v1, 2, 2
    v_lshlrev_b32 v5, 10, v6
    v_lshl_add_u32 v4, v10, 7, v5
    v_lshl_add_u32 v5, v10, 6, v5
    v_bfe_u32 v10, v1, 4, 1
    v_lshl_add_u32 v5, v10, 5, v5
    v_lshl_add_u32 v4, v10, 5, v4
    v_and_b32 v10, 3, v1
    v_lshl_add_u32 v4, v10, 3, v4
    v_and_b32 v10, 1, v1
    v_lshl_add_u32 v5, v10, 4, v5
    v_bfe_u32 v10, v1, 1, 1
    v_lshl_add_u32 v5, v10, 3, v5
    s_lshl_b32 s57, s47, 9
    v_add_u32 v5, s57, v5
    s_lshl_b32 s57, s47, 12
    s_lshl_b32 s56, s46, 6
    s_add_u32 s57, s57, s56
    s_add_u32 s57, s57, {YL}
    v_add_u32 v4, s57, v4
    s_lshl_b32 s57, s46, 16
    s_add_u32 s57, s57, 16384
    v_add_u32 v9, s57, v3
    v_add_u32 v11, 0x10000, v5
    s_mul_i32 s59, s3, {hex(LY.GRL)}
    s_lshl_b32 s60, s43, 13
    s_add_u32 s59, s59, s60
    s_add_u32 s59, s59, {hex(LY.GR)}
    s_lshl_b32 s60, s42, 10
    s_lshl_b32 s61, s47, 9
    s_add_u32 s60, s60, s61
    s_add_u32 s60, s60, s59
    s_add_u32 s61, s59, 4096
    s_mov_b32 s62, 0x3f803f80
    s_barrier
    """)
    stamp(a, 5)
    def rd(ks):
        b = FR + 8 * (ks & 3)
        a(f"ds_read_b128 v[{b}:{b+3}], v9 offset:{(ks >> 4)*32768 + (ks & 15)*1024}")
        wb, wo_ = (5 if ks < 16 else 11), ((ks >> 3) & 1)*32768 + (ks & 7)*2048
        a(f"ds_read_b64_tr_b16 v[{b+4}:{b+5}], v{wb} offset:{wo_}")
        a(f"ds_read_b64_tr_b16 v[{b+6}:{b+7}], v{wb} offset:{wo_ + 256}")
    for i in range(4): rd(i)
    for ks in range(32):
        a(f"s_waitcnt lgkmcnt({3*min(3, 31 - ks)})")
        b = FR + 8 * (ks & 3)
        mf(a, ACC, b + 4, b, "0" if ks == 0 else vr(ACC, 16))
        if ks + 4 < 32: rd(ks + 4)
    for q in range(4):
        a(f"ds_read_b64_tr_b16 v[{YR+2*q}:{YR+2*q+1}], v4 offset:{(q >> 1)*2048 + (q & 1)*512}")
    a("s_barrier")
    a("s_waitcnt vmcnt(0)")
    for j in range(8):
        a(f"v_lshlrev_b32 v{RF+2*j}, 16, v{RES+j}")
        a(f"v_and_b32 v{RF+2*j+1}, 0xffff0000, v{RES+j}")
    a(f"""
    v_mov_b32 v12, 0
    v_mov_b32 v14, 0
    """)
    stamp(a, 6)
    for j in range(8): a(f"v_cvt_pk_bf16_f32 v{T+j}, v{ACC+2*j}, v{ACC+2*j+1}")
    for j in range(8):
        a(f"v_lshlrev_b32 v{ACC+2*j}, 16, v{T+j}")
        a(f"v_and_b32 v{ACC+2*j+1}, 0xffff0000, v{T+j}")
    for j in range(8): a(f"v_pk_add_f32 {p(ACC+2*j)}, {p(ACC+2*j)}, {p(RF+2*j)}")
    for j in range(8): a(f"v_cvt_pk_bf16_f32 v{T+j}, v{ACC+2*j}, v{ACC+2*j+1}")
    for j in range(8):
        a(f"v_dot2c_f32_bf16 v12, s62, v{T+j}")
        a(f"v_dot2c_f32_bf16 v14, v{T+j}, v{T+j}")
    a(f"""
    s_nop 2
    v_mov_b32 v13, v12
    v_mov_b32 v15, v14
    s_nop 1
    v_permlane32_swap_b32 v12, v13
    v_permlane32_swap_b32 v14, v15
    s_nop 1
    v_add_f32 v12, v12, v13
    v_add_f32 v14, v14, v15
    v_mov_b32 v13, s65
    v_mov_b32 v15, s65
    s_mov_b64 exec, 0xffffffff
    buffer_store_dwordx4 v[12:15], v8, s[24:27], s60 offen
    s_add_u32 s66, s60, {hex(LY.GD)}
    buffer_store_dwordx4 v[12:15], v8, s[24:27], s66 offen sc1
    s_mov_b64 exec, -1
    s_mov_b32 s69, 0x8000
    v_mov_b32 v6, v3
    """)
    for j in range(8):
        a(f"v_lshlrev_b32 v{ACC+2*j}, 16, v{T+j}")
        a(f"v_and_b32 v{ACC+2*j+1}, 0xffff0000, v{T+j}")
    a("s_waitcnt lgkmcnt(0)")
    for j in range(8):
        a(f"v_lshlrev_b32 v{RF+2*j}, 16, v{YR+j}")
        a(f"v_and_b32 v{RF+2*j+1}, 0xffff0000, v{YR+j}")
    a.label(f"{N}_gp")
    for i in range(8):
        a(f"buffer_load_dwordx4 v[{G+4*i}:{G+4*i+3}], v6, s[24:27], s{59 if i < 4 else 61} offen offset:{(i%4)*1024} sc1")
    a("s_waitcnt vmcnt(0)")
    tags = [G + 4*i + k for i in range(8) for k in (1, 3)]
    a(f"v_min3_u32 v10, v{tags[0]}, v{tags[1]}, v{tags[2]}")
    a(f"v_max3_u32 v11, v{tags[0]}, v{tags[1]}, v{tags[2]}")
    for q in range(3, 15, 2):
        a(f"v_min3_u32 v10, v10, v{tags[q]}, v{tags[q+1]}")
        a(f"v_max3_u32 v11, v11, v{tags[q]}, v{tags[q+1]}")
    a(f"""
    v_min_u32 v10, v10, v{tags[15]}
    v_max_u32 v11, v11, v{tags[15]}
    v_xor_b32 v10, s65, v10
    v_xor_b32 v11, s65, v11
    v_or_b32 v10, v10, v11
    v_cmp_eq_u32 vcc, 0, v10
    s_sub_u32 s69, s69, 1
    s_cbranch_scc1 {N}_gpo
    s_cmp_eq_u64 vcc, -1
    s_cbranch_scc1 {N}_gpo
    """)
    switch_copy(a, f"{N}_gp", [6])
    a(f"""
    s_sleep {GSLEEP}
    s_branch {N}_gp
    """)
    a.label(f"{N}_gpo")
    stamp(a, 7)
    for i in range(1, 8):
        a(f"v_add_f32 v{G}, v{G}, v{G+4*i}")
        a(f"v_add_f32 v{G+2}, v{G+2}, v{G+4*i+2}")
    a(f"""
    v_mov_b32 v{G+1}, v{G}
    v_mov_b32 v{G+3}, v{G+2}
    s_mov_b32 s56, {f32hex(1.0/512)}
    s_nop 0
    v_permlane32_swap_b32 v{G}, v{G+1}
    v_permlane32_swap_b32 v{G+2}, v{G+3}
    s_nop 1
    v_add_f32 v10, v{G}, v{G+1}
    v_add_f32 v11, v{G+2}, v{G+3}
    """)
    ln_stats(a, 10, 11, 12, 14, 13)
    a(f"""
    v_mov_b32 v13, v12
    v_mov_b32 v15, v14
    """)
    for j in range(8): a(f"v_pk_fma_f32 {p(FR+2*j)}, {p(ACC+2*j)}, v[12:13], v[14:15]")
    for j in range(8): a(f"v_pk_fma_f32 {p(FR+2*j)}, {p(FR+2*j)}, {p(RF+2*j)}, {p(ACC+2*j)}")
    for j in range(8): a(f"v_cvt_pk_bf16_f32 v{T+j}, v{FR+2*j}, v{FR+2*j+1}")
    a(f"""
    s_cmp_eq_u32 s3, 0
    s_cbranch_scc1 {N}_ops0
    buffer_store_dwordx4 v[{T}:{T+3}], v7, s[20:23], s58 offen
    buffer_store_dwordx4 v[{T+4}:{T+7}], v7, s[20:23], s58 offen offset:32
    """)
    stamp(a, 13)
    stamp_flush(a, 1, 14, 40, 14)
    a("s_endpgm")
    a.label(f"{N}_ops0")
    SX = "" if FAST else "sc1"
    sanitize(a, range(T, T + 8))
    a(f"""
    buffer_store_dwordx4 v[{T}:{T+3}], v3, s[24:27], s55 offen {SX}
    buffer_store_dwordx4 v[{T+4}:{T+7}], v3, s[24:27], s55 offen offset:1024 {SX}
    s_add_u32 s55, s55, {hex(LY.GD)}
    v_mov_b32 v10, 0
    v_mov_b32 v11, 0
    """)
    for j in range(8):
        a(f"v_dot2c_f32_bf16 v10, s62, v{T+j}")
        a(f"v_dot2c_f32_bf16 v11, v{T+j}, v{T+j}")
    a(f"""
    v_lshrrev_b32 v8, 1, v8
    s_sub_u32 s60, s60, {hex(LY.GR)}
    s_lshr_b32 s61, s60, 1
    s_add_u32 s61, s61, {hex(LY.ST2)}
    v_mov_b32 v12, v10
    v_mov_b32 v13, v11
    s_lshr_b32 s60, s60, 7
    s_add_u32 s60, s60, {hex(LY.FX)}
    v_permlane32_swap_b32 v10, v12
    v_permlane32_swap_b32 v11, v13
    s_nop 0
    v_add_f32 v10, v10, v12
    v_add_f32 v11, v11, v13
    v_min_u32 v10, s67, v10
    v_min_u32 v11, s67, v11
    s_mov_b64 exec, 0xffffffff
    buffer_store_dwordx2 v[10:11], v8, s[24:27], s61 offen
    s_add_u32 s61, s61, {hex(LY.GD)}
    buffer_store_dwordx2 v[10:11], v8, s[24:27], s61 offen sc1
    s_mov_b64 exec, -1
    buffer_store_dwordx4 v[{T}:{T+3}], v3, s[24:27], s55 offen sc1
    buffer_store_dwordx4 v[{T+4}:{T+7}], v3, s[24:27], s55 offen offset:1024 sc1
    """)
    stamp(a, 8)

def qkv(a):
    a.comment("================= layer-2 QKV projection =================")
    a.label(f"{N}_qkv")
    SC = 98304
    a(f"""
    s_lshl_b32 s41, s36, 1
    s_and_b32 s46, s37, 1
    s_add_u32 s41, s41, s46
    s_lshr_b32 s42, s37, 1
    s_and_b32 s39, s40, 3
    s_lshl_b32 s43, s41, 2
    s_add_u32 s43, s43, s39
    s_cmp_lt_u32 s40, 4
    s_cbranch_scc1 {N}_qc
    s_cmp_lt_u32 s40, 8
    s_cbranch_scc1 {N}_qb
    s_lshl_b32 s53, s39, 10
    s_mul_i32 s52, s42, 98304
    s_add_u32 s52, s52, s53
    s_add_u32 s52, s52, {hex(LY.WP)}
    """)
    for m in range(24):
        a(f"s_add_u32 m0, s53, {m*4096}")
        a(f"s_add_u32 s51, s52, {m*4096}")
        a(f"buffer_load_dwordx4 v3, s[24:27], s51 offen sc1 lds")
        if m >= WDEPTH - 1: a(f"s_waitcnt vmcnt({WDEPTH - 1})")
    a(f"""
    s_waitcnt vmcnt(0)
    s_barrier
    s_branch {N}_qw
    """)
    a.label(f"{N}_qb")
    a(f"""
    v_lshlrev_b32 v7, 3, v1
    s_lshl_b32 s52, s43, 12
    s_add_u32 s52, s52, {hex(LY.ST2)}
    s_min_u32 s53, s39, 2
    s_lshl_b32 s51, s53, 11
    s_lshl_b32 s54, s42, 7
    s_add_u32 s51, s51, s54
    s_add_u32 s51, s51, {hex(LY.CSB)}
    v_and_b32 v4, 31, v1
    v_lshlrev_b32 v4, 2, v4
    buffer_load_dword v32, v4, s[24:27], s51 offen sc1
    s_lshl_b32 s53, s53, 7
    s_add_u32 s53, s53, {SC + 2048}
    v_add_u32 v5, s53, v4
    s_lshl_b32 s53, s39, 9
    s_add_u32 s53, s53, {SC}
    v_add_u32 v4, s53, v4
    """)
    a("s_mov_b32 s69, 0x8000")
    a.label(f"{N}_stp")
    for i2 in range(8):
        a(f"buffer_load_dwordx2 v[{16+2*i2}:{17+2*i2}], v7, s[24:27], s52 offen offset:{512*i2} sc1")
    a("s_waitcnt vmcnt(0)")
    maxchain(a, 15, range(16, 32))
    a(f"""
    v_cmp_eq_u32 vcc, -1, v15
    s_cmp_eq_u64 vcc, 0
    s_cbranch_scc1 {N}_std
    s_sub_u32 s69, s69, 1
    s_cbranch_scc1 {N}_std
    """)
    switch_copy(a, f"{N}_stp", [7])
    a(f"""
    s_sleep 1
    s_branch {N}_stp
    """)
    a.label(f"{N}_std")
    a(f"""
    s_lshl_b32 s58, s39, 2
    s_add_u32 s58, s58, {FLAG + 32}
    v_mov_b32 v6, s58
    v_or_b32 v8, 1, v7
    s_mov_b64 exec, 1
    ds_write_b32 v6, v8
    s_mov_b64 exec, -1
    """)
    for i2 in range(1, 8):
        a(f"v_add_f32 v16, v16, v{16+2*i2}")
        a(f"v_add_f32 v17, v17, v{17+2*i2}")
    a(f"""
    v_mov_b32 v18, v16
    v_mov_b32 v19, v17
    s_mov_b32 s56, {f32hex(1.0/512)}
    s_nop 0
    v_permlane32_swap_b32 v16, v18
    v_permlane32_swap_b32 v17, v19
    s_nop 0
    v_add_f32 v16, v16, v18
    v_add_f32 v17, v17, v19
    """)
    ln_stats(a, 16, 17, 17, 16, 18)
    a(f"""
    ds_write_b32 v4, v17
    ds_write_b32 v4, v16 offset:128
    ds_write_b32 v5, v32
    s_waitcnt lgkmcnt(0)
    s_barrier
    """)
    a.label(f"{N}_qw")
    a("s_barrier")
    a.label(f"{N}_qw2")
    a(f"""
    s_barrier
    s_branch {N}_qend
    """)
    a.label(f"{N}_qc")
    XR, ACC, WFR, TQ, TV, PK = 20, 84, 132, 20, 52, 132
    a(f"""
    s_lshl_b32 s49, s43, 15
    s_add_u32 s49, s49, {hex(LY.X2F)}
    """)
    for g in range(8): a(f"s_add_u32 s{58+g if g < 6 else 46+g}, s49, {g*4096}")
    def xl(ks):
        g = ks // 4
        r = XR + 4 * (ks & 15)
        a(f"buffer_load_dwordx4 v[{r}:{r+3}], v16, s[24:27], s{58+g if g < 6 else 46+g} offen offset:{(ks % 4)*1024} sc1")
    xu = [(lambda i=i: (xl(2*i), xl(2*i + 1)), range(XR + 8*i, XR + 8*i + 8), None) for i in range(8)]
    a(f"""
    s_lshl_b32 s50, s40, 2
    s_add_u32 s50, s50, {FLAG + 32}
    v_mov_b32 v14, s50
    """)
    a.label(f"{N}_xw")
    a(f"""
    ds_read_b32 v16, v14
    s_waitcnt lgkmcnt(0)
    v_readfirstlane_b32 s50, v16
    s_cmp_lg_u32 s50, 0
    s_cbranch_scc0 {N}_xw
    s_and_b32 s50, s50, {hex(LY.GD)}
    v_or_b32 v16, s50, v3
    """)
    stamp(a, 1)
    for u in xu: u[0]()
    stamp(a, 2)
    a(f"""
    v_lshrrev_b32 v6, 5, v1
    v_and_b32 v4, 31, v1
    v_lshlrev_b32 v18, 9, v6
    v_bfe_u32 v19, v1, 2, 2
    v_lshl_add_u32 v18, v19, 6, v18
    v_bfe_u32 v19, v1, 4, 1
    v_lshl_add_u32 v18, v19, 5, v18
    v_and_b32 v19, 3, v1
    v_lshl_add_u32 v18, v19, 3, v18
    v_add_u32 v19, 49152, v18
    s_lshl_b32 s50, s40, 9
    s_add_u32 s50, s50, {SC}
    v_lshl_add_u32 v12, v4, 2, s50
    v_lshl_add_u32 v11, v6, 4, s50
    v_lshlrev_b32 v13, 4, v6
    v_add_u32 v13, {SC}, v13
    v_lshlrev_b32 v5, 2, v4
    v_add_u32 v5, {SC}, v5
    s_lshl_b32 s57, s42, 17
    s_lshl_b32 s51, s43, 10
    s_add_u32 s57, s57, s51
    s_add_u32 s57, s57, {hex(LY.QKVL)}
    v_and_b32 v10, 3, v1
    v_bfe_u32 v9, v1, 2, 1
    v_lshl_or_b32 v10, v9, 3, v10
    v_bfe_u32 v9, v1, 3, 1
    v_lshl_or_b32 v10, v9, 2, v10
    v_lshlrev_b32 v10, 4, v10
    v_lshl_or_b32 v10, v6, 8, v10
    v_bfe_u32 v9, v1, 4, 1
    v_lshl_or_b32 v10, v9, 16, v10
    s_barrier
    """)
    def wread(ks, fs=(0, 1, 2)):
        j, kk = ks // 4, ks % 4
        b = WFR + 12 * (ks % 3)
        for f in fs:
            for q in range(2):
                off = (j & 3) * 12288 + f*4096 + kk*1024 + q*256
                a(f"ds_read_b64_tr_b16 v[{b+4*f+2*q}:{b+4*f+2*q+1}], v{18 + (j >> 2)} offset:{off}")
    stamp(a, 3)
    wread(0); wread(1)
    for ks in range(32):
        def gcheck(k0, w):
            checked(a, lambda: [xl(k2) for k2 in range(k0, k0 + 4)], range(XR + 4*(k0 & 15), XR + 4*(k0 & 15) + 16),
                    first_wait=w, switch=[16])
        if ks == 0:
            gcheck(0, 12)
            stamp(a, 9)
        a(f"s_waitcnt lgkmcnt({6 if ks < 31 else 0})")
        if ks == 30:
            a("s_barrier")
        b = WFR + 12 * (ks % 3)
        x = vr(XR + 4*(ks & 15), 4)
        for f in range(3):
            acc = vr(ACC + 16*f, 16)
            c = "0" if ks == 0 else acc
            w = vr(b + 4*f, 4)
            if f < 2: a(f"v_mfma_f32_32x32x16_bf16 {acc}, {w}, {x}, {c}")
            else:     a(f"v_mfma_f32_32x32x16_bf16 {acc}, {x}, {w}, {c}")
            if ks + 2 < 32: wread(ks + 2, (f,))
        if ks % 4 == 3 and ks < 31: gcheck(ks + 1, min(11, 27 - ks))
        if ks < 16: xl(ks + 16)
        if ks == 30:
            a("ds_read_b32 v16, v12")
            a("ds_read_b32 v17, v12 offset:128")
            a("ds_read_b32 v14, v5 offset:2304")
            for g in range(4):
                a(f"ds_read_b128 v[{TQ+4*g}:{TQ+4*g+3}], v13 offset:{2048 + 32*g}")
    stamp(a, 10)
    for g in range(4):
        a(f"ds_read_b128 v[{TQ+16+4*g}:{TQ+16+4*g+3}], v13 offset:{2176 + 32*g}")
        a(f"ds_read_b128 v[{TV+4*g}:{TV+4*g+3}], v11 offset:{32*g}")
        a(f"ds_read_b128 v[{TV+16+4*g}:{TV+16+4*g+3}], v11 offset:{128 + 32*g}")
    a(f"""
    s_mov_b32 s56, {f32hex(LY.QSCALE)}
    v_mul_f32 v6, s56, v16
    v_mul_f32 v8, s56, v17
    v_mov_b32 v7, v6
    v_mov_b32 v9, v8
    v_mov_b32 v18, v17
    v_mov_b32 v19, v17
    v_mov_b32 v17, v16
    v_mov_b32 v15, v14
    """)
    def qk(f, rs, mr):
        for j in range(8): a(f"v_pk_mul_f32 {p(ACC+16*f+2*j)}, {p(ACC+16*f+2*j)}, {p(rs)}")
        for j in range(8): a(f"v_pk_fma_f32 {p(ACC+16*f+2*j)}, {p(TQ+16*f+2*j)}, {p(mr)}, {p(ACC+16*f+2*j)}")
        for j in range(8): a(f"v_cvt_pk_bf16_f32 v{PK+8*f+j}, v{ACC+16*f+2*j}, v{ACC+16*f+2*j+1}")
        sanitize(a, range(PK + 8*f, PK + 8*f + 8))
        base = LY.QF if f == 0 else LY.KF
        a(f"s_add_u32 s58, s57, {hex(base)}")
        a(f"buffer_store_dwordx4 v[{PK+8*f}:{PK+8*f+3}], v3, s[24:27], s58 offen sc1")
        a(f"s_add_u32 s58, s57, {hex(base + 65536)}")
        a(f"buffer_store_dwordx4 v[{PK+8*f+4}:{PK+8*f+7}], v3, s[24:27], s58 offen sc1")
    a("s_waitcnt lgkmcnt(0)")
    a("s_barrier")
    qk(1, 16, 18)
    for j in range(8): a(f"v_pk_mul_f32 {p(ACC+32+2*j)}, {p(ACC+32+2*j)}, {p(TV+2*j)}")
    for j in range(8): a(f"v_pk_fma_f32 {p(ACC+32+2*j)}, {p(TV+16+2*j)}, v[14:15], {p(ACC+32+2*j)}")
    for j in range(8): a(f"v_cvt_pk_bf16_f32 v{PK+16+j}, v{ACC+32+2*j}, v{ACC+32+2*j+1}")
    sanitize(a, range(PK + 16, PK + 24))
    a(f"""
    s_add_u32 s58, s57, {hex(LY.VF)}
    buffer_store_dwordx4 v[{PK+16}:{PK+19}], v10, s[24:27], s58 offen sc1
    buffer_store_dwordx4 v[{PK+20}:{PK+23}], v10, s[24:27], s58 offen offset:512 sc1
    """)
    qk(0, 6, 8)
    stamp(a, 11)
    stamp_flush(a, 2, 12, 40, 14)
    if DIAGFIX(): a("s_mov_b64 exec, -1\nv_and_b32 v1, 63, v0\nv_lshlrev_b32 v2, 2, v1")
    a.label(f"{N}_qend")


NSLOT, SLOT, LA = 5, 28672, 3
SC1 = NSLOT * SLOT
EPL = FLAG + 48

def qkv1(a):
    a.comment("================= layer-1 QKV projection =================")
    a(f"""
    s_and_b32 s41, s36, 3
    s_lshl_b32 s41, s41, 2
    s_and_b32 s46, s37, 3
    s_add_u32 s41, s41, s46
    s_lshr_b32 s42, s36, 2
    s_lshl_b32 s42, s42, 3
    s_lshr_b32 s46, s37, 2
    s_add_u32 s42, s42, s46
    s_and_b32 s39, s40, 3
    s_lshl_b32 s43, s41, 2
    s_add_u32 s43, s43, s39
    s_lshl_b32 s49, s43, 15
    v_lshrrev_b32 v6, 5, v1
    v_and_b32 v4, 31, v1
    """)
    srd(a, 32, 4, 0x200000)
    srd(a, 20, 6, 0x180000)
    a(f"""
    s_cmp_ge_u32 s40, 4
    s_cbranch_scc1 {N}_p_nc
    """)
    a(f"""
    s_and_b32 s51, s42, 7
    s_lshl_b32 s51, s51, 7
    s_add_u32 s51, s51, s49
    v_lshlrev_b32 v10, 10, v4
    buffer_load_dword v160, v10, s[32:35], s51 offen
    s_and_b32 s53, s41, 3
    s_lshl_b32 s53, s53, 1
    s_and_b32 s54, s42, 1
    s_add_u32 s53, s53, s54
    s_mul_i32 s53, s53, 3072
    s_lshl_b32 s54, s42, 6
    s_add_u32 s53, s53, s54
    s_min_u32 s54, s40, 2
    s_lshl_b32 s54, s54, 10
    s_add_u32 s53, s53, s54
    s_movk_i32 s54, {8*3072}
    v_mul_lo_u32 v10, v1, s54
    buffer_load_dword v161, v10, s[20:23], s53 offen
    """)
    a.label(f"{N}_p_nc")
    a(f"""
    s_cmp_lt_u32 s40, 4
    s_cbranch_scc1 {N}_p_ad
    s_cmp_lt_u32 s40, 8
    s_cbranch_scc1 {N}_p_ld
    """)
    a.label(f"{N}_p_ad")
    a(f"""
    v_lshlrev_b32 v21, 9, v6
    v_bfe_u32 v22, v1, 2, 2
    v_lshl_add_u32 v21, v22, 6, v21
    v_bfe_u32 v22, v1, 4, 1
    v_lshl_add_u32 v21, v22, 5, v21
    v_and_b32 v22, 3, v1
    v_lshl_add_u32 v21, v22, 3, v21
    v_add_u32 v22, {2*SLOT}, v21
    v_add_u32 v23, {4*SLOT}, v21
    s_lshl_b32 s56, s39, 12
    s_add_u32 s56, s56, 12288
    v_bfe_u32 v13, v1, 1, 3
    v_xor_b32 v13, v13, v6
    v_lshlrev_b32 v13, 4, v13
    v_lshl_add_u32 v13, v4, 7, v13
    v_add_u32 v13, s56, v13
    """)
    for kk in range(4):
        a(f"v_xor_b32 v{56+kk}, {kk << 5}, v13")
        a(f"v_add_u32 v{60+kk}, {2*SLOT}, v{56+kk}")
        a(f"v_add_u32 v{16+kk}, {4*SLOT}, v{56+kk}")
    a(f"""
    s_lshl_b32 s50, s39, 9
    s_add_u32 s50, s50, {SC1}
    v_lshl_add_u32 v12, v4, 2, s50
    v_lshlrev_b32 v5, 2, v4
    v_add_u32 v5, {SC1}, v5
    v_mov_b32 v7, {EPL}
    s_cmp_ge_u32 s40, 8
    s_cbranch_scc1 {N}_p_st
    """)
    XR, ACC, WFR, TQ, TV, PK = (24, 40), 64, 112, 24, 112, 144
    def xread(j, dst):
        sl = j % NSLOT
        for kk in range(4):
            a(f"ds_read_b128 v[{dst+4*kk}:{dst+4*kk+3}], v{(56, 60, 16)[sl // 2] + kk} offset:{(sl & 1) * SLOT}")
    def wread(ks, fs=(0, 1, 2)):
        j, kk = ks // 4, ks % 4
        sl = j % NSLOT
        b = WFR + 12 * (ks % 3)
        for f in fs:
            for q in range(2):
                a(f"ds_read_b64_tr_b16 v[{b+4*f+2*q}:{b+4*f+2*q+1}], v{21 + sl // 2} offset:{(sl & 1) * SLOT + f*4096 + kk*1024 + q*256}")
    a(f"""
    v_lshl_add_u32 v11, v6, 4, s50
    v_lshlrev_b32 v13, 4, v6
    v_add_u32 v13, {SC1}, v13
    s_lshl_b32 s57, s42, 17
    s_lshl_b32 s58, s43, 10
    s_add_u32 s57, s57, s58
    v_and_b32 v10, 3, v1
    v_bfe_u32 v9, v1, 2, 1
    v_lshl_or_b32 v10, v9, 3, v10
    v_bfe_u32 v9, v1, 3, 1
    v_lshl_or_b32 v10, v9, 2, v10
    v_lshlrev_b32 v10, 4, v10
    v_lshl_or_b32 v10, v6, 8, v10
    v_bfe_u32 v9, v1, 4, 1
    v_lshl_or_b32 v10, v9, 16, v10
    s_lshl_b32 s59, s42, 8
    s_lshl_b32 s60, s43, 2
    s_add_u32 s59, s59, s60
    s_add_u32 s59, s59, {hex(LY.FQ)}
    s_barrier
    """)
    stamp(a, 9)
    xread(0, XR[0]); wread(0)
    for ks in range(32):
        j, kk = ks // 4, ks % 4
        later = []
        if kk == 0:
            a("s_waitcnt lgkmcnt(0)")
            wread(ks + 1)
            later = [ks + 2]
        elif kk == 1:
            a("s_waitcnt lgkmcnt(6)")
            later = [ks + 2]
        elif kk == 2:
            a("s_waitcnt lgkmcnt(6)")
        else:
            a("s_waitcnt lgkmcnt(0)")
            if j < 7:
                a("s_barrier")
                xread(j + 1, XR[(j + 1) & 1])
                later = [ks + 1]
        b = WFR + 12 * (ks % 3)
        x = vr(XR[j & 1] + 4*kk, 4)
        for f in range(3):
            acc = vr(ACC + 16*f, 16)
            c = "0" if ks == 0 else acc
            w = vr(b + 4*f, 4)
            if f < 2: a(f"v_mfma_f32_32x32x16_bf16 {acc}, {w}, {x}, {c}")
            else:     a(f"v_mfma_f32_32x32x16_bf16 {acc}, {x}, {w}, {c}")
            for k2 in later: wread(k2, (f,))
    stamp(a, 10)
    a(f"""
    s_waitcnt vmcnt(0)
    s_barrier
    ds_read_b32 v16, v12
    ds_read_b32 v17, v12 offset:128
    ds_read_b32 v14, v5 offset:2304
    ds_read_b32 v15, v7
    """)
    for g in range(4):
        a(f"ds_read_b128 v[{TQ+16+4*g}:{TQ+16+4*g+3}], v13 offset:{2176 + 32*g}")
    for g in range(4):
        a(f"ds_read_b128 v[{TV+4*g}:{TV+4*g+3}], v11 offset:{32*g}")
    a("s_waitcnt lgkmcnt(8)")
    for g in range(4):
        a(f"ds_read_b128 v[{TV+16+4*g}:{TV+16+4*g+3}], v11 offset:{128 + 32*g}")
    a(f"""
    v_readfirstlane_b32 s65, v15
    s_mov_b32 s56, {f32hex(LY.QSCALE)}
    v_mul_f32 v6, s56, v16
    v_mul_f32 v8, s56, v17
    s_waitcnt lgkmcnt(8)
    """)
    for g in range(4):
        a(f"ds_read_b128 v[{TQ+4*g}:{TQ+4*g+3}], v13 offset:{2048 + 32*g}")
    a(f"""
    v_mov_b32 v7, v6
    v_mov_b32 v9, v8
    v_mov_b32 v18, v17
    v_mov_b32 v19, v17
    v_mov_b32 v17, v16
    v_mov_b32 v15, v14
    """)
    def qk(f, rs, mr):
        for j in range(8): a(f"v_pk_mul_f32 {p(ACC+16*f+2*j)}, {p(ACC+16*f+2*j)}, {p(rs)}")
        for j in range(8): a(f"v_pk_fma_f32 {p(ACC+16*f+2*j)}, {p(TQ+16*f+2*j)}, {p(mr)}, {p(ACC+16*f+2*j)}")
        for j in range(8): a(f"v_cvt_pk_bf16_f32 v{PK+8*f+j}, v{ACC+16*f+2*j}, v{ACC+16*f+2*j+1}")
        sanitize(a, range(PK + 8*f, PK + 8*f + 8))
        base = LY.QF if f == 0 else LY.KF
        a(f"s_add_u32 s58, s57, {hex(base)}")
        a(f"buffer_store_dwordx4 v[{PK+8*f}:{PK+8*f+3}], v3, s[24:27], s58 offen sc1")
        a(f"s_add_u32 s58, s57, {hex(base + 65536)}")
        a(f"buffer_store_dwordx4 v[{PK+8*f+4}:{PK+8*f+7}], v3, s[24:27], s58 offen sc1")
    qk(1, 16, 18)
    a("s_waitcnt lgkmcnt(0)")
    a("s_barrier")
    for j in range(8): a(f"v_pk_mul_f32 {p(ACC+32+2*j)}, {p(ACC+32+2*j)}, {p(TV+2*j)}")
    for j in range(8): a(f"v_pk_fma_f32 {p(ACC+32+2*j)}, {p(TV+16+2*j)}, v[14:15], {p(ACC+32+2*j)}")
    for j in range(8): a(f"v_cvt_pk_bf16_f32 v{PK+16+j}, v{ACC+32+2*j}, v{ACC+32+2*j+1}")
    sanitize(a, range(PK + 16, PK + 24))
    a(f"""
    s_add_u32 s58, s57, {hex(LY.VF)}
    buffer_store_dwordx4 v[{PK+16}:{PK+19}], v10, s[24:27], s58 offen sc1
    buffer_store_dwordx4 v[{PK+20}:{PK+23}], v10, s[24:27], s58 offen offset:512 sc1
    """)
    qk(0, 6, 8)
    publish(a, 59)
    stamp(a, 11)
    stamp_flush(a, 0, 12, 40, 14)
    if DIAGFIX(): a("s_mov_b64 exec, -1\nv_and_b32 v1, 63, v0\nv_lshlrev_b32 v2, 2, v1")
    a(f"s_branch {N}_p_end")

    a.label(f"{N}_p_st")
    a(f"""
    s_load_dwordx2 s[60:61], s[0:1], 80
    s_mov_b32 s55, 0x3f803f80
    s_min_u32 s51, s39, 2
    s_lshl_b32 s51, s51, 12
    v_add_u32 v21, s51, v21
    v_add_u32 v22, s51, v22
    v_add_u32 v23, s51, v23
    v_mov_b32 v8, 0
    v_mov_b32 v9, 0
    v_mov_b32 v10, 0
    v_mov_b32 v11, 0
    v_mov_b32 v13, 0
    v_mov_b32 v14, 0
    s_mov_b32 s62, 256
    s_mov_b32 s63, 0x00020000
    s_mov_b32 s53, {hex(LY.EP)}
    s_waitcnt lgkmcnt(0)
    s_or_b32 s51, s2, s39
    s_cmp_lg_u32 s51, 0
    s_cbranch_scc1 {N}_p_ne
    """)
    a(f"""
    buffer_load_dword v15, v14, s[24:27], s53 offen sc1
    s_waitcnt vmcnt(0)
    v_add_u32 v15, 2, v15
    v_max_u32 v15, 2, v15
    v_subrev_u32 v15, 1, v15
    s_mov_b64 exec, 1
    buffer_store_dword v15, v14, s[24:27], s53 offen sc1
    s_waitcnt vmcnt(0)
    buffer_store_dword v15, v14, s[60:63], 0 offen sc1
    s_mov_b64 exec, -1
    """)
    a.label(f"{N}_p_ne")
    for j in range(8):
        if j == 4:
            a(f"""
            s_cmp_lg_u32 s39, 0
            s_cbranch_scc1 {N}_p_e2
            s_mov_b32 s69, 0x10000
            """)
            a.label(f"{N}_p_e1")
            a(f"""
            buffer_load_dword v15, v14, s[60:63], 0 offen sc1
            s_waitcnt vmcnt(0)
            v_readfirstlane_b32 s65, v15
            s_sub_u32 s69, s69, 1
            s_cbranch_scc1 {N}_p_e3
            s_cmp_eq_u32 s65, 0
            s_cbranch_scc1 {N}_p_e1
            """)
            a.label(f"{N}_p_e3")
            a("ds_write_b32 v7, v15")
            a.label(f"{N}_p_e2")
        a("s_barrier")
        sl = j % NSLOT
        xread(j, 24)
        for kk in range(4):
            for q in range(2):
                a(f"ds_read_b64_tr_b16 v[{40+4*kk+2*q}:{41+4*kk+2*q}], v{21 + sl // 2} offset:{(sl & 1) * SLOT + kk*1024 + q*256}")
        a("s_waitcnt lgkmcnt(8)")
        for r in range(16):
            a(f"v_lshlrev_b32 v{64+2*(r&3)}, 16, v{24+r}")
            a(f"v_and_b32 v{65+2*(r&3)}, 0xffff0000, v{24+r}")
            a(f"v_add_f32 v8, v8, v{64+2*(r&3)}")
            a(f"v_add_f32 v9, v9, v{65+2*(r&3)}")
            a(f"v_fmac_f32 v10, v{64+2*(r&3)}, v{64+2*(r&3)}")
            a(f"v_fmac_f32 v11, v{65+2*(r&3)}, v{65+2*(r&3)}")
        a("s_waitcnt lgkmcnt(0)")
        for r in range(16): a(f"v_dot2c_f32_bf16 v13, s55, v{40+r}")
    a(f"""
    v_add_f32 v8, v8, v9
    v_add_f32 v10, v10, v11
    v_mov_b32 v9, v8
    v_mov_b32 v11, v10
    v_mov_b32 v15, v13
    s_mov_b32 s56, {f32hex(1.0/512)}
    s_lshl_b32 s51, s39, 7
    v_permlane32_swap_b32 v8, v9
    v_permlane32_swap_b32 v10, v11
    v_permlane32_swap_b32 v13, v15
    v_add_u32 v5, s51, v5
    v_add_f32 v8, v8, v9
    v_add_f32 v10, v10, v11
    v_add_f32 v13, v13, v15
    v_mul_f32 v8, s56, v8
    v_mul_f32 v10, s56, v10
    v_fma_f32 v10, -v8, v8, v10
    v_max_f32 v10, 0, v10
    v_add_f32 v10, {f32hex(1e-5)}, v10
    v_rsq_f32 v10, v10
    ds_write_b32 v5, v13 offset:2048
    v_mul_f32 v8, v8, v10
    v_sub_f32 v8, 0, v8
    ds_write_b32 v12, v10
    ds_write_b32 v12, v8 offset:128
    s_waitcnt lgkmcnt(0)
    s_barrier
    ds_read_b32 v15, v7
    s_waitcnt lgkmcnt(0)
    v_readfirstlane_b32 s65, v15
    s_barrier
    s_branch {N}_p_end
    """)

    a.label(f"{N}_p_ld")
    a(f"""
    v_lshrrev_b32 v11, 2, v1
    s_movk_i32 s52, 3072
    v_mul_lo_u32 v11, v11, s52
    v_and_b32 v12, 3, v1
    v_lshl_add_u32 v11, v12, 4, v11
    s_lshl_b32 s52, s42, 6
    s_mul_i32 s53, s39, {16*3072}
    s_add_u32 s52, s52, s53
    s_lshl_b32 s53, s39, 10
    s_lshl_b32 s54, s39, 12
    s_add_u32 s54, s54, 12288
    v_lshrrev_b32 v13, 3, v1
    v_lshrrev_b32 v14, 4, v1
    v_and_b32 v15, 7, v1
    v_xor_b32 v15, v15, v14
    v_lshlrev_b32 v15, 4, v15
    v_lshl_add_u32 v15, v13, 10, v15
    v_xor_b32 v16, 64, v15
    """)
    def issue(j):
        sl = (j % NSLOT) * SLOT
        for n in range(4):
            a(f"s_add_u32 m0, s54, {sl + n*1024}")
            a(f"s_add_u32 s51, s49, {n*8192 + j*128}")
            a(f"buffer_load_dwordx4 v{15 + (n & 1)}, s[32:35], s51 offen lds")
            if n < 3:
                a(f"s_add_u32 m0, s53, {sl + n*4096}")
                a(f"s_add_u32 s51, s52, {n*1024 + j*64*3072}")
                a(f"buffer_load_dwordx4 v11, s[20:23], s51 offen lds")
    for j in range(LA): issue(j)
    T = 24
    def side_loads():
        a.comment("packed copy of W for layer 2 (rows [32rb,32rb+32), tile f = lw) and the k/v rows of this wave's kv^T block")
        a(f"""
        s_min_u32 s56, s39, 2
        s_lshl_b32 s57, s56, 10
        s_lshl_b32 s58, s42, 6
        s_add_u32 s57, s57, s58
        s_mul_i32 s58, s41, {32*3072}
        s_add_u32 s57, s57, s58
        buffer_load_dwordx4 v[112:115], v11, s[20:23], s57 offen
        s_add_u32 s57, s57, {16*3072}
        buffer_load_dwordx4 v[116:119], v11, s[20:23], s57 offen
        s_mul_i32 s59, s42, {8*12288}
        s_lshr_b32 s58, s41, 1
        s_mul_i32 s58, s58, 12288
        s_add_u32 s59, s59, s58
        s_and_b32 s58, s41, 1
        s_lshl_b32 s58, s58, 11
        s_add_u32 s59, s59, s58
        s_lshl_b32 s56, s56, 12
        s_add_u32 s59, s59, s56
        s_add_u32 s59, s59, {hex(LY.WP)}
        """)
        srd(a, 32, 28, 0x200000)
        srd(a, 20, 30, 0x200000)
        srd(a, 60, 10, 0x1000)
        a(f"""
        s_lshl_b32 s46, s37, 16
        s_lshl_b32 s47, s39, 14
        s_add_u32 s46, s46, s47
        s_lshl_b32 s48, s36, 7
        s_add_u32 s46, s46, s48
        v_lshlrev_b32 v5, 13, v6
        v_lshl_add_u32 v5, v4, 2, v5
        v_add_u32 v5, s46, v5
        v_add_u32 v9, 0x1000, v5
        v_subrev_u32 v7, 0xc00, v5
        s_lshl_b32 s48, s36, 9
        v_lshl_add_u32 v8, v4, 4, s48
        """)
        for r in range(3):
            a(f"buffer_load_dword v{T+r}, v7, s[32:35], 0 offen offset:{r*1024}")
        for r in range(8):
            a(f"buffer_load_dword v{T+3+r}, v{5 if r < 4 else 9}, s[32:35], 0 offen offset:{(r%4)*1024}")
        for r in range(8):
            a(f"buffer_load_dword v{T+11+r}, v{5 if r < 4 else 9}, s[20:23], 0 offen offset:{(r%4)*1024}")
        a(f"buffer_load_dwordx4 v[{T+20}:{T+23}], v8, s[60:63], 0 offen")
    for j in range(8):
        issued = min(8, LA + j)
        extra = 22 if j >= 5 else 0
        a(f"s_waitcnt vmcnt({7 * (issued - j - 1) + extra})")
        a("s_barrier")
        if j + LA < 8: issue(j + LA)
        if j == 4: side_loads()
    a(f"""
    s_min_u32 s56, s39, 2
    s_lshl_b32 s57, s56, 7
    s_add_u32 s57, s57, {SC1 + 2048}
    v_lshlrev_b32 v10, 2, v4
    v_add_u32 v12, s57, v10
    v_mov_b32 v13, {EPL}
    s_barrier
    ds_read_b32 v14, v12
    ds_read_b32 v15, v13
    s_waitcnt lgkmcnt(0)
    v_readfirstlane_b32 s65, v15
    s_barrier
    s_waitcnt vmcnt(0)
    s_cmp_lg_u32 s41, 0
    s_cbranch_scc1 {N}_p_ncs
    s_lshl_b32 s56, s56, 11
    s_lshl_b32 s57, s42, 7
    s_add_u32 s56, s56, s57
    s_add_u32 s56, s56, {hex(LY.CSB)}
    buffer_store_dword v14, v10, s[24:27], s56 offen sc1
    """)
    a.label(f"{N}_p_ncs")
    a(f"""
    buffer_store_dwordx4 v[112:115], v3, s[24:27], s59 offen sc1
    buffer_store_dwordx4 v[116:119], v3, s[24:27], s59 offen offset:1024 sc1
    """)
    KFp, VFp, WPr, RS = 48, 70, 86, 94
    for r in range(11):
        a(f"v_lshlrev_b32 v{KFp+2*r}, 16, v{T+r}")
        a(f"v_and_b32 v{KFp+2*r+1}, 0xffff0000, v{T+r}")
    for r in range(8):
        a(f"v_lshlrev_b32 v{VFp+2*r}, 16, v{T+11+r}")
        a(f"v_and_b32 v{VFp+2*r+1}, 0xffff0000, v{T+11+r}")
    D0 = T + 20
    a(f"""
    v_lshlrev_b32 v{WPr+0}, 16, v{D0}
    v_lshlrev_b32 v{WPr+1}, 16, v{D0+2}
    v_and_b32 v{WPr+2}, 0xffff0000, v{D0}
    v_and_b32 v{WPr+3}, 0xffff0000, v{D0+2}
    v_lshlrev_b32 v{WPr+4}, 16, v{D0+1}
    v_lshlrev_b32 v{WPr+5}, 16, v{D0+3}
    v_and_b32 v{WPr+6}, 0xffff0000, v{D0+1}
    v_and_b32 v{WPr+7}, 0xffff0000, v{D0+3}
    """)
    for t in range(8): a(f"v_pk_mul_f32 {p(RS+2*t)}, {p(KFp+2*t)}, {p(WPr+6)}")
    for jj in (2, 1, 0):
        for t in range(8):
            a(f"v_pk_fma_f32 {p(RS+2*t)}, {p(KFp+2*(t+3-jj))}, {p(WPr+2*jj)}, {p(RS+2*t)}")
    for t in range(8): a(f"v_pk_mul_f32 {p(RS+2*t)}, {p(RS+2*t)}, {p(VFp+2*t)}")
    for q in range(4):
        a(f"v_cvt_pk_bf16_f32 v{T+q}, v{RS+2*(7-2*q)}, v{RS+2*(6-2*q)}")
        a(f"v_cvt_pk_bf16_f32 v{T+4+q}, v{RS+2*(7-2*q)+1}, v{RS+2*(6-2*q)+1}")
    a(f"""
    s_lshl_b32 s46, s36, 18
    s_add_u32 s46, s46, {hex(LY.UT)}
    s_lshl_b32 s48, s37, 5
    s_add_u32 s46, s46, s48
    s_lshr_b32 s48, s39, 1
    s_lshl_b32 s48, s48, 4
    s_add_u32 s46, s46, s48
    s_and_b32 s48, s39, 1
    s_lshl_b32 s48, s48, 11
    s_add_u32 s46, s46, s48
    v_lshlrev_b32 v5, 13, v4
    v_lshl_add_u32 v5, v6, 10, v5
    v_add_u32 v9, 0x1000, v5
    buffer_store_dwordx4 v[{T}:{T+3}], v5, s[24:27], s46 offen sc1
    buffer_store_dwordx4 v[{T+4}:{T+7}], v9, s[24:27], s46 offen sc1
    s_lshl_b32 s46, s36, 9
    s_lshl_b32 s48, s37, 4
    s_add_u32 s46, s46, s48
    s_lshl_b32 s48, s39, 2
    s_add_u32 s46, s46, s48
    s_add_u32 s46, s46, {hex(LY.FU)}
    """)
    publish(a, 46)
    a.label(f"{N}_p_end")

def DIAGFIX():
    import asmlib
    return asmlib.DIAG
```

```python
import struct
from asmlib import *
import layout as LY

def f32hex(x):
    return hex(struct.unpack("<I", struct.pack("<f", x))[0])

NSLOT = 5
ZERO = 1
T1 = 1
MAPC = 0
T1J = 2
TSKIP = 0
TNT = 0
NOSTAT = 0
ILV = 0
CODEPF = 0
LEAN = 0
WT = 0
SLOT = 28672
STAT = NSLOT * SLOT
def lds_bytes(layer1):
    return STAT + 4 * 2048

def emit(a, name, layer1, prefetch=False):
    TFL = ("", "nt", "sc1")[TNT]
    kernel_begin(a, name)
    done = f"{name}_done"
    a(f"""
    s_cmp_ge_u32 s2, 256
    s_cbranch_scc1 {done}
    s_load_dwordx4 s[4:7], s[0:1], 0
    s_load_dwordx2 s[14:15], s[0:1], 88
    """)
    if layer1 and T1:
        a("""
        s_load_dwordx4 s[8:11], s[0:1], 32
        s_load_dwordx2 s[12:13], s[0:1], 48
        """)
    a(f"""
    v_lshrrev_b32 v2, 6, v0
    v_and_b32 v1, 63, v0
    v_readfirstlane_b32 s40, v2
    s_and_b32 s44, s2, 7
    s_lshr_b32 s45, s2, 3
    """)
    if layer1 and MAPC:
        a("""
        s_lshr_b32 s41, s45, 1
        s_lshl_b32 s42, s44, 1
        s_and_b32 s46, s45, 1
        s_add_u32 s42, s42, s46
        """)
    elif layer1:
        a("""
        s_and_b32 s41, s44, 3
        s_lshl_b32 s41, s41, 2
        s_and_b32 s46, s45, 3
        s_add_u32 s41, s41, s46
        s_lshr_b32 s42, s44, 2
        s_lshl_b32 s42, s42, 3
        s_lshr_b32 s46, s45, 2
        s_add_u32 s42, s42, s46
        """)
    else:
        a("""
        s_lshl_b32 s41, s44, 1
        s_and_b32 s46, s45, 1
        s_add_u32 s41, s41, s46
        s_lshr_b32 s42, s45, 1
        """)
    a(f"""
    s_and_b32 s39, s40, 3
    s_lshl_b32 s43, s41, 2
    s_add_u32 s43, s43, s39
    v_lshrrev_b32 v3, 5, v1
    v_and_b32 v4, 31, v1
    v_lshlrev_b32 v9, 4, v1
    s_lshl_b32 s49, s43, 15
    s_cmp_ge_u32 s40, 4
    s_cbranch_scc1 {name}_loader
    s_lshl_b32 s50, s40, 11
    s_add_u32 s50, s50, {STAT}
    s_waitcnt lgkmcnt(0)
    """)
    srd(a, 24, 14, LY.WS_USED)
    stamp(a, 0)
    XR = (64, 80)
    ACC = 96
    WFR = 144
    TQ = 24
    TV = 180
    SUM, SQ, CS = 14, 16, 18
    if not layer1:
        a.comment("column sums of W (written by layer 1): Q,K per register, V per lane; row-stat partials of x2")
        a(f"""
        v_lshlrev_b32 v5, 4, v3
        v_lshlrev_b32 v6, 2, v4
        s_lshl_b32 s51, s42, 7
        s_add_u32 s51, s51, {hex(LY.CSB)}
        v_lshlrev_b32 v7, 3, v1
        s_lshl_b32 s52, s43, 12
        s_add_u32 s52, s52, {hex(LY.ST2)}
        """)
        for i2 in range(8):
            a(f"buffer_load_dwordx2 v[{WFR+2*i2}:{WFR+2*i2+1}], v7, s[24:27], s52 offen offset:{512*i2}")
        for f in range(2):
            for g in range(4):
                a(f"buffer_load_dwordx4 v[{TQ+16*f+4*g}:{TQ+16*f+4*g+3}], v5, s[24:27], s51 offen offset:{f*2048 + 32*g}")
        a(f"s_add_u32 s51, s51, 4096")
        a(f"buffer_load_dword v20, v6, s[24:27], s51 offen")
    if layer1:
        a.comment("cold start: touch a distinct share of the lines this XCD will need, so all misses are in flight at once (speed only)")
        srd(a, 16, 4, 0x200000)
        srd(a, 20, 6, 0x180000)
        if MAPC:
            a(f"""
            s_and_b32 s51, s42, 1
            s_lshl_b32 s51, s51, 9
            s_add_u32 s51, s51, s49
            v_lshlrev_b32 v10, 10, v4
            v_lshl_add_u32 v10, v3, 8, v10
            buffer_load_dword v24, v10, s[16:19], s51 offen
            buffer_load_dword v24, v10, s[16:19], s51 offen offset:128
            s_mul_i32 s53, s45, 3072
            s_lshl_b32 s54, s42, 6
            s_add_u32 s53, s53, s54
            s_lshl_b32 s54, s40, 10
            s_add_u32 s53, s53, s54
            s_mov_b32 s54, {32*3072}
            v_mul_lo_u32 v10, v1, s54
            s_cmp_eq_u32 s40, 3
            s_cbranch_scc1 {name}_nw
            s_mov_b64 exec, 0xffff
            buffer_load_dword v25, v10, s[20:23], s53 offen
            s_mov_b64 exec, -1
            s_branch {name}_nw
            """)
        a(f"""
        s_and_b32 s51, s42, 7
        s_cmp_lt_u32 s51, {TSKIP}
        s_cbranch_scc1 {name}_nx
        s_lshl_b32 s51, s51, 7
        s_add_u32 s51, s51, s49
        v_lshlrev_b32 v10, 10, v4
        s_mov_b64 exec, 0xffffffff
        buffer_load_dword v24, v10, s[16:19], s51 offen {TFL}
        s_mov_b64 exec, -1
        """)
        a.label(f"{name}_nx")
        a(f"""
        s_and_b32 s53, s41, 3
        s_lshl_b32 s53, s53, 1
        s_and_b32 s54, s42, 1
        s_add_u32 s53, s53, s54
        s_mul_i32 s53, s53, 3072
        s_lshl_b32 s54, s42, 6
        s_add_u32 s53, s53, s54
        s_add_u32 s53, s53, {64*TSKIP*3072}
        s_lshl_b32 s54, s40, 10
        s_add_u32 s53, s53, s54
        s_movk_i32 s54, {8*3072}
        v_mul_lo_u32 v10, v1, s54
        s_cmp_eq_u32 s40, 3
        s_cbranch_scc1 {name}_nw
        buffer_load_dword v25, v10, s[20:23], s53 offen {TFL}
        """)
        a.label(f"{name}_nw")
    if layer1 and CODEPF:
        a.comment("pull the instruction bytes of both kernels into this XCD's L2 while waiting for the first tiles (speed only)")
        a(f"""
        s_getpc_b64 s[60:61]
        s_and_b32 s60, s60, 0xffffff00
        s_lshl_b32 s53, s45, 2
        s_add_u32 s53, s53, s40
        s_lshl_b32 s53, s53, 8
        v_lshlrev_b32 v10, 7, v1
        v_add_u32 v10, s53, v10
        s_cmp_ge_u32 s53, all_code_end - {name} - 1024
        s_cbranch_scc1 {name}_ncp
        s_mov_b64 exec, 3
        global_load_dword v26, v10, s[60:61]
        s_mov_b64 exec, -1
        """)
        a.label(f"{name}_ncp")
    if layer1 and LEAN: a("s_mov_b32 s67, 0xfffffffe")
    if layer1 and ZERO and not LEAN:
        a.comment("zero the hand-off words of the second launch: 4 KB of stat granules per workgroup, 32 KB of flags")
        a(f"""
        v_mov_b32 v28, 0
        v_mov_b32 v29, 0
        v_mov_b32 v30, 0
        v_mov_b32 v31, 0
        s_lshl_b32 s51, s2, 12
        s_lshl_b32 s53, s40, 10
        s_add_u32 s51, s51, s53
        s_add_u32 s53, s51, {hex(LY.GR)}
        buffer_store_dwordx4 v[28:31], v9, s[24:27], s53 offen
        s_add_u32 s53, s53, {hex(LY.GD)}
        buffer_store_dwordx4 v[28:31], v9, s[24:27], s53 offen
        s_cmp_ge_u32 s2, 8
        s_cbranch_scc1 {name}_nz
        s_add_u32 s53, s51, {hex(LY.FLG)}
        buffer_store_dwordx4 v[28:31], v9, s[24:27], s53 offen
        """)
        a.label(f"{name}_nz")
        a(f"""
        v_mov_b32 v32, -1
        v_mov_b32 v33, -1
        v_mov_b32 v34, -1
        v_mov_b32 v35, -1
        s_lshl_b32 s53, s51, 1
        s_add_u32 s53, s53, {hex(LY.OF)}
        buffer_store_dwordx4 v[32:35], v9, s[24:27], s53 offen
        buffer_store_dwordx4 v[32:35], v9, s[24:27], s53 offen offset:1024
        s_mov_b32 s67, 0xfffffffe
        """)
    a(f"""
    s_mov_b32 s55, 0x3f803f80
    v_lshlrev_b32 v21, 9, v3
    v_bfe_u32 v22, v1, 2, 2
    v_lshl_add_u32 v21, v22, 6, v21
    v_bfe_u32 v22, v1, 4, 1
    v_lshl_add_u32 v21, v22, 5, v21
    v_and_b32 v22, 3, v1
    v_lshl_add_u32 v21, v22, 3, v21
    v_add_u32 v22, {2*SLOT}, v21
    v_add_u32 v23, {4*SLOT}, v21
    s_lshl_b32 s56, s40, 12
    s_add_u32 s56, s56, 12288
    """)
    if layer1:
        a(f"""
        v_bfe_u32 v13, v1, 1, 3
        v_xor_b32 v13, v13, v3
        v_lshlrev_b32 v13, 4, v13
        v_lshl_add_u32 v13, v4, 7, v13
        v_add_u32 v13, s56, v13
        """)
        for kk in range(4):
            a(f"v_xor_b32 v{56+kk}, {kk << 5}, v13")
            a(f"v_add_u32 v{60+kk}, {2*SLOT}, v{56+kk}")
            a(f"v_add_u32 v{5+kk}, {4*SLOT}, v{56+kk}")
        for r in (14, 15, 16, 17, 18, 19, 20):
            a(f"v_mov_b32 v{r}, 0")
    else:
        a(f"""
        v_add_u32 v56, s56, v9
        v_add_u32 v60, {2*SLOT}, v56
        v_add_u32 v5, {4*SLOT}, v56
        """)
    def finish_stats():
        a(f"""
        v_mov_b32 v15, v14
        v_mov_b32 v17, v16
        v_lshl_add_u32 v12, v4, 2, s50
        v_lshl_add_u32 v11, v3, 4, s50
        v_permlane32_swap_b32 v14, v15
        v_permlane32_swap_b32 v16, v17
        s_mov_b32 s56, {f32hex(1.0/512)}
        s_nop 0
        v_add_f32 v14, v14, v15
        v_add_f32 v16, v16, v17
        """)
        ln_stats(a, 14, 16, 16, 17, 15)
        a(f"""
        ds_write_b32 v12, v16 offset:512
        ds_write_b32 v12, v17 offset:640
        s_waitcnt lgkmcnt(0)
        """)
        for g in range(4):
            a(f"ds_read_b128 v[{TV+4*g}:{TV+4*g+3}], v11 offset:{512 + 32*g}")
            a(f"ds_read_b128 v[{TV+16+4*g}:{TV+16+4*g+3}], v11 offset:{640 + 32*g}")
    if not layer1:
        a("s_waitcnt vmcnt(9)")
        for i2 in range(1, 8):
            a(f"v_add_f32 v{WFR}, v{WFR}, v{WFR+2*i2}")
            a(f"v_add_f32 v{WFR+1}, v{WFR+1}, v{WFR+2*i2+1}")
        a(f"v_mov_b32 v14, v{WFR}")
        a(f"v_mov_b32 v16, v{WFR+1}")
        finish_stats()
        a("s_waitcnt lgkmcnt(0)")
    def wread(ks):
        j, kk = ks // 4, ks % 4
        sl = j % NSLOT
        base = 21 + sl // 2
        b = WFR + 12 * (ks % 3)
        for f in range(3):
            for q in range(2):
                off = (sl & 1) * SLOT + f*4096 + kk*1024 + q*256
                a(f"ds_read_b64_tr_b16 v[{b+4*f+2*q}:{b+4*f+2*q+1}], v{base} offset:{off}")
    def xread(j):
        sl = j % NSLOT
        for kk in range(4):
            if layer1:
                base, off = (56, 60, 5)[sl // 2] + kk, (sl & 1) * SLOT
            else:
                base, off = (56, 60, 5)[sl // 2], (sl & 1) * SLOT + kk * 1024
            a(f"ds_read_b128 v[{XR[j&1]+4*kk}:{XR[j&1]+4*kk+3}], v{base} offset:{off}")
    a("s_barrier")
    stamp(a, 1)
    xread(0); wread(0)
    for ks in range(32):
        j, kk = ks // 4, ks % 4
        if kk == 0:
            a("s_waitcnt lgkmcnt(0)")
            wread(ks + 1); wread(ks + 2)
        elif kk == 1:
            a("s_waitcnt lgkmcnt(6)")
            wread(ks + 2)
        elif kk == 2:
            a("s_waitcnt lgkmcnt(6)")
        else:
            a("s_waitcnt lgkmcnt(0)")
            if j < 7:
                a("s_barrier")
                if j == 6: stamp(a, 2)
                xread(j + 1); wread(ks + 1)
        b = WFR + 12 * (ks % 3)
        xr = XR[j & 1] + 4*kk
        x = vr(xr, 4)
        for f in range(3):
            acc = vr(ACC + 16*f, 16)
            c = "0" if ks == 0 else acc
            w = vr(b + 4*f, 4)
            if f < 2: a(f"v_mfma_f32_32x32x16_bf16 {acc}, {w}, {x}, {c}")
            else:     a(f"v_mfma_f32_32x32x16_bf16 {acc}, {x}, {w}, {c}")
        if layer1 and not NOSTAT:
            skip = a.uid(f"{name}_cs")
            a(f"s_cmp_eq_u32 s40, {kk}")
            a(f"s_cbranch_scc0 {skip}")
            for d in range(4):
                for f in range(3):
                    a(f"v_dot2c_f32_bf16 v{CS+f}, s55, v{b+4*f+d}")
            a.label(skip)
            if kk == 2:
                for r in range(16):
                    a(f"v_dot2c_f32_bf16 v{SUM + (r & 1)}, s55, v{XR[j&1]+r}")
                    a(f"v_dot2c_f32_bf16 v{SQ + (r & 1)}, v{XR[j&1]+r}, v{XR[j&1]+r}")
    stamp(a, 3)
    if layer1:
        a(f"""
        s_nop 2
        v_add_f32 v14, v14, v15
        v_add_f32 v16, v16, v17
        v_mov_b32 v57, v18
        v_mov_b32 v58, v19
        v_mov_b32 v59, v20
        v_lshl_add_u32 v12, v4, 2, s50
        s_nop 0
        v_permlane32_swap_b32 v18, v57
        v_permlane32_swap_b32 v19, v58
        v_permlane32_swap_b32 v20, v59
        s_nop 0
        v_add_f32 v18, v18, v57
        v_add_f32 v19, v19, v58
        v_add_f32 v20, v20, v59
        ds_write_b32 v12, v18
        ds_write_b32 v12, v19 offset:128
        ds_write_b32 v12, v20 offset:256
        """)
        finish_stats()
        a(f"""
        s_barrier
        v_lshlrev_b32 v10, 2, v4
        v_add_u32 v13, {STAT}, v10
        """)
        for f in range(3):
            for w in range(4):
                a(f"ds_read_b32 v{64+4*f+w}, v13 offset:{w*2048 + f*128}")
        a("s_waitcnt lgkmcnt(0)")
        for f in range(3):
            a(f"v_add_f32 v{64+4*f}, v{64+4*f}, v{65+4*f}")
            a(f"v_add_f32 v{66+4*f}, v{66+4*f}, v{67+4*f}")
            a(f"v_add_f32 v{CS+f}, v{64+4*f}, v{66+4*f}")
        a(f"""
        ds_write_b32 v12, v18 offset:1024
        ds_write_b32 v12, v19 offset:1152
        """)
        sk = a.uid(f"{name}_cst")
        a(f"""
        s_cmp_lg_u32 s43, 0
        s_cbranch_scc1 {sk}
        s_lshl_b32 s51, s42, 7
        s_add_u32 s51, s51, {hex(LY.CSB)}
        buffer_store_dword v18, v10, s[24:27], s51 offen
        buffer_store_dword v19, v10, s[24:27], s51 offen offset:2048
        s_add_u32 s51, s51, 4096
        buffer_store_dword v20, v10, s[24:27], s51 offen
        """)
        a.label(sk)
        a("s_waitcnt lgkmcnt(0)")
        for g in range(4):
            a(f"ds_read_b128 v[{TQ+4*g}:{TQ+4*g+3}], v11 offset:{1024 + 32*g}")
            a(f"ds_read_b128 v[{TQ+16+4*g}:{TQ+16+4*g+3}], v11 offset:{1152 + 32*g}")
    a(f"""
    s_mov_b32 s56, {f32hex(LY.QSCALE)}
    v_mul_f32 v56, s56, v16
    v_mul_f32 v58, s56, v17
    v_mov_b32 v57, v56
    v_mov_b32 v59, v58
    v_mov_b32 v60, v16
    v_mov_b32 v61, v16
    v_mov_b32 v62, v17
    v_mov_b32 v63, v17
    s_waitcnt vmcnt(0)
    v_mov_b32 v21, v20
    s_lshl_b32 s57, s42, 17
    s_lshl_b32 s58, s43, 10
    s_add_u32 s57, s57, s58
    v_and_b32 v10, 3, v1
    v_bfe_u32 v11, v1, 2, 1
    v_lshl_or_b32 v10, v11, 3, v10
    v_bfe_u32 v11, v1, 3, 1
    v_lshl_or_b32 v10, v11, 2, v10
    v_lshlrev_b32 v10, 4, v10
    v_lshl_or_b32 v10, v3, 8, v10
    v_bfe_u32 v11, v1, 4, 1
    v_lshl_or_b32 v10, v11, 16, v10
    s_waitcnt lgkmcnt(0)
    """)
    def p(b): return f"v[{b}:{b+1}]"
    PK = 64
    for f, (rs, mr) in ((1, (60, 62)), (0, (56, 58))):
        for j in range(8):
            a(f"v_pk_mul_f32 {p(ACC+16*f+2*j)}, {p(ACC+16*f+2*j)}, {p(rs)}")
        for j in range(8):
            a(f"v_pk_fma_f32 {p(ACC+16*f+2*j)}, {p(TQ+16*f+2*j)}, {p(mr)}, {p(ACC+16*f+2*j)}")
        for j in range(8):
            a(f"v_cvt_pk_bf16_f32 v{PK+8*f+j}, v{ACC+16*f+2*j}, v{ACC+16*f+2*j+1}")
        if layer1 and ZERO:
            for j in range(8): a(f"v_min_u32 v{PK+8*f+j}, s67, v{PK+8*f+j}")
        base = LY.QF if f == 0 else LY.KF
        a(f"s_add_u32 s58, s57, {hex(base)}")
        a(f"buffer_store_dwordx4 v[{PK+8*f}:{PK+8*f+3}], v9, s[24:27], s58 offen")
        a(f"s_add_u32 s58, s57, {hex(base + 65536)}")
        a(f"buffer_store_dwordx4 v[{PK+8*f+4}:{PK+8*f+7}], v9, s[24:27], s58 offen")
    for j in range(8):
        a(f"v_pk_mul_f32 {p(ACC+32+2*j)}, {p(ACC+32+2*j)}, {p(TV+2*j)}")
    for j in range(8):
        a(f"v_pk_fma_f32 {p(ACC+32+2*j)}, {p(TV+16+2*j)}, v[20:21], {p(ACC+32+2*j)}")
    for j in range(8):
        a(f"v_cvt_pk_bf16_f32 v{PK+16+j}, v{ACC+32+2*j}, v{ACC+32+2*j+1}")
    if layer1 and ZERO:
        for j in range(8): a(f"v_min_u32 v{PK+16+j}, s67, v{PK+16+j}")
    a(f"""
    s_add_u32 s58, s57, {hex(LY.VF)}
    buffer_store_dwordx4 v[{PK+16}:{PK+19}], v10, s[24:27], s58 offen
    buffer_store_dwordx4 v[{PK+20}:{PK+23}], v10, s[24:27], s58 offen offset:512
    """)
    stamp(a, 4)
    stamp_flush(a, 0 if layer1 else 2, 5, 40, 14)
    a.label(done)
    a("s_endpgm")
    a.label(f"{name}_loader")
    a(f"""
    v_lshrrev_b32 v11, 2, v1
    s_movk_i32 s52, 3072
    v_mul_lo_u32 v11, v11, s52
    v_and_b32 v12, 3, v1
    v_lshl_add_u32 v11, v12, 4, v11
    s_lshl_b32 s52, s42, 6
    s_mul_i32 s53, s39, {16*3072}
    s_add_u32 s52, s52, s53
    s_lshl_b32 s53, s39, 10
    s_lshl_b32 s54, s39, 12
    s_add_u32 s54, s54, 12288
    """)
    if layer1:
        a(f"""
        v_lshrrev_b32 v13, 3, v1
        v_lshrrev_b32 v14, 4, v1
        v_and_b32 v15, 7, v1
        v_xor_b32 v15, v15, v14
        v_lshlrev_b32 v15, 4, v15
        v_lshl_add_u32 v15, v13, 10, v15
        v_xor_b32 v16, 64, v15
        """)
    else:
        a(f"""
        s_add_u32 s49, s49, {hex(LY.X2F)}
        s_mul_i32 s52, s42, {8*12288}
        s_add_u32 s52, s52, s53
        s_add_u32 s52, s52, {hex(LY.WP)}
        """)
    a("s_waitcnt lgkmcnt(0)")
    if layer1: srd(a, 20, 6, 0x180000)
    if layer1: srd(a, 16, 4, 0x200000)
    srd(a, 24, 14, LY.WS_USED)
    def issue(j):
        sl = (j % NSLOT) * SLOT
        for n in range(4):
            a(f"s_add_u32 m0, s54, {sl + n*1024}")
            if layer1:
                a(f"s_add_u32 s51, s49, {n*8192 + j*128}")
                a(f"buffer_load_dwordx4 v{15 + (n & 1)}, s[16:19], s51 offen lds")
            else:
                a(f"s_add_u32 s51, s49, {j*4096 + n*1024}")
                a(f"buffer_load_dwordx4 v9, s[24:27], s51 offen lds")
            if n < 3:
                a(f"s_add_u32 m0, s53, {sl + n*4096}")
                if layer1:
                    a(f"s_add_u32 s51, s52, {n*1024 + j*64*3072}")
                    a(f"buffer_load_dwordx4 v11, s[20:23], s51 offen lds")
                else:
                    a(f"s_add_u32 s51, s52, {n*4096 + j*12288}")
                    a(f"buffer_load_dwordx4 v9, s[24:27], s51 offen lds")
    LA = 3
    for j in range(LA): issue(j)
    nT1 = ((20 if T1 else 0) + (0 if LEAN else 2)) if layer1 else 0
    T = 24
    def t1_loads():
        a.comment("packed copy of W for layer 2: rows [32rb,32rb+32), tile f = lw (lw 3 repeats f=2)")
        a(f"""
        s_min_u32 s56, s39, 2
        s_lshl_b32 s57, s56, 10
        s_lshl_b32 s58, s42, 6
        s_add_u32 s57, s57, s58
        s_mul_i32 s58, s41, {32*3072}
        s_add_u32 s57, s57, s58
        buffer_load_dwordx4 v[112:115], v11, s[20:23], s57 offen
        s_add_u32 s57, s57, {16*3072}
        buffer_load_dwordx4 v[116:119], v11, s[20:23], s57 offen
        s_mul_i32 s59, s42, {8*12288}
        s_lshr_b32 s58, s41, 1
        s_mul_i32 s58, s58, 12288
        s_add_u32 s59, s59, s58
        s_and_b32 s58, s41, 1
        s_lshl_b32 s58, s58, 11
        s_add_u32 s59, s59, s58
        s_lshl_b32 s56, s56, 12
        s_add_u32 s59, s59, s56
        s_add_u32 s59, s59, {hex(LY.WP)}
        """)
    def t1_more():
        srd(a, 28, 8, 0x200000)
        srd(a, 32, 10, 0x200000)
        srd(a, 64, 12, 0x1000)
        a(f"""
        s_lshr_b32 s46, s2, 3
        s_lshl_b32 s46, s46, 16
        s_lshl_b32 s47, s39, 14
        s_add_u32 s46, s46, s47
        s_and_b32 s47, s2, 7
        s_lshl_b32 s48, s47, 7
        s_add_u32 s46, s46, s48
        v_lshlrev_b32 v5, 13, v3
        v_lshl_add_u32 v5, v4, 2, v5
        v_add_u32 v5, s46, v5
        v_add_u32 v6, 0x1000, v5
        v_subrev_u32 v7, 0xc00, v5
        s_lshl_b32 s48, s47, 9
        v_lshl_add_u32 v8, v4, 4, s48
        """)
        for r in range(3):
            a(f"buffer_load_dword v{T+r}, v7, s[28:31], 0 offen offset:{r*1024}")
        for r in range(8):
            a(f"buffer_load_dword v{T+3+r}, v{5 if r < 4 else 6}, s[28:31], 0 offen offset:{(r%4)*1024}")
        for r in range(8):
            a(f"buffer_load_dword v{T+11+r}, v{5 if r < 4 else 6}, s[32:35], 0 offen offset:{(r%4)*1024}")
        a(f"buffer_load_dwordx4 v[{T+20}:{T+23}], v8, s[64:67], 0 offen")
    KFp, VFp, WPr, RS, PR = 48, 70, 86, 94, 110
    def rnd(r):
        a(f"v_cvt_pk_bf16_f32 v{PR+2}, v{r}, v{r+1}")
        a(f"v_lshlrev_b32 v{r}, 16, v{PR+2}")
        a(f"v_and_b32 v{r+1}, 0xffff0000, v{PR+2}")
    def t1_half(h):
        if h == 0:
            for r in range(11):
                a(f"v_lshlrev_b32 v{KFp+2*r}, 16, v{T+r}")
                a(f"v_and_b32 v{KFp+2*r+1}, 0xffff0000, v{T+r}")
            D0 = T + 20
            a(f"""
            v_lshlrev_b32 v{WPr+0}, 16, v{D0}
            v_lshlrev_b32 v{WPr+1}, 16, v{D0+2}
            v_and_b32 v{WPr+2}, 0xffff0000, v{D0}
            v_and_b32 v{WPr+3}, 0xffff0000, v{D0+2}
            v_lshlrev_b32 v{WPr+4}, 16, v{D0+1}
            v_lshlrev_b32 v{WPr+5}, 16, v{D0+3}
            v_and_b32 v{WPr+6}, 0xffff0000, v{D0+1}
            v_and_b32 v{WPr+7}, 0xffff0000, v{D0+3}
            """)
        for t in {0: range(0, 0), 3: range(0, 3), 1: range(3, 8), 2: ()}[h]:
            for c2 in range(2): a(f"v_mul_f32 v{RS+2*t+c2}, v{KFp+2*t+c2}, v{WPr+6+c2}")
            rnd(RS + 2*t)
            for jj in (2, 1, 0):
                for c2 in range(2): a(f"v_mul_f32 v{PR+c2}, v{KFp+2*(t+3-jj)+c2}, v{WPr+2*jj+c2}")
                rnd(PR)
                for c2 in range(2): a(f"v_add_f32 v{RS+2*t+c2}, v{RS+2*t+c2}, v{PR+c2}")
                rnd(RS + 2*t)
        if h == 2:
            for r in range(8):
                a(f"v_lshlrev_b32 v{VFp+2*r}, 16, v{T+11+r}")
                a(f"v_and_b32 v{VFp+2*r+1}, 0xffff0000, v{T+11+r}")
            for t in range(8):
                a(f"v_pk_mul_f32 {p(RS+2*t)}, {p(RS+2*t)}, {p(VFp+2*t)}")
    TJ = T1J
    for j in range(8):
        issued = min(8, LA + j)
        extra = nT1 if TJ < j <= min(7, TJ + LA) else 0
        if TJ + LA >= 7 and j > TJ: extra = nT1
        a(f"s_waitcnt vmcnt({7 * (issued - j - 1) + extra})")
        a("s_barrier")
        if j + LA < 8: issue(j + LA)
        if j == TJ and layer1:
            if not LEAN: t1_loads()
            if T1: t1_more()
        if layer1 and T1:
            first = TJ + LA + 1
            if j == max(5, first): t1_half(0)
            if j == max(6, first): t1_half(3)
    if layer1:
        a("s_waitcnt vmcnt(0)")
        if T1:
            if TJ + LA + 1 > 7: t1_half(0); t1_half(3)
            t1_half(1)
        a("s_barrier")
        if T1: t1_half(2)
        if not LEAN:
            a("buffer_store_dwordx4 v[112:115], v9, s[24:27], s59 offen")
            a("buffer_store_dwordx4 v[116:119], v9, s[24:27], s59 offen offset:1024")
    if layer1 and T1:
        for q in range(4):
            a(f"v_cvt_pk_bf16_f32 v{T+q}, v{RS+2*(7-2*q)}, v{RS+2*(6-2*q)}")
            a(f"v_cvt_pk_bf16_f32 v{T+4+q}, v{RS+2*(7-2*q)+1}, v{RS+2*(6-2*q)+1}")
        a(f"""
        s_lshl_b32 s46, s47, 18
        s_add_u32 s46, s46, {hex(LY.UT)}
        s_lshr_b32 s48, s2, 3
        s_lshl_b32 s48, s48, 5
        s_add_u32 s46, s46, s48
        s_lshr_b32 s48, s39, 1
        s_lshl_b32 s48, s48, 4
        s_add_u32 s46, s46, s48
        s_and_b32 s48, s39, 1
        s_lshl_b32 s48, s48, 11
        s_add_u32 s46, s46, s48
        v_lshlrev_b32 v5, 13, v4
        v_lshl_add_u32 v5, v3, 10, v5
        v_add_u32 v6, 0x1000, v5
        buffer_store_dwordx4 v[{T}:{T+3}], v5, s[24:27], s46 offen
        buffer_store_dwordx4 v[{T+4}:{T+7}], v6, s[24:27], s46 offen
        """)
    if layer1 and LEAN:
        a.comment("workgroup 0: launch epoch = stored word + 1 (never 0 or the fill pattern)")
        a(f"""
        s_xor_b32 s51, s40, 7
        s_or_b32 s51, s51, s2
        s_cmp_lg_u32 s51, 0
        s_cbranch_scc1 {name}_ne
        v_mov_b32 v20, 0
        s_mov_b32 s53, {hex(LY.EP)}
        buffer_load_dword v21, v20, s[24:27], s53 offen sc1
        s_waitcnt vmcnt(0)
        v_add_u32 v21, 2, v21
        v_max_u32 v21, 2, v21
        v_subrev_u32 v21, 1, v21
        s_mov_b64 exec, 1
        buffer_store_dword v21, v20, s[24:27], s53 offen
        s_mov_b64 exec, -1
        """)
        a.label(f"{name}_ne")
    a("s_endpgm")
    return 212
```
